```python
import torch

def _softmax(x, axis=-1):
    return torch.softmax(x, dim=axis)
def _gelu(x):
    return torch.nn.functional.gelu(x, approximate="tanh")
def _silu(x):
    return torch.nn.functional.silu(x)
def _sigmoid(x):
    return torch.sigmoid(x)
def _layernorm(x, axis=-1, eps=1e-5):
    m = x.mean(dim=axis, keepdim=True)
    v = x.var(dim=axis, keepdim=True, unbiased=False)
    return (x - m) / torch.sqrt(v + eps)
def _scatter_add(tgt, idx, src, axis=0):
    return tgt.clone().index_add_(axis, idx, src)
def _segment_sum(src, seg, n):
    out = torch.zeros((n,) + src.shape[1:], dtype=src.dtype)
    return out.index_add_(0, seg, src)
def _pad(x, pw):
    flat = tuple(v for pair in reversed(pw) for v in pair)
    return torch.nn.functional.pad(x, flat)

kernel_name = 'gated_mix__grouped_kv_mqa__glu_gated_geglu__prompt'

def setup_inputs():

    _w = (lambda a: (lambda t: t.to(torch.bfloat16) if t.is_floating_point() else t)(torch.as_tensor(a)))
    def _A_setup():
        B, S, D, H = 1, 2048, 512, 32
        Dh = D // H
        return {
            "x": _w((lambda *s: torch.randn(*s, dtype=torch.bfloat16) * 0.05)(B, S, D)),
            "wq": _w((lambda *s: torch.randn(*s, dtype=torch.bfloat16) * 0.8)(D, H * Dh)),
            "wk": _w((lambda *s: torch.randn(*s, dtype=torch.bfloat16) * 0.8)(D, Dh)),
            "wv": _w((lambda *s: torch.randn(*s, dtype=torch.bfloat16) * 0.05)(D, Dh)),
            "wo": _w((lambda *s: torch.randn(*s, dtype=torch.bfloat16) * 0.05)(H * Dh, D)),
        }
    _A_in = _A_setup()

    def _B_setup():
        B, S, Dm, Df = 1, 2048, 512, 1792
        return {
            "x": _w((lambda *s: torch.randn(*s, dtype=torch.bfloat16) * 0.05)(B, S, Dm)),
            "w_gate": _w((lambda *s: torch.randn(*s, dtype=torch.bfloat16) * 0.8)(Dm, Df) * (Dm ** -0.5)),
            "w_up": _w((lambda *s: torch.randn(*s, dtype=torch.bfloat16) * 0.8)(Dm, Df) * (Dm ** -0.5)),
            "w_down": _w((lambda *s: torch.randn(*s, dtype=torch.bfloat16) * 0.8)(Df, Dm) * (Df ** -0.5)),
        }
    _B_in = _B_setup()

    return {
        "A_x": _A_in["x"],
        "A_wq": _A_in["wq"],
        "A_wk": _A_in["wk"],
        "A_wv": _A_in["wv"],
        "A_wo": _A_in["wo"],
        "B_x": _B_in["x"],
        "B_w_gate": _B_in["w_gate"],
        "B_w_up": _B_in["w_up"],
        "B_w_down": _B_in["w_down"],
        "gate_w": _w((lambda *s: torch.randn(*s, dtype=torch.bfloat16) * 0.05)(512) * 16.0),
    }

def reference(A_x, A_wq, A_wk, A_wv, A_wo, B_x, B_w_gate, B_w_up, B_w_down, gate_w):
    def _A_ref(x, wq, wk, wv, wo):
        B, S, D = x.shape
        H = 32
        Dh = D // H
        q = (lambda x, *d: x.permute(*d))((x @ wq).reshape(B, S, H, Dh), 0, 2, 1, 3)
        k = x @ wk
        v = x @ wv
        scores = torch.einsum("bhqd,bkd->bhqk", q, k) * (Dh ** -0.5)
        p = _softmax(scores, axis=-1)
        o = torch.einsum("bhqk,bkd->bhqd", p, v)
        return (lambda x, *d: x.permute(*d))(o, 0, 2, 1, 3).reshape(B, S, H * Dh) @ wo

    def _B_ref(x, w_gate, w_up, w_down):
        g = torch.einsum("bsd,df->bsf", x, w_gate)
        u = torch.einsum("bsd,df->bsf", x, w_up)
        h = _gelu(g) * u
        return torch.einsum("bsf,fd->bsd", h, w_down)

    x = A_x
    g = _sigmoid((x * gate_w).sum(-1, keepdims=True))
    a = _A_ref(x, A_wq, A_wk, A_wv, A_wo)
    b = _B_ref(x, B_w_gate, B_w_up, B_w_down)
    return g * a + (1 - g) * b
```

```python
import sys, math

NAME = "gated_mix__grouped_kv_mqa__glu_gated_geglu__prompt"

WS_EPOCH = 0x0
WS_RECK = 0x1000
WS_RECV = 0x1200
WS_RECG = 0x1400
WS_RECQ = 0x2000
WS_FLH = 0x4000
WS_FLO = 0x5000
WS_ACKF = 0x6000
WS_KP = 0x10000
WS_VP = 0x20000
WS_G = 0x30000
WS_QP = 0x100000
WS_OP = 0x300000
WS_HP = 0x500000
WS_SIZE = 0x10000000

LOG2E = 1.4426950408889634
def f2u(x):
    import struct
    return struct.unpack("<I", struct.pack("<f", x))[0]

class Asm:
    def __init__(self):
        self.L = []
        self.uid = 0
    def __call__(self, s):
        for line in s.split("\n"):
            self.L.append("    " + line.strip())
    def label(self, n): self.L.append(n + ":")
    def raw(self, s): self.L.append(s)
    def newlabel(self, p):
        self.uid += 1
        return f"L_{p}_{self.uid}"
    def text(self): return "\n".join(self.L) + "\n"

def vr(a, n=1): return f"v{a}" if n == 1 else f"v[{a}:{a+n-1}]"
def sr(a, n=1): return f"s{a}" if n == 1 else f"s[{a}:{a+n-1}]"

S_X, S_WQ, S_WK, S_WV, S_WO, S_BX, S_WG, S_WU = 16, 18, 20, 22, 24, 26, 28, 30
S_WD, S_GW, S_OUT, S_DBG, S_WSP = 32, 34, 36, 38, 40
R_X, R_WS, R_W0, R_W1, R_OUT = 44, 48, 52, 56, 60
S_WAVE, S_TAG = 64, 65
S_T = 66
S_ID = 80
S_M0B = 81
S_A, S_B, S_C, S_D, S_E, S_F = 82, 83, 84, 85, 86, 87
S_EX = 88
S_K0, S_K1, S_K2, S_K3 = 90, 91, 92, 93

def srd(a, r, p, size):
    a(f"s_mov_b32 s{r}, s{p}\ns_mov_b32 s{r+1}, s{p+1}\ns_mov_b32 s{r+2}, {size:#x}\ns_mov_b32 s{r+3}, 0x20000")

def prologue(a, nwg, fused):
    a(f"s_cmp_ge_u32 s2, {nwg}")
    a("s_cbranch_scc1 L_exit_" + a.kname)
    a("s_load_dwordx16 s[16:31], s[0:1], 0")
    a("s_load_dwordx8 s[32:39], s[0:1], 64")
    a("s_load_dwordx2 s[40:41], s[0:1], 96")
    a("v_lshrrev_b32 v1, 6, v0")
    a("v_and_b32 v0, 63, v0")
    a(f"v_readfirstlane_b32 s{S_WAVE}, v1")
    a(f"s_and_b32 s{S_ID}, s2, 255")
    a("s_waitcnt lgkmcnt(0)")
    if fused:
        a(f"s_load_dword s{S_TAG}, s[40:41], {WS_EPOCH}")
    srd(a, R_X, S_X, 2048 * 1024)
    srd(a, R_WS, S_WSP, WS_SIZE)
    a(f"s_lshl_b32 s{S_M0B}, s{S_WAVE}, 10")

def finish_tag(a):
    a(f"s_mul_i32 s{S_TAG}, s{S_TAG}, 0x9E3779B1")
    a(f"s_add_u32 s{S_TAG}, s{S_TAG}, 0x7F4A7C15")

def dma(a, vaddr, rs, soff_reg, soff_base, soff_imm, lds_imm):
    a(f"s_add_u32 m0, s{S_M0B}, {lds_imm}")
    a(f"s_add_u32 s{soff_reg}, s{soff_base}, {soff_imm}")
    a(f"buffer_load_dwordx4 v{vaddr}, s[{rs}:{rs+3}], s{soff_reg} offen lds")

def wave_max(a, v, t):
    for m in ("row_shr:1", "row_shr:2", "row_shr:4", "row_shr:8", "row_bcast:15 row_mask:0xa", "row_bcast:31 row_mask:0xc"):
        a("s_nop 1")
        a(f"v_max_f32_dpp v{v}, v{v}, v{v} {m}")

def qkv(a, fused):
    W = S_WAVE
    a(f"s_and_b32 s{S_T}, s{S_ID}, 1            ; th")
    a(f"s_lshl_b32 s{S_T}, s{S_T}, 4")
    a(f"s_lshr_b32 s{S_T+1}, s{S_ID}, 3         ; i")
    a(f"s_and_b32 s{S_T+2}, s{S_T+1}, 15")
    a(f"s_add_u32 s{S_A}, s{S_T}, s{S_T+2}       ; tb64")
    a(f"s_and_b32 s{S_T}, s{S_ID}, 6            ; 2*xq")
    a(f"s_lshr_b32 s{S_T+1}, s{S_T+1}, 4")
    a(f"s_add_u32 s{S_B}, s{S_T}, s{S_T+1}       ; cb")
    srd(a, R_W0, S_WQ, 512 * 1024)
    a(f"s_cmp_eq_u32 s{S_B}, 0")
    a(f"s_cselect_b32 s{R_W1}, s{S_WK}, s{S_WV}")
    a(f"s_cselect_b32 s{R_W1+1}, s{S_WK+1}, s{S_WV+1}")
    a(f"s_cmp_eq_u32 s{S_B}, 2")
    a(f"s_cselect_b32 s{R_W1}, s{S_GW}, s{R_W1}")
    a(f"s_cselect_b32 s{R_W1+1}, s{S_GW+1}, s{R_W1+1}")
    a(f"s_movk_i32 s{R_W1+2}, 16384")
    a(f"s_cselect_b32 s{R_W1+2}, 1024, s{R_W1+2}")
    a(f"s_mov_b32 s{R_W1+3}, 0x20000")
    VXS, VWS, VLIN, VXR, VWR, VER, VGR = 2, 3, 4, 8, 5, 6, 7
    T0, T1, T2 = 12, 13, 14
    a(f"v_lshrrev_b32 v{T0}, 3, v0              ; row")
    a(f"v_and_b32 v{T1}, 7, v0                  ; pos")
    a(f"v_lshrrev_b32 v{T2}, 1, v{T0}")
    a(f"s_and_b32 s{S_T}, s{W}, 1")
    a(f"s_lshl_b32 s{S_T}, s{S_T}, 2")
    a(f"v_or_b32 v{VXS}, s{S_T}, v{T2}")
    a(f"v_xor_b32 v{VXS}, v{VXS}, v{T1}")
    a(f"v_lshlrev_b32 v{VXS}, 4, v{VXS}")
    a(f"v_lshl_add_u32 v{VXS}, v{T0}, 10, v{VXS}")
    a(f"v_and_b32 v{T2}, 1, v{T2}")
    a(f"v_lshlrev_b32 v{T2}, 2, v{T2}")
    a(f"v_xor_b32 v{VWS}, v{T2}, v{T1}")
    a(f"v_lshlrev_b32 v{VWS}, 4, v{VWS}")
    a(f"v_lshl_add_u32 v{VWS}, v{T0}, 10, v{VWS}")
    a(f"v_lshlrev_b32 v{VLIN}, 4, v0")
    a(f"s_lshl_b32 s{S_C}, s{S_A}, 16")
    a(f"s_lshl_b32 s{S_T}, s{W}, 13")
    a(f"s_add_u32 s{S_C}, s{S_C}, s{S_T}")
    a(f"s_lshl_b32 s{S_D}, s{S_B}, 7")
    a(f"s_add_u32 s{S_D}, s{S_D}, s{S_T}")
    lab = a.newlabel("noextra")
    a(f"s_cmp_gt_u32 s{S_B}, 2")
    a(f"s_cbranch_scc1 {lab}")
    for j in range(4):
        dma(a, VLIN, R_W1, S_T, S_M0B, j * 4096, 65536 + j * 4096)
    a.label(lab)
    def issue_chunk(c):
        s = (c % 4) * 16384
        for j in range(2):
            dma(a, VXS, R_X, S_T, S_C, j * 32768 + c * 128, s + j * 4096)
        for j in range(2):
            dma(a, VWS, R_W0, S_T, S_D, c * 65536 + j * 32768, s + 8192 + j * 4096)
    for c in range(4): issue_chunk(c)
    a(f"v_and_b32 v{T0}, 31, v0                 ; t")
    a(f"v_lshrrev_b32 v{T1}, 5, v0              ; h")
    a(f"v_bfe_u32 v{T2}, v0, 1, 3               ; (t>>1)&7")
    a(f"v_xor_b32 v{T2}, v{T2}, v{T1}")
    a(f"s_and_b32 s{S_T}, s{W}, 1")
    a(f"s_lshl_b32 s{S_T}, s{S_T}, 12           ; tt_l*4096")
    a(f"v_lshlrev_b32 v{T0}, 7, v{T0}")
    a(f"v_add_u32 v{T0}, s{S_T}, v{T0}")
    for ks in range(4):
        a(f"v_xor_b32 v{VXR+ks}, {2*ks}, v{T2}")
        a(f"v_lshl_add_u32 v{VXR+ks}, v{VXR+ks}, 4, v{T0}")
    a(f"v_bfe_u32 v{T0}, v0, 2, 2               ; r")
    a(f"v_lshl_add_u32 v{T0}, v{T1}, 3, v{T0}    ; 8h+r")
    a(f"v_and_b32 v{T2}, 3, v0")
    a(f"v_lshlrev_b32 v{T2}, 3, v{T2}           ; c4*8")
    a(f"v_lshl_add_u32 v{VER}, v{T0}, 5, v{T2}")
    a(f"v_add_u32 v{VER}, 0x10000, v{VER}")
    a(f"v_lshl_add_u32 v{VWR}, v{T0}, 7, v{T2}")
    a(f"v_bfe_u32 v{T0}, v0, 4, 1               ; G&1")
    a(f"v_bfe_u32 v{T2}, v0, 3, 1               ; (r>>1)&1")
    a(f"v_lshl_or_b32 v{T0}, v{T2}, 1, v{T0}")
    a(f"s_and_b32 s{S_T}, s{W}, 2               ; 2*ct")
    a(f"v_xor_b32 v{T0}, s{S_T}, v{T0}")
    a(f"v_lshl_add_u32 v{VWR}, v{T0}, 5, v{VWR}")
    a(f"v_add_u32 v{VWR}, 0x2000, v{VWR}")
    a(f"v_lshlrev_b32 v{VGR}, 4, v{T1}")
    a(f"v_add_u32 v{VGR}, 0x10000, v{VGR}")
    if fused:
        a("s_waitcnt lgkmcnt(0)")
        finish_tag(a)
    ACC, ACC2 = 32, 48
    XF, WF, EF = 64, 72, 80
    a(f"s_lshr_b32 s{S_T}, s{W}, 1")
    a(f"s_lshl_b32 s{S_T}, s{S_T}, 4")
    a(f"s_add_u32 s{S_E}, s{S_T}, s{S_B}")
    labs = {v: a.newlabel("qkv" + v) for v in "NKVG"}
    done = a.newlabel("qkvdone")
    for key, v in ((0, "K"), (1, "V"), (2, "G")):
        a(f"s_cmp_eq_u32 s{S_E}, {key}")
        a(f"s_cbranch_scc1 {labs[v]}")
    for v in "NKVG":
        a.label(labs[v])
        def reads(c, ks, b):
            s = (c % 4) * 16384
            a(f"ds_read_b128 {vr(XF+4*b,4)}, v{VXR+ks} offset:{s}")
            a(f"ds_read_b64_tr_b16 {vr(WF+4*b,2)}, v{VWR} offset:{s + ks*2048}")
            a(f"ds_read_b64_tr_b16 {vr(WF+4*b+2,2)}, v{VWR} offset:{s + ks*2048 + 512}")
            if v in "KV":
                a(f"ds_read_b64_tr_b16 {vr(EF+4*b,2)}, v{VER} offset:{c*2048 + ks*512}")
                a(f"ds_read_b64_tr_b16 {vr(EF+4*b+2,2)}, v{VER} offset:{c*2048 + ks*512 + 128}")
            if v == "G":
                a(f"ds_read_b128 {vr(EF+4*b,4)}, v{VGR} offset:{c*128 + ks*32}")
        nrd = {"N": 3, "K": 5, "V": 5, "G": 4}[v]
        for c in range(8):
            later = min(7, max(3, c + 2)) - c
            a(f"s_waitcnt vmcnt({4*later})")
            a("s_barrier")
            if 1 <= c <= 4: issue_chunk(c + 3)
            reads(c, 0, 0)
            for ks in range(4):
                b = ks & 1
                if ks < 3:
                    reads(c, ks + 1, b ^ 1)
                    a(f"s_waitcnt lgkmcnt({nrd})")
                else:
                    a("s_waitcnt lgkmcnt(0)")
                first = (c == 0 and ks == 0)
                cq = "0" if first else vr(ACC, 16)
                ce = "0" if first else vr(ACC2, 16)
                a(f"v_mfma_f32_32x32x16_bf16 {vr(ACC,16)}, {vr(WF+4*b,4)}, {vr(XF+4*b,4)}, {cq}")
                if v in "KG":
                    a(f"v_mfma_f32_32x32x16_bf16 {vr(ACC2,16)}, {vr(EF+4*b,4)}, {vr(XF+4*b,4)}, {ce}")
                if v == "V":
                    a(f"v_mfma_f32_32x32x16_bf16 {vr(ACC2,16)}, {vr(XF+4*b,4)}, {vr(EF+4*b,4)}, {ce}")
        a(f"s_and_b32 s{S_T}, s{W}, 1")
        a(f"s_lshl_b32 s{S_F}, s{S_A}, 1")
        a(f"s_add_u32 s{S_F}, s{S_F}, s{S_T}")
        a("s_nop 15")
        P = 64
        if v == "K":
            a(f"v_mul_f32 v{T0}, v{ACC2}, v{ACC2}")
            for j in range(1, 8): a(f"v_fmac_f32 v{T0}, v{ACC2+j}, v{ACC2+j}")
            for j in range(4): a(f"v_cvt_pk_bf16_f32 v{P+j}, v{ACC2+2*j}, v{ACC2+2*j+1}")
            a(f"v_and_b32 v{T1}, 0x33, v0")
            a(f"v_bfe_u32 v{T2}, v0, 2, 1")
            a(f"v_lshl_or_b32 v{T1}, v{T2}, 3, v{T1}")
            a(f"v_bfe_u32 v{T2}, v0, 3, 1")
            a(f"v_lshl_or_b32 v{T1}, v{T2}, 2, v{T1}")
            a(f"v_lshlrev_b32 v{T1}, 4, v{T1}")
            a(f"s_lshl_b32 s{S_T}, s{S_F}, 10")
            a(f"s_add_u32 s{S_T}, s{S_T}, {WS_KP}")
            a(f"buffer_store_dwordx4 {vr(P,4)}, v{T1}, s[{R_WS}:{R_WS+3}], s{S_T} offen sc1")
            a(f"v_mov_b32 v15, v{T0}")
            a("s_nop 1")
            a(f"v_permlane32_swap_b32 v{T0}, v15")
            a(f"v_add_f32 v15, v{T0}, v15")
            wave_max(a, 15, T0)
        if v == "V":
            for j in range(8): a(f"v_cvt_pk_bf16_f32 v{P+j}, v{ACC2+2*j}, v{ACC2+2*j+1}")
            a(f"v_and_b32 v{T1}, 16, v0")
            a(f"v_cmp_ne_u32 vcc, 0, v{T1}")
            a(f"v_lshlrev_b32 v{T1}, 5, v{T1}          ; s*512")
            a(f"v_and_b32 v{T2}, 32, v0")
            a(f"v_lshl_add_u32 v{T1}, v{T2}, 3, v{T1}   ; + h*256")
            a(f"v_and_b32 v{T2}, 15, v0")
            a(f"v_lshl_add_u32 v{T1}, v{T2}, 4, v{T1}")
            for j in range(4): a(f"v_cndmask_b32 v{P+j}, v{P+j}, v{P+4+j}, vcc")
            a(f"s_lshl_b32 s{S_T}, s{S_F}, 10")
            a(f"s_add_u32 s{S_T}, s{S_T}, {WS_VP}")
            a(f"buffer_store_dwordx4 {vr(P,4)}, v{T1}, s[{R_WS}:{R_WS+3}], s{S_T} offen sc1")
        if v == "G":
            a(f"v_mul_f32 v{T0}, {f2u(-LOG2E):#x}, v{ACC2}")
            a(f"v_exp_f32 v{T0}, v{T0}")
            a(f"v_and_b32 v{T1}, 31, v0")
            a(f"v_add_f32 v{T0}, 1.0, v{T0}")
            a(f"v_rcp_f32 v{T0}, v{T0}")
            a(f"v_lshlrev_b32 v{T1}, 2, v{T1}")
            a(f"s_lshl_b32 s{S_T}, s{S_F}, 7")
            a(f"s_add_u32 s{S_T}, s{S_T}, {WS_G}")
            a(f"buffer_store_dword v{T0}, v{T1}, s[{R_WS}:{R_WS+3}], s{S_T} offen sc1")
        if v != "G":
            a(f"s_branch {done}")
    a.label(done)
    P = 72
    a(f"s_mov_b32 s{S_T}, {f2u(0.25*LOG2E):#x}")
    for j in range(16): a(f"v_mul_f32 v{ACC+j}, s{S_T}, v{ACC+j}")
    for j in range(8): a(f"v_cvt_pk_bf16_f32 v{P+j}, v{ACC+2*j}, v{ACC+2*j+1}")
    a(f"s_lshl_b32 s{S_T}, s{S_F}, 15")
    a(f"s_lshl_b32 s{S_T+1}, s{S_B}, 12")
    a(f"s_add_u32 s{S_T}, s{S_T}, s{S_T+1}")
    a(f"s_and_b32 s{S_T+1}, s{W}, 2")
    a(f"s_lshl_b32 s{S_T+1}, s{S_T+1}, 10")
    a(f"s_add_u32 s{S_T}, s{S_T}, s{S_T+1}")
    a(f"s_add_u32 s{S_T}, s{S_T}, {WS_QP}")
    a(f"buffer_store_dwordx4 {vr(P,4)}, v{VLIN}, s[{R_WS}:{R_WS+3}], s{S_T} offen sc1")
    a(f"buffer_store_dwordx4 {vr(P+4,4)}, v{VLIN}, s[{R_WS}:{R_WS+3}], s{S_T} offen offset:1024 sc1")
    if fused:
        a(f"v_mul_f32 v{T0}, v{ACC}, v{ACC}")
        a(f"v_mul_f32 v{T1}, v{ACC+8}, v{ACC+8}")
        for j in range(1, 8):
            a(f"v_fmac_f32 v{T0}, v{ACC+j}, v{ACC+j}")
            a(f"v_fmac_f32 v{T1}, v{ACC+8+j}, v{ACC+8+j}")
        a("s_nop 1")
        a(f"v_permlane32_swap_b32 v{T0}, v{T1}")
        a(f"v_add_f32 v17, v{T0}, v{T1}")
        wave_max(a, 17, T0)
        a(f"v_mov_b32 v16, s{S_TAG}")
        a(f"v_mov_b32 v14, s{S_TAG}")
        a(f"s_lshl_b32 s{S_T}, s{S_F}, 7")
        a(f"s_lshl_b32 s{S_T+1}, s{S_B}, 4")
        a(f"s_add_u32 s{S_T}, s{S_T}, s{S_T+1}")
        a(f"s_and_b32 s{S_T+1}, s{W}, 2")
        a(f"s_lshl_b32 s{S_T+1}, s{S_T+1}, 2")
        a(f"s_add_u32 s{S_T}, s{S_T}, s{S_T+1}")
        a(f"s_add_u32 s{S_T}, s{S_T}, {WS_RECQ}      ; recQ[tt][cb*2+ct]")
        a(f"s_lshl_b32 s{S_T+1}, s{S_F}, 3")
        a(f"s_lshl_b32 s{S_T+2}, s{S_E}, 9")
        a(f"s_add_u32 s{S_T+1}, s{S_T+1}, s{S_T+2}")
        a(f"s_add_u32 s{S_T+1}, s{S_T+1}, {WS_RECK}  ; rec{{K,V,G}}[tt]")
        a(f"v_mov_b32 v{T0}, 0")
        a(f"s_mov_b64 s[{S_EX}:{S_EX+1}], exec")
        a("s_mov_b32 exec_lo, 0")
        a("s_mov_b32 exec_hi, 0x80000000")
        a("s_waitcnt vmcnt(0)")
        lab = a.newlabel("norec")
        a(f"s_cmp_gt_u32 s{S_E}, 2")
        a(f"s_cbranch_scc1 {lab}")
        a(f"buffer_store_dwordx2 v[14:15], v{T0}, s[{R_WS}:{R_WS+3}], s{S_T+1} offen sc1")
        a.label(lab)
        a(f"buffer_store_dwordx2 v[16:17], v{T0}, s[{R_WS}:{R_WS+3}], s{S_T} offen sc1")
        a(f"s_mov_b64 exec, s[{S_EX}:{S_EX+1}]")

def attention(a, fused):
    W = S_WAVE
    VL16, VIDX, VL4, VQO, VG = 1, 2, 3, 4, 5
    QB = (8, 12)
    SB = (16, 32)
    OA = 48
    KR, VR_ = 64, 128
    a(f"s_lshr_b32 s{S_A}, s{S_ID}, 2          ; tt")
    a(f"s_and_b32 s{S_B}, s{S_ID}, 3           ; sub")
    a(f"v_lshlrev_b32 v{VL16}, 4, v0")
    a(f"v_lshlrev_b32 v{VL4}, 2, v0")
    a(f"v_mov_b32 v{VIDX}, 0xdddddddd")
    a(f"v_bfe_u32 v6, v0, 3, 2")
    a(f"v_lshlrev_b32 v{VQO}, 10, v6")
    a(f"v_and_b32 v6, 32, v0")
    a(f"v_lshl_add_u32 v{VQO}, v6, 4, v{VQO}")
    a(f"v_and_b32 v6, 7, v0")
    a(f"s_lshl_b32 s{S_T}, s{S_B}, 3")
    a(f"v_add_u32 v6, s{S_T}, v6")
    a(f"v_lshl_add_u32 v{VQO}, v6, 4, v{VQO}")
    a(f"v_lshlrev_b32 v6, 2, v6                ; g offset")
    a(f"v_and_b32 v7, 32, v0")
    a(f"v_lshlrev_b32 v7, 3, v7")
    a(f"v_and_b32 v16, 15, v0")
    a(f"v_lshl_add_u32 v7, v16, 4, v7")
    a(f"s_mov_b32 s{S_T}, 0x3f803f80")
    a(f"s_mov_b32 s{S_T+1}, 0x3f803f80")
    for j in range(0, 128, 2):
        a(f"v_pk_mov_b32 {vr(VR_+j,2)}, s[{S_T}:{S_T+1}], s[{S_T}:{S_T+1}]")
    for j in range(16): a(f"v_mov_b32 v{OA+j}, 0")
    a(f"s_lshl_b32 s{S_C}, s{S_A}, 15")
    a(f"s_add_u32 s{S_D}, s{S_C}, {WS_OP}")
    a(f"s_add_u32 s{S_C}, s{S_C}, {WS_QP}")
    a(f"s_lshl_b32 s{S_E}, s{W}, 14")
    a(f"s_add_u32 s{S_F}, s{S_E}, {WS_VP}")
    a(f"s_add_u32 s{S_E}, s{S_E}, {WS_KP}")
    a(f"s_lshl_b32 s{S_T+2}, s{S_A}, 7")
    a(f"s_add_u32 s{S_T+2}, s{S_T+2}, {WS_G}")
    if fused:
        att_wait(a)
    ws = f"s[{R_WS}:{R_WS+3}]"
    a(f"buffer_load_dwordx4 {vr(QB[0],4)}, v{VQO}, {ws}, s{S_C} offen sc1")
    vm_lo = 0x0000ffff
    for t in range(16):
        if t % 4 == 0 and t:
            a(f"s_add_u32 s{S_E}, s{S_E}, 4096")
            a(f"s_add_u32 s{S_F}, s{S_F}, 4096")
        a(f"buffer_load_dwordx4 {vr(KR+4*t,4)}, v{VL16}, {ws}, s{S_E} offen offset:{(t%4)*1024} sc1")
        a(f"s_mov_b32 exec_lo, {vm_lo:#x}\ns_mov_b32 exec_hi, {vm_lo:#x}")
        for s in range(2):
            a(f"buffer_load_dwordx4 {vr(VR_+8*t+4*s,4)}, v7, {ws}, s{S_F} offen offset:{(t%4)*1024 + s*512} sc1")
        a("s_mov_b64 exec, -1")
    a(f"buffer_load_dword v{VG}, v6, {ws}, s{S_T+2} offen sc1")
    NLOAD = 1 + 48 + 1
    def S(t, q, buf): a(f"v_mfma_f32_32x32x16_bf16 {vr(SB[buf],16)}, {vr(KR+4*t,4)}, {vr(QB[q&1],4)}, 0")
    def PV(t, s, buf): a(f"v_smfmac_f32_32x32x32_bf16 {vr(OA,16)}, {vr(VR_+8*t+4*s,4)}, {vr(SB[buf]+8*s,8)}, v{VIDX}")
    def EX(buf, i): a(f"v_exp_f32 v{SB[buf]+i}, v{SB[buf]+i}")
    def flush(q):
        base = q * 4 * 2304
        if q == 7:
            a(f"v_add_u32 v{VL16}, {base}, v{VL16}")
            a(f"v_add_u32 v{VL4}, {base}, v{VL4}")
            base = 0
        a(f"ds_write_b128 v{VL16}, {vr(OA,4)} offset:{base}")
        a(f"ds_write_b128 v{VL16}, {vr(OA+4,4)} offset:{base+1024}")
        a(f"ds_write_b32 v{VL4}, v{OA+8} offset:{base+2048}")
    a(f"s_mul_i32 s{S_T}, s{W}, 2304")
    out_cnt = NLOAD
    def need(nth):
        a(f"s_waitcnt vmcnt({NLOAD - nth})")
    need(2)
    a(f"v_add_u32 v{VL16}, s{S_T}, v{VL16}")
    a(f"v_add_u32 v{VL4}, s{S_T}, v{VL4}")
    S(0, 0, 0)
    a("s_nop 10")
    for q in range(8):
        for t in range(16):
            g = q * 16 + t
            cur, oth = g & 1, (g & 1) ^ 1
            last = (g == 127)
            nt, nq = (t + 1) % 16, q + (t + 1) // 16
            if t == 0:
                EX(cur, 0); EX(cur, 1)
                if q > 0: PV(15, 1, oth)
                EX(cur, 2); EX(cur, 3); EX(cur, 4)
                if q == 0: need(2 + 3)
                S(nt, nq, oth)
                for i in range(5, 16): EX(cur, i)
                if q > 0:
                    flush(q - 1)
                    for j in range(0, 8, 2): a(f"v_pk_mov_b32 {vr(OA+j,2)}, 0, 0")
                    a(f"v_mov_b32 v{OA+8}, 0")
                if q < 7:
                    a(f"s_add_u32 s{S_C}, s{S_C}, 4096")
                    a(f"buffer_load_dwordx4 {vr(QB[(q+1)&1],4)}, v{VQO}, {ws}, s{S_C} offen sc1")
                    if q == 0: NLOAD += 1
            elif t == 1:
                EX(cur, 0); EX(cur, 1)
                PV(0, 0, oth)
                EX(cur, 2); EX(cur, 3); EX(cur, 4)
                PV(0, 1, oth)
                EX(cur, 5); EX(cur, 6); EX(cur, 7)
                if q == 0: need(2 + 3 * 2)
                S(nt, nq, oth)
                EX(cur, 8); EX(cur, 9); EX(cur, 10)
                PV(1, 0, cur)
                for i in range(11, 16): EX(cur, i)
                a("s_nop 2")
            else:
                EX(cur, 0); EX(cur, 1)
                PV(t - 1, 1, oth)
                EX(cur, 2); EX(cur, 3); EX(cur, 4)
                if not last:
                    if q == 0 and t < 15: need(2 + 3 * (t + 1))
                    if t == 15: a("s_waitcnt vmcnt(0)")
                    S(nt, nq, oth)
                for i in range(5, 10): EX(cur, i)
                PV(t, 0, cur)
                for i in range(10, 16): EX(cur, i)
    a("s_nop 1")
    PV(15, 1, 1)
    a("s_nop 15")
    flush(7)
    a("s_waitcnt lgkmcnt(0)")
    a("s_barrier")
    a(f"v_lshlrev_b32 v{VL16}, 4, v0")
    a(f"v_lshlrev_b32 v{VL4}, 2, v0")
    a(f"s_mul_i32 s{S_T}, s{W}, {2*4*2304}")
    a(f"v_add_u32 v{VL16}, s{S_T}, v{VL16}")
    a(f"v_add_u32 v{VL4}, s{S_T}, v{VL4}")
    R = 64
    for j in range(2):
        for p in range(4):
            b = (j * 4 + p) * 2304
            r = R + (j * 4 + p) * 12
            a(f"ds_read_b32 v{r+8}, v{VL4} offset:{b+2048}")
            a(f"ds_read_b128 {vr(r,4)}, v{VL16} offset:{b}")
            a(f"ds_read_b128 {vr(r+4,4)}, v{VL16} offset:{b+1024}")
        if j == 0: pass
    a(f"s_lshl_b32 s{S_T}, s{W}, 13")
    a(f"s_add_u32 s{S_D}, s{S_D}, s{S_T}")
    for j in range(2):
        r0 = R + j * 48
        a(f"s_waitcnt lgkmcnt({12 if j == 0 else 0})")
        a(f"v_add_f32 v{r0+8}, v{r0+8}, v{r0+20}")
        a(f"v_add_f32 v{r0+32}, v{r0+32}, v{r0+44}")
        a(f"v_add_f32 v{r0+8}, v{r0+8}, v{r0+32}")
        a(f"v_rcp_f32 v{r0+8}, v{r0+8}")
        for i in range(0, 8, 2):
            a(f"v_pk_add_f32 {vr(r0+i,2)}, {vr(r0+i,2)}, {vr(r0+12+i,2)}")
            a(f"v_pk_add_f32 {vr(r0+24+i,2)}, {vr(r0+24+i,2)}, {vr(r0+36+i,2)}")
        a(f"v_mul_f32 v{r0+8}, v{r0+8}, v{VG}")
        for i in range(0, 8, 2):
            a(f"v_pk_add_f32 {vr(r0+i,2)}, {vr(r0+i,2)}, {vr(r0+24+i,2)}")
        for i in range(8):
            a(f"v_mul_f32 v{r0+i}, v{r0+i}, v{r0+8}")
        for i in range(4):
            a(f"v_cvt_pk_bf16_f32 v{r0+12+i}, v{r0+2*i}, v{r0+2*i+1}")
        if j == 1: a(f"s_add_u32 s{S_D}, s{S_D}, 4096")
        a(f"buffer_store_dwordx4 {vr(r0+12,4)}, v{VQO}, {ws}, s{S_D} offen sc1")
    if fused:
        a(f"s_lshl_b32 s{S_T}, s{S_ID}, 4")
        a(f"s_lshl_b32 s{S_T+1}, s{W}, 2")
        a(f"s_add_u32 s{S_T}, s{S_T}, s{S_T+1}")
        a(f"s_add_u32 s{S_T}, s{S_T}, {WS_FLO}")
        a(f"v_mov_b32 v16, s{S_TAG}")
        a(f"v_mov_b32 v17, 0")
        a("s_mov_b64 exec, 1")
        a("s_waitcnt vmcnt(0)")
        a(f"buffer_store_dword v16, v17, {ws}, s{S_T} offen sc1")

def poll(a, loads, check_regs, vt):
    lab = a.newlabel("poll"); out = a.newlabel("polled")
    a(f"s_mov_b32 s{S_T+10}, 0x40000")
    a.label(lab)
    for l in loads: a(l)
    a("s_waitcnt vmcnt(0)")
    a(f"v_cmp_ne_u32 vcc, s{S_TAG}, v{check_regs[0]}")
    for r in check_regs[1:]:
        a(f"v_cmp_ne_u32 s[{S_T+12}:{S_T+13}], s{S_TAG}, v{r}")
        a(f"s_or_b64 vcc, vcc, s[{S_T+12}:{S_T+13}]")
    a(f"s_cbranch_vccz {out}")
    a("s_sleep 2")
    a(f"s_sub_u32 s{S_T+10}, s{S_T+10}, 1")
    a(f"s_cmp_lg_u32 s{S_T+10}, 0")
    a(f"s_cbranch_scc1 {lab}")
    a.label(out)

def att_wait(a):
    ws = f"s[{R_WS}:{R_WS+3}]"
    a(f"v_lshlrev_b32 v16, 3, v0               ; lane*8")
    a(f"s_lshl_b32 s{S_T+4}, s{S_A}, 7")
    a(f"s_add_u32 s{S_T+4}, s{S_T+4}, {WS_RECQ}")
    a(f"s_lshl_b32 s{S_T+5}, s{S_A}, 3")
    a(f"s_add_u32 s{S_T+5}, s{S_T+5}, {WS_RECG}")
    a(f"v_add_u32 v17, s{S_T+4}, v16")
    a(f"v_mov_b32 v18, s{S_T+5}")
    a(f"v_cmp_gt_u32 vcc, 16, v0")
    a("s_nop 1")
    a(f"v_cndmask_b32 v17, v18, v17, vcc")
    poll(a, [f"buffer_load_dwordx2 v[20:21], v16, {ws}, s{S_K0} offen sc1",
             f"buffer_load_dwordx2 v[22:23], v16, {ws}, s{S_K0} offen offset:{WS_RECV - WS_RECK} sc1",
             f"buffer_load_dwordx2 v[24:25], v17, {ws}, 0 offen sc1"], [20, 22, 24], 26)

def ffn1(a, fused, skip_label):
    W = S_WAVE
    ws = f"s[{R_WS}:{R_WS+3}]"
    a(f"s_lshr_b32 s{S_T+1}, s{S_ID}, 3         ; i")
    a(f"s_bfe_u32 s{S_T}, s{S_ID}, 0x20001      ; xq")
    if fused:
        a("s_waitcnt lgkmcnt(0)")
        finish_tag(a)
        a(f"s_lshl_b32 s{S_T+2}, s{S_ID}, 4")
        a(f"s_lshl_b32 s{S_T+3}, s{W}, 2")
        a(f"s_add_u32 s{S_T+2}, s{S_T+2}, s{S_T+3}")
        a(f"s_add_u32 s{S_T+2}, s{S_T+2}, {WS_ACKF}")
        a(f"v_mov_b32 v2, s{S_TAG}")
        a(f"v_mov_b32 v3, 0")
        a("s_mov_b64 exec, 1")
        a(f"buffer_store_dword v2, v3, {ws}, s{S_T+2} offen sc1")
        a("s_mov_b64 exec, -1")
    a(f"s_cmp_ge_u32 s{S_T+1}, 28")
    a(f"s_cbranch_scc1 {skip_label}")
    a(f"s_mul_i32 s{S_T}, s{S_T}, 28")
    a(f"s_add_u32 s{S_T}, s{S_T}, s{S_T+1}       ; g_")
    a(f"s_lshr_b32 s{S_B}, s{S_T}, 3            ; fb")
    a(f"s_and_b32 s{S_T}, s{S_T}, 7")
    a(f"s_and_b32 s{S_T+1}, s{S_ID}, 1")
    a(f"s_lshl_b32 s{S_T+1}, s{S_T+1}, 3")
    a(f"s_add_u32 s{S_A}, s{S_T}, s{S_T+1}       ; tb128")
    srd(a, R_W0, S_WG, 512 * 3584)
    srd(a, R_W1, S_WU, 512 * 3584)
    VXS, VGS, VUS, VXR, VWR = 2, 3, 4, 8, 12
    T0, T1, T2 = 5, 6, 7
    XL, WL = 0, 32768
    a(f"v_lshrrev_b32 v{T0}, 3, v0")
    a(f"v_and_b32 v{T1}, 7, v0")
    a(f"v_lshrrev_b32 v{T2}, 1, v{T0}")
    a(f"s_and_b32 s{S_T}, s{W}, 1")
    a(f"s_lshl_b32 s{S_T}, s{S_T}, 2")
    a(f"v_or_b32 v{VXS}, s{S_T}, v{T2}")
    a(f"v_xor_b32 v{VXS}, v{VXS}, v{T1}")
    a(f"v_lshlrev_b32 v{VXS}, 4, v{VXS}")
    a(f"v_lshl_add_u32 v{VXS}, v{T0}, 10, v{VXS}")
    a(f"v_lshrrev_b32 v{T0}, 4, v0")
    a(f"v_and_b32 v{T1}, 15, v0")
    a(f"v_lshlrev_b32 v{T2}, 1, v{T0}")
    a(f"v_xor_b32 v{T1}, v{T1}, v{T2}")
    a(f"v_lshlrev_b32 v{T1}, 4, v{T1}")
    a(f"v_mul_u32_u24 v{T0}, 3584, v{T0}")
    a(f"v_add_u32 v{VGS}, v{T0}, v{T1}")
    a(f"v_xor_b32 v{T1}, 128, v{T1}")
    a(f"v_add_u32 v{VUS}, v{T0}, v{T1}")
    a(f"s_lshl_b32 s{S_C}, s{S_A}, 17")
    a(f"s_lshl_b32 s{S_T}, s{W}, 13")
    a(f"s_add_u32 s{S_C}, s{S_C}, s{S_T}         ; x base")
    a(f"s_mul_i32 s{S_D}, s{W}, {4*3584}")
    a(f"s_lshl_b32 s{S_T}, s{S_B}, 8")
    a(f"s_add_u32 s{S_D}, s{S_D}, s{S_T}         ; w base")
    q = []
    def issueX(u):
        for j in range(4):
            dma(a, VXS, R_X, S_T, S_C, j * 32768 + u * 128, XL + (u % 2) * 16384 + j * 4096); q.append(("X", u))
    def issueW(j):
        s = WL + (j % 6) * 8192
        dma(a, VGS, R_W0, S_T, S_D, j * 16 * 3584, s); q.append(("W", j))
        dma(a, VUS, R_W1, S_T, S_D, j * 16 * 3584, s + 4096); q.append(("W", j))
    def waitfor(tags):
        idx = max((i for i, t in enumerate(q) if t in tags), default=-1)
        n = len(q) - 1 - idx
        del q[:idx + 1]
        a(f"s_waitcnt vmcnt({n})")
    issueX(0); issueW(0); issueW(1); issueW(2); issueX(1); issueW(3); issueW(4); issueW(5)
    a(f"v_and_b32 v{T0}, 31, v0")
    a(f"v_lshrrev_b32 v{T1}, 5, v0              ; h")
    a(f"v_bfe_u32 v{T2}, v0, 1, 3")
    a(f"v_xor_b32 v{T2}, v{T2}, v{T1}")
    a(f"s_and_b32 s{S_T}, s{W}, 1")
    a(f"s_lshl_b32 s{S_T}, s{S_T}, 13")
    a(f"v_lshlrev_b32 v{T0}, 7, v{T0}")
    a(f"v_add_u32 v{T0}, s{S_T}, v{T0}")
    for ks in range(4):
        a(f"v_xor_b32 v{VXR+ks}, {2*ks}, v{T2}")
        a(f"v_lshl_add_u32 v{VXR+ks}, v{VXR+ks}, 4, v{T0}")
    a(f"v_bfe_u32 v{T0}, v0, 2, 2               ; r")
    a(f"v_bfe_u32 v{T2}, v0, 4, 1               ; mat")
    a(f"v_lshl_add_u32 v16, v{T1}, 3, v{T0}      ; 8h+r")
    a(f"v_lshlrev_b32 v16, 8, v16")
    a(f"v_lshl_add_u32 v16, v{T2}, 12, v16")
    a(f"v_and_b32 v17, 3, v0")
    a(f"v_lshl_add_u32 v16, v17, 3, v16")
    a(f"v_add_u32 v16, {WL}, v16")
    a(f"v_lshl_or_b32 v{T0}, v{T2}, 2, v{T0}     ; r | mat<<2")
    a(f"s_and_b32 s{S_T}, s{W}, 2")
    a(f"s_lshl_b32 s{S_T}, s{S_T}, 1            ; 4*wf")
    a(f"v_xor_b32 v{T0}, s{S_T}, v{T0}")
    for jj in range(4):
        a(f"v_xor_b32 v{VWR+jj}, {jj}, v{T0}")
        a(f"v_lshl_add_u32 v{VWR+jj}, v{VWR+jj}, 5, v16")
    ACC = 128
    FX = (16, 40); FW = (24, 48)
    def rd_list(j):
        b = j & 1
        L = []
        xs = XL + ((j // 4) % 2) * 16384
        wsl = (j % 6) * 8192
        for m in range(2):
            L.append(f"ds_read_b128 {vr(FX[b]+4*m,4)}, v{VXR + j%4} offset:{xs + m*4096}")
        for jj in range(4):
            for hf in range(2):
                L.append(f"ds_read_b64_tr_b16 {vr(FW[b]+4*jj+2*hf,2)}, v{VWR+jj} offset:{wsl + hf*1024}")
        return [L[0], L[2], L[3], L[1]] + L[4:]
    waitfor({("X", 0), ("W", 0)})
    a("s_barrier")
    for l in rd_list(0): a(l)
    for j in range(32):
        b = j & 1
        if j < 31:
            tags = {("W", j + 1)}
            if (j + 1) % 4 == 0: tags.add(("X", (j + 1) // 4))
            waitfor(tags)
        a("s_waitcnt lgkmcnt(0)")
        if j < 31: a("s_barrier")
        rl = rd_list(j + 1) if j < 31 else []
        pend = []
        if j + 6 < 32: pend.append(lambda j=j: issueW(j + 6))
        if j % 4 == 3 and j // 4 + 2 < 8: pend.append(lambda j=j: issueX(j // 4 + 2))
        n = 0
        for jj in range(4):
            for m in range(2):
                acc = ACC + 16 * (2 * jj + m)
                c = "0" if j == 0 else vr(acc, 16)
                a(f"v_mfma_f32_32x32x16_bf16 {vr(acc,16)}, {vr(FW[b]+4*jj,4)}, {vr(FX[b]+4*m,4)}, {c}")
                for _ in range(2):
                    if rl: a(rl.pop(0))
                if n >= 4 and pend: pend.pop(0)()
                n += 1
        assert not rl and not pend
    c0 = -2.0 * LOG2E * math.sqrt(2.0 / math.pi)
    c1 = c0 * 0.044715
    a(f"s_mov_b32 s{S_K0}, {f2u(c0):#x}\ns_mov_b32 s{S_K0+1}, {f2u(c0):#x}")
    a(f"s_mov_b32 s{S_K2}, {f2u(c1):#x}\ns_mov_b32 s{S_K2+1}, {f2u(c1):#x}")
    a(f"v_lshlrev_b32 v2, 4, v0")
    a(f"v_mov_b32 v4, s{S_K0}\nv_mov_b32 v5, s{S_K0}")
    a(f"s_lshl_b32 s{S_T}, s{S_A}, 2")
    a(f"s_and_b32 s{S_T+1}, s{W}, 1")
    a(f"s_lshl_b32 s{S_T+1}, s{S_T+1}, 1")
    a(f"s_add_u32 s{S_T}, s{S_T}, s{S_T+1}")
    a(f"s_mul_i32 s{S_T}, s{S_T}, 112")
    a(f"s_lshl_b32 s{S_T+1}, s{S_B}, 3")
    a(f"s_add_u32 s{S_T}, s{S_T}, s{S_T+1}")
    a(f"s_and_b32 s{S_T+1}, s{W}, 2")
    a(f"s_lshl_b32 s{S_T+1}, s{S_T+1}, 1")
    a(f"s_add_u32 s{S_T}, s{S_T}, s{S_T+1}")
    a(f"s_lshl_b32 s{S_T}, s{S_T}, 10")
    a(f"s_add_u32 s{S_E}, s{S_T}, {WS_HP}")
    a(f"s_add_u32 s{S_F}, s{S_E}, {112*1024}")
    a("s_nop 7")
    for jj in range(4):
        for m in range(2):
            acc = ACC + 16 * (2 * jj + m)
            T = 16 + 16 * ((2 * jj + m) & 1)
            for i in range(0, 8, 2):
                a(f"v_pk_mul_f32 {vr(T+i,2)}, {vr(acc+i,2)}, {vr(acc+i,2)}")
            for i in range(0, 8, 2):
                a(f"v_pk_fma_f32 {vr(T+i,2)}, {vr(T+i,2)}, s[{S_K2}:{S_K2+1}], v[4:5]")
            for i in range(0, 8, 2):
                a(f"v_pk_mul_f32 {vr(T+i,2)}, {vr(T+i,2)}, {vr(acc+i,2)}")
            for i in range(8): a(f"v_exp_f32 v{T+i}, v{T+i}")
            for i in range(0, 8, 2):
                a(f"v_pk_mul_f32 {vr(acc+i,2)}, {vr(acc+i,2)}, {vr(acc+8+i,2)}")
            for i in range(0, 8, 2):
                a(f"v_pk_add_f32 {vr(T+i,2)}, {vr(T+i,2)}, 1.0 op_sel_hi:[1,0]")
            for i in range(8): a(f"v_rcp_f32 v{T+i}, v{T+i}")
            a("s_nop 0")
            for i in range(0, 8, 2):
                a(f"v_pk_mul_f32 {vr(acc+i,2)}, {vr(acc+i,2)}, {vr(T+i,2)}")
            for i in range(4):
                a(f"v_cvt_pk_bf16_f32 v{T+8+i}, v{acc+2*i}, v{acc+2*i+1}")
            a(f"buffer_store_dwordx4 {vr(T+8,4)}, v2, {ws}, s{S_E if m == 0 else S_F} offen offset:{jj*1024} sc1")
    if fused:
        a(f"s_lshl_b32 s{S_T}, s{S_A}, 8")
        a(f"s_lshl_b32 s{S_T+1}, s{S_B}, 4")
        a(f"s_add_u32 s{S_T}, s{S_T}, s{S_T+1}")
        a(f"s_lshl_b32 s{S_T+1}, s{W}, 2")
        a(f"s_add_u32 s{S_T}, s{S_T}, s{S_T+1}")
        a(f"s_add_u32 s{S_T}, s{S_T}, {WS_FLH}")
        a(f"v_mov_b32 v2, s{S_TAG}")
        a(f"v_mov_b32 v3, 0")
        a("s_mov_b64 exec, 1")
        a("s_waitcnt vmcnt(0)")
        a(f"buffer_store_dword v2, v3, {ws}, s{S_T} offen sc1")
        a("s_mov_b64 exec, -1")

def ffn2(a, fused):
    W = S_WAVE
    ws = f"s[{R_WS}:{R_WS+3}]"
    a(f"s_and_b32 s{S_T}, s{S_ID}, 1")
    a(f"s_lshl_b32 s{S_T}, s{S_T}, 4")
    a(f"s_and_b32 s{S_T+1}, s{S_ID}, 2")
    a(f"s_lshl_b32 s{S_T+1}, s{S_T+1}, 2")
    a(f"s_add_u32 s{S_T}, s{S_T}, s{S_T+1}")
    a(f"s_bfe_u32 s{S_T+1}, s{S_ID}, 0x30003")
    a(f"s_add_u32 s{S_A}, s{S_T}, s{S_T+1}       ; tb64")
    a(f"s_and_b32 s{S_T}, s{S_ID}, 4")
    a(f"s_lshr_b32 s{S_T+1}, s{S_ID}, 6")
    a(f"s_add_u32 s{S_B}, s{S_T}, s{S_T+1}       ; cb")
    srd(a, R_W0, S_WD, 1792 * 1024)
    srd(a, R_W1, S_WO, 512 * 1024)
    srd(a, R_OUT, S_OUT, 2048 * 1024)
    VWS, VLIN, VR0, VR1, VG = 2, 3, 4, 5, 6
    T0, T1, T2 = 8, 9, 10
    a(f"v_lshrrev_b32 v{T0}, 3, v0")
    a(f"v_and_b32 v{T1}, 7, v0")
    a(f"v_bfe_u32 v{T2}, v0, 4, 1")
    a(f"v_lshlrev_b32 v{T2}, 2, v{T2}")
    a(f"v_xor_b32 v{VWS}, v{T2}, v{T1}")
    a(f"v_lshlrev_b32 v{VWS}, 4, v{VWS}")
    a(f"v_lshl_add_u32 v{VWS}, v{T0}, 10, v{VWS}")
    a(f"v_lshlrev_b32 v{VLIN}, 4, v0")
    a(f"v_lshrrev_b32 v{T1}, 5, v0")
    a(f"v_bfe_u32 v{T0}, v0, 2, 2")
    a(f"v_lshl_add_u32 v{T0}, v{T1}, 2, v{T0}")
    a(f"v_and_b32 v{T2}, 3, v0")
    a(f"v_lshlrev_b32 v{T2}, 3, v{T2}")
    a(f"v_lshl_add_u32 v{VR0}, v{T0}, 7, v{T2}")
    a(f"v_bfe_u32 v{T0}, v0, 4, 1")
    a(f"v_bfe_u32 v{T2}, v0, 3, 1")
    a(f"v_lshl_or_b32 v{T0}, v{T2}, 1, v{T0}")
    a(f"v_xor_b32 v{T2}, 2, v{T0}")
    a(f"v_lshl_add_u32 v{VR1}, v{T2}, 5, v{VR0}")
    a(f"v_lshl_add_u32 v{VR0}, v{T0}, 5, v{VR0}")
    a(f"s_cmp_ge_u32 s{W}, 2")
    a(f"s_cselect_b64 vcc, -1, 0")
    a(f"v_cndmask_b32 v7, v{VR0}, v{VR1}, vcc")
    a(f"s_lshl_b32 s{S_M0B}, s{W}, 14")
    a(f"v_add_u32 v{VR0}, s{S_M0B}, v{VR0}")
    a(f"v_add_u32 v{VR1}, s{S_M0B}, v{VR1}")
    a(f"s_lshl_b32 s{S_T}, s{S_B}, 7")
    a(f"s_add_u32 s{S_C}, s{S_M0B}, s{S_T}")
    a(f"s_mul_i32 s{S_D}, s{S_A}, {2*112*1024}")
    a(f"s_lshl_b32 s{S_T}, s{W}, 10")
    a(f"s_add_u32 s{S_D}, s{S_D}, s{S_T}")
    a(f"s_add_u32 s{S_D}, s{S_D}, {WS_HP}")
    a(f"s_add_u32 s{S_E}, s{S_D}, {112*1024}")
    ACC = 64
    HF = 128
    FW = (16, 24)
    NS, D = 28, 8
    q = []
    def issueW(n):
        for p in range(2):
            dma(a, VWS, R_W0, S_T, S_C, n * 65536 + p * 8192, (n % D) * 2048 + p * 1024); q.append(("W", n))
    def issueH(n):
        a(f"s_add_u32 s{S_T}, s{S_D}, {n*4096}")
        a(f"s_add_u32 s{S_T+1}, s{S_E}, {n*4096}")
        a(f"buffer_load_dwordx4 {vr(HF+(n%D)*8,4)}, v{VLIN}, {ws}, s{S_T} offen sc1"); q.append(("H", n))
        a(f"buffer_load_dwordx4 {vr(HF+(n%D)*8+4,4)}, v{VLIN}, {ws}, s{S_T+1} offen sc1"); q.append(("H", n))
    def waitfor(tags):
        idx = max((i for i, t in enumerate(q) if t in tags), default=-1)
        n = len(q) - 1 - idx
        del q[:idx + 1]
        a(f"s_waitcnt vmcnt({n})")
    def rd_list(n):
        b = n & 1
        return [f"ds_read_b64_tr_b16 {vr(FW[b]+4*ct+2*hf,2)}, v{(VR0,VR1)[ct]} offset:{(n%D)*2048 + hf*1024}" for ct in range(2) for hf in range(2)]
    if fused:
        a("s_barrier")
    for n in range(D): issueW(n)
    if fused:
        a(f"s_lshr_b32 s{S_T+4}, s{S_A}, 1")
        a(f"s_lshl_b32 s{S_T+4}, s{S_T+4}, 8")
        a(f"s_add_u32 s{S_T+4}, s{S_T+4}, {WS_FLH}")
        a(f"s_lshl_b32 s{S_T+5}, s{S_A}, 4")
        a(f"s_add_u32 s{S_T+5}, s{S_T+5}, {WS_RECG}")
        a(f"v_lshlrev_b32 v11, 2, v0")
        a(f"v_add_u32 v11, s{S_T+4}, v11")
        a(f"v_and_b32 v12, 1, v0")
        a(f"v_lshlrev_b32 v12, 3, v12")
        a(f"v_add_u32 v12, s{S_T+5}, v12")
        a(f"v_cmp_gt_u32 vcc, 56, v0")
        a("s_nop 1")
        a(f"v_cndmask_b32 v11, v12, v11, vcc")
        poll(a, [f"buffer_load_dword v13, v11, {ws}, 0 offen sc1"], [13], 14)
        q.clear()
    for n in range(D): issueH(n)
    a(f"s_lshl_b32 s{S_T}, s{S_A}, 1")
    a(f"s_and_b32 s{S_T+1}, s{W}, 1")
    a(f"s_add_u32 s{S_F}, s{S_T}, s{S_T+1}")
    a(f"s_lshl_b32 s{S_T}, s{S_F}, 7")
    a(f"s_add_u32 s{S_T}, s{S_T}, {WS_G}")
    a(f"v_and_b32 v{T0}, 31, v0")
    a(f"v_lshlrev_b32 v{T0}, 2, v{T0}")
    a(f"buffer_load_dword v{VG}, v{T0}, {ws}, s{S_T} offen sc1"); q.append(("G", 0))
    waitfor({("W", 0)})
    for l in rd_list(0): a(l)
    for n in range(NS):
        b = n & 1
        tags = {("H", n)}
        if n + 1 < NS: tags.add(("W", n + 1))
        waitfor(tags)
        a("s_waitcnt lgkmcnt(0)")
        rl = rd_list(n + 1) if n + 1 < NS else []
        k = 0
        for ct in range(2):
            for m in range(2):
                acc = ACC + 16 * (2 * ct + m)
                c = "0" if n == 0 else vr(acc, 16)
                a(f"v_mfma_f32_32x32x16_bf16 {vr(acc,16)}, {vr(FW[b]+4*ct,4)}, {vr(HF+(n%D)*8+4*m,4)}, {c}")
                for _ in range(2):
                    if rl: a(rl.pop(0))
                if k == 2 and n + D < NS: issueW(n + D)
                k += 1
        if n + D < NS: issueH(n + D)
    a("s_waitcnt vmcnt(0)")
    q.clear()
    a("s_barrier")
    a("s_nop 7")
    a(f"v_lshlrev_b32 v{T0}, 4, v0")
    for d in range(4):
        lab = a.newlabel("skipq")
        a(f"s_cmp_eq_u32 s{W}, {d}")
        a(f"s_cbranch_scc1 {lab}")
        a(f"s_sub_u32 s{S_T}, s{W}, {d+1}")
        a(f"s_and_b32 s{S_T}, s{S_T}, 3")
        a(f"s_lshl_b32 s{S_T}, s{S_T}, 12")
        a(f"v_add_u32 v{T1}, s{S_T}, v{T0}")
        for i in range(4):
            a(f"ds_write_b128 v{T1}, {vr(ACC+16*d+4*i,4)} offset:{d*12288 + i*1024}")
        a.label(lab)
    for d in range(1, 4):
        lab = a.newlabel("mvq")
        a(f"s_cmp_lg_u32 s{W}, {d}")
        a(f"s_cbranch_scc1 {lab}")
        for i in range(0, 16, 2): a(f"v_pk_mov_b32 {vr(ACC+i,2)}, {vr(ACC+16*d+i,2)}, {vr(ACC+16*d+i,2)} op_sel:[0,1]")
        a.label(lab)
    a(f"s_mul_i32 s{S_T}, s{W}, 12288")
    a(f"v_add_u32 v{T1}, s{S_T}, v{T0}")
    a("s_waitcnt lgkmcnt(0)")
    a("s_barrier")
    RB = 80
    for i in range(12):
        a(f"ds_read_b128 {vr(RB+4*i,4)}, v{T1} offset:{i*1024}")
    a(f"v_sub_f32 v{VG}, 1.0, v{VG}")
    for k in range(3):
        a(f"s_waitcnt lgkmcnt({8 - 4*k})")
        for i in range(0, 16, 2):
            a(f"v_pk_add_f32 {vr(ACC+i,2)}, {vr(ACC+i,2)}, {vr(RB+16*k+i,2)}")
    a("s_barrier")
    a(f"s_lshl_b32 s{S_M0B}, s{W}, 10")
    a(f"s_lshl_b32 s{S_C}, s{W}, 13")
    a(f"s_lshl_b32 s{S_T}, s{S_B}, 7")
    a(f"s_add_u32 s{S_C}, s{S_C}, s{S_T}")
    for p in range(16):
        dma(a, VWS, R_W1, S_T, S_C, p * 32768, p * 4096)
    for i in range(16): a(f"v_mul_f32 v{ACC+i}, v{ACC+i}, v{VG}")
    a(f"s_lshl_b32 s{S_D}, s{S_F}, 15")
    a(f"s_add_u32 s{S_D}, s{S_D}, {WS_OP}")
    if fused:
        a(f"s_lshl_b32 s{S_T+4}, s{S_A}, 7")
        a(f"s_add_u32 s{S_T+4}, s{S_T+4}, {WS_FLO}")
        a(f"v_and_b32 v11, 31, v0")
        a(f"v_lshlrev_b32 v11, 2, v11")
        a("s_waitcnt vmcnt(0)")
        a("s_barrier")
        poll(a, [f"buffer_load_dword v13, v11, {ws}, s{S_T+4} offen sc1"], [13], 14)
    OF = 128
    for j in range(32):
        if j % 4 == 0 and j: a(f"s_add_u32 s{S_D}, s{S_D}, 4096")
        a(f"buffer_load_dwordx4 {vr(OF+4*j,4)}, v{VLIN}, {ws}, s{S_D} offen offset:{(j%4)*1024} sc1")
    if not fused:
        a("s_waitcnt vmcnt(32)")
        a("s_barrier")
    def rdo(j):
        b = j % 4
        return [f"ds_read_b64_tr_b16 {vr(16+4*b+2*hf,2)}, v7 offset:{j*2048 + hf*1024}" for hf in range(2)]
    for j in range(3):
        for l in rdo(j): a(l)
    for j in range(32):
        if j + 3 < 32:
            for l in rdo(j + 3): a(l)
        a(f"s_waitcnt vmcnt({31-j}) lgkmcnt({2*min(3, 31-j)})")
        a(f"v_mfma_f32_32x32x16_bf16 {vr(ACC,16)}, {vr(16+4*(j%4),4)}, {vr(OF+4*j,4)}, {vr(ACC,16)}")
    a(f"v_and_b32 v{T0}, 31, v0")
    a(f"v_lshlrev_b32 v{T0}, 10, v{T0}")
    a(f"v_and_b32 v{T1}, 32, v0")
    a(f"v_lshrrev_b32 v{T1}, 1, v{T1}")
    a(f"v_add_u32 v{T0}, v{T0}, v{T1}")
    a(f"s_lshl_b32 s{S_T}, s{S_F}, 15")
    a(f"s_lshl_b32 s{S_T+1}, s{S_B}, 7")
    a(f"s_add_u32 s{S_T}, s{S_T}, s{S_T+1}")
    a(f"s_and_b32 s{S_T+1}, s{W}, 2")
    a(f"s_lshl_b32 s{S_T+1}, s{S_T+1}, 5")
    a(f"s_add_u32 s{S_T}, s{S_T}, s{S_T+1}")
    a("s_nop 4")
    for i in range(8): a(f"v_cvt_pk_bf16_f32 v{32+i}, v{ACC+2*i}, v{ACC+2*i+1}")
    a("s_nop 1")
    a("v_permlane32_swap_b32 v32, v34\nv_permlane32_swap_b32 v33, v35\nv_permlane32_swap_b32 v36, v38\nv_permlane32_swap_b32 v37, v39")
    a(f"buffer_store_dwordx4 v[32:35], v{T0}, s[{R_OUT}:{R_OUT+3}], s{S_T} offen")
    a(f"buffer_store_dwordx4 v[36:39], v{T0}, s[{R_OUT}:{R_OUT+3}], s{S_T} offen offset:32")

def epoch_update(a):
    ws = f"s[{R_WS}:{R_WS+3}]"
    lab = a.newlabel("noepoch")
    a(f"s_cmp_lg_u32 s{S_ID}, 224")
    a(f"s_cbranch_scc1 {lab}")
    a(f"s_cmp_lg_u32 s{S_WAVE}, 0")
    a(f"s_cbranch_scc1 {lab}")
    a(f"v_lshlrev_b32 v2, 4, v0")
    a(f"s_mov_b32 s{S_T+4}, {WS_RECQ}")
    a(f"s_mov_b32 s{S_T+5}, {WS_RECQ+4096}")
    a(f"s_mov_b32 s{S_T+6}, {WS_ACKF}")
    loads, regs = [], []
    for i in range(8):
        loads.append(f"buffer_load_dwordx4 {vr(16+4*i,4)}, v2, {ws}, s{S_T+4+i//4} offen offset:{(i%4)*1024} sc1")
        regs += [16 + 4*i, 18 + 4*i]
    for i in range(4):
        loads.append(f"buffer_load_dwordx4 {vr(48+4*i,4)}, v2, {ws}, s{S_T+6} offen offset:{i*1024} sc1")
        regs += [48 + 4*i + j for j in range(4)]
    poll(a, loads, regs, 0)
    a(f"v_mov_b32 v2, s{S_TAG}")
    a(f"v_mov_b32 v3, 0")
    a("s_mov_b64 exec, 1")
    a(f"buffer_store_dword v2, v3, {ws}, 0 offen offset:{WS_EPOCH} sc1")
    a("s_mov_b64 exec, -1")
    a.label(lab)

KD = """.section .rodata,"a"
.p2align 6
.amdhsa_kernel {k}
  .amdhsa_next_free_vgpr 256
  .amdhsa_next_free_sgpr 96
  .amdhsa_accum_offset 256
  .amdhsa_group_segment_fixed_size 0
  .amdhsa_kernarg_size 104
  .amdhsa_user_sgpr_count 2
  .amdhsa_user_sgpr_kernarg_segment_ptr 1
  .amdhsa_system_sgpr_workgroup_id_x 1
.end_amdhsa_kernel
"""

def kstart(a, k):
    a.kname = k
    a.raw(f".text\n.globl {k}\n.p2align 8\n.type {k},@function\n{k}:")
def kend(a):
    a.label("L_exit_" + a.kname)
    a("s_endpgm")

def header():
    ref = open(f"cdna_kernels/{NAME}.s.ref").read().split("\n")
    return [l for l in ref if l.startswith(";") and "@launch" not in l]

def gen(mode):
    a = Asm()
    LDS = 81920
    H = header()
    if mode == "multi":
        ks = ["p1_kernel", "p2_kernel", "p3_kernel"]
        H += [f"; @launch kernel=p1_kernel grid=(512,1,1) block=(256,1,1) lds={LDS}",
              f"; @launch kernel=p2_kernel grid=(256,1,1) block=(256,1,1) lds={LDS}",
              f"; @launch kernel=p3_kernel grid=(256,1,1) block=(256,1,1) lds={LDS}"]
        a.raw('.amdgcn_target "amdgcn-amd-amdhsa--gfx950"')
        kstart(a, ks[0]); prologue(a, 512, False)
        a("s_cmp_ge_u32 s2, 256\ns_cbranch_scc1 L_roleF")
        qkv(a, False); a("s_endpgm")
        a.raw(".p2align 6"); a.label("L_roleF")
        ffn1(a, False, "L_exit_p1_kernel"); kend(a)
        kstart(a, ks[1]); prologue(a, 256, False); attention(a, False); kend(a)
        kstart(a, ks[2]); prologue(a, 256, False); ffn2(a, False); kend(a)
    else:
        ks = [NAME + "_kernel"]
        H += [f"; @launch grid=(512,1,1) block=(256,1,1) lds={LDS}"]
        a.raw('.amdgcn_target "amdgcn-amd-amdhsa--gfx950"')
        kstart(a, ks[0]); prologue(a, 512, True)
        a("s_cmp_ge_u32 s2, 256\ns_cbranch_scc1 L_roleF")
        a("s_setprio 2")
        qkv(a, True)
        a(f"s_mov_b32 s{S_K0}, {WS_RECK}")
        a("s_barrier")
        attention(a, True); a("s_endpgm")
        a.raw(".p2align 6"); a.label("L_roleF")
        ffn1(a, True, "L_idle1")
        a("s_branch L_stage2")
        a.label("L_idle1")
        epoch_update(a)
        a.label("L_stage2")
        ffn2(a, True); kend(a)
    return "\n".join(H) + "\n" + a.text() + "".join(KD.format(k=k) for k in ks)

if __name__ == "__main__":
    mode = sys.argv[1]
    open(sys.argv[2], "w").write(gen(mode))
```

```python
import sys, math, struct

NAME = "gated_mix__grouped_kv_mqa__glu_gated_geglu__prompt"

WS_EPOCH = 0x0
WS_ACK = 0x6000
WS_KP = 0x10000
WS_VP = 0x20000
WS_G = 0x30000
WS_RECK = 0x40000
WS_PRE = 0x50000
WS_FLH = 0x80000
WS_FLO = 0xA0000
WS_QP = 0x100000
WS_OP = 0x300000
WS_HP = 0x500000
WS_DIAG = 0xE00000
WS_SIZE = 0x10000000
OPT = dict(prioA=1, prioF=2, prioG=2, prioD=0, prioL=3, sleep=4, sc1=0, rot=4, rot2=7, thr=60, clk=0, barpos=0, kvwin=2, touch=0, trig=0, qslots=3, prioQ=3, early=6, rsh=3, cpf=0)
DIAG = False

LOG2E = 1.4426950408889634
def f2u(x): return struct.unpack("<I", struct.pack("<f", x))[0]
def SC(): return " sc1" if OPT["sc1"] else ""

class Asm:
    def __init__(self): self.L = []; self.uid = 0
    def __call__(self, s):
        for line in s.split("\n"): self.L.append("    " + line.strip())
    def label(self, n): self.L.append(n + ":")
    def raw(self, s): self.L.append(s)
    def newlabel(self, p):
        self.uid += 1
        return f"L_{p}_{self.uid}"
    def text(self): return "\n".join(self.L) + "\n"

def vr(a, n=1): return f"v{a}" if n == 1 else f"v[{a}:{a+n-1}]"

S_X, S_WQ, S_WK, S_WV, S_WO, S_BX, S_WG, S_WU = 16, 18, 20, 22, 24, 26, 28, 30
S_WD, S_GW, S_OUT, S_DBG, S_WSP = 32, 34, 36, 38, 40
R_X, R_WS, R_W0, R_W1, R_OUT = 44, 48, 52, 56, 60
S_WAVE, S_TAG = 64, 65
S_T = 66
S_ID, S_M0B = 80, 81
S_A, S_B, S_C, S_D, S_E, S_F = 82, 83, 84, 85, 86, 87
S_G, S_H = 88, 89
S_K0, S_K1, S_K2, S_K3 = 90, 91, 92, 93
W = S_WAVE
WSR = f"s[{R_WS}:{R_WS+3}]"
def rs(r): return f"s[{r}:{r+3}]"

STAMP_REGS = [4, 6, 8, 10, 12, 14, 42, 94, 96, 98, 100]
def stamp(a, i, force=False):
    if OPT.get("fst") and getattr(a, "roleF", 0) and 5 <= i <= 9 and not force: return
    if DIAG: a(f"{'s_memtime' if OPT['clk'] else 's_memrealtime'} s[{STAMP_REGS[i]}:{STAMP_REGS[i]+1}]")
def stamp_init(a):
    if DIAG:
        for r in STAMP_REGS[1:]: a(f"s_mov_b32 s{r}, 0")
def stamp_dump(a):
    if not DIAG: return
    a("s_waitcnt vmcnt(0) lgkmcnt(0)")
    stamp(a, 10)
    a("s_waitcnt lgkmcnt(0)")
    a(f"s_lshl_b32 s{S_T}, s2, 2\ns_add_u32 s{S_T}, s{S_T}, s{W}\ns_lshl_b32 s{S_T}, s{S_T}, 6\ns_add_u32 s{S_T}, s{S_T}, {WS_DIAG}")
    a("s_mov_b64 exec, 1\nv_mov_b32 v1, 0")
    for i, r in enumerate(STAMP_REGS):
        a(f"v_mov_b32 v2, s{r}\nbuffer_store_dword v2, v1, {WSR}, s{S_T} offen offset:{4*i}\ns_nop 1")

def srd(a, r, p, size):
    a(f"s_mov_b32 s{r}, s{p}\ns_mov_b32 s{r+1}, s{p+1}\ns_mov_b32 s{r+2}, {size:#x}\ns_mov_b32 s{r+3}, 0x20000")

def kernarg_wait(a):
    a("s_waitcnt lgkmcnt(0)")
    a(f"s_load_dword s{S_TAG}, s[40:41], {WS_EPOCH}")
    srd(a, R_X, S_X, 2048 * 1024)

def finish_tag_ack(a, v0_, v1_):
    srd(a, R_WS, S_WSP, WS_SIZE)
    a(f"s_lshl_b32 s{S_T+2}, s2, 4\ns_lshl_b32 s{S_T+3}, s{W}, 2\ns_add_u32 s{S_T+2}, s{S_T+2}, s{S_T+3}")
    a(f"s_add_u32 s{S_T+2}, s{S_T+2}, {WS_ACK}")
    a(f"v_mov_b32 v{v1_}, 0")
    a("s_waitcnt lgkmcnt(0)")
    a(f"s_mul_i32 s{S_TAG}, s{S_TAG}, 0x9E3779B1")
    a(f"s_add_u32 s{S_TAG}, s{S_TAG}, 0x7F4A7C15")
    a(f"v_mov_b32 v{v0_}, s{S_TAG}")
    a("s_mov_b64 exec, 1")
    a(f"buffer_store_dword v{v0_}, v{v1_}, {WSR}, s{S_T+2} offen sc1")
    if OPT["touch"]:
        a("s_mov_b64 exec, 0xff")
        a(f"v_lshlrev_b32 v{v0_}, 21, v0")
        a(f"buffer_load_dword v{v0_}, v{v0_}, {WSR}, 0 offen offset:256")
        srd(a, R_OUT, S_OUT, 2048 * 1024)
        a(f"v_lshlrev_b32 v{v1_}, 18, v0")
        a(f"buffer_load_dword v{v1_}, v{v1_}, {rs(R_OUT)}, 0 offen")
    a("s_mov_b64 exec, -1")

def dma(a, vaddr, r, soff_reg, soff_base, soff_imm, lds_imm):
    a(f"s_add_u32 m0, s{S_M0B}, {lds_imm}")
    a(f"s_add_u32 s{soff_reg}, s{soff_base}, {soff_imm}")
    a(f"buffer_load_dwordx4 v{vaddr}, {rs(r)}, s{soff_reg} offen lds")

def wave_max(a, v):
    for m in ("row_shr:1", "row_shr:2", "row_shr:4", "row_shr:8", "row_bcast:15 row_mask:0xa", "row_bcast:31 row_mask:0xc"):
        a("s_nop 1")
        a(f"v_max_u32_dpp v{v}, v{v}, v{v} {m}")

def poll(a, loads, regs, sleep=None):
    lab = a.newlabel("poll"); out = a.newlabel("polled")
    sleep = sleep or OPT["sleep"]
    masked = len(loads) == 1 and len(regs) == 1
    a(f"s_mov_b32 s{S_T+10}, 0x40000")
    a.label(lab)
    for l in loads: a(l)
    a("s_waitcnt vmcnt(0)")
    a(f"v_cmp_ne_u32 vcc, s{S_TAG}, v{regs[0]}")
    for r in regs[1:]:
        a(f"v_cmp_ne_u32 s[{S_T+12}:{S_T+13}], s{S_TAG}, v{r}")
        a(f"s_or_b64 vcc, vcc, s[{S_T+12}:{S_T+13}]")
    a(f"s_cbranch_vccz {out}")
    if masked: a("s_mov_b64 exec, vcc")
    a(f"s_sleep {sleep}")
    a(f"s_sub_u32 s{S_T+10}, s{S_T+10}, 1\ns_cmp_lg_u32 s{S_T+10}, 0\ns_cbranch_scc1 {lab}")
    a.label(out)
    if masked: a("s_mov_b64 exec, -1")

def x_src_addr(a, V, T0, T1, T2):
    a(f"v_lshrrev_b32 v{T0}, 3, v0\nv_and_b32 v{T1}, 7, v0\nv_lshrrev_b32 v{T2}, 1, v{T0}")
    a(f"s_and_b32 s{S_T}, s{W}, 1\ns_lshl_b32 s{S_T}, s{S_T}, 2")
    a(f"v_or_b32 v{V}, s{S_T}, v{T2}\nv_xor_b32 v{V}, v{V}, v{T1}\nv_lshlrev_b32 v{V}, 4, v{V}")
    a(f"v_lshl_add_u32 v{V}, v{T0}, 10, v{V}")

def x_read_addr(a, V, T0, T1, T2, sbase=None):
    a(f"v_and_b32 v{T0}, 31, v0\nv_lshrrev_b32 v{T1}, 5, v0\nv_bfe_u32 v{T2}, v0, 1, 3\nv_xor_b32 v{T2}, v{T2}, v{T1}")
    a(f"v_lshlrev_b32 v{T0}, 7, v{T0}")
    if sbase is not None: a(f"v_add_u32 v{T0}, s{sbase}, v{T0}")
    for ks in range(4):
        a(f"v_xor_b32 v{V+ks}, {2*ks}, v{T2}\nv_lshl_add_u32 v{V+ks}, v{V+ks}, 4, v{T0}")

PART = 2176
LDS_Q = 8 * 4 * PART
LDS_X = LDS_Q + 8192

def kvg(a, half):
    VXS, VLIN, VXR, VER = 2, 4, 8, 6
    T0, T1, T2 = 12, 13, 14
    done = a.newlabel("kvgdone")
    a(f"v_lshlrev_b32 v{VLIN}, 4, v0")
    a(f"s_and_b32 s{S_T}, s{S_ID}, 1\ns_lshl_b32 s{S_T}, s{S_T}, 5\ns_and_b32 s{S_T+1}, s{S_ID}, 6\ns_lshl_b32 s{S_T+1}, s{S_T+1}, 2")
    a(f"s_add_u32 s{S_T}, s{S_T}, s{S_T+1}\ns_bfe_u32 s{S_T+1}, s{S_ID}, 0x20003\ns_lshl_b32 s{S_T+1}, s{S_T+1}, 1\ns_add_u32 s{S_F}, s{S_T}, s{S_T+1}")
    if half: a(f"s_add_u32 s{S_F}, s{S_F}, 1")
    x_src_addr(a, VXS, T0, T1, T2)
    a(f"s_lshl_b32 s{S_C}, s{S_F}, 15\ns_lshl_b32 s{S_T}, s{W}, 13\ns_add_u32 s{S_C}, s{S_C}, s{S_T}")
    kernarg_wait(a)
    srd(a, R_W0, S_WK, 16384); srd(a, R_W1, S_WV, 16384); srd(a, R_OUT, S_GW, 1024)
    dma(a, VLIN, R_OUT, S_T, S_M0B, 0, 65536)
    for c in range(8):
        dma(a, VXS, R_X, S_T, S_C, c * 128, c * 4096)
        if c % 2 == 0:
            dma(a, VLIN, R_W0, S_T, S_M0B, (c // 2) * 4096, 32768 + (c // 2) * 4096)
            dma(a, VLIN, R_W1, S_T, S_M0B, (c // 2) * 4096, 49152 + (c // 2) * 4096)
    x_read_addr(a, VXR, T0, T1, T2)
    a(f"v_bfe_u32 v{T0}, v0, 2, 2\nv_lshl_add_u32 v{T0}, v{T1}, 3, v{T0}\nv_and_b32 v{T2}, 3, v0\nv_lshlrev_b32 v{T2}, 3, v{T2}")
    a(f"v_lshl_add_u32 v{VER}, v{T0}, 5, v{T2}")
    a(f"v_lshlrev_b32 v7, 4, v{T1}\nv_add_u32 v7, 0x10000, v7")
    finish_tag_ack(a, 18, 19)
    a(f"s_waitcnt vmcnt({1 + 2*OPT['touch']})")
    a("s_barrier")
    ACC2 = 48
    XF, EF = 64, 96
    labs = {v: a.newlabel("kvg" + v) for v in "KVG"}
    pub = a.newlabel("kvgpub")
    for key, l in ((1, labs["V"]), (2, labs["G"]), (3, pub)):
        a(f"s_cmp_eq_u32 s{W}, {key}\ns_cbranch_scc1 {l}")
    for v in "KVG":
        a.label(labs[v])
        def reads(n):
            c, ks, b = n // 4, n % 4, n % 4
            a(f"ds_read_b128 {vr(XF+4*b,4)}, v{VXR+ks} offset:{c*4096}")
            if v in "KV":
                o = (32768 if v == "K" else 49152) + n * 512
                a(f"ds_read_b64_tr_b16 {vr(EF+4*b,2)}, v{VER} offset:{o}")
                a(f"ds_read_b64_tr_b16 {vr(EF+4*b+2,2)}, v{VER} offset:{o + 128}")
            else:
                a(f"ds_read_b128 {vr(EF+4*b,4)}, v7 offset:{n*32}")
        nrd = 3 if v in "KV" else 2
        for n in range(3): reads(n)
        for n in range(32):
            if n + 3 < 32: reads(n + 3)
            a(f"s_waitcnt lgkmcnt({nrd * min(3, 31 - n)})")
            b = n % 4
            ce = "0" if n == 0 else vr(ACC2, 16)
            if v == "V": a(f"v_mfma_f32_32x32x16_bf16 {vr(ACC2,16)}, {vr(XF+4*b,4)}, {vr(EF+4*b,4)}, {ce}")
            else: a(f"v_mfma_f32_32x32x16_bf16 {vr(ACC2,16)}, {vr(EF+4*b,4)}, {vr(XF+4*b,4)}, {ce}")
        a("s_nop 15")
        P = 64
        if v == "K":
            for j in range(8): a(f"v_mul_f32 v{ACC2+j}, {f2u(0.25*LOG2E):#x}, v{ACC2+j}")
            for j in range(4): a(f"v_cvt_pk_bf16_f32 v{P+j}, v{ACC2+2*j}, v{ACC2+2*j+1}")
            a(f"v_and_b32 v{T1}, 0x33, v0\nv_bfe_u32 v{T2}, v0, 2, 1\nv_lshl_or_b32 v{T1}, v{T2}, 3, v{T1}")
            a(f"v_bfe_u32 v{T2}, v0, 3, 1\nv_lshl_or_b32 v{T1}, v{T2}, 2, v{T1}\nv_lshlrev_b32 v{T1}, 4, v{T1}")
            a(f"s_lshl_b32 s{S_T}, s{S_F}, 10\ns_add_u32 s{S_T}, s{S_T}, {WS_KP}")
            a(f"buffer_store_dwordx4 {vr(P,4)}, v{T1}, {WSR}, s{S_T} offen sc1")
            a(f"v_mul_f32 v{T0}, v{ACC2}, v{ACC2}")
            for j in range(1, 8): a(f"v_fmac_f32 v{T0}, v{ACC2+j}, v{ACC2+j}")
            a(f"v_mov_b32 v15, v{T0}\ns_nop 1\nv_permlane32_swap_b32 v{T0}, v15\nv_add_f32 v15, v{T0}, v15")
            wave_max(a, 15)
        if v == "V":
            for j in range(8): a(f"v_cvt_pk_bf16_f32 v{P+j}, v{ACC2+2*j}, v{ACC2+2*j+1}")
            a(f"v_and_b32 v{T1}, 16, v0\nv_cmp_ne_u32 vcc, 0, v{T1}")
            a(f"s_lshl_b32 s{S_T}, s{S_F}, 10\ns_add_u32 s{S_T}, s{S_T}, {WS_VP}")
            for j in range(4): a(f"v_cndmask_b32 v{P+j}, v{P+j}, v{P+4+j}, vcc")
            a(f"buffer_store_dwordx4 {vr(P,4)}, v{VLIN}, {WSR}, s{S_T} offen sc1")
        if v == "G":
            a(f"v_mul_f32 v{T0}, {f2u(-LOG2E):#x}, v{ACC2}\nv_exp_f32 v{T0}, v{T0}\nv_and_b32 v{T1}, 31, v0")
            a(f"v_add_f32 v{T0}, 1.0, v{T0}\nv_rcp_f32 v{T0}, v{T0}\nv_lshlrev_b32 v{T1}, 2, v{T1}")
            a(f"s_lshl_b32 s{S_T}, s{S_F}, 7\ns_add_u32 s{S_T}, s{S_T}, {WS_G}")
            a(f"buffer_store_dword v{T0}, v{T1}, {WSR}, s{S_T} offen sc1")
        if v != "G": a(f"s_branch {pub}")
    a.label(pub)
    a(f"v_mov_b32 v14, s{S_TAG}\ns_lshl_b32 s{S_T+1}, s{S_F}, {OPT['rsh']}\ns_add_u32 s{S_T+1}, s{S_T+1}, {WS_RECK}\nv_mov_b32 v{T0}, 0")
    a("s_waitcnt vmcnt(0)")
    a("s_barrier")
    stamp(a, 3)
    a(f"s_cmp_lg_u32 s{W}, 0\ns_cbranch_scc1 {done}")
    a("s_mov_b32 exec_lo, 0\ns_mov_b32 exec_hi, 0x80000000")
    a(f"buffer_store_dwordx2 v[14:15], v{T0}, {WSR}, s{S_T+1} offen sc1")
    a("s_mov_b64 exec, -1")
    a.label(done)

def qproj(a):
    VXS, VWS, VLIN, VXR, VWR, VER, VGR = 2, 3, 4, 8, 5, 6, 7
    T0, T1, T2 = 12, 13, 14
    a(f"s_and_b32 s{S_T}, s{S_ID}, 1\ns_lshl_b32 s{S_T}, s{S_T}, 4\ns_lshr_b32 s{S_T+1}, s{S_ID}, 3\ns_and_b32 s{S_T+3}, s{S_ID}, 6")
    a(f"s_lshl_b32 s{S_T+2}, s{S_T+3}, 1\ns_add_u32 s{S_T+2}, s{S_T+2}, s{S_T+1}\ns_add_u32 s{S_T+2}, s{S_T+2}, 4\ns_and_b32 s{S_T+2}, s{S_T+2}, 15")
    a(f"s_add_u32 s{S_A}, s{S_T}, s{S_T+2}\ns_lshr_b32 s{S_T+1}, s{S_T+1}, 4\ns_add_u32 s{S_B}, s{S_T+3}, s{S_T+1}")
    x_src_addr(a, VXS, T0, T1, T2)
    a(f"v_and_b32 v{T2}, 1, v{T2}\nv_lshlrev_b32 v{T2}, 2, v{T2}\nv_xor_b32 v{VWS}, v{T2}, v{T1}\nv_lshlrev_b32 v{VWS}, 4, v{VWS}")
    a(f"v_lshl_add_u32 v{VWS}, v{T0}, 10, v{VWS}\nv_lshlrev_b32 v{VLIN}, 4, v0")
    a(f"s_lshl_b32 s{S_C}, s{S_A}, 16\ns_lshl_b32 s{S_T}, s{W}, 13\ns_add_u32 s{S_C}, s{S_C}, s{S_T}")
    a(f"s_lshl_b32 s{S_D}, s{S_B}, 7\ns_add_u32 s{S_D}, s{S_D}, s{S_T}")
    a(f"s_and_b32 s{S_T}, s{W}, 1\ns_lshl_b32 s{S_F}, s{S_A}, 1\ns_add_u32 s{S_F}, s{S_F}, s{S_T}   ; tt\ns_lshl_b32 s{S_E}, s{S_T}, 10")
    lab = a.newlabel("havearg")
    a(f"s_cmp_ge_u32 s{S_ID}, 224\ns_cbranch_scc1 {lab}")
    kernarg_wait(a)
    a.label(lab)
    srd(a, R_W0, S_WQ, 512 * 1024)
    def addrs():
        a(f"s_and_b32 s{S_T}, s{W}, 1\ns_lshl_b32 s{S_T}, s{S_T}, 12")
        x_read_addr(a, VXR, T0, T1, T2, S_T)
        a(f"v_bfe_u32 v{T0}, v0, 2, 2\nv_lshl_add_u32 v{T0}, v{T1}, 3, v{T0}\nv_and_b32 v{T2}, 3, v0\nv_lshlrev_b32 v{T2}, 3, v{T2}")
        a(f"v_lshl_add_u32 v{VER}, v{T0}, 5, v{T2}\nv_lshl_add_u32 v{VWR}, v{T0}, 7, v{T2}")
        a(f"v_bfe_u32 v{T0}, v0, 4, 1\nv_bfe_u32 v{T2}, v0, 3, 1\nv_lshl_or_b32 v{T0}, v{T2}, 1, v{T0}\ns_and_b32 s{S_T}, s{W}, 2")
        a(f"v_xor_b32 v{T0}, s{S_T}, v{T0}\nv_lshl_add_u32 v{VWR}, v{T0}, 5, v{VWR}\nv_add_u32 v{VWR}, 0x2000, v{VWR}")
        a(f"v_lshlrev_b32 v{VGR}, 4, v{T1}")
        lab = a.newlabel("acked")
        a(f"s_cmp_ge_u32 s{S_ID}, 224\ns_cbranch_scc1 {lab}")
        finish_tag_ack(a, 18, 19)
        a.label(lab)
        a(f"v_lshlrev_b32 v28, {OPT['rsh']}, v0\ns_mov_b32 s{S_K0}, {WS_RECK}\nv_mov_b32 v26, 0")
    NA = 1 + 2 * OPT["touch"]
    ACC, ACK, ACG = 32, 48, 96
    XF, WF, EF, GF = 64, 72, 80, 88
    duty = a.newlabel("duty"); lv = a.newlabel("dutyV"); done = a.newlabel("qdone")
    def loop(v, NS, SZ, issue, per):
        def reads(c, ks, b):
            s = (c % NS) * SZ
            a(f"ds_read_b128 {vr(XF+4*b,4)}, v{VXR+ks} offset:{s}")
            a(f"ds_read_b64_tr_b16 {vr(WF+4*b,2)}, v{VWR} offset:{s + ks*2048}")
            a(f"ds_read_b64_tr_b16 {vr(WF+4*b+2,2)}, v{VWR} offset:{s + ks*2048 + 512}")
            if v in "KV":
                o = s + (16384 if v == "K" else 18432) + ks * 512
                a(f"ds_read_b64_tr_b16 {vr(EF+4*b,2)}, v{VER} offset:{o}\nds_read_b64_tr_b16 {vr(EF+4*b+2,2)}, v{VER} offset:{o + 128}")
            if v == "K": a(f"ds_read_b128 {vr(GF+4*b,4)}, v{VGR} offset:{61440 + c*128 + ks*32}")
        nrd = {"N": 3, "K": 6, "V": 5}[v]
        for c in range(8):
            later = min(7, max(NS - 1, c + NS - 2)) - c
            a(f"s_waitcnt vmcnt({per*later})")
            a("s_barrier")
            if c == 0: stamp(a, 1)
            if c >= 1 and c + NS - 1 < 8: issue(c + NS - 1)
            if c == OPT["early"]:
                lab = a.newlabel("noearly")
                a(f"s_cmp_lg_u32 s{W}, 0\ns_cbranch_scc1 {lab}")
                a(f"buffer_load_dwordx2 v[26:27], v28, {WSR}, s{S_K0} offen sc1")
                a.label(lab)
            reads(c, 0, 0)
            for ks in range(4):
                b = ks & 1
                if ks < 3:
                    reads(c, ks + 1, b ^ 1); a(f"s_waitcnt lgkmcnt({nrd})")
                else:
                    a("s_waitcnt lgkmcnt(0)")
                cc = (lambda r: "0") if (c == 0 and ks == 0) else (lambda r: vr(r, 16))
                if v == "K":
                    a(f"v_mfma_f32_32x32x16_bf16 {vr(ACK,16)}, {vr(EF+4*b,4)}, {vr(XF+4*b,4)}, {cc(ACK)}")
                    a(f"v_mfma_f32_32x32x16_bf16 {vr(ACG,16)}, {vr(GF+4*b,4)}, {vr(XF+4*b,4)}, {cc(ACG)}")
                if v == "V": a(f"v_mfma_f32_32x32x16_bf16 {vr(ACK,16)}, {vr(XF+4*b,4)}, {vr(EF+4*b,4)}, {cc(ACK)}")
                a(f"v_mfma_f32_32x32x16_bf16 {vr(ACC,16)}, {vr(WF+4*b,4)}, {vr(XF+4*b,4)}, {cc(ACC)}")
        a("s_nop 15")
    def issue_base(c, s):
        for j in range(2): dma(a, VXS, R_X, S_T, S_C, j * 32768 + c * 128, s + j * 4096)
        for j in range(2): dma(a, VWS, R_W0, S_T, S_D, c * 65536 + j * 32768, s + 8192 + j * 4096)
    NS = OPT["qslots"]
    a(f"s_setprio {OPT['prioQ']}")
    issue = lambda c: issue_base(c, (c % NS) * 16384)
    for c in range(NS): issue(c)
    addrs()
    loop("N", NS, 16384, issue, 4)
    a(f"s_setprio {OPT['prioL']}")
    stamp(a, 2)
    P = 72
    for j in range(8): a(f"v_cvt_pk_bf16_f32 v{P+j}, v{ACC+2*j}, v{ACC+2*j+1}")
    a(f"v_bfe_u32 v{T0}, v0, 3, 2\nv_lshlrev_b32 v{T0}, 10, v{T0}\nv_and_b32 v{T1}, 32, v0\nv_lshl_add_u32 v{T0}, v{T1}, 4, v{T0}")
    a(f"v_and_b32 v{T1}, 7, v0\nv_lshl_add_u32 v{T0}, v{T1}, 4, v{T0}")
    a(f"s_and_b32 s{S_T}, s{W}, 1\ns_lshl_b32 s{S_T}, s{S_T}, 12\ns_and_b32 s{S_T+1}, s{W}, 2\ns_lshl_b32 s{S_T+1}, s{S_T+1}, 7")
    a(f"s_add_u32 s{S_T}, s{S_T}, s{S_T+1}\ns_add_u32 s{S_T}, s{S_T}, {LDS_Q}\nv_add_u32 v{T0}, s{S_T}, v{T0}")
    a(f"ds_write_b128 v{T0}, {vr(P,4)}\nds_write_b128 v{T0}, {vr(P+4,4)} offset:128")
    a(f"v_mul_f32 v20, v{ACC}, v{ACC}\nv_mul_f32 v22, v{ACC+8}, v{ACC+8}")
    for i in range(1, 8): a(f"v_fmac_f32 v20, v{ACC+i}, v{ACC+i}\nv_fmac_f32 v22, v{ACC+8+i}, v{ACC+8+i}")
    a("s_nop 1\nv_permlane32_swap_b32 v20, v22\nv_add_f32 v14, v20, v22")
    a(f"s_lshl_b32 s{S_T}, s{W}, 8\ns_add_u32 s{S_T}, s{S_T}, {LDS_X}\nv_lshl_add_u32 v{T0}, v0, 2, s{S_T}\nds_write_b32 v{T0}, v14")
    a("s_waitcnt lgkmcnt(0)")
    a("s_barrier")
    if DIAG:
        l3 = a.newlabel("st3")
        a(f"s_cmp_ge_u32 s{S_ID}, 224\ns_cbranch_scc1 {l3}"); stamp(a, 3); a.label(l3)
    lab = a.newlabel("nonorm")
    a(f"s_cmp_lg_u32 s{W}, 0\ns_cbranch_scc1 {lab}")
    a(f"ds_read2st64_b32 v[20:21], v{T0} offset0:1 offset1:2\nds_read_b32 v22, v{T0} offset:768")
    a("s_waitcnt vmcnt(0) lgkmcnt(0)")
    a("v_max3_u32 v18, v14, v20, v21\nv_max_u32 v18, v18, v22")
    wave_max(a, 18)
    a(f"s_nop 0\nv_readlane_b32 s{S_G}, v18, 63")
    a.label(lab)

def attention(a):
    VL16, VIDX, VL4, VO, VGO, VLQ = 1, 2, 3, 4, 5, 12
    QB = 8; SB = (16, 32); OA = 48; KR, VR_ = 64, 128
    def vfix(t):
        for j in range(4): a(f"v_permlane16_swap_b32 v{VR_+8*t+j}, v{VR_+8*t+4+j}")
    def S(t, buf, c="0"): a(f"v_mfma_f32_32x32x16_bf16 {vr(SB[buf],16)}, {vr(KR+4*t,4)}, {vr(QB,4)}, {c}")
    def PV(t, s, buf): a(f"v_smfmac_f32_32x32x32_bf16 {vr(OA,16)}, {vr(VR_+8*t+4*s,4)}, {vr(SB[buf]+8*s,8)}, v{VIDX}")
    def EX(buf, i): a(f"v_exp_f32 v{SB[buf]+i}, v{SB[buf]+i}")
    def flush(base):
        a(f"ds_write_b128 v{VL16}, {vr(OA,4)} offset:{base}")
        a(f"ds_write_b128 v{VL16}, {vr(OA+4,4)} offset:{base+1024}")
        a(f"ds_write_b32 v{VL4}, v{OA+8} offset:{base+2048}")
    def zero_o():
        for j in range(0, 8, 2): a(f"v_mov_b64 {vr(OA+j,2)}, 0")
        a(f"v_mov_b32 v{OA+8}, 0")
    if OPT.get("twice"):
        a(f"s_mov_b32 s{S_H}, 2"); stamp(a, 3); a.label("L_twice")
    a(f"v_lshlrev_b32 v{VL16}, 4, v0\nv_and_b32 v{VL4}, 31, v0\nv_lshlrev_b32 v{VL4}, 2, v{VL4}\nv_mov_b32 v{VIDX}, 0xdddddddd")
    a(f"v_add_u32 v{VLQ}, {LDS_Q}, v{VL16}")
    a(f"v_bfe_u32 v6, v0, 3, 2\nv_lshlrev_b32 v{VO}, 10, v6\nv_and_b32 v6, 32, v0\nv_lshl_add_u32 v{VO}, v6, 4, v{VO}")
    a(f"v_and_b32 v6, 7, v0\nv_lshl_add_u32 v{VO}, v6, 4, v{VO}\nv_lshlrev_b32 v{VGO}, 2, v6")
    a(f"v_and_b32 v6, 11, v0\nv_cmp_eq_u32 vcc, 0, v6\nv_mov_b32 v6, 0x3f803f80\ns_nop 0\nv_cndmask_b32 v6, 0, v6, vcc\nv_mov_b32 v7, v6")
    for t in range(16):
        for j in range(4, 8, 2): a(f"v_mov_b64 {vr(VR_+8*t+j,2)}, v[6:7]")
    for j in range(0, 16, 2): a(f"v_mov_b64 {vr(OA+j,2)}, 0")
    a(f"s_lshl_b32 s{S_D}, s{S_A}, 16\ns_and_b32 s{S_T}, s{W}, 2\ns_lshl_b32 s{S_T}, s{S_T}, 14\ns_add_u32 s{S_D}, s{S_D}, s{S_T}")
    a(f"s_lshl_b32 s{S_T}, s{S_B}, 12\ns_add_u32 s{S_D}, s{S_D}, s{S_T}\ns_and_b32 s{S_T}, s{W}, 1\ns_lshl_b32 s{S_T}, s{S_T}, 8")
    a(f"s_add_u32 s{S_D}, s{S_D}, s{S_T}\ns_add_u32 s{S_D}, s{S_D}, {WS_OP}")
    a(f"s_lshl_b32 s{S_C}, s{S_A}, 8\ns_lshl_b32 s{S_T}, s{W}, 6\ns_add_u32 s{S_C}, s{S_C}, s{S_T}\ns_add_u32 s{S_C}, s{S_C}, {WS_G}")
    a(f"s_lshl_b32 s{S_E}, s{W}, 3\ns_lshr_b32 s{S_T}, s{S_ID}, 3\ns_add_u32 s{S_E}, s{S_E}, s{S_T}")
    if OPT.get("twice"):
        a(f"s_sub_u32 s{S_H}, s{S_H}, 1\ns_cmp_eq_u32 s{S_H}, 0\ns_cbranch_scc1 L_twice2"); stamp(a, 1); a("s_branch L_twice"); a.label("L_twice2"); stamp(a, 2)
    slow = a.newlabel("slow"); red = a.newlabel("reduce")
    lab = a.newlabel("nopoll")
    a(f"s_cmp_lg_u32 s{W}, 0\ns_cbranch_scc1 {lab}")
    seen = a.newlabel("seen")
    a(f"v_cmp_ne_u32 vcc, s{S_TAG}, v26\ns_cbranch_vccz {seen}\ns_mov_b64 exec, vcc")
    poll(a, [f"buffer_load_dwordx2 v[26:27], v28, {WSR}, s{S_K0} offen sc1"], [26])
    a.label(seen)
    a(f"v_mul_f32 v21, s{S_G}, v27")
    a(f"v_cmp_nge_f32 vcc, {f2u(float(OPT['thr'])**2):#x}, v21")
    a(f"v_mov_b32 v16, {LDS_X}\ns_nop 0\ns_cmp_lg_u64 vcc, 0\ns_cselect_b32 s{S_T}, 1, 0\nv_mov_b32 v17, s{S_T}")
    a("ds_write_b32 v16, v17")
    if OPT["trig"]:
        lab2 = a.newlabel("notrig")
        a(f"s_cmp_ge_u32 s{S_ID}, 224\ns_cbranch_scc1 {lab2}")
        a(f"v_mov_b32 v18, 0\ns_lshl_b32 s{S_K1}, s{S_ID}, 7\ns_add_u32 s{S_K1}, s{S_K1}, {WS_PRE}")
        poll(a, [f"buffer_load_dword v20, v18, {WSR}, s{S_K1} offen sc1"], [20], sleep=4)
        a.label(lab2)
    a("s_waitcnt lgkmcnt(0)")
    a.label(lab)
    a("s_barrier")
    stamp(a, 4)
    KW = OPT["kvwin"]
    a(f"v_mov_b32 v16, {LDS_X}\nds_read_b32 v17, v16\nds_read_b128 {vr(QB,4)}, v{VLQ}")
    for t in range(16 + KW):
        if t < 16:
            if t % 2 == 0:
                a(f"s_add_u32 s{S_T}, s{S_E}, {t//2}\ns_and_b32 s{S_T}, s{S_T}, 31\ns_lshl_b32 s{S_T}, s{S_T}, 11")
                a(f"s_add_u32 s{S_T+1}, s{S_T}, {WS_VP}\ns_add_u32 s{S_T}, s{S_T}, {WS_KP}")
            a(f"buffer_load_dwordx4 {vr(KR+4*t,4)}, v{VL16}, {WSR}, s{S_T} offen offset:{(t%2)*1024}{SC()}")
            a(f"buffer_load_dwordx4 {vr(VR_+8*t,4)}, v{VL16}, {WSR}, s{S_T+1} offen offset:{(t%2)*1024}{SC()}")
        if t >= KW - 1 and t - KW + 1 < 16:
            a(f"s_waitcnt vmcnt({2 * (min(t, 15) - (t - KW + 1))})")
            vfix(t - KW + 1)
    a(f"s_mul_i32 s{S_T}, s{W}, {PART}")
    a(f"v_add_u32 v{VL16}, s{S_T}, v{VL16}\nv_add_u32 v{VL4}, s{S_T}, v{VL4}")
    a(f"s_waitcnt lgkmcnt(0)\nv_readfirstlane_b32 s{S_T}, v17")
    a(f"s_setprio {OPT['prioA']}")
    a(f"s_cmp_lg_u32 s{S_T}, 0\ns_cbranch_scc1 {slow}")
    stamp(a, 5)
    S(0, 0)
    a("s_nop 10")
    gl = lambda j, r: a(f"buffer_load_dword v{r}, v{VGO}, {WSR}, s{S_C} offen offset:{32*j}{SC()}")
    for q in range(8):
        for t in range(16):
            g = q * 16 + t
            cur, oth = g & 1, (g & 1) ^ 1
            nt = (t + 1) % 16
            if t == 0:
                if q == 1: stamp(a, 6)
                if q == 4: stamp(a, 7)
                EX(cur, 0); EX(cur, 1)
                if q > 0: PV(15, 1, oth)
                EX(cur, 2); EX(cur, 3); EX(cur, 4)
                S(nt, oth)
                for i in range(5, 16): EX(cur, i)
                if q > 0:
                    flush((q - 1) * 4 * PART); zero_o()
                if q == 7: gl(0, 6); gl(1, 7)
            elif t == 1:
                EX(cur, 0); EX(cur, 1)
                PV(0, 0, oth)
                EX(cur, 2); EX(cur, 3); EX(cur, 4)
                PV(0, 1, oth)
                EX(cur, 5); EX(cur, 6); EX(cur, 7)
                S(nt, oth)
                EX(cur, 8); EX(cur, 9); EX(cur, 10)
                PV(1, 0, cur)
                for i in range(11, 16): EX(cur, i)
                a("s_nop 2")
            else:
                EX(cur, 0); EX(cur, 1)
                PV(t - 1, 1, oth)
                EX(cur, 2); EX(cur, 3); EX(cur, 4)
                if g != 127:
                    if t == 15: a("s_waitcnt lgkmcnt(0)")
                    S(nt, oth)
                EX(cur, 5); EX(cur, 6)
                if t == 14 and q < 7: a(f"ds_read_b128 {vr(QB,4)}, v{VLQ} offset:{(q+1)*1024}")
                for i in range(7, 10): EX(cur, i)
                PV(t, 0, cur)
                for i in range(10, 16): EX(cur, i)
    stamp(a, 8)
    a("s_nop 1")
    PV(15, 1, 1)
    a("s_nop 15")
    flush(7 * 4 * PART)
    a.label(red)
    a(f"s_mul_i32 s{S_T}, s{W}, {2*4*PART}")
    a(f"v_lshl_add_u32 v{VL16}, v0, 4, s{S_T}\nv_and_b32 v{VL4}, 31, v0\nv_lshl_add_u32 v{VL4}, v{VL4}, 2, s{S_T}")
    a("s_waitcnt lgkmcnt(0)")
    a("s_barrier")
    R = 64
    for j in range(2):
        for p in range(4):
            b = (j * 4 + p) * PART; r = R + (j * 4 + p) * 12
            a(f"ds_read_b32 v{r+8}, v{VL4} offset:{b+2048}")
        for p in range(4):
            b = (j * 4 + p) * PART; r = R + (j * 4 + p) * 12
            a(f"ds_read_b128 {vr(r,4)}, v{VL16} offset:{b}")
            a(f"ds_read_b128 {vr(r+4,4)}, v{VL16} offset:{b+1024}")
        r0 = R + j * 48
        a(f"s_waitcnt lgkmcnt(8)")
        a(f"v_add_f32 v{r0+8}, v{r0+8}, v{r0+20}\nv_add_f32 v{r0+32}, v{r0+32}, v{r0+44}\nv_add_f32 v{r0+8}, v{r0+8}, v{r0+32}")
        a(f"v_rcp_f32 v{r0+8}, v{r0+8}")
    for j in range(2):
        r0 = R + j * 48
        a("s_waitcnt vmcnt(0)" if j == 0 else "s_waitcnt lgkmcnt(0)")
        for i in range(0, 8, 2):
            a(f"v_pk_add_f32 {vr(r0+i,2)}, {vr(r0+i,2)}, {vr(r0+12+i,2)}")
            a(f"v_pk_add_f32 {vr(r0+24+i,2)}, {vr(r0+24+i,2)}, {vr(r0+36+i,2)}")
        a(f"v_mul_f32 v{r0+8}, v{r0+8}, v{6+j}")
        for i in range(0, 8, 2):
            a(f"v_pk_add_f32 {vr(r0+i,2)}, {vr(r0+i,2)}, {vr(r0+24+i,2)}")
        for i in range(0, 8, 2):
            a(f"v_pk_mul_f32 {vr(r0+i,2)}, {vr(r0+i,2)}, {vr(r0+8,2)} op_sel_hi:[1,0]")
        for i in range(4):
            a(f"v_cvt_pk_bf16_f32 v{r0+12+i}, v{r0+2*i}, v{r0+2*i+1}")
        a(f"buffer_store_dwordx4 {vr(r0+12,4)}, v{VO}, {WSR}, s{S_D} offen offset:{128*j} sc1")
    a(f"s_lshl_b32 s{S_T}, s{S_A}, 12\ns_lshl_b32 s{S_T+1}, s{S_B}, 9\ns_add_u32 s{S_T}, s{S_T}, s{S_T+1}")
    a(f"s_lshl_b32 s{S_T+1}, s{W}, 7\ns_add_u32 s{S_T}, s{S_T}, s{S_T+1}\ns_add_u32 s{S_T}, s{S_T}, {WS_FLO}")
    a(f"v_mov_b32 v16, s{S_TAG}\nv_mov_b32 v17, 0\ns_mov_b64 exec, 1")
    a("s_waitcnt vmcnt(0)")
    stamp(a, 9)
    a(f"buffer_store_dword v16, v17, {WSR}, s{S_T} offen sc1")
    stamp_dump(a)
    a("s_endpgm")
    a.label(slow)
    loop = a.newlabel("slowq")
    a(f"v_lshlrev_b32 v6, 2, v0\nv_add_u32 v6, {LDS_X + 2048}, v6")
    a(f"s_lshl_b32 s{S_K1}, s{W}, 8\ns_mov_b32 s{S_K0}, 8")
    a.label(loop)
    a(f"ds_read_b128 {vr(QB,4)}, v{VLQ}\nv_add_u32 v{VLQ}, 1024, v{VLQ}")
    zero_o()
    a(f"v_mov_b32 v7, 0xff800000")
    a("s_waitcnt lgkmcnt(0)")
    for t in range(16):
        S(t, 0)
        a("s_nop 12")
        for i in range(0, 16, 2): a(f"v_max3_f32 v7, v7, v{SB[0]+i}, v{SB[0]+i+1}")
    a(f"v_mov_b32 v13, v7\ns_nop 1\nv_permlane32_swap_b32 v7, v13\nv_max_f32 v7, v7, v13")
    a(f"v_add_u32 v13, s{S_K1}, v6\nds_write_b32 v13, v7\ns_waitcnt lgkmcnt(0)\ns_barrier")
    a(f"ds_read2st64_b32 v[14:15], v6 offset0:0 offset1:1\nds_read2st64_b32 v[16:17], v6 offset0:2 offset1:3")
    a("s_waitcnt lgkmcnt(0)")
    a("v_max3_f32 v7, v14, v15, v16\nv_max_f32 v7, v7, v17")
    for i in range(16): a(f"v_sub_f32 v{SB[1]+i}, 0, v7")
    a("s_nop 1")
    for t in range(16):
        S(t, 0, vr(SB[1], 16))
        a("s_nop 12")
        for i in range(16): EX(0, i)
        a("s_nop 1")
        PV(t, 0, 0); PV(t, 1, 0)
    a("s_nop 15")
    flush(0)
    a(f"v_add_u32 v{VL16}, {4*PART}, v{VL16}\nv_add_u32 v{VL4}, {4*PART}, v{VL4}\nv_xor_b32 v6, 1024, v6")
    a(f"s_sub_u32 s{S_K0}, s{S_K0}, 1\ns_cmp_lg_u32 s{S_K0}, 0\ns_cbranch_scc1 {loop}")
    gl(0, 6); gl(1, 7)
    a(f"s_branch {red}")

def ffn1(a):
    S_RS, S_QT = S_K2, S_K3
    S_WB, S_WEND, S_XR, S_REC = S_T + 8, S_T + 9, S_T + 11, S_G
    VXS, VGS, VUS, VXR, VWR = 2, 3, 4, 8, 12
    T0, T1, T2 = 5, 6, 7
    XL, WL = 0, 32768
    x_src_addr(a, VXS, T0, T1, T2)
    a(f"s_lshr_b32 s{S_T+1}, s{S_ID}, 3\ns_bfe_u32 s{S_T}, s{S_ID}, 0x20001\ns_and_b32 s{S_T+2}, s{S_ID}, 1\ns_lshl_b32 s{S_T+2}, s{S_T+2}, 3")
    lidle = a.newlabel("idle1"); lend = a.newlabel("s1end")
    a(f"s_cmp_ge_u32 s{S_T+1}, 28\ns_cbranch_scc1 {lidle}")
    a(f"s_mul_i32 s{S_T}, s{S_T}, 28\ns_add_u32 s{S_T}, s{S_T}, s{S_T+1}\ns_lshr_b32 s{S_B}, s{S_T}, 3   ; fb")
    a(f"s_and_b32 s{S_T}, s{S_T}, 7\ns_add_u32 s{S_A}, s{S_T}, s{S_T+2}   ; tb128")
    a(f"s_movk_i32 s{S_RS}, 3584\ns_lshl_b32 s{S_D}, s{S_B}, 8")
    a(f"s_lshl_b32 s{S_F}, s{S_B}, 1\ns_add_u32 s{S_F}, s{S_F}, s{S_A}   ; rotation")
    a(f"s_and_b32 s{S_F}, s{S_F}, {OPT['rot']}")
    a(f"v_lshrrev_b32 v{T0}, 4, v0\nv_and_b32 v{T1}, 15, v0\nv_lshlrev_b32 v{T2}, 1, v{T0}\nv_xor_b32 v{T1}, v{T1}, v{T2}")
    a(f"v_lshlrev_b32 v{T1}, 4, v{T1}\nv_mul_u32_u24 v{T0}, s{S_RS}, v{T0}\nv_add_u32 v{VGS}, v{T0}, v{T1}")
    a(f"v_xor_b32 v{T1}, 128, v{T1}\nv_add_u32 v{VUS}, v{T0}, v{T1}")
    a(f"s_lshl_b32 s{S_C}, s{S_A}, 17\ns_lshl_b32 s{S_T}, s{W}, 13\ns_add_u32 s{S_C}, s{S_C}, s{S_T}")
    a(f"s_mul_i32 s{S_T}, s{W}, s{S_RS}\ns_lshl_b32 s{S_T}, s{S_T}, 2\ns_add_u32 s{S_WB}, s{S_D}, s{S_T}")
    a(f"s_lshl_b32 s{S_RS}, s{S_RS}, 4\ns_lshl_b32 s{S_T}, s{S_RS}, 5\ns_add_u32 s{S_WEND}, s{S_WB}, s{S_T}")
    a(f"s_mul_i32 s{S_T}, s{S_RS}, s{S_F}\ns_lshl_b32 s{S_T}, s{S_T}, 2\ns_add_u32 s{S_D}, s{S_WB}, s{S_T}")
    q = []
    def issueW1(j, mat):
        s = WL + (j % 6) * 8192
        a(f"s_add_u32 m0, s{S_M0B}, {s + mat*4096}\ns_nop 0")
        a(f"buffer_load_dwordx4 v{(VGS,VUS)[mat]}, {rs((R_W0,R_W1)[mat])}, s{S_D} offen lds"); q.append(("W", j))
        if mat:
            a(f"s_add_u32 s{S_D}, s{S_D}, s{S_RS}")
            if j % 4 == 3: a(f"s_cmp_eq_u32 s{S_D}, s{S_WEND}\ns_cselect_b32 s{S_D}, s{S_WB}, s{S_D}")
    def issueX1(u, j):
        if j == 0:
            a(f"s_add_u32 s{S_XR}, s{S_F}, {u}\ns_and_b32 s{S_XR}, s{S_XR}, 7\ns_lshl_b32 s{S_XR}, s{S_XR}, 7\ns_add_u32 s{S_XR}, s{S_XR}, s{S_C}")
        dma(a, VXS, R_X, S_T, S_XR, j * 32768, XL + (u % 2) * 16384 + j * 4096); q.append(("X", u))
    def issueX(u):
        for j in range(4): issueX1(u, j)
    def issueW(j): issueW1(j, 0); issueW1(j, 1)
    def waitfor(tags):
        idx = max((i for i, t in enumerate(q) if t in tags), default=-1)
        n = len(q) - 1 - idx
        del q[:idx + 1]
        a(f"s_waitcnt vmcnt({n})")
    kernarg_wait(a)
    issueX(0)
    srd(a, R_W0, S_WG, 512 * 3584); srd(a, R_W1, S_WU, 512 * 3584)
    issueW(0); issueW(1); issueW(2); issueX(1); issueW(3); issueW(4); issueW(5)
    finish_tag_ack(a, 68, 69); q += [("ack", 0)] * (1 + 2 * OPT["touch"])
    a(f"s_and_b32 s{S_T}, s{W}, 1\ns_lshl_b32 s{S_T}, s{S_T}, 13")
    x_read_addr(a, VXR, T0, T1, T2, S_T)
    a(f"v_bfe_u32 v{T0}, v0, 2, 2\nv_bfe_u32 v{T2}, v0, 4, 1\nv_lshl_add_u32 v16, v{T1}, 3, v{T0}\nv_lshlrev_b32 v16, 8, v16")
    a(f"v_lshl_add_u32 v16, v{T2}, 12, v16\nv_and_b32 v17, 3, v0\nv_lshl_add_u32 v16, v17, 3, v16\nv_add_u32 v16, {WL}, v16")
    a(f"v_lshl_or_b32 v{T0}, v{T2}, 2, v{T0}\ns_and_b32 s{S_T}, s{W}, 2\ns_lshl_b32 s{S_T}, s{S_T}, 1\nv_xor_b32 v{T0}, s{S_T}, v{T0}")
    for jj in range(4):
        a(f"v_xor_b32 v{VWR+jj}, {jj}, v{T0}\nv_lshl_add_u32 v{VWR+jj}, v{VWR+jj}, 5, v16")
    a(f"v_mov_b32 v64, s{S_TAG}\nv_mov_b32 v65, 0")
    ACC = 128
    FX = (16, 40); FW = (24, 48)
    def rd_list(j):
        b = j & 1
        xs = XL + ((j // 4) % 2) * 16384; wsl = (j % 6) * 8192
        X = [f"ds_read_b128 {vr(FX[b]+4*m,4)}, v{VXR + j%4} offset:{xs + m*4096}" for m in range(2)]
        Wl = [f"ds_read_b64_tr_b16 {vr(FW[b]+4*jj+2*hf,2)}, v{VWR+jj} offset:{wsl + hf*1024}" for jj in range(4) for hf in range(2)]
        return [X[0], Wl[0], Wl[1], X[1]] + Wl[2:]
    waitfor({("X", 0), ("W", 0)})
    a("s_barrier")
    stamp(a, 1)
    for l in rd_list(0): a(l)
    BP = OPT["barpos"]
    for j in range(32):
        b = j & 1
        if OPT.get("fst") and j in (4, 8, 16, 24): stamp(a, {4: 5, 8: 6, 16: 7, 24: 8}[j], True)
        a("s_waitcnt lgkmcnt(0)")
        rl = rd_list(j + 1) if j < 31 else []
        pend = []
        if j + 6 < 32: pend += [lambda j=j: issueW1(j + 6, 0), lambda j=j: issueW1(j + 6, 1)]
        if j % 4 == 3 and j // 4 + 2 < 8: pend += [lambda j=j, p=p: issueX1(j // 4 + 2, p) for p in range(4)]
        first_gap = max(BP - 1, 8 - len(pend)) if len(pend) > 3 else 5
        def sync():
            tags = {("W", j + 1)}
            if (j + 1) % 4 == 0: tags.add(("X", (j + 1) // 4))
            waitfor(tags)
            a("s_barrier")
        if BP == 0 and j < 31: sync()
        for n in range(8):
            jj, m = n // 2, n % 2
            acc = ACC + 16 * n
            c = "0" if j == 0 else vr(acc, 16)
            a(f"v_mfma_f32_32x32x16_bf16 {vr(acc,16)}, {vr(FW[b]+4*jj,4)}, {vr(FX[b]+4*m,4)}, {c}")
            if n == BP - 1 and j < 31: sync()
            if n >= BP - 1:
                for _ in range(3 if BP else 2):
                    if rl: a(rl.pop(0))
            if n >= first_gap and pend: pend.pop(0)()
            if n == 7 and pend: pend.pop(0)()
        assert not rl and not pend, (j, rl, pend)
        if OPT["trig"] and j == OPT["trig"]:
            lab = a.newlabel("nopre")
            a(f"s_cmp_lg_u32 s{W}, 0\ns_cbranch_scc1 {lab}")
            a(f"s_lshl_b32 s{S_T}, s{S_ID}, 7\ns_add_u32 s{S_T}, s{S_T}, {WS_PRE}")
            a(f"s_mov_b64 exec, 1\nbuffer_store_dword v64, v65, {WSR}, s{S_T} offen sc1\ns_mov_b64 exec, -1")
            a.label(lab)
    stamp(a, 2)
    a(f"v_lshlrev_b32 v2, 4, v0")
    a(f"s_lshl_b32 s{S_T}, s{S_A}, 2\ns_and_b32 s{S_T+1}, s{W}, 1\ns_lshl_b32 s{S_T+1}, s{S_T+1}, 1\ns_add_u32 s{S_T}, s{S_T}, s{S_T+1}")
    a(f"s_setprio {OPT['prioG']}")
    c0 = -2.0 * LOG2E * math.sqrt(2.0 / math.pi); c1 = c0 * 0.044715
    a(f"s_mov_b32 s{S_K2}, {f2u(c1):#x}\ns_mov_b32 s{S_K2+1}, {f2u(c1):#x}")
    a(f"v_mov_b32 v4, {f2u(c0):#x}\nv_mov_b32 v5, {f2u(c0):#x}")
    a(f"s_mul_i32 s{S_T}, s{S_T}, 112\ns_lshl_b32 s{S_T+1}, s{S_B}, 3\ns_add_u32 s{S_T}, s{S_T}, s{S_T+1}")
    a(f"s_and_b32 s{S_T+1}, s{W}, 2\ns_lshl_b32 s{S_T+1}, s{S_T+1}, 1\ns_add_u32 s{S_T}, s{S_T}, s{S_T+1}\ns_lshl_b32 s{S_T}, s{S_T}, 10")
    a(f"s_add_u32 s{S_E}, s{S_T}, {WS_HP}\ns_add_u32 s{S_F}, s{S_E}, {112*1024}")
    for jj in range(4):
        A2 = [ACC + 32 * jj, ACC + 32 * jj + 16]
        TT = [16 + 24 * (jj & 1), 16 + 24 * (jj & 1) + 12]
        P2 = [(A2[m] + i, TT[m] + i) for m in range(2) for i in range(0, 8, 2)]
        for g_, t_ in P2: a(f"v_pk_mul_f32 {vr(t_,2)}, {vr(g_,2)}, {vr(g_,2)}")
        for g_, t_ in P2: a(f"v_pk_fma_f32 {vr(t_,2)}, {vr(t_,2)}, s[{S_K2}:{S_K2+1}], v[4:5]")
        for g_, t_ in P2: a(f"v_pk_mul_f32 {vr(t_,2)}, {vr(t_,2)}, {vr(g_,2)}")
        for g_, t_ in P2: a(f"v_exp_f32 v{t_}, v{t_}\nv_exp_f32 v{t_+1}, v{t_+1}")
        for g_, t_ in P2: a(f"v_pk_mul_f32 {vr(g_,2)}, {vr(g_,2)}, {vr(g_+8,2)}")
        for g_, t_ in P2: a(f"v_pk_add_f32 {vr(t_,2)}, {vr(t_,2)}, 1.0 op_sel_hi:[1,0]")
        for g_, t_ in P2: a(f"v_rcp_f32 v{t_}, v{t_}\nv_rcp_f32 v{t_+1}, v{t_+1}")
        a("s_nop 0")
        for g_, t_ in P2: a(f"v_pk_mul_f32 {vr(g_,2)}, {vr(g_,2)}, {vr(t_,2)}")
        for m in range(2):
            for i in range(4): a(f"v_cvt_pk_bf16_f32 v{TT[m]+8+i}, v{A2[m]+2*i}, v{A2[m]+2*i+1}")
            a(f"buffer_store_dwordx4 {vr(TT[m]+8,4)}, v2, {WSR}, s{S_E if m == 0 else S_F} offen offset:{jj*1024} sc1")
    a(f"s_lshl_b32 s{S_T}, s{S_A}, 11\ns_lshl_b32 s{S_T+1}, s{S_B}, 7\ns_add_u32 s{S_T}, s{S_T}, s{S_T+1}\ns_add_u32 s{S_T}, s{S_T}, {WS_FLH}")
    stamp(a, 3)
    a("s_waitcnt vmcnt(0)")
    a("s_barrier")
    stamp(a, 4)
    a(f"s_cmp_lg_u32 s{W}, 0\ns_cbranch_scc1 {lend}")
    a(f"s_mov_b64 exec, 1\nbuffer_store_dword v64, v65, {WSR}, s{S_T} offen sc1\ns_mov_b64 exec, -1")
    a(f"s_branch {lend}")
    a.label(lidle)
    if OPT.get("skipA"): a("s_endpgm")
    a(f"s_setprio 3")
    kvg(a, 0)
    a(f"v_mov_b32 v64, s{S_TAG}\nv_mov_b32 v65, 0")
    if not OPT.get("skipA"): epoch_update(a)
    a.label(lend)

def epoch_update(a):
    lab = a.newlabel("noepoch")
    a(f"s_cmp_lg_u32 s{S_ID}, 224\ns_cbranch_scc1 {lab}\ns_cmp_lg_u32 s{W}, 1\ns_cbranch_scc1 {lab}")
    a(f"v_lshlrev_b32 v2, 4, v0\ns_mov_b32 s{S_T+6}, {WS_ACK}\ns_mov_b32 s{S_T+7}, {WS_ACK+4096}")
    loads, regs = [], []
    for i in range(8):
        loads.append(f"buffer_load_dwordx4 {vr(16+4*i,4)}, v2, {WSR}, s{S_T+6+i//4} offen offset:{(i%4)*1024} sc1")
        regs += [16 + 4*i + j for j in range(4)]
    poll(a, loads, regs, sleep=64)
    a(f"s_mov_b64 exec, 1\nbuffer_store_dword v64, v65, {WSR}, 0 offen offset:{WS_EPOCH} sc1\ns_mov_b64 exec, -1")
    a.label(lab)

def ffn2(a):
    a(f"s_and_b32 s{S_T}, s{S_ID}, 1\ns_lshl_b32 s{S_T}, s{S_T}, 4\ns_and_b32 s{S_T+1}, s{S_ID}, 2\ns_lshl_b32 s{S_T+1}, s{S_T+1}, 2")
    a(f"s_add_u32 s{S_T}, s{S_T}, s{S_T+1}\ns_bfe_u32 s{S_T+1}, s{S_ID}, 0x30003\ns_add_u32 s{S_A}, s{S_T}, s{S_T+1}   ; tb64")
    a(f"s_and_b32 s{S_T}, s{S_ID}, 4\ns_lshr_b32 s{S_T+1}, s{S_ID}, 6\ns_add_u32 s{S_B}, s{S_T}, s{S_T+1}   ; cb")
    srd(a, R_W0, S_WD, 1792 * 1024); srd(a, R_W1, S_WO, 512 * 1024); srd(a, R_OUT, S_OUT, 2048 * 1024)
    VWS, VLIN, VR0, VR1, VG = 2, 3, 4, 5, 6
    T0, T1, T2 = 8, 9, 10
    a(f"v_lshrrev_b32 v{T0}, 3, v0\nv_and_b32 v{T1}, 7, v0\nv_bfe_u32 v{T2}, v0, 4, 1\nv_lshlrev_b32 v{T2}, 2, v{T2}")
    a(f"v_xor_b32 v{VWS}, v{T2}, v{T1}\nv_lshlrev_b32 v{VWS}, 4, v{VWS}\nv_lshl_add_u32 v{VWS}, v{T0}, 10, v{VWS}")
    a(f"v_lshlrev_b32 v{VLIN}, 4, v0")
    a(f"v_lshrrev_b32 v{T1}, 5, v0\nv_bfe_u32 v{T0}, v0, 2, 2\nv_lshl_add_u32 v{T0}, v{T1}, 2, v{T0}\nv_and_b32 v{T2}, 3, v0")
    a(f"v_lshlrev_b32 v{T2}, 3, v{T2}\nv_lshl_add_u32 v{VR0}, v{T0}, 7, v{T2}\nv_bfe_u32 v{T0}, v0, 4, 1\nv_bfe_u32 v{T2}, v0, 3, 1")
    a(f"v_lshl_or_b32 v{T0}, v{T2}, 1, v{T0}\nv_xor_b32 v{T2}, 2, v{T0}")
    a(f"v_lshl_add_u32 v{VR1}, v{T2}, 5, v{VR0}\nv_lshl_add_u32 v{VR0}, v{T0}, 5, v{VR0}")
    a(f"s_lshl_b32 s{S_M0B}, s{W}, 14")
    a(f"v_add_u32 v{VR0}, s{S_M0B}, v{VR0}\nv_add_u32 v{VR1}, s{S_M0B}, v{VR1}")
    a(f"s_lshl_b32 s{S_T}, s{S_B}, 7\ns_add_u32 s{S_C}, s{S_M0B}, s{S_T}")
    a(f"s_mul_i32 s{S_D}, s{S_A}, {2*112*1024}\ns_lshl_b32 s{S_T}, s{W}, 10\ns_add_u32 s{S_D}, s{S_D}, s{S_T}")
    a(f"s_add_u32 s{S_D}, s{S_D}, {WS_HP}\ns_add_u32 s{S_E}, s{S_D}, {112*1024}")
    a(f"s_lshl_b32 s{S_T}, s{S_B}, 1\ns_add_u32 s{S_T}, s{S_T}, s{S_A}\ns_and_b32 s{S_T}, s{S_T}, {OPT['rot2']}")
    a(f"s_mul_i32 s{S_T}, s{S_T}, 7\ns_lshr_b32 s{S_T}, s{S_T}, 1\ns_lshl_b32 s{S_K2}, s{S_T}, 16\ns_lshl_b32 s{S_K3}, s{S_T}, 12")
    ACC, HF, FW = 64, 128, (16, 24)
    NS, D = 28, 8
    q = []
    def issueW(n):
        a(f"s_add_u32 s{S_T+1}, s{S_C}, s{S_K2}")
        for p in range(2):
            dma(a, VWS, R_W0, S_T, S_T + 1, p * 8192, (n % D) * 2048 + p * 1024); q.append(("W", n))
        a(f"s_add_u32 s{S_K2}, s{S_K2}, 65536\ns_cmp_eq_u32 s{S_K2}, {28*65536}\ns_cselect_b32 s{S_K2}, 0, s{S_K2}")
    def issueWo(n):
        for p in range(2):
            dma(a, VWS, R_W1, S_T, S_G, (n - NS) * 16384 + p * 8192, (n % D) * 2048 + p * 1024); q.append(("W", n))
    def issueH(n):
        a(f"s_add_u32 s{S_T}, s{S_D}, s{S_K3}\ns_add_u32 s{S_T+1}, s{S_E}, s{S_K3}")
        a(f"s_add_u32 s{S_K3}, s{S_K3}, 4096\ns_cmp_eq_u32 s{S_K3}, {28*4096}\ns_cselect_b32 s{S_K3}, 0, s{S_K3}")
        a(f"buffer_load_dwordx4 {vr(HF+(n%D)*8,4)}, v{VLIN}, {WSR}, s{S_T} offen{SC()}"); q.append(("H", n))
        a(f"buffer_load_dwordx4 {vr(HF+(n%D)*8+4,4)}, v{VLIN}, {WSR}, s{S_T+1} offen{SC()}"); q.append(("H", n))
    def waitfor(tags):
        idx = max((i for i, t in enumerate(q) if t in tags), default=-1)
        n = len(q) - 1 - idx
        del q[:idx + 1]
        a(f"s_waitcnt vmcnt({n})")
    def rd_list(n):
        b = n & 1
        return [f"ds_read_b64_tr_b16 {vr(FW[b]+4*ct+2*hf,2)}, v{(VR0,VR1)[ct]} offset:{(n%D)*2048 + hf*1024}" for ct in range(2) for hf in range(2)]
    for n in range(OPT.get("wpre", 2)): issueW(n)
    lab = a.newlabel("nopoll")
    a(f"s_cmp_lg_u32 s{W}, 0\ns_cbranch_scc1 {lab}")
    a(f"s_lshr_b32 s{S_T+4}, s{S_A}, 1\ns_lshl_b32 s{S_T+4}, s{S_T+4}, 11\ns_add_u32 s{S_T+4}, s{S_T+4}, {WS_FLH}")
    a(f"s_lshl_b32 s{S_T+5}, s{S_A}, {OPT['rsh']+1}\ns_add_u32 s{S_T+5}, s{S_T+5}, {WS_RECK}")
    a(f"v_lshlrev_b32 v11, 7, v0\nv_add_u32 v11, s{S_T+4}, v11\nv_and_b32 v12, 1, v0\nv_lshlrev_b32 v12, {OPT['rsh']}, v12\nv_add_u32 v12, s{S_T+5}, v12")
    a(f"v_cmp_gt_u32 vcc, 14, v0\ns_nop 1\nv_cndmask_b32 v11, v12, v11, vcc")
    poll(a, [f"buffer_load_dword v13, v11, {WSR}, 0 offen sc1"], [13], sleep=12)
    a.label(lab)
    a("s_waitcnt vmcnt(0)")
    a("s_barrier")
    q.clear()
    stamp(a, 5)
    a(f"s_setprio {OPT['prioD']}")
    for n in range(D):
        if n >= OPT.get("wpre", 2): issueW(n)
        issueH(n)
    a(f"s_lshl_b32 s{S_T}, s{S_A}, 8\ns_add_u32 s{S_T}, s{S_T}, {WS_G}\nv_and_b32 v{T0}, 31, v0\nv_lshlrev_b32 v{T0}, 2, v{T0}")
    for m in range(2):
        a(f"buffer_load_dword v{VG+m}, v{T0}, {WSR}, s{S_T} offen offset:{128*m}{SC()}"); q.append(("G", 0))
    waitfor({("W", 0)})
    for l in rd_list(0): a(l)
    def step(n, bsrc, extra=None):
        b = n & 1
        rl = rd_list(n + 1) if n + 1 < NS else []
        for k in range(4):
            ct, m = k // 2, k % 2
            acc = ACC + 16 * k
            c = "0" if n == 0 else vr(acc, 16)
            a(f"v_mfma_f32_32x32x16_bf16 {vr(acc,16)}, {vr(FW[b]+4*ct,4)}, {vr(bsrc+4*m,4)}, {c}")
            for _ in range(2):
                if rl: a(rl.pop(0))
            if k == 2 and extra: extra()
    for n in range(NS):
        waitfor({("H", n), ("W", n + 1)})
        a("s_waitcnt lgkmcnt(0)")
        step(n, HF + (n % D) * 8, (lambda: issueW(n + D)) if n + D < NS else None)
        if n + D < NS: issueH(n + D)
    stamp(a, 6)
    a(f"s_setprio {OPT['prioG']}")
    a(f"v_lshl_add_u32 v{T0}, v0, 4, s{S_M0B}")
    a(f"v_lshlrev_b32 v{T1}, 4, v0\ns_lshl_b32 s{S_T}, s{W}, 12\nv_add_u32 v{T1}, s{S_T}, v{T1}")
    a(f"s_bitcmp1_b32 s{W}, 0\ns_cselect_b64 vcc, -1, 0\nv_cndmask_b32 v{VG}, v{VG}, v{VG+1}, vcc\nv_sub_f32 v{VG}, 1.0, v{VG}")
    a("s_nop 7")
    for d in range(4):
        for i in range(4): a(f"ds_write_b128 v{T0}, {vr(ACC+16*d+4*i,4)} offset:{d*4096 + i*1024}")
    a("s_waitcnt lgkmcnt(0)")
    a("s_barrier")
    RB = 128
    for src in range(4):
        for i in range(4): a(f"ds_read_b128 {vr(RB+16*src+4*i,4)}, v{T1} offset:{src*16384 + i*1024}")
        if src == 1 or src == 3:
            a(f"s_waitcnt lgkmcnt(0)")
            if src == 3: a("s_barrier")
            for i in range(0, 16, 2):
                a(f"v_pk_add_f32 {vr(RB+16*(src-1)+i,2)}, {vr(RB+16*(src-1)+i,2)}, {vr(RB+16*src+i,2)}")
    a(f"s_lshl_b32 s{S_M0B}, s{W}, 10\ns_lshl_b32 s{S_C}, s{W}, 13\ns_lshl_b32 s{S_T}, s{S_B}, 7\ns_add_u32 s{S_C}, s{S_C}, s{S_T}")
    for p in range(16): dma(a, VWS, R_W1, S_T, S_C, p * 32768, p * 4096)
    OWN, OTH = 64, 80
    for i in range(0, 16, 2): a(f"v_pk_add_f32 {vr(RB+i,2)}, {vr(RB+i,2)}, {vr(RB+32+i,2)}")
    for i in range(0, 16, 2): a(f"v_pk_mul_f32 {vr(OWN+i,2)}, {vr(RB+i,2)}, {vr(VG,2)} op_sel_hi:[1,0]")
    a(f"s_lshl_b32 s{S_T}, s{W}, 14\nv_subrev_u32 v{VR0}, s{S_T}, v{VR0}\nv_subrev_u32 v{VR1}, s{S_T}, v{VR1}")
    a(f"s_and_b32 s{S_T}, s{W}, 2\ns_lshl_b32 s{S_T}, s{S_T}, 14\nv_add_u32 v{VR0}, s{S_T}, v{VR0}\nv_add_u32 v{VR1}, s{S_T}, v{VR1}")
    a(f"s_bitcmp1_b32 s{W}, 1\ns_cselect_b64 vcc, -1, 0\nv_cndmask_b32 v12, v{VR0}, v{VR1}, vcc\nv_cndmask_b32 v{VR1}, v{VR1}, v{VR0}, vcc\nv_mov_b32 v{VR0}, v12")
    a(f"s_lshl_b32 s{S_F}, s{S_A}, 1\ns_and_b32 s{S_T}, s{W}, 1\ns_add_u32 s{S_F}, s{S_F}, s{S_T}   ; tt")
    a(f"s_lshl_b32 s{S_D}, s{S_F}, 15\ns_and_b32 s{S_T}, s{W}, 2\ns_lshl_b32 s{S_T}, s{S_T}, 13\ns_add_u32 s{S_D}, s{S_D}, s{S_T}\ns_add_u32 s{S_D}, s{S_D}, {WS_OP}")
    a(f"s_lshl_b32 s{S_T+4}, s{S_A}, 12\ns_and_b32 s{S_T}, s{W}, 2\ns_lshl_b32 s{S_T}, s{S_T}, 10\ns_add_u32 s{S_T+4}, s{S_T+4}, s{S_T}")
    a(f"s_and_b32 s{S_T}, s{W}, 1\ns_lshl_b32 s{S_T}, s{S_T}, 8\ns_add_u32 s{S_T+4}, s{S_T+4}, s{S_T}\ns_add_u32 s{S_T+4}, s{S_T+4}, {WS_FLO}")
    a(f"v_and_b32 v11, 3, v0\nv_lshlrev_b32 v11, 9, v11\nv_and_b32 v12, 4, v0\nv_lshl_add_u32 v11, v12, 5, v11")
    a(f"s_lshl_b32 s{S_T}, s{W}, 12\ns_add_u32 s{S_T}, s{S_T}, 65536\nv_lshl_add_u32 v{T0}, v0, 4, s{S_T}")
    a(f"s_xor_b32 s{S_T}, s{S_T}, 8192\nv_lshl_add_u32 v{T1}, v0, 4, s{S_T}")
    a(f"v_and_b32 v{T2}, 31, v0\nv_lshlrev_b32 v{T2}, 10, v{T2}\nv_and_b32 v12, 32, v0\nv_lshrrev_b32 v12, 1, v12\nv_add_u32 v{T2}, v{T2}, v12")
    a(f"s_lshl_b32 s{S_E}, s{S_F}, 15\ns_lshl_b32 s{S_T+1}, s{S_B}, 7\ns_add_u32 s{S_E}, s{S_E}, s{S_T+1}")
    a(f"s_and_b32 s{S_T+1}, s{W}, 2\ns_lshl_b32 s{S_T+1}, s{S_T+1}, 5\ns_add_u32 s{S_E}, s{S_E}, s{S_T+1}")
    a("s_waitcnt vmcnt(0)")
    a("s_barrier")
    def rdo(j):
        b = 16 + 8 * (j % 3)
        return [f"ds_read_b64_tr_b16 {vr(b+4*o+2*hf,2)}, v{(VR0,VR1)[o]} offset:{j*2048 + hf*1024}" for o in range(2) for hf in range(2)]
    for j in range(2):
        for l in rdo(j): a(l)
    stamp(a, 7)
    poll(a, [f"buffer_load_dword v13, v11, {WSR}, s{S_T+4} offen sc1"], [13], sleep=2)
    stamp(a, 8)
    for j in range(16):
        if j % 4 == 0 and j: a(f"s_add_u32 s{S_D}, s{S_D}, 4096")
        a(f"buffer_load_dwordx4 {vr(HF+4*j,4)}, v{VLIN}, {WSR}, s{S_D} offen offset:{(j%4)*1024}{SC()}")
    for j in range(16):
        if j + 2 < 16:
            for l in rdo(j + 2): a(l)
        a(f"s_waitcnt vmcnt({15-j}) lgkmcnt({4*min(2, 15-j)})")
        b = 16 + 8 * (j % 3)
        a(f"v_mfma_f32_32x32x16_bf16 {vr(OTH,16)}, {vr(b+4,4)}, {vr(HF+4*j,4)}, {'0' if j == 0 else vr(OTH,16)}")
        a(f"v_mfma_f32_32x32x16_bf16 {vr(OWN,16)}, {vr(b,4)}, {vr(HF+4*j,4)}, {vr(OWN,16)}")
    stamp(a, 9)
    a("s_nop 10")
    for i in range(4): a(f"ds_write_b128 v{T0}, {vr(OTH+4*i,4)} offset:{i*1024}")
    a("s_waitcnt lgkmcnt(0)")
    a("s_barrier")
    for i in range(4): a(f"ds_read_b128 {vr(OTH+4*i,4)}, v{T1} offset:{i*1024}")
    for i in range(4):
        a(f"s_waitcnt lgkmcnt({3-i})")
        a(f"v_pk_add_f32 {vr(OWN+4*i,2)}, {vr(OWN+4*i,2)}, {vr(OTH+4*i,2)}\nv_pk_add_f32 {vr(OWN+4*i+2,2)}, {vr(OWN+4*i+2,2)}, {vr(OTH+4*i+2,2)}")
        a(f"v_cvt_pk_bf16_f32 v{32+2*i}, v{OWN+4*i}, v{OWN+4*i+1}\nv_cvt_pk_bf16_f32 v{33+2*i}, v{OWN+4*i+2}, v{OWN+4*i+3}")
    a("s_nop 1")
    a("v_permlane32_swap_b32 v32, v34\nv_permlane32_swap_b32 v33, v35\nv_permlane32_swap_b32 v36, v38\nv_permlane32_swap_b32 v37, v39")
    a(f"buffer_store_dwordx4 v[32:35], v{T2}, {rs(R_OUT)}, s{S_E} offen")
    a(f"buffer_store_dwordx4 v[36:39], v{T2}, {rs(R_OUT)}, s{S_E} offen offset:32")

KD = """.section .rodata,"a"
.p2align 6
.amdhsa_kernel {k}
  .amdhsa_next_free_vgpr 256
  .amdhsa_next_free_sgpr 102
  .amdhsa_accum_offset 256
  .amdhsa_group_segment_fixed_size 0
  .amdhsa_kernarg_size 104
  .amdhsa_user_sgpr_count 2
  .amdhsa_user_sgpr_kernarg_segment_ptr 1
  .amdhsa_system_sgpr_workgroup_id_x 1
.end_amdhsa_kernel
"""

def gen():
    a = Asm()
    ref = open(f"cdna_kernels/{NAME}.s.ref").read().split("\n")
    H = [l for l in ref if l.startswith(";") and "@launch" not in l]
    H += ["; @launch grid=(512,1,1) block=(256,1,1) lds=81920"]
    k = NAME + "_kernel"
    a.raw(f'.amdgcn_target "amdgcn-amd-amdhsa--gfx950"\n.text\n.globl {k}\n.p2align 8\n.type {k},@function\n{k}:')
    a("s_cmp_ge_u32 s2, 512\ns_cbranch_scc1 L_exit")
    stamp(a, 0); stamp_init(a)
    a("s_load_dwordx16 s[16:31], s[0:1], 0\ns_load_dwordx8 s[32:39], s[0:1], 64\ns_load_dwordx2 s[40:41], s[0:1], 96")
    a(f"v_lshrrev_b32 v1, 6, v0\nv_and_b32 v0, 63, v0\nv_readfirstlane_b32 s{W}, v1\ns_and_b32 s{S_ID}, s2, 255")
    a(f"s_cmp_ge_u32 s2, 256\ns_lshl_b32 s{S_M0B}, s{W}, 10")
    a("s_cmp_ge_u32 s2, 256\ns_cbranch_scc1 L_roleF")
    if OPT.get("skipA"): a("s_endpgm")
    a(f"s_setprio {OPT['prioL']}")
    if OPT["cpf"]:
        a("s_getpc_b64 s[70:71]")
        a.label("L_pc")
        a(f"s_lshr_b32 s72, s{S_ID}, 3\ns_lshl_b32 s72, s72, 2\ns_add_u32 s72, s72, s{W}\ns_lshl_b32 s72, s72, 10")
        a("s_cmp_ge_u32 s72, L_exit - L_pc - 1024\ns_cbranch_scc1 L_nocpf")
        a("s_add_u32 s70, s70, s72\ns_addc_u32 s71, s71, 0")
        a("v_lshlrev_b32 v30, 4, v0\nv_mov_b32 v31, s71\nv_add_co_u32 v30, vcc, s70, v30\ns_nop 1\nv_addc_co_u32 v31, vcc, 0, v31, vcc")
        a("global_load_dwordx4 v[100:103], v[30:31], off")
        a.label("L_nocpf")
    lab = a.newlabel("nokvg")
    a(f"s_cmp_lt_u32 s{S_ID}, 224\ns_cbranch_scc1 {lab}")
    kvg(a, 1)
    a.label(lab)
    qproj(a)
    attention(a)
    a.raw(".p2align 6"); a.label("L_roleF"); a.roleF = 1
    a(f"s_setprio {OPT['prioF']}")
    ffn1(a)
    if OPT.get("skipA"): stamp_dump(a); a("s_endpgm")
    ffn2(a); stamp_dump(a)
    a.label("L_exit")
    a("s_endpgm")
    return "\n".join(H) + "\n" + a.text() + KD.format(k=k)

if __name__ == "__main__":
    if "--diag" in sys.argv: DIAG = True
    for x in sys.argv[2:]:
        if "=" in x:
            k, v = x.split("="); OPT[k] = int(v)
    open(sys.argv[1], "w").write(gen())
```

```python
import sys, math, struct

NAME = "gated_mix__grouped_kv_mqa__glu_gated_geglu__prompt"

WS_EPOCH = 0x0
WS_ACK = 0x6000
WS_KP = 0x10000
WS_VP = 0x20000
WS_G = 0x30000
WS_RECK = 0x40000
WS_PRE = 0x50000
WS_FLH = 0x80000
WS_FLO = 0xA0000
WS_QP = 0x100000
WS_OP = 0x300000
WS_HP = 0x500000
WS_DIAG = 0xE00000
WS_SIZE = 0x10000000
OPT = dict(prioA=1, prioF=2, prioG=2, prioD=0, prioL=3, sleep=4, sc1=0, rot=6, rot2=7, thr=60, clk=0, look=19, kvat=24, kvper=2, wpre=2, w0=4, ramp=2, xper=2, barpos=0, lsl=0, outsc=0, nw=11)
DIAG = False

LOG2E = 1.4426950408889634
def f2u(x): return struct.unpack("<I", struct.pack("<f", x))[0]
def SC(): return " sc1" if OPT["sc1"] else ""

class Asm:
    def __init__(self): self.L = []; self.uid = 0
    def __call__(self, s):
        for line in s.split("\n"): self.L.append("    " + line.strip())
    def label(self, n): self.L.append(n + ":")
    def raw(self, s): self.L.append(s)
    def newlabel(self, p):
        self.uid += 1
        return f"L_{p}_{self.uid}"
    def text(self): return "\n".join(self.L) + "\n"

def vr(a, n=1): return f"v{a}" if n == 1 else f"v[{a}:{a+n-1}]"

S_X, S_WQ, S_WK, S_WV, S_WO, S_BX, S_WG, S_WU = 16, 18, 20, 22, 24, 26, 28, 30
S_WD, S_GW, S_OUT, S_DBG, S_WSP = 32, 34, 36, 38, 40
R_X, R_WS, R_W0, R_W1, R_OUT = 44, 48, 52, 56, 60
S_WAVE, S_TAG = 64, 65
S_T = 66
S_ID, S_M0B = 80, 81
S_A, S_B, S_C, S_D, S_E, S_F = 82, 83, 84, 85, 86, 87
S_G, S_H = 88, 89
S_K0, S_K1, S_K2, S_K3 = 90, 91, 92, 93
W = S_WAVE
WSR = f"s[{R_WS}:{R_WS+3}]"
def rs(r): return f"s[{r}:{r+3}]"

STAMP_REGS = [4, 6, 8, 10, 12, 14, 42, 94, 96, 98, 100]
def stamp(a, i, force=False):
    if OPT.get("fst") and getattr(a, "roleF", 0) and 5 <= i <= 9 and not force: return
    if DIAG: a(f"{'s_memtime' if OPT['clk'] else 's_memrealtime'} s[{STAMP_REGS[i]}:{STAMP_REGS[i]+1}]")
def stamp_init(a):
    if DIAG:
        for r in STAMP_REGS[1:]: a(f"s_mov_b32 s{r}, 0")
def stamp_dump(a):
    if not DIAG: return
    a("s_waitcnt vmcnt(0) lgkmcnt(0)")
    stamp(a, 10)
    a("s_waitcnt lgkmcnt(0)")
    a(f"s_lshl_b32 s{S_T}, s2, 2\ns_add_u32 s{S_T}, s{S_T}, s{W}\ns_add_u32 s{S_T}, s{S_T}, {1024 if getattr(a, 'roleF', 0) else 0}\ns_lshl_b32 s{S_T}, s{S_T}, 6\ns_add_u32 s{S_T}, s{S_T}, {WS_DIAG}")
    a("s_mov_b64 exec, 1\nv_mov_b32 v1, 0")
    for i, r in enumerate(STAMP_REGS):
        a(f"v_mov_b32 v2, s{r}\nbuffer_store_dword v2, v1, {WSR}, s{S_T} offen offset:{4*i}\ns_nop 1")

def srd(a, r, p, size):
    a(f"s_mov_b32 s{r}, s{p}\ns_mov_b32 s{r+1}, s{p+1}\ns_mov_b32 s{r+2}, {size:#x}\ns_mov_b32 s{r+3}, 0x20000")

def kernarg_wait(a):
    a("s_waitcnt lgkmcnt(0)")
    a(f"s_load_dword s{S_TAG}, s[40:41], {WS_EPOCH}")
    srd(a, R_X, S_X, 2048 * 1024)

def finish_tag_ack(a, v0_, v1_):
    srd(a, R_WS, S_WSP, WS_SIZE)
    a(f"s_lshl_b32 s{S_T+2}, s2, 5\ns_lshl_b32 s{S_T+3}, s{W}, 2\ns_add_u32 s{S_T+2}, s{S_T+2}, s{S_T+3}")
    a(f"s_add_u32 s{S_T+2}, s{S_T+2}, {WS_ACK + (16 if getattr(a, 'roleF', 0) else 0)}")
    a(f"v_mov_b32 v{v1_}, 0")
    a("s_waitcnt lgkmcnt(0)")
    a(f"s_mul_i32 s{S_TAG}, s{S_TAG}, 0x9E3779B1")
    a(f"s_add_u32 s{S_TAG}, s{S_TAG}, 0x7F4A7C15")
    a(f"v_mov_b32 v{v0_}, s{S_TAG}")
    a("s_mov_b64 exec, 1")
    a(f"buffer_store_dword v{v0_}, v{v1_}, {WSR}, s{S_T+2} offen sc1")
    a("s_mov_b64 exec, -1")

def dma(a, vaddr, r, soff_reg, soff_base, soff_imm, lds_imm):
    a(f"s_add_u32 m0, s{S_M0B}, {lds_imm}")
    a(f"s_add_u32 s{soff_reg}, s{soff_base}, {soff_imm}")
    a(f"buffer_load_dwordx4 v{vaddr}, {rs(r)}, s{soff_reg} offen lds")

def wave_max(a, v):
    for m in ("row_shr:1", "row_shr:2", "row_shr:4", "row_shr:8", "row_bcast:15 row_mask:0xa", "row_bcast:31 row_mask:0xc"):
        a("s_nop 1")
        a(f"v_max_u32_dpp v{v}, v{v}, v{v} {m}")

def poll(a, loads, regs, sleep=None):
    lab = a.newlabel("poll"); out = a.newlabel("polled")
    sleep = sleep or OPT["sleep"]
    masked = len(loads) == 1 and len(regs) == 1
    a(f"s_mov_b32 s{S_T+10}, 0x40000")
    a.label(lab)
    for l in loads: a(l)
    a("s_waitcnt vmcnt(0)")
    a(f"v_cmp_ne_u32 vcc, s{S_TAG}, v{regs[0]}")
    for r in regs[1:]:
        a(f"v_cmp_ne_u32 s[{S_T+12}:{S_T+13}], s{S_TAG}, v{r}")
        a(f"s_or_b64 vcc, vcc, s[{S_T+12}:{S_T+13}]")
    a(f"s_cbranch_vccz {out}")
    if masked: a("s_mov_b64 exec, vcc")
    a(f"s_sleep {sleep}")
    a(f"s_sub_u32 s{S_T+10}, s{S_T+10}, 1\ns_cmp_lg_u32 s{S_T+10}, 0\ns_cbranch_scc1 {lab}")
    a.label(out)
    if masked: a("s_mov_b64 exec, -1")

def x_src_addr(a, V, T0, T1, T2):
    a(f"v_lshrrev_b32 v{T0}, 3, v0\nv_and_b32 v{T1}, 7, v0\nv_lshrrev_b32 v{T2}, 1, v{T0}")
    a(f"s_and_b32 s{S_T}, s{W}, 1\ns_lshl_b32 s{S_T}, s{S_T}, 2")
    a(f"v_or_b32 v{V}, s{S_T}, v{T2}\nv_xor_b32 v{V}, v{V}, v{T1}\nv_lshlrev_b32 v{V}, 4, v{V}")
    a(f"v_lshl_add_u32 v{V}, v{T0}, 10, v{V}")

def x_read_addr(a, V, T0, T1, T2, sbase=None):
    a(f"v_and_b32 v{T0}, 31, v0\nv_lshrrev_b32 v{T1}, 5, v0\nv_bfe_u32 v{T2}, v0, 1, 3\nv_xor_b32 v{T2}, v{T2}, v{T1}")
    a(f"v_lshlrev_b32 v{T0}, 7, v{T0}")
    if sbase is not None: a(f"v_add_u32 v{T0}, s{sbase}, v{T0}")
    for ks in range(4):
        a(f"v_xor_b32 v{V+ks}, {2*ks}, v{T2}\nv_lshl_add_u32 v{V+ks}, v{V+ks}, 4, v{T0}")

XL, QWL, WL = 0, 49152, 61440
IXL, IQL, IEL, IGL = 0, 65536, 81920, 98304
PART = 2176
LDS_P = 81920
LDS_Q = LDS_P + 32 * PART
LDS_X = LDS_Q + 8192
LDS_C = LDS_X + 1088
assert LDS_X + 4096 == 163840

def lsync(a, idx, n, va, vb, slp=0):
    lab = a.newlabel("ls")
    a(f"v_mov_b32 v{va}, {LDS_C + 4*idx}\nv_mov_b32 v{vb}, 1\ns_mov_b64 exec, 1\nds_add_u32 v{va}, v{vb}\ns_mov_b64 exec, -1")
    if slp:
        l2 = a.newlabel("ls")
        a(f"s_branch {l2}")
        a.label(lab)
        a(f"s_sleep {slp}")
        a.label(l2)
    else:
        a.label(lab)
    a(f"ds_read_b32 v{vb}, v{va}\ns_waitcnt lgkmcnt(0)\nv_readfirstlane_b32 s{S_T+10}, v{vb}\ns_cmp_lt_u32 s{S_T+10}, {n}\ns_cbranch_scc1 {lab}")

def decode(a):
    a(f"s_lshr_b32 s{S_T+1}, s{S_ID}, 3\ns_bfe_u32 s{S_T}, s{S_ID}, 0x20001\ns_and_b32 s{S_T+2}, s{S_ID}, 1\ns_lshl_b32 s{S_T+2}, s{S_T+2}, 3")
    a(f"s_mul_i32 s{S_T+3}, s{S_T}, 28\ns_add_u32 s{S_T+3}, s{S_T+3}, s{S_T+1}\ns_lshr_b32 s{S_B}, s{S_T+3}, 3\ns_and_b32 s{S_A}, s{S_T+3}, 7")
    a(f"s_lshl_b32 s{S_T}, s{S_T}, 1\ns_bfe_u32 s{S_T+3}, s{S_T+1}, 0x10001\ns_add_u32 s{S_T}, s{S_T}, s{S_T+3}")
    a(f"s_and_b32 s{S_T+3}, s{S_T+1}, 1\ns_add_u32 s{S_T+3}, s{S_T+3}, 14")
    a(f"s_cmp_ge_u32 s{S_ID}, 224\ns_cselect_b32 s{S_A}, s{S_T}, s{S_A}\ns_cselect_b32 s{S_B}, s{S_T+3}, s{S_B}")
    a(f"s_add_u32 s{S_A}, s{S_A}, s{S_T+2}")
    a(f"s_lshl_b32 s{S_F}, s{S_B}, 1\ns_add_u32 s{S_F}, s{S_F}, s{S_A}\ns_and_b32 s{S_F}, s{S_F}, {OPT['rot']}")

class VQ:
    def __init__(self, a): self.a = a; self.q = []
    def add(self, t, n=1): self.q += [t] * n; self.total = getattr(self, "total", 0) + n
    def wait(self, tags):
        idx = max((i for i, t in enumerate(self.q) if t in tags), default=-1)
        n = len(self.q) - 1 - idx
        del self.q[:idx + 1]
        assert n < 64
        self.a(f"s_waitcnt vmcnt({n})")

def roleA(a):
    VL16, VIDX, VL4, VO, VGO, VLQ = 1, 2, 3, 4, 5, 12
    VXS, VQS, VXR, VQR, VGS, VUS = 6, 7, 8, 13, 14, 15
    QB = 8; SB = (16, 32); OA = 48; KR, VR_ = 64, 128
    XF, WF, ACC = 16, 24, 32
    T0, T1, T2 = 16, 17, 18
    VREC, VRA, VQW = 58, 62, 57
    S_WB, S_WEND, S_XR, S_QR = S_K2, S_K3, S_T + 11, S_T + 12
    RS = 3584 * 16
    x_src_addr(a, VXS, T0, T1, T2)
    a(f"v_lshrrev_b32 v{T0}, 2, v0\nv_and_b32 v{T1}, 3, v0\nv_lshlrev_b32 v{T1}, 4, v{T1}\nv_lshl_add_u32 v{VQS}, v{T0}, 10, v{T1}")
    a(f"v_lshrrev_b32 v{T0}, 4, v0\nv_and_b32 v{T1}, 15, v0\nv_lshlrev_b32 v{T2}, 1, v{T0}\nv_xor_b32 v{T1}, v{T1}, v{T2}")
    a(f"v_lshlrev_b32 v{T1}, 4, v{T1}\nv_mul_u32_u24 v{T0}, 3584, v{T0}\nv_add_u32 v{VGS}, v{T0}, v{T1}")
    a(f"v_xor_b32 v{T1}, 128, v{T1}\nv_add_u32 v{VUS}, v{T0}, v{T1}")
    a(f"s_lshl_b32 s{S_C}, s{S_A}, 17\ns_lshl_b32 s{S_T}, s{W}, 13\ns_add_u32 s{S_C}, s{S_C}, s{S_T}   ; x base")
    a(f"s_lshl_b32 s{S_H}, s{W}, 14\ns_lshl_b32 s{S_T}, s{S_B}, 6\ns_add_u32 s{S_H}, s{S_H}, s{S_T}")
    a(f"s_mul_i32 s{S_T}, s{W}, {4*3584}\ns_lshl_b32 s{S_WB}, s{S_B}, 8\ns_add_u32 s{S_WB}, s{S_WB}, s{S_T}")
    a(f"s_add_u32 s{S_WEND}, s{S_WB}, {32*RS}\ns_mul_i32 s{S_T}, s{S_F}, {4*RS}\ns_add_u32 s{S_D}, s{S_WB}, s{S_T}")
    kernarg_wait(a)
    stamp(a, 3)
    srd(a, R_OUT, S_WQ, 512 * 1024)
    vq = VQ(a)
    def issueX1(u, j, xl, ql):
        if j == 0:
            a(f"s_add_u32 s{S_XR}, s{S_F}, {u}\ns_and_b32 s{S_XR}, s{S_XR}, 7\ns_lshl_b32 s{S_QR}, s{S_XR}, 16\ns_lshl_b32 s{S_XR}, s{S_XR}, 7")
            a(f"s_add_u32 s{S_XR}, s{S_XR}, s{S_C}\ns_add_u32 s{S_QR}, s{S_QR}, s{S_H}")
        if j < 4: dma(a, VXS, R_X, S_T, S_XR, j * 32768, xl + j * 4096)
        else: a(f"s_add_u32 m0, s{S_M0B}, {ql}\ns_nop 0\nbuffer_load_dwordx4 v{VQS}, {rs(R_OUT)}, s{S_QR} offen lds")
        vq.add(("X", u))
    def issueW1(j, mat):
        a(f"s_add_u32 m0, s{S_M0B}, {WL + (j % OPT['nw']) * 8192 + mat*4096}\ns_nop 0")
        a(f"buffer_load_dwordx4 v{(VGS,VUS)[mat]}, {rs((R_W0,R_W1)[mat])}, s{S_D} offen lds"); vq.add(("W", j))
        if mat:
            a(f"s_add_u32 s{S_D}, s{S_D}, {RS}")
            if j % 4 == 3: a(f"s_cmp_eq_u32 s{S_D}, s{S_WEND}\ns_cselect_b32 s{S_D}, s{S_WB}, s{S_D}")
    def setup(ql):
        finish_tag_ack(a, 20, 21); vq.add(("ack", 0))
        a(f"s_lshl_b32 s{S_T}, s{W}, 12")
        x_read_addr(a, VXR, T0, T1, T2, S_T)
        a(f"v_bfe_u32 v{T0}, v0, 2, 2\nv_lshl_add_u32 v{T0}, v{T1}, 3, v{T0}\nv_and_b32 v{T2}, 3, v0\nv_lshlrev_b32 v{T2}, 3, v{T2}")
        a(f"v_lshl_add_u32 v{VQR}, v{T0}, 6, v{T2}\nv_bfe_u32 v{T0}, v0, 4, 1\nv_lshl_add_u32 v{VQR}, v{T0}, 5, v{VQR}\nv_add_u32 v{VQR}, {ql}, v{VQR}")
        a(f"v_lshlrev_b32 v{T0}, 2, v0\nv_add_u32 v{T0}, {LDS_C}, v{T0}\nv_mov_b32 v{T1}, 0\nds_write_b32 v{T0}, v{T1}")
        a(f"v_lshlrev_b32 v{VL16}, 4, v0\nv_and_b32 v{VL4}, 31, v0\nv_lshlrev_b32 v{VL4}, 2, v{VL4}\nv_mov_b32 v{VIDX}, 0xdddddddd")
        a(f"v_add_u32 v{VLQ}, {LDS_Q}, v{VL16}\nv_lshlrev_b32 v{VRA}, 3, v0\ns_mov_b32 s{S_K0}, {WS_RECK}")
        a(f"v_bfe_u32 v{T0}, v0, 4, 1\nv_lshlrev_b32 v{VO}, 10, v{T0}\nv_and_b32 v{T0}, 32, v0\nv_lshl_add_u32 v{VO}, v{T0}, 4, v{VO}")
        a(f"v_and_b32 v{T0}, 15, v0\nv_lshl_add_u32 v{VO}, v{T0}, 4, v{VO}\nv_lshlrev_b32 v{VGO}, 2, v{T0}")
        a(f"s_lshl_b32 s{S_T}, s{W}, 11\ns_add_u32 s{S_T}, s{S_T}, {LDS_Q}\nv_add_u32 v{VQW}, s{S_T}, v{VO}")
        a(f"v_and_b32 v{T0}, 11, v0\nv_cmp_eq_u32 vcc, 0, v{T0}\nv_mov_b32 v{T0}, 0x3f803f80\ns_nop 0\nv_cndmask_b32 v{T0}, 0, v{T0}, vcc\nv_mov_b32 v{T0+1}, v{T0}")
        for t in range(16):
            for j in range(4, 8, 2): a(f"v_mov_b64 {vr(VR_+8*t+j,2)}, {vr(T0,2)}")
        zero_o()
        a(f"s_lshl_b32 s{S_E}, s{W}, 3\ns_lshr_b32 s{S_T}, s{S_ID}, 3\ns_add_u32 s{S_E}, s{S_E}, s{S_T}")
    def zero_o():
        for j in range(0, 8, 2): a(f"v_mov_b64 {vr(OA+j,2)}, 0")
        a(f"v_mov_b32 v{OA+8}, 0")
    def qreads(j, xoff, qoff):
        b = j & 1
        a(f"ds_read_b128 {vr(XF+4*b,4)}, v{VXR + j%4} offset:{xoff}")
        a(f"ds_read_b64_tr_b16 {vr(WF+4*b,2)}, v{VQR} offset:{qoff + (j%4)*1024}\nds_read_b64_tr_b16 {vr(WF+4*b+2,2)}, v{VQR} offset:{qoff + (j%4)*1024 + 256}")
    def qmfma(j):
        b = j & 1
        a(f"v_mfma_f32_32x32x16_bf16 {vr(ACC,16)}, {vr(WF+4*b,4)}, {vr(XF+4*b,4)}, {'0' if j == 0 else vr(ACC,16)}")
    rec_loads = [f"buffer_load_dwordx2 {vr(VREC,2)}, v{VRA}, {WSR}, s{S_K0} offen sc1",
                 f"buffer_load_dwordx2 {vr(VREC+2,2)}, v{VRA}, {WSR}, s{S_K0} offen offset:512 sc1"]
    def rec_finish(looked):
        lab = a.newlabel("norec"); seen = a.newlabel("seen")
        a(f"s_cmp_lg_u32 s{W}, 0\ns_cbranch_scc1 {lab}")
        if looked is not None:
            a(f"s_waitcnt vmcnt({looked})")
            a(f"v_cmp_ne_u32 vcc, s{S_TAG}, v{VREC}\nv_cmp_ne_u32 s[{S_T+6}:{S_T+7}], s{S_TAG}, v{VREC+2}\ns_or_b64 vcc, vcc, s[{S_T+6}:{S_T+7}]\ns_cbranch_vccz {seen}")
        poll(a, rec_loads, [VREC, VREC + 2], sleep=8)
        a.label(seen)
        wave_max(a, VREC + 1)
        a(f"v_mov_b32 v{VREC}, {LDS_X + 1024}\ns_mov_b32 exec_lo, 0\ns_mov_b32 exec_hi, 0x80000000\nds_write_b32 v{VREC}, v{VREC+1}\ns_mov_b64 exec, -1")
        a.label(lab)
    def kvload(t):
        if t % 2 == 0:
            a(f"s_add_u32 s{S_T}, s{S_E}, {t//2}\ns_and_b32 s{S_T}, s{S_T}, 31\ns_lshl_b32 s{S_T}, s{S_T}, 11")
            a(f"s_add_u32 s{S_T+1}, s{S_T}, {WS_VP}\ns_add_u32 s{S_T}, s{S_T}, {WS_KP}")
        a(f"buffer_load_dwordx4 {vr(KR+4*t,4)}, v{VL16}, {WSR}, s{S_T} offen offset:{(t%2)*1024}{SC()}")
        a(f"buffer_load_dwordx4 {vr(VR_+8*t,4)}, v{VL16}, {WSR}, s{S_T+1} offen offset:{(t%2)*1024}{SC()}")
        vq.add(("KV", t), 2)
    lidle = a.newlabel("Aidle"); ljoin = a.newlabel("Ajoin")
    a(f"s_cmp_ge_u32 s{S_ID}, 224\ns_cbranch_scc1 {lidle}")
    X = lambda u, j: issueX1(u, j, XL + (u % 3) * 16384, QWL + (u % 3) * 4096)
    for j in range(5): X(0, j)
    srd(a, R_W0, S_WG, 512 * 3584); srd(a, R_W1, S_WU, 512 * 3584)
    W0 = OPT["w0"]
    nextW, nextX, xp = W0, 1, 0
    for j in range(W0):
        issueW1(j, 0); issueW1(j, 1)
        if OPT.get("xup") and j == OPT["xup"] - 1:
            for p in range(5): X(1, p)
            nextX = 2
    if OPT.get("st4") == 1: stamp(a, 4)
    setup(QWL)
    if OPT.get("st4") == 2: stamp(a, 4)
    vq.wait({("X", 0), ("W", 0)})
    if OPT.get("st4") == 3: stamp(a, 4)
    a("s_waitcnt lgkmcnt(0)")
    a("s_barrier")
    stamp(a, 1)
    qreads(0, XL, 0)
    kvt = 0
    for j in range(32):
        if j == OPT["kvat"]: rec_finish(vq.total - look_at)
        if j < 31:
            tags = {("W", j + 1)}
            if (j + 1) % 4 == 0: tags.add(("X", (j + 1) // 4))
            assert nextW > j + 1 and ((j + 1) % 4 or nextX > (j + 1) // 4)
            vq.wait(tags)
        a("s_waitcnt lgkmcnt(0)")
        a("s_barrier")
        qmfma(j)
        if j < 31: qreads(j + 1, XL + (((j + 1) // 4) % 3) * 16384, (((j + 1) // 4) % 3) * 4096)
        for _ in range(5 if nextX == 1 else OPT["xper"]):
            if nextX < 8 and j >= 4 * (nextX - 3) + 3:
                X(nextX, xp); xp += 1
                if xp == 5: nextX += 1; xp = 0; break
        for _ in range(OPT["ramp"]):
            if nextW < 32 and nextW <= j + OPT['nw']:
                issueW1(nextW, 0); issueW1(nextW, 1); nextW += 1
        if j == OPT["look"]:
            lab = a.newlabel("nolook")
            a(f"s_cmp_lg_u32 s{W}, 0\ns_cbranch_scc1 {lab}")
            for l in rec_loads: a(l)
            a.label(lab)
            look_at = vq.total
        if j >= OPT["kvat"]:
            for _ in range(OPT["kvper"] if j < 31 else 16):
                if kvt < 16: kvload(kvt); kvt += 1
    a(f"s_branch {ljoin}")
    a.label(lidle)
    vq.q = []
    a(f"s_cmp_eq_u32 s{S_B}, 14\ns_cselect_b32 s{R_W0}, s{S_WK}, s{S_WV}\ns_cselect_b32 s{R_W0+1}, s{S_WK+1}, s{S_WV+1}")
    a(f"s_movk_i32 s{R_W0+2}, 16384\ns_mov_b32 s{R_W0+3}, 0x20000\ns_mov_b32 s{S_F}, 0")
    srd(a, R_W1, S_GW, 1024)
    a(f"v_lshlrev_b32 v{VGS}, 4, v0")
    dma(a, VGS, R_W1, S_T, S_M0B, 0, IGL)
    for p in range(4): dma(a, VGS, R_W0, S_T, S_M0B, p * 4096, IEL + p * 4096)
    XI = lambda u: [issueX1(u, p, IXL + (u % 4) * 16384, IQL + (u % 4) * 4096) for p in range(5)]
    for u in range(4): XI(u)
    setup(IQL)
    for u in range(8):
        vq.wait({("X", u)})
        a("s_waitcnt lgkmcnt(0)")
        a("s_barrier")
        if u == 0: stamp(a, 1)
        if 1 <= u <= 4: XI(u + 3)
        qreads(4 * u, (u % 4) * 16384, (u % 4) * 4096)
        for ks in range(4):
            j = 4 * u + ks
            if ks < 3:
                qreads(j + 1, (u % 4) * 16384, (u % 4) * 4096); a("s_waitcnt lgkmcnt(3)")
            else: a("s_waitcnt lgkmcnt(0)")
            qmfma(j)
    rec_finish(None)
    a("s_waitcnt lgkmcnt(0)")
    a("s_barrier")
    for t in range(16): kvload(t)
    a.label(ljoin)
    stamp(a, 2)
    a(f"s_lshl_b32 s{S_T}, s{S_A}, 2\ns_add_u32 s{S_T}, s{S_T}, s{W}\ns_lshl_b32 s{S_D}, s{S_T}, 15\ns_lshl_b32 s{S_C}, s{S_T}, 7")
    a(f"s_lshl_b32 s{S_T}, s{S_B}, 11\ns_add_u32 s{S_D}, s{S_D}, s{S_T}\ns_add_u32 s{S_D}, s{S_D}, {WS_OP}\ns_add_u32 s{S_C}, s{S_C}, {WS_G}")
    a(f"s_mul_i32 s{S_T}, s{W}, {PART}\ns_add_u32 s{S_T}, s{S_T}, {LDS_P}")
    a(f"v_add_u32 v{VL16}, s{S_T}, v{VL16}\nv_add_u32 v{VL4}, s{S_T}, v{VL4}")
    a(f"s_lshl_b32 s{S_T}, s{W}, 8\ns_add_u32 s{S_T}, s{S_T}, {LDS_X}\nv_lshl_add_u32 v15, v0, 2, s{S_T}")
    for j in range(8): a(f"v_cvt_pk_bf16_f32 v{16+j}, v{ACC+2*j}, v{ACC+2*j+1}")
    a(f"ds_write_b128 v{VQW}, v[16:19]\nds_write_b128 v{VQW}, v[20:23] offset:256")
    a(f"v_mul_f32 v24, v{ACC}, v{ACC}\nv_mul_f32 v25, v{ACC+8}, v{ACC+8}")
    for i in range(1, 8): a(f"v_fmac_f32 v24, v{ACC+i}, v{ACC+i}\nv_fmac_f32 v25, v{ACC+8+i}, v{ACC+8+i}")
    a(f"v_mov_b32 v26, {LDS_X + 1024}\ns_nop 0\nv_permlane32_swap_b32 v24, v25\nv_add_f32 v24, v24, v25\nds_write_b32 v15, v24")
    a(f"v_lshlrev_b32 v15, 2, v0\nv_add_u32 v15, {LDS_X}, v15")
    lsync(a, 0, 4, 27, 28)
    a(f"ds_read_b128 {vr(QB,4)}, v{VLQ}")
    a(f"ds_read2st64_b32 v[20:21], v15 offset0:0 offset1:1\nds_read2st64_b32 v[22:23], v15 offset0:2 offset1:3\nds_read_b32 v24, v26")
    a("s_waitcnt lgkmcnt(0)")
    a("v_max3_u32 v20, v20, v21, v22\nv_max_u32 v20, v20, v23\nv_mul_f32 v20, v20, v24")
    slow = a.newlabel("slow"); red = a.newlabel("reduce")
    a(f"v_cmp_nge_f32 vcc, {f2u(float(OPT['thr'])**2):#x}, v20")
    a(f"s_setprio {OPT['prioA']}")
    a(f"s_cbranch_vccnz {slow}")
    def vfix(t):
        for j in range(4): a(f"v_permlane16_swap_b32 v{VR_+8*t+j}, v{VR_+8*t+4+j}")
    def S(t, buf, c="0"): a(f"v_mfma_f32_32x32x16_bf16 {vr(SB[buf],16)}, {vr(KR+4*t,4)}, {vr(QB,4)}, {c}")
    def PV(t, s, buf): a(f"v_smfmac_f32_32x32x32_bf16 {vr(OA,16)}, {vr(VR_+8*t+4*s,4)}, {vr(SB[buf]+8*s,8)}, v{VIDX}")
    def EX(buf, i): a(f"v_exp_f32 v{SB[buf]+i}, v{SB[buf]+i}")
    def flush(base):
        a(f"ds_write_b128 v{VL16}, {vr(OA,4)} offset:{base}")
        a(f"ds_write_b128 v{VL16}, {vr(OA+4,4)} offset:{base+1024}")
        a(f"ds_write_b32 v{VL4}, v{OA+8} offset:{base+2048}")
    a("s_waitcnt vmcnt(31)")
    stamp(a, 5)
    S(0, 0)
    a("s_nop 10")
    gl = lambda j, r: a(f"buffer_load_dword v{r}, v{VGO}, {WSR}, s{S_C} offen offset:{64*j}{SC()}")
    for q in range(8):
        for t in range(16):
            g = q * 16 + t
            cur, oth = g & 1, (g & 1) ^ 1
            nt = (t + 1) % 16
            def kv():
                if q == 0: a(f"s_waitcnt vmcnt({max(0, 29 - 2*t)})"); vfix(t)
            if t == 0:
                if q == 1: stamp(a, 6)
                if q == 4: stamp(a, 7)
                EX(cur, 0); EX(cur, 1)
                if q > 0: PV(15, 1, oth)
                EX(cur, 2); EX(cur, 3); EX(cur, 4)
                kv(); S(nt, oth)
                for i in range(5, 16): EX(cur, i)
                if q > 0:
                    flush((q - 1) * 4 * PART); zero_o()
                if q == 7: gl(0, 6); gl(1, 7)
            elif t == 1:
                EX(cur, 0); EX(cur, 1)
                PV(0, 0, oth)
                EX(cur, 2); EX(cur, 3); EX(cur, 4)
                PV(0, 1, oth)
                EX(cur, 5); EX(cur, 6); EX(cur, 7)
                kv(); S(nt, oth)
                EX(cur, 8); EX(cur, 9); EX(cur, 10)
                PV(1, 0, cur)
                for i in range(11, 16): EX(cur, i)
                a("s_nop 2")
            else:
                EX(cur, 0); EX(cur, 1)
                PV(t - 1, 1, oth)
                EX(cur, 2); EX(cur, 3); EX(cur, 4)
                if g != 127:
                    if t == 15: a("s_waitcnt lgkmcnt(0)")
                    kv(); S(nt, oth)
                EX(cur, 5); EX(cur, 6)
                if t == 14 and q < 7: a(f"ds_read_b128 {vr(QB,4)}, v{VLQ} offset:{(q+1)*1024}")
                for i in range(7, 10): EX(cur, i)
                PV(t, 0, cur)
                for i in range(10, 16): EX(cur, i)
    stamp(a, 8)
    a("s_nop 1")
    PV(15, 1, 1)
    a("s_nop 15")
    flush(7 * 4 * PART)
    a.label(red)
    a(f"s_mul_i32 s{S_T}, s{W}, {2*4*PART}\ns_add_u32 s{S_T}, s{S_T}, {LDS_P}")
    a(f"v_lshl_add_u32 v{VL16}, v0, 4, s{S_T}\nv_and_b32 v{VL4}, 31, v0\nv_lshl_add_u32 v{VL4}, v{VL4}, 2, s{S_T}")
    lsync(a, 1, 4, 16, 17)
    R = 64
    for j in range(2):
        for p in range(4):
            b = (j * 4 + p) * PART; r = R + (j * 4 + p) * 12
            a(f"ds_read_b32 v{r+8}, v{VL4} offset:{b+2048}")
        for p in range(4):
            b = (j * 4 + p) * PART; r = R + (j * 4 + p) * 12
            a(f"ds_read_b128 {vr(r,4)}, v{VL16} offset:{b}")
            a(f"ds_read_b128 {vr(r+4,4)}, v{VL16} offset:{b+1024}")
        r0 = R + j * 48
        a(f"s_waitcnt lgkmcnt(8)")
        a(f"v_add_f32 v{r0+8}, v{r0+8}, v{r0+20}\nv_add_f32 v{r0+32}, v{r0+32}, v{r0+44}\nv_add_f32 v{r0+8}, v{r0+8}, v{r0+32}")
        a(f"v_rcp_f32 v{r0+8}, v{r0+8}")
    for j in range(2):
        r0 = R + j * 48
        a("s_waitcnt vmcnt(0)" if j == 0 else "s_waitcnt lgkmcnt(0)")
        for i in range(0, 8, 2):
            a(f"v_pk_add_f32 {vr(r0+i,2)}, {vr(r0+i,2)}, {vr(r0+12+i,2)}")
            a(f"v_pk_add_f32 {vr(r0+24+i,2)}, {vr(r0+24+i,2)}, {vr(r0+36+i,2)}")
        a(f"v_mul_f32 v{r0+8}, v{r0+8}, v{6+j}")
        for i in range(0, 8, 2):
            a(f"v_pk_add_f32 {vr(r0+i,2)}, {vr(r0+i,2)}, {vr(r0+24+i,2)}")
        for i in range(0, 8, 2):
            a(f"v_pk_mul_f32 {vr(r0+i,2)}, {vr(r0+i,2)}, {vr(r0+8,2)} op_sel_hi:[1,0]")
        for i in range(4):
            a(f"v_cvt_pk_bf16_f32 v{r0+12+i}, v{r0+2*i}, v{r0+2*i+1}")
        a(f"buffer_store_dwordx4 {vr(r0+12,4)}, v{VO}, {WSR}, s{S_D} offen offset:{256*j} sc1")
    a(f"s_lshl_b32 s{S_T}, s{S_A}, 13\ns_lshl_b32 s{S_T+1}, s{S_B}, 9\ns_add_u32 s{S_T}, s{S_T}, s{S_T+1}")
    a(f"s_lshl_b32 s{S_T+1}, s{W}, 7\ns_add_u32 s{S_T}, s{S_T}, s{S_T+1}\ns_add_u32 s{S_T}, s{S_T}, {WS_FLO}")
    a(f"v_mov_b32 v16, s{S_TAG}\nv_mov_b32 v17, 0\ns_mov_b64 exec, 1")
    a("s_waitcnt vmcnt(0)")
    stamp(a, 9)
    a(f"buffer_store_dword v16, v17, {WSR}, s{S_T} offen sc1")
    stamp_dump(a)
    a("s_endpgm")
    a.label(slow)
    loop = a.newlabel("slowq"); spin = a.newlabel("slows")
    a("s_waitcnt vmcnt(0)")
    for t in range(16): vfix(t)
    a(f"v_lshlrev_b32 v6, 2, v0\nv_add_u32 v6, {LDS_X + 2048}, v6")
    a(f"s_lshl_b32 s{S_K1}, s{W}, 8\ns_mov_b32 s{S_K0}, 4")
    a.label(loop)
    a(f"ds_read_b128 {vr(QB,4)}, v{VLQ}\nv_add_u32 v{VLQ}, 1024, v{VLQ}")
    zero_o()
    a(f"v_mov_b32 v7, 0xff800000")
    a("s_waitcnt lgkmcnt(0)")
    for t in range(16):
        S(t, 0)
        a("s_nop 12")
        for i in range(0, 16, 2): a(f"v_max3_f32 v7, v7, v{SB[0]+i}, v{SB[0]+i+1}")
    a(f"v_mov_b32 v13, v7\ns_nop 1\nv_permlane32_swap_b32 v7, v13\nv_max_f32 v7, v7, v13")
    a(f"v_add_u32 v13, s{S_K1}, v6\nds_write_b32 v13, v7")
    a(f"v_mov_b32 v14, {LDS_C + 8}\nv_mov_b32 v15, 1\ns_mov_b64 exec, 1\nds_add_u32 v14, v15\ns_mov_b64 exec, -1")
    a.label(spin)
    a(f"ds_read_b32 v15, v14\ns_waitcnt lgkmcnt(0)\nv_readfirstlane_b32 s{S_T}, v15\ns_cmp_lt_u32 s{S_T}, s{S_K0}\ns_cbranch_scc1 {spin}")
    a(f"ds_read2st64_b32 v[14:15], v6 offset0:0 offset1:1\nds_read2st64_b32 v[16:17], v6 offset0:2 offset1:3")
    a("s_waitcnt lgkmcnt(0)")
    a("v_max3_f32 v7, v14, v15, v16\nv_max_f32 v7, v7, v17")
    for i in range(16): a(f"v_sub_f32 v{SB[1]+i}, 0, v7")
    a("s_nop 1")
    for t in range(16):
        S(t, 0, vr(SB[1], 16))
        a("s_nop 12")
        for i in range(16): EX(0, i)
        a("s_nop 1")
        PV(t, 0, 0); PV(t, 1, 0)
    a("s_nop 15")
    flush(0)
    a(f"v_add_u32 v{VL16}, {4*PART}, v{VL16}\nv_add_u32 v{VL4}, {4*PART}, v{VL4}\nv_xor_b32 v6, 1024, v6")
    a(f"s_add_u32 s{S_K0}, s{S_K0}, 4\ns_cmp_le_u32 s{S_K0}, 32\ns_cbranch_scc1 {loop}")
    gl(0, 6); gl(1, 7)
    a(f"s_branch {red}")

def ffn1(a):
    VXR, VWR = 8, 12
    T0, T1, T2 = 5, 6, 7
    lidle = a.newlabel("Fidle"); lend = a.newlabel("s1end")
    a(f"s_cmp_ge_u32 s{S_ID}, 224\ns_cbranch_scc1 {lidle}")
    a(f"s_and_b32 s{S_T}, s{W}, 1\ns_lshl_b32 s{S_T}, s{S_T}, 13")
    x_read_addr(a, VXR, T0, T1, T2, S_T)
    a(f"v_bfe_u32 v{T0}, v0, 2, 2\nv_bfe_u32 v{T2}, v0, 4, 1\nv_lshl_add_u32 v16, v{T1}, 3, v{T0}\nv_lshlrev_b32 v16, 8, v16")
    a(f"v_lshl_add_u32 v16, v{T2}, 12, v16\nv_and_b32 v17, 3, v0\nv_lshl_add_u32 v16, v17, 3, v16\nv_add_u32 v16, {WL}, v16")
    a(f"v_lshl_or_b32 v{T0}, v{T2}, 2, v{T0}\ns_and_b32 s{S_T}, s{W}, 2\ns_lshl_b32 s{S_T}, s{S_T}, 1\nv_xor_b32 v{T0}, s{S_T}, v{T0}")
    for jj in range(4):
        a(f"v_xor_b32 v{VWR+jj}, {jj}, v{T0}\nv_lshl_add_u32 v{VWR+jj}, v{VWR+jj}, 5, v16\nv_add_u32 v{68+jj}, 0x10000, v{VWR+jj}")
    kernarg_wait(a)
    finish_tag_ack(a, 64, 65)
    ACC = 128
    FX = (16, 40); FW = (24, 48)
    def rd_list(j):
        b = j & 1
        xs = XL + ((j // 4) % 3) * 16384; sl = j % OPT["nw"]; wsl = (sl % 8) * 8192; wr = VWR if sl < 8 else 68
        X = [f"ds_read_b128 {vr(FX[b]+4*m,4)}, v{VXR + j%4} offset:{xs + m*4096}" for m in range(2)]
        Wl = [f"ds_read_b64_tr_b16 {vr(FW[b]+4*jj+2*hf,2)}, v{wr+jj} offset:{wsl + hf*1024}" for jj in range(4) for hf in range(2)]
        return [X[0], Wl[0], Wl[1], X[1]] + Wl[2:]
    a("s_barrier")
    stamp(a, 1)
    for l in rd_list(0): a(l)
    for j in range(32):
        b = j & 1
        if OPT.get("fst") and j in (4, 8, 16, 24): stamp(a, {4: 5, 8: 6, 16: 7, 24: 8}[j], True)
        a("s_waitcnt lgkmcnt(0)")
        BP = OPT["barpos"]
        if BP == 0: a("s_barrier")
        rl = rd_list(j + 1) if j < 31 else []
        for n in range(8):
            jj, m = n // 2, n % 2
            acc = ACC + 16 * n
            a(f"v_mfma_f32_32x32x16_bf16 {vr(acc,16)}, {vr(FW[b]+4*jj,4)}, {vr(FX[b]+4*m,4)}, {'0' if j == 0 else vr(acc,16)}")
            if n == BP - 1: a("s_barrier")
            if n >= BP - 1:
                for _ in range(2 if BP < 3 else 3):
                    if rl: a(rl.pop(0))
        assert not rl
    stamp(a, 2)
    a(f"v_lshlrev_b32 v2, 4, v0")
    a(f"s_lshl_b32 s{S_T}, s{S_A}, 2\ns_and_b32 s{S_T+1}, s{W}, 1\ns_lshl_b32 s{S_T+1}, s{S_T+1}, 1\ns_add_u32 s{S_T}, s{S_T}, s{S_T+1}")
    a(f"s_setprio {OPT['prioG']}")
    c0 = -2.0 * LOG2E * math.sqrt(2.0 / math.pi); c1 = c0 * 0.044715
    a(f"s_mov_b32 s{S_K2}, {f2u(c1):#x}\ns_mov_b32 s{S_K2+1}, {f2u(c1):#x}")
    a(f"v_mov_b32 v4, {f2u(c0):#x}\nv_mov_b32 v5, {f2u(c0):#x}")
    a(f"s_mul_i32 s{S_T}, s{S_T}, 112\ns_lshl_b32 s{S_T+1}, s{S_B}, 3\ns_add_u32 s{S_T}, s{S_T}, s{S_T+1}")
    a(f"s_and_b32 s{S_T+1}, s{W}, 2\ns_lshl_b32 s{S_T+1}, s{S_T+1}, 1\ns_add_u32 s{S_T}, s{S_T}, s{S_T+1}\ns_lshl_b32 s{S_T}, s{S_T}, 10")
    a(f"s_add_u32 s{S_E}, s{S_T}, {WS_HP}\ns_add_u32 s{S_F}, s{S_E}, {112*1024}")
    for jj in range(4):
        A2 = [ACC + 32 * jj, ACC + 32 * jj + 16]
        TT = [16 + 24 * (jj & 1), 16 + 24 * (jj & 1) + 12]
        P2 = [(A2[m] + i, TT[m] + i) for m in range(2) for i in range(0, 8, 2)]
        if OPT.get("nopk"):
            P1 = [(A2[m] + i, TT[m] + i) for m in range(2) for i in range(8)]
            for g_, t_ in P1: a(f"v_mul_f32 v{t_}, v{g_}, v{g_}")
            for g_, t_ in P1: a(f"v_fma_f32 v{t_}, v{t_}, s{S_K2}, v4")
            for g_, t_ in P1: a(f"v_mul_f32 v{t_}, v{t_}, v{g_}")
            for g_, t_ in P1: a(f"v_exp_f32 v{t_}, v{t_}")
            for g_, t_ in P1: a(f"v_mul_f32 v{g_}, v{g_}, v{g_+8}")
            for g_, t_ in P1: a(f"v_add_f32 v{t_}, 1.0, v{t_}")
            for g_, t_ in P1: a(f"v_rcp_f32 v{t_}, v{t_}")
            for g_, t_ in P1: a(f"v_mul_f32 v{g_}, v{g_}, v{t_}")
        else:
            for g_, t_ in P2: a(f"v_pk_mul_f32 {vr(t_,2)}, {vr(g_,2)}, {vr(g_,2)}")
            for g_, t_ in P2: a(f"v_pk_fma_f32 {vr(t_,2)}, {vr(t_,2)}, s[{S_K2}:{S_K2+1}], v[4:5]")
            for g_, t_ in P2: a(f"v_pk_mul_f32 {vr(t_,2)}, {vr(t_,2)}, {vr(g_,2)}")
            for g_, t_ in P2: a(f"v_exp_f32 v{t_}, v{t_}\nv_exp_f32 v{t_+1}, v{t_+1}")
            for g_, t_ in P2: a(f"v_pk_mul_f32 {vr(g_,2)}, {vr(g_,2)}, {vr(g_+8,2)}")
            for g_, t_ in P2: a(f"v_pk_add_f32 {vr(t_,2)}, {vr(t_,2)}, 1.0 op_sel_hi:[1,0]")
            for g_, t_ in P2: a(f"v_rcp_f32 v{t_}, v{t_}\nv_rcp_f32 v{t_+1}, v{t_+1}")
            a("s_nop 0")
            for g_, t_ in P2: a(f"v_pk_mul_f32 {vr(g_,2)}, {vr(g_,2)}, {vr(t_,2)}")
        for m in range(2):
            for i in range(4): a(f"v_cvt_pk_bf16_f32 v{TT[m]+8+i}, v{A2[m]+2*i}, v{A2[m]+2*i+1}")
            a(f"buffer_store_dwordx4 {vr(TT[m]+8,4)}, v2, {WSR}, s{S_E if m == 0 else S_F} offen offset:{jj*1024} sc1")
    a(f"s_lshl_b32 s{S_T}, s{S_A}, 11\ns_lshl_b32 s{S_T+1}, s{S_B}, 7\ns_add_u32 s{S_T}, s{S_T}, s{S_T+1}\ns_add_u32 s{S_T}, s{S_T}, {WS_FLH}")
    stamp(a, 3)
    a("s_waitcnt vmcnt(0)")
    lsync(a, 3, 4, 6, 7, OPT['lsl'])
    stamp(a, 4)
    a(f"s_cmp_lg_u32 s{W}, 0\ns_cbranch_scc1 {lend}")
    a(f"s_mov_b64 exec, 1\nbuffer_store_dword v64, v65, {WSR}, s{S_T} offen sc1\ns_mov_b64 exec, -1")
    a(f"s_branch {lend}")
    a.label(lidle)
    VER, VGR, VLIN = 12, 13, 4
    a(f"s_lshl_b32 s{S_T}, s{W}, 12")
    x_read_addr(a, VXR, T0, T1, T2, S_T)
    a(f"v_bfe_u32 v{T0}, v0, 2, 2\nv_lshl_add_u32 v{T0}, v{T1}, 3, v{T0}\nv_and_b32 v{T2}, 3, v0\nv_lshlrev_b32 v{T2}, 3, v{T2}")
    a(f"v_lshl_add_u32 v{VER}, v{T0}, 5, v{T2}\nv_add_u32 v{VER}, {IEL}, v{VER}\nv_lshlrev_b32 v{VGR}, 4, v{T1}\nv_add_u32 v{VGR}, {IGL}, v{VGR}")
    a(f"v_lshlrev_b32 v{VLIN}, 4, v0\ns_lshl_b32 s{S_F}, s{S_A}, 2\ns_add_u32 s{S_F}, s{S_F}, s{W}   ; tt")
    kernarg_wait(a)
    finish_tag_ack(a, 64, 65)
    lv = a.newlabel("FV"); pub = a.newlabel("Fpub")
    ACK, ACG, XF, EF, GF, P = 32, 48, 16, 24, 72, 80
    a(f"s_cmp_eq_u32 s{S_B}, 15\ns_cbranch_scc1 {lv}")
    for v in "KV":
        if v == "V": a.label(lv)
        def reads(j):
            b = j & 1; u = j // 4
            a(f"ds_read_b128 {vr(XF+4*b,4)}, v{VXR + j%4} offset:{(u%4)*16384}")
            a(f"ds_read_b64_tr_b16 {vr(EF+4*b,2)}, v{VER} offset:{j*512}\nds_read_b64_tr_b16 {vr(EF+4*b+2,2)}, v{VER} offset:{j*512 + 128}")
            if v == "K": a(f"ds_read_b128 {vr(GF+4*b,4)}, v{VGR} offset:{j*32}")
        for u in range(8):
            a("s_barrier")
            reads(4 * u)
            for ks in range(4):
                j = 4 * u + ks; b = j & 1
                if ks < 3: reads(j + 1); a(f"s_waitcnt lgkmcnt({4 if v == 'K' else 3})")
                else: a("s_waitcnt lgkmcnt(0)")
                cc = (lambda r: "0") if j == 0 else (lambda r: vr(r, 16))
                if v == "K":
                    a(f"v_mfma_f32_32x32x16_bf16 {vr(ACK,16)}, {vr(EF+4*b,4)}, {vr(XF+4*b,4)}, {cc(ACK)}")
                    a(f"v_mfma_f32_32x32x16_bf16 {vr(ACG,16)}, {vr(GF+4*b,4)}, {vr(XF+4*b,4)}, {cc(ACG)}")
                else:
                    a(f"v_mfma_f32_32x32x16_bf16 {vr(ACK,16)}, {vr(XF+4*b,4)}, {vr(EF+4*b,4)}, {cc(ACK)}")
        stamp(a, 2)
        a("s_nop 15")
        if v == "K":
            for j in range(8): a(f"v_mul_f32 v{ACK+j}, {f2u(0.25*LOG2E):#x}, v{ACK+j}")
            for j in range(4): a(f"v_cvt_pk_bf16_f32 v{P+j}, v{ACK+2*j}, v{ACK+2*j+1}")
            a(f"v_and_b32 v{T1}, 0x33, v0\nv_bfe_u32 v{T2}, v0, 2, 1\nv_lshl_or_b32 v{T1}, v{T2}, 3, v{T1}")
            a(f"v_bfe_u32 v{T2}, v0, 3, 1\nv_lshl_or_b32 v{T1}, v{T2}, 2, v{T1}\nv_lshlrev_b32 v{T1}, 4, v{T1}")
            a(f"s_lshl_b32 s{S_T}, s{S_F}, 10\ns_add_u32 s{S_T}, s{S_T}, {WS_KP}")
            a(f"buffer_store_dwordx4 {vr(P,4)}, v{T1}, {WSR}, s{S_T} offen sc1")
            a(f"v_mul_f32 v20, {f2u(-LOG2E):#x}, v{ACG}\nv_exp_f32 v20, v20\nv_and_b32 v21, 31, v0")
            a(f"v_add_f32 v20, 1.0, v20\nv_rcp_f32 v20, v20\nv_lshlrev_b32 v21, 2, v21")
            a(f"s_lshl_b32 s{S_T}, s{S_F}, 7\ns_add_u32 s{S_T}, s{S_T}, {WS_G}")
            a(f"buffer_store_dword v20, v21, {WSR}, s{S_T} offen sc1")
            a(f"v_mul_f32 v{T0}, v{ACK}, v{ACK}")
            for j in range(1, 8): a(f"v_fmac_f32 v{T0}, v{ACK+j}, v{ACK+j}")
            a(f"v_mov_b32 v67, v{T0}\ns_nop 1\nv_permlane32_swap_b32 v{T0}, v67\nv_add_f32 v67, v{T0}, v67")
            wave_max(a, 67)
            a(f"s_mov_b32 s{S_T+1}, {WS_RECK}")
            a(f"s_branch {pub}")
        else:
            for j in range(8): a(f"v_cvt_pk_bf16_f32 v{P+j}, v{ACK+2*j}, v{ACK+2*j+1}")
            a(f"v_and_b32 v{T1}, 16, v0\nv_cmp_ne_u32 vcc, 0, v{T1}")
            a(f"s_lshl_b32 s{S_T}, s{S_F}, 10\ns_add_u32 s{S_T}, s{S_T}, {WS_VP}")
            for j in range(4): a(f"v_cndmask_b32 v{P+j}, v{P+j}, v{P+4+j}, vcc")
            a(f"buffer_store_dwordx4 {vr(P,4)}, v{VLIN}, {WSR}, s{S_T} offen sc1")
            a(f"s_mov_b32 s{S_T+1}, {WS_RECK + 512}\nv_mov_b32 v67, 0")
    a.label(pub)
    a(f"s_lshl_b32 s{S_T}, s{S_F}, 3\ns_add_u32 s{S_T+1}, s{S_T+1}, s{S_T}\nv_mov_b32 v66, s{S_TAG}")
    a("s_mov_b32 exec_lo, 0\ns_mov_b32 exec_hi, 0x80000000\ns_waitcnt vmcnt(0)")
    stamp(a, 3)
    a(f"buffer_store_dwordx2 v[66:67], v65, {WSR}, s{S_T+1} offen sc1\ns_mov_b64 exec, -1")
    a("s_barrier")
    epoch_update(a)
    a.label(lend)

def epoch_update(a):
    lab = a.newlabel("noepoch")
    a(f"s_cmp_lg_u32 s{S_ID}, 224\ns_cbranch_scc1 {lab}\ns_cmp_lg_u32 s{W}, 1\ns_cbranch_scc1 {lab}")
    a(f"v_lshlrev_b32 v2, 4, v0\ns_mov_b32 s{S_T+6}, {WS_ACK}\ns_mov_b32 s{S_T+7}, {WS_ACK+4096}")
    loads, regs = [], []
    for i in range(8):
        loads.append(f"buffer_load_dwordx4 {vr(16+4*i,4)}, v2, {WSR}, s{S_T+6+i//4} offen offset:{(i%4)*1024} sc1")
        regs += [16 + 4*i + j for j in range(4)]
    poll(a, loads, regs, sleep=64)
    a(f"s_mov_b64 exec, 1\nbuffer_store_dword v64, v65, {WSR}, 0 offen offset:{WS_EPOCH} sc1\ns_mov_b64 exec, -1")
    a.label(lab)

def ffn2(a):
    a(f"s_and_b32 s{S_T}, s{S_ID}, 1\ns_lshl_b32 s{S_T}, s{S_T}, 4\ns_and_b32 s{S_T+1}, s{S_ID}, 2\ns_lshl_b32 s{S_T+1}, s{S_T+1}, 2")
    a(f"s_add_u32 s{S_T}, s{S_T}, s{S_T+1}\ns_bfe_u32 s{S_T+1}, s{S_ID}, 0x30003\ns_add_u32 s{S_A}, s{S_T}, s{S_T+1}   ; tb64")
    a(f"s_and_b32 s{S_T}, s{S_ID}, 4\ns_lshr_b32 s{S_T+1}, s{S_ID}, 6\ns_add_u32 s{S_B}, s{S_T}, s{S_T+1}   ; cb")
    srd(a, R_W0, S_WD, 1792 * 1024); srd(a, R_W1, S_WO, 512 * 1024); srd(a, R_OUT, S_OUT, 2048 * 1024)
    VWS, VLIN, VR0, VR1, VG = 2, 3, 4, 5, 6
    T0, T1, T2 = 8, 9, 10
    a(f"v_lshrrev_b32 v{T0}, 3, v0\nv_and_b32 v{T1}, 7, v0\nv_bfe_u32 v{T2}, v0, 4, 1\nv_lshlrev_b32 v{T2}, 2, v{T2}")
    a(f"v_xor_b32 v{VWS}, v{T2}, v{T1}\nv_lshlrev_b32 v{VWS}, 4, v{VWS}\nv_lshl_add_u32 v{VWS}, v{T0}, 10, v{VWS}")
    a(f"v_lshlrev_b32 v{VLIN}, 4, v0")
    a(f"v_lshrrev_b32 v{T1}, 5, v0\nv_bfe_u32 v{T0}, v0, 2, 2\nv_lshl_add_u32 v{T0}, v{T1}, 2, v{T0}\nv_and_b32 v{T2}, 3, v0")
    a(f"v_lshlrev_b32 v{T2}, 3, v{T2}\nv_lshl_add_u32 v{VR0}, v{T0}, 7, v{T2}\nv_bfe_u32 v{T0}, v0, 4, 1\nv_bfe_u32 v{T2}, v0, 3, 1")
    a(f"v_lshl_or_b32 v{T0}, v{T2}, 1, v{T0}\nv_xor_b32 v{T2}, 2, v{T0}")
    a(f"v_lshl_add_u32 v{VR1}, v{T2}, 5, v{VR0}\nv_lshl_add_u32 v{VR0}, v{T0}, 5, v{VR0}")
    a(f"s_lshl_b32 s{S_M0B}, s{W}, 14")
    a(f"v_add_u32 v{VR0}, s{S_M0B}, v{VR0}\nv_add_u32 v{VR1}, s{S_M0B}, v{VR1}")
    a(f"s_lshl_b32 s{S_T}, s{S_B}, 7\ns_add_u32 s{S_C}, s{S_M0B}, s{S_T}")
    a(f"s_mul_i32 s{S_D}, s{S_A}, {2*112*1024}\ns_lshl_b32 s{S_T}, s{W}, 10\ns_add_u32 s{S_D}, s{S_D}, s{S_T}")
    a(f"s_add_u32 s{S_D}, s{S_D}, {WS_HP}\ns_add_u32 s{S_E}, s{S_D}, {112*1024}")
    a(f"s_lshl_b32 s{S_T}, s{S_B}, 1\ns_add_u32 s{S_T}, s{S_T}, s{S_A}\ns_and_b32 s{S_T}, s{S_T}, {OPT['rot2']}")
    a(f"s_mul_i32 s{S_T}, s{S_T}, 7\ns_lshr_b32 s{S_T}, s{S_T}, 1\ns_lshl_b32 s{S_K2}, s{S_T}, 16\ns_lshl_b32 s{S_K3}, s{S_T}, 12")
    ACC, HF, FW = 64, 128, (16, 24)
    NS, D = 28, 8
    q = []
    def issueW(n):
        a(f"s_add_u32 s{S_T+1}, s{S_C}, s{S_K2}")
        for p in range(2):
            dma(a, VWS, R_W0, S_T, S_T + 1, p * 8192, (n % D) * 2048 + p * 1024); q.append(("W", n))
        a(f"s_add_u32 s{S_K2}, s{S_K2}, 65536\ns_cmp_eq_u32 s{S_K2}, {28*65536}\ns_cselect_b32 s{S_K2}, 0, s{S_K2}")
    def issueWo(n):
        for p in range(2):
            dma(a, VWS, R_W1, S_T, S_G, (n - NS) * 16384 + p * 8192, (n % D) * 2048 + p * 1024); q.append(("W", n))
    def issueH(n):
        a(f"s_add_u32 s{S_T}, s{S_D}, s{S_K3}\ns_add_u32 s{S_T+1}, s{S_E}, s{S_K3}")
        a(f"s_add_u32 s{S_K3}, s{S_K3}, 4096\ns_cmp_eq_u32 s{S_K3}, {28*4096}\ns_cselect_b32 s{S_K3}, 0, s{S_K3}")
        a(f"buffer_load_dwordx4 {vr(HF+(n%D)*8,4)}, v{VLIN}, {WSR}, s{S_T} offen{SC()}"); q.append(("H", n))
        a(f"buffer_load_dwordx4 {vr(HF+(n%D)*8+4,4)}, v{VLIN}, {WSR}, s{S_T+1} offen{SC()}"); q.append(("H", n))
    def waitfor(tags):
        idx = max((i for i, t in enumerate(q) if t in tags), default=-1)
        n = len(q) - 1 - idx
        del q[:idx + 1]
        a(f"s_waitcnt vmcnt({n})")
    def rd_list(n):
        b = n & 1
        return [f"ds_read_b64_tr_b16 {vr(FW[b]+4*ct+2*hf,2)}, v{(VR0,VR1)[ct]} offset:{(n%D)*2048 + hf*1024}" for ct in range(2) for hf in range(2)]
    for n in range(OPT.get("wpre", 2)): issueW(n)
    lab = a.newlabel("nopoll")
    a(f"s_cmp_lg_u32 s{W}, 0\ns_cbranch_scc1 {lab}")
    a(f"s_lshr_b32 s{S_T+4}, s{S_A}, 1\ns_lshl_b32 s{S_T+4}, s{S_T+4}, 11\ns_add_u32 s{S_T+4}, s{S_T+4}, {WS_FLH}")
    a(f"s_lshl_b32 s{S_T+5}, s{S_A}, 4\ns_add_u32 s{S_T+5}, s{S_T+5}, {WS_RECK}")
    a(f"v_lshlrev_b32 v11, 7, v0\nv_add_u32 v11, s{S_T+4}, v11\nv_and_b32 v12, 1, v0\nv_lshlrev_b32 v12, 3, v12\nv_add_u32 v12, s{S_T+5}, v12")
    a(f"v_cmp_gt_u32 vcc, 14, v0\ns_nop 1\nv_cndmask_b32 v11, v12, v11, vcc")
    poll(a, [f"buffer_load_dword v13, v11, {WSR}, 0 offen sc1"], [13], sleep=12)
    a.label(lab)
    a("s_waitcnt vmcnt(0)")
    lsync(a, 4, 4, 11, 12, 4 * OPT['lsl'])
    q.clear()
    stamp(a, 5)
    a(f"s_setprio {OPT['prioD']}")
    for n in range(D):
        if n >= OPT.get("wpre", 2): issueW(n)
        issueH(n)
    a(f"s_lshl_b32 s{S_T}, s{S_A}, 8\ns_add_u32 s{S_T}, s{S_T}, {WS_G}\nv_and_b32 v{T0}, 31, v0\nv_lshlrev_b32 v{T0}, 2, v{T0}")
    for m in range(2):
        a(f"buffer_load_dword v{VG+m}, v{T0}, {WSR}, s{S_T} offen offset:{128*m}{SC()}"); q.append(("G", 0))
    waitfor({("W", 0)})
    for l in rd_list(0): a(l)
    def step(n, bsrc, extra=None):
        b = n & 1
        rl = rd_list(n + 1) if n + 1 < NS else []
        for k in range(4):
            ct, m = k // 2, k % 2
            acc = ACC + 16 * k
            c = "0" if n == 0 else vr(acc, 16)
            a(f"v_mfma_f32_32x32x16_bf16 {vr(acc,16)}, {vr(FW[b]+4*ct,4)}, {vr(bsrc+4*m,4)}, {c}")
            for _ in range(2):
                if rl: a(rl.pop(0))
            if k == 2 and extra: extra()
            if OPT.get("space") and k != 2: a(f"s_nop {OPT['space']}")
    for n in range(NS):
        waitfor({("H", n), ("W", n + 1)})
        a("s_waitcnt lgkmcnt(0)")
        step(n, HF + (n % D) * 8, (lambda: issueW(n + D)) if n + D < NS else None)
        if n + D < NS: issueH(n + D)
    stamp(a, 6)
    a(f"s_setprio {OPT['prioG']}")
    a(f"v_lshl_add_u32 v{T0}, v0, 4, s{S_M0B}")
    a(f"v_lshlrev_b32 v{T1}, 4, v0\ns_lshl_b32 s{S_T}, s{W}, 12\nv_add_u32 v{T1}, s{S_T}, v{T1}")
    a(f"s_bitcmp1_b32 s{W}, 0\ns_cselect_b64 vcc, -1, 0\nv_cndmask_b32 v{VG}, v{VG}, v{VG+1}, vcc\nv_sub_f32 v{VG}, 1.0, v{VG}")
    a("s_nop 7")
    for d in range(4):
        for i in range(4): a(f"ds_write_b128 v{T0}, {vr(ACC+16*d+4*i,4)} offset:{d*4096 + i*1024}")
    lsync(a, 5, 4, 11, 12, 2 * OPT['lsl'])
    RB = 128
    for src in range(4):
        for i in range(4): a(f"ds_read_b128 {vr(RB+16*src+4*i,4)}, v{T1} offset:{src*16384 + i*1024}")
        if src == 1 or src == 3:
            a(f"s_waitcnt lgkmcnt(0)")
            if src == 3: lsync(a, 6, 4, 11, 12, OPT['lsl'])
            for i in range(0, 16, 2):
                a(f"v_pk_add_f32 {vr(RB+16*(src-1)+i,2)}, {vr(RB+16*(src-1)+i,2)}, {vr(RB+16*src+i,2)}")
    a(f"s_lshl_b32 s{S_M0B}, s{W}, 10\ns_lshl_b32 s{S_C}, s{W}, 13\ns_lshl_b32 s{S_T}, s{S_B}, 7\ns_add_u32 s{S_C}, s{S_C}, s{S_T}")
    for p in range(16): dma(a, VWS, R_W1, S_T, S_C, p * 32768, p * 4096)
    OWN, OTH = 64, 80
    for i in range(0, 16, 2): a(f"v_pk_add_f32 {vr(RB+i,2)}, {vr(RB+i,2)}, {vr(RB+32+i,2)}")
    for i in range(0, 16, 2): a(f"v_pk_mul_f32 {vr(OWN+i,2)}, {vr(RB+i,2)}, {vr(VG,2)} op_sel_hi:[1,0]")
    a(f"s_lshl_b32 s{S_T}, s{W}, 14\nv_subrev_u32 v{VR0}, s{S_T}, v{VR0}\nv_subrev_u32 v{VR1}, s{S_T}, v{VR1}")
    a(f"s_and_b32 s{S_T}, s{W}, 2\ns_lshl_b32 s{S_T}, s{S_T}, 14\nv_add_u32 v{VR0}, s{S_T}, v{VR0}\nv_add_u32 v{VR1}, s{S_T}, v{VR1}")
    a(f"s_bitcmp1_b32 s{W}, 1\ns_cselect_b64 vcc, -1, 0\nv_cndmask_b32 v12, v{VR0}, v{VR1}, vcc\nv_cndmask_b32 v{VR1}, v{VR1}, v{VR0}, vcc\nv_mov_b32 v{VR0}, v12")
    a(f"s_lshl_b32 s{S_F}, s{S_A}, 1\ns_and_b32 s{S_T}, s{W}, 1\ns_add_u32 s{S_F}, s{S_F}, s{S_T}   ; tt")
    a(f"s_lshl_b32 s{S_D}, s{S_F}, 15\ns_and_b32 s{S_T}, s{W}, 2\ns_lshl_b32 s{S_T}, s{S_T}, 13\ns_add_u32 s{S_D}, s{S_D}, s{S_T}\ns_add_u32 s{S_D}, s{S_D}, {WS_OP}")
    a(f"s_lshr_b32 s{S_T+4}, s{S_F}, 2\ns_lshl_b32 s{S_T+4}, s{S_T+4}, 13\ns_and_b32 s{S_T}, s{W}, 2\ns_lshl_b32 s{S_T}, s{S_T}, 11\ns_add_u32 s{S_T+4}, s{S_T+4}, s{S_T}")
    a(f"s_and_b32 s{S_T}, s{S_F}, 3\ns_lshl_b32 s{S_T}, s{S_T}, 7\ns_add_u32 s{S_T+4}, s{S_T+4}, s{S_T}\ns_add_u32 s{S_T+4}, s{S_T+4}, {WS_FLO}")
    a(f"v_and_b32 v11, 7, v0\nv_lshlrev_b32 v11, 9, v11")
    a(f"s_lshl_b32 s{S_T}, s{W}, 12\ns_add_u32 s{S_T}, s{S_T}, 65536\nv_lshl_add_u32 v{T0}, v0, 4, s{S_T}")
    a(f"s_xor_b32 s{S_T}, s{S_T}, 8192\nv_lshl_add_u32 v{T1}, v0, 4, s{S_T}")
    a(f"v_and_b32 v{T2}, 31, v0\nv_lshlrev_b32 v{T2}, 10, v{T2}\nv_and_b32 v12, 32, v0\nv_lshrrev_b32 v12, 1, v12\nv_add_u32 v{T2}, v{T2}, v12")
    a(f"s_lshl_b32 s{S_E}, s{S_F}, 15\ns_lshl_b32 s{S_T+1}, s{S_B}, 7\ns_add_u32 s{S_E}, s{S_E}, s{S_T+1}")
    a(f"s_and_b32 s{S_T+1}, s{W}, 2\ns_lshl_b32 s{S_T+1}, s{S_T+1}, 5\ns_add_u32 s{S_E}, s{S_E}, s{S_T+1}")
    a("s_waitcnt vmcnt(0)")
    lsync(a, 7, 4, 13, 12, OPT['lsl'])
    def rdo(j):
        b = 16 + 8 * (j % 3)
        return [f"ds_read_b64_tr_b16 {vr(b+4*o+2*hf,2)}, v{(VR0,VR1)[o]} offset:{j*2048 + hf*1024}" for o in range(2) for hf in range(2)]
    for j in range(2):
        for l in rdo(j): a(l)
    stamp(a, 7)
    poll(a, [f"buffer_load_dword v13, v11, {WSR}, s{S_T+4} offen sc1"], [13], sleep=2)
    stamp(a, 8)
    for j in range(16):
        if j % 4 == 0 and j: a(f"s_add_u32 s{S_D}, s{S_D}, 4096")
        a(f"buffer_load_dwordx4 {vr(HF+4*j,4)}, v{VLIN}, {WSR}, s{S_D} offen offset:{(j%4)*1024}{SC()}")
    for j in range(16):
        if j + 2 < 16:
            for l in rdo(j + 2): a(l)
        a(f"s_waitcnt vmcnt({15-j}) lgkmcnt({4*min(2, 15-j)})")
        b = 16 + 8 * (j % 3)
        a(f"v_mfma_f32_32x32x16_bf16 {vr(OTH,16)}, {vr(b+4,4)}, {vr(HF+4*j,4)}, {'0' if j == 0 else vr(OTH,16)}")
        a(f"v_mfma_f32_32x32x16_bf16 {vr(OWN,16)}, {vr(b,4)}, {vr(HF+4*j,4)}, {vr(OWN,16)}")
    stamp(a, 9)
    a("s_nop 10")
    for i in range(4): a(f"ds_write_b128 v{T0}, {vr(OTH+4*i,4)} offset:{i*1024}")
    lsync(a, 8, 4, 11, 12)
    for i in range(4): a(f"ds_read_b128 {vr(OTH+4*i,4)}, v{T1} offset:{i*1024}")
    for i in range(4):
        a(f"s_waitcnt lgkmcnt({3-i})")
        a(f"v_pk_add_f32 {vr(OWN+4*i,2)}, {vr(OWN+4*i,2)}, {vr(OTH+4*i,2)}\nv_pk_add_f32 {vr(OWN+4*i+2,2)}, {vr(OWN+4*i+2,2)}, {vr(OTH+4*i+2,2)}")
        a(f"v_cvt_pk_bf16_f32 v{32+2*i}, v{OWN+4*i}, v{OWN+4*i+1}\nv_cvt_pk_bf16_f32 v{33+2*i}, v{OWN+4*i+2}, v{OWN+4*i+3}")
    a("s_nop 1")
    a("v_permlane32_swap_b32 v32, v34\nv_permlane32_swap_b32 v33, v35\nv_permlane32_swap_b32 v36, v38\nv_permlane32_swap_b32 v37, v39")
    a(f"buffer_store_dwordx4 v[32:35], v{T2}, {rs(R_OUT)}, s{S_E} offen{['', ' sc1', ' nt', ' sc0 sc1'][OPT['outsc']]}")
    a(f"buffer_store_dwordx4 v[36:39], v{T2}, {rs(R_OUT)}, s{S_E} offen offset:32{['', ' sc1', ' nt', ' sc0 sc1'][OPT['outsc']]}")

KD = """.section .rodata,"a"
.p2align 6
.amdhsa_kernel {k}
  .amdhsa_next_free_vgpr 256
  .amdhsa_next_free_sgpr 102
  .amdhsa_accum_offset 256
  .amdhsa_group_segment_fixed_size 0
  .amdhsa_kernarg_size 104
  .amdhsa_user_sgpr_count 2
  .amdhsa_user_sgpr_kernarg_segment_ptr 1
  .amdhsa_system_sgpr_workgroup_id_x 1
.end_amdhsa_kernel
"""

def gen():
    a = Asm()
    ref = open(f"cdna_kernels/{NAME}.s.ref").read().split("\n")
    H = [l for l in ref if l.startswith(";") and "@launch" not in l]
    H += ["; @launch grid=(256,1,1) block=(512,1,1) lds=163840"]
    k = NAME + "_kernel"
    a.raw(f'.amdgcn_target "amdgcn-amd-amdhsa--gfx950"\n.text\n.globl {k}\n.p2align 8\n.type {k},@function\n{k}:')
    a("s_cmp_ge_u32 s2, 256\ns_cbranch_scc1 L_exit")
    stamp(a, 0); stamp_init(a)
    a("s_load_dwordx16 s[16:31], s[0:1], 0\ns_load_dwordx8 s[32:39], s[0:1], 64\ns_load_dwordx2 s[40:41], s[0:1], 96")
    a(f"v_lshrrev_b32 v1, 6, v0\nv_and_b32 v0, 63, v0\nv_readfirstlane_b32 s3, v1\ns_mov_b32 s{S_ID}, s2")
    decode(a)
    a(f"s_and_b32 s{W}, s3, 3\ns_lshl_b32 s{S_M0B}, s{W}, 10")
    a("s_cmp_ge_u32 s3, 4\ns_cbranch_scc1 L_roleF")
    a(f"s_setprio {OPT['prioL']}")
    roleA(a)
    a.raw(".p2align 6"); a.label("L_roleF"); a.roleF = 1
    a(f"s_setprio {OPT['prioF']}")
    ffn1(a)
    ffn2(a); stamp_dump(a)
    a.label("L_exit")
    a("s_endpgm")
    return "\n".join(H) + "\n" + a.text() + KD.format(k=k)

if __name__ == "__main__":
    if "--diag" in sys.argv: DIAG = True
    for x in sys.argv[2:]:
        if "=" in x:
            k, v = x.split("="); OPT[k] = int(v)
    open(sys.argv[1], "w").write(gen())
```

```python
import sys, math, struct

NAME = "gated_mix__grouped_kv_mqa__glu_gated_geglu__prompt"

WS_EPOCH = 0x0
WS_ACK = 0x6000
WS_KP = 0x10000
WS_VP = 0x20000
WS_G = 0x30000
WS_RECK = 0x40000
WS_PRE = 0x50000
WS_FLH = 0x80000
WS_FLO = 0xA0000
WS_QP = 0x100000
WS_OP = 0x300000
WS_HP = 0x500000
WS_DIAG = 0xE00000
WS_SIZE = 0x10000000
OPT = dict(prioA=1, prioF=2, prioG=2, prioD=0, prioL=3, sleep=4, sc1=0, rot=6, rot2=7, thr=60, clk=0, look=19, kvat=24, kvper=2, wpre=2, w0=4, ramp=2, xper=2, barpos=0, lsl=0, outsc=0, nw=11)
DIAG = False

LOG2E = 1.4426950408889634
def f2u(x): return struct.unpack("<I", struct.pack("<f", x))[0]
def SC(): return " sc1" if OPT["sc1"] else ""

class Asm:
    def __init__(self): self.L = []; self.uid = 0
    def __call__(self, s):
        for line in s.split("\n"): self.L.append("    " + line.strip())
    def label(self, n): self.L.append(n + ":")
    def raw(self, s): self.L.append(s)
    def newlabel(self, p):
        self.uid += 1
        return f"L_{p}_{self.uid}"
    def text(self): return "\n".join(self.L) + "\n"

def vr(a, n=1): return f"v{a}" if n == 1 else f"v[{a}:{a+n-1}]"

S_X, S_WQ, S_WK, S_WV, S_WO, S_BX, S_WG, S_WU = 16, 18, 20, 22, 24, 26, 28, 30
S_WD, S_GW, S_OUT, S_DBG, S_WSP = 32, 34, 36, 38, 40
R_X, R_WS, R_W0, R_W1, R_OUT = 44, 48, 52, 56, 60
S_WAVE, S_TAG = 64, 65
S_T = 66
S_ID, S_M0B = 80, 81
S_A, S_B, S_C, S_D, S_E, S_F = 82, 83, 84, 85, 86, 87
S_G, S_H = 88, 89
S_K0, S_K1, S_K2, S_K3 = 90, 91, 92, 93
W = S_WAVE
WSR = f"s[{R_WS}:{R_WS+3}]"
def rs(r): return f"s[{r}:{r+3}]"

STAMP_REGS = [4, 6, 8, 10, 12, 14, 42, 94, 96, 98, 100]
def stamp(a, i, force=False):
    if OPT.get("fst") and getattr(a, "roleF", 0) and 5 <= i <= 9 and not force: return
    if DIAG: a(f"{'s_memtime' if OPT['clk'] else 's_memrealtime'} s[{STAMP_REGS[i]}:{STAMP_REGS[i]+1}]")
def stamp_init(a):
    if DIAG:
        for r in STAMP_REGS[1:]: a(f"s_mov_b32 s{r}, 0")
def stamp_dump(a):
    if not DIAG: return
    a("s_waitcnt vmcnt(0) lgkmcnt(0)")
    stamp(a, 10)
    a("s_waitcnt lgkmcnt(0)")
    a(f"s_lshl_b32 s{S_T}, s2, 2\ns_add_u32 s{S_T}, s{S_T}, s{W}\ns_add_u32 s{S_T}, s{S_T}, {1024 if getattr(a, 'roleF', 0) else 0}\ns_lshl_b32 s{S_T}, s{S_T}, 6\ns_add_u32 s{S_T}, s{S_T}, {WS_DIAG}")
    a("s_mov_b64 exec, 1\nv_mov_b32 v1, 0")
    for i, r in enumerate(STAMP_REGS):
        a(f"v_mov_b32 v2, s{r}\nbuffer_store_dword v2, v1, {WSR}, s{S_T} offen offset:{4*i}\ns_nop 1")

def srd(a, r, p, size):
    a(f"s_mov_b32 s{r}, s{p}\ns_mov_b32 s{r+1}, s{p+1}\ns_mov_b32 s{r+2}, {size:#x}\ns_mov_b32 s{r+3}, 0x20000")

def kernarg_wait(a):
    a("s_waitcnt lgkmcnt(0)")
    a(f"s_load_dword s{S_TAG}, s[40:41], {WS_EPOCH}")
    srd(a, R_X, S_X, 2048 * 1024)

def finish_tag_ack(a, v0_, v1_):
    srd(a, R_WS, S_WSP, WS_SIZE)
    a(f"s_lshl_b32 s{S_T+2}, s2, 5\ns_lshl_b32 s{S_T+3}, s{W}, 2\ns_add_u32 s{S_T+2}, s{S_T+2}, s{S_T+3}")
    a(f"s_add_u32 s{S_T+2}, s{S_T+2}, {WS_ACK + (16 if getattr(a, 'roleF', 0) else 0)}")
    a(f"v_mov_b32 v{v1_}, 0")
    a("s_waitcnt lgkmcnt(0)")
    a(f"s_mul_i32 s{S_TAG}, s{S_TAG}, 0x9E3779B1")
    a(f"s_add_u32 s{S_TAG}, s{S_TAG}, 0x7F4A7C15")
    a(f"v_mov_b32 v{v0_}, s{S_TAG}")
    a("s_mov_b64 exec, 1")
    a(f"buffer_store_dword v{v0_}, v{v1_}, {WSR}, s{S_T+2} offen sc1")
    a("s_mov_b64 exec, -1")

def dma(a, vaddr, r, soff_reg, soff_base, soff_imm, lds_imm):
    a(f"s_add_u32 m0, s{S_M0B}, {lds_imm}")
    a(f"s_add_u32 s{soff_reg}, s{soff_base}, {soff_imm}")
    a(f"buffer_load_dwordx4 v{vaddr}, {rs(r)}, s{soff_reg} offen lds")

def wave_max(a, v):
    for m in ("row_shr:1", "row_shr:2", "row_shr:4", "row_shr:8", "row_bcast:15 row_mask:0xa", "row_bcast:31 row_mask:0xc"):
        a("s_nop 1")
        a(f"v_max_u32_dpp v{v}, v{v}, v{v} {m}")

def poll(a, loads, regs, sleep=None):
    lab = a.newlabel("poll"); out = a.newlabel("polled")
    sleep = sleep or OPT["sleep"]
    masked = len(loads) == 1 and len(regs) == 1
    a(f"s_mov_b32 s{S_T+10}, 0x40000")
    a.label(lab)
    for l in loads: a(l)
    a("s_waitcnt vmcnt(0)")
    a(f"v_cmp_ne_u32 vcc, s{S_TAG}, v{regs[0]}")
    for r in regs[1:]:
        a(f"v_cmp_ne_u32 s[{S_T+12}:{S_T+13}], s{S_TAG}, v{r}")
        a(f"s_or_b64 vcc, vcc, s[{S_T+12}:{S_T+13}]")
    a(f"s_cbranch_vccz {out}")
    if masked: a("s_mov_b64 exec, vcc")
    a(f"s_sleep {sleep}")
    a(f"s_sub_u32 s{S_T+10}, s{S_T+10}, 1\ns_cmp_lg_u32 s{S_T+10}, 0\ns_cbranch_scc1 {lab}")
    a.label(out)
    if masked: a("s_mov_b64 exec, -1")

def x_src_addr(a, V, T0, T1, T2):
    a(f"v_lshrrev_b32 v{T0}, 3, v0\nv_and_b32 v{T1}, 7, v0\nv_lshrrev_b32 v{T2}, 1, v{T0}")
    a(f"s_and_b32 s{S_T}, s{W}, 1\ns_lshl_b32 s{S_T}, s{S_T}, 2")
    a(f"v_or_b32 v{V}, s{S_T}, v{T2}\nv_xor_b32 v{V}, v{V}, v{T1}\nv_lshlrev_b32 v{V}, 4, v{V}")
    a(f"v_lshl_add_u32 v{V}, v{T0}, 10, v{V}")

def x_read_addr(a, V, T0, T1, T2, sbase=None):
    a(f"v_and_b32 v{T0}, 31, v0\nv_lshrrev_b32 v{T1}, 5, v0\nv_bfe_u32 v{T2}, v0, 1, 3\nv_xor_b32 v{T2}, v{T2}, v{T1}")
    a(f"v_lshlrev_b32 v{T0}, 7, v{T0}")
    if sbase is not None: a(f"v_add_u32 v{T0}, s{sbase}, v{T0}")
    for ks in range(4):
        a(f"v_xor_b32 v{V+ks}, {2*ks}, v{T2}\nv_lshl_add_u32 v{V+ks}, v{V+ks}, 4, v{T0}")

XL, QWL, WL = 0, 49152, 61440
IXL, IQL, IEL, IGL = 0, 65536, 81920, 98304
PART = 2176
LDS_P = 81920
LDS_Q = LDS_P + 32 * PART
LDS_X = LDS_Q + 8192
LDS_C = LDS_X + 1088
assert LDS_X + 4096 == 163840

def lsync(a, idx, n, va, vb, slp=0):
    lab = a.newlabel("ls")
    a(f"v_mov_b32 v{va}, {LDS_C + 4*idx}\nv_mov_b32 v{vb}, 1\ns_mov_b64 exec, 1\nds_add_u32 v{va}, v{vb}\ns_mov_b64 exec, -1")
    if slp:
        l2 = a.newlabel("ls")
        a(f"s_branch {l2}")
        a.label(lab)
        a(f"s_sleep {slp}")
        a.label(l2)
    else:
        a.label(lab)
    a(f"ds_read_b32 v{vb}, v{va}\ns_waitcnt lgkmcnt(0)\nv_readfirstlane_b32 s{S_T+10}, v{vb}\ns_cmp_lt_u32 s{S_T+10}, {n}\ns_cbranch_scc1 {lab}")

def decode(a):
    a(f"s_lshr_b32 s{S_T+1}, s{S_ID}, 3\ns_bfe_u32 s{S_T}, s{S_ID}, 0x20001\ns_and_b32 s{S_T+2}, s{S_ID}, 1\ns_lshl_b32 s{S_T+2}, s{S_T+2}, 3")
    a(f"s_mul_i32 s{S_T+3}, s{S_T}, 28\ns_add_u32 s{S_T+3}, s{S_T+3}, s{S_T+1}\ns_lshr_b32 s{S_B}, s{S_T+3}, 3\ns_and_b32 s{S_A}, s{S_T+3}, 7")
    a(f"s_lshl_b32 s{S_T}, s{S_T}, 1\ns_bfe_u32 s{S_T+3}, s{S_T+1}, 0x10001\ns_add_u32 s{S_T}, s{S_T}, s{S_T+3}")
    a(f"s_and_b32 s{S_T+3}, s{S_T+1}, 1\ns_add_u32 s{S_T+3}, s{S_T+3}, 14")
    a(f"s_cmp_ge_u32 s{S_ID}, 224\ns_cselect_b32 s{S_A}, s{S_T}, s{S_A}\ns_cselect_b32 s{S_B}, s{S_T+3}, s{S_B}")
    a(f"s_add_u32 s{S_A}, s{S_A}, s{S_T+2}")
    a(f"s_lshl_b32 s{S_F}, s{S_B}, 1\ns_add_u32 s{S_F}, s{S_F}, s{S_A}\ns_and_b32 s{S_F}, s{S_F}, {OPT['rot']}")

class VQ:
    def __init__(self, a): self.a = a; self.q = []
    def add(self, t, n=1): self.q += [t] * n; self.total = getattr(self, "total", 0) + n
    def wait(self, tags):
        idx = max((i for i, t in enumerate(self.q) if t in tags), default=-1)
        n = len(self.q) - 1 - idx
        del self.q[:idx + 1]
        assert n < 64
        self.a(f"s_waitcnt vmcnt({n})")

def roleA(a):
    VL16, VIDX, VL4, VO, VGO, VLQ = 1, 2, 3, 4, 5, 12
    VXS, VQS, VXR, VQR, VGS, VUS = 6, 7, 8, 13, 14, 15
    QB = 8; SB = (16, 32); OA = 48; KR, VR_ = 64, 128
    XF, WF, ACC = 16, 24, 32
    T0, T1, T2 = 16, 17, 18
    VREC, VRA, VQW = 58, 62, 57
    S_WB, S_WEND, S_XR, S_QR = S_K2, S_K3, S_T + 11, S_T + 12
    RS = 3584 * 16
    x_src_addr(a, VXS, T0, T1, T2)
    a(f"v_lshrrev_b32 v{T0}, 2, v0\nv_and_b32 v{T1}, 3, v0\nv_lshlrev_b32 v{T1}, 4, v{T1}\nv_lshl_add_u32 v{VQS}, v{T0}, 10, v{T1}")
    a(f"v_lshrrev_b32 v{T0}, 4, v0\nv_and_b32 v{T1}, 15, v0\nv_lshlrev_b32 v{T2}, 1, v{T0}\nv_xor_b32 v{T1}, v{T1}, v{T2}")
    a(f"v_lshlrev_b32 v{T1}, 4, v{T1}\nv_mul_u32_u24 v{T0}, 3584, v{T0}\nv_add_u32 v{VGS}, v{T0}, v{T1}")
    a(f"v_xor_b32 v{T1}, 128, v{T1}\nv_add_u32 v{VUS}, v{T0}, v{T1}")
    a(f"s_lshl_b32 s{S_C}, s{S_A}, 17\ns_lshl_b32 s{S_T}, s{W}, 13\ns_add_u32 s{S_C}, s{S_C}, s{S_T}   ; x base")
    a(f"s_lshl_b32 s{S_H}, s{W}, 14\ns_lshl_b32 s{S_T}, s{S_B}, 6\ns_add_u32 s{S_H}, s{S_H}, s{S_T}")
    a(f"s_mul_i32 s{S_T}, s{W}, {4*3584}\ns_lshl_b32 s{S_WB}, s{S_B}, 8\ns_add_u32 s{S_WB}, s{S_WB}, s{S_T}")
    a(f"s_add_u32 s{S_WEND}, s{S_WB}, {32*RS}\ns_mul_i32 s{S_T}, s{S_F}, {4*RS}\ns_add_u32 s{S_D}, s{S_WB}, s{S_T}")
    kernarg_wait(a)
    stamp(a, 3)
    srd(a, R_OUT, S_WQ, 512 * 1024)
    vq = VQ(a)
    def issueX1(u, j, xl, ql):
        if j == 0:
            a(f"s_add_u32 s{S_XR}, s{S_F}, {u}\ns_and_b32 s{S_XR}, s{S_XR}, 7\ns_lshl_b32 s{S_QR}, s{S_XR}, 16\ns_lshl_b32 s{S_XR}, s{S_XR}, 7")
            a(f"s_add_u32 s{S_XR}, s{S_XR}, s{S_C}\ns_add_u32 s{S_QR}, s{S_QR}, s{S_H}")
        if j < 4: dma(a, VXS, R_X, S_T, S_XR, j * 32768, xl + j * 4096)
        else: a(f"s_add_u32 m0, s{S_M0B}, {ql}\ns_nop 0\nbuffer_load_dwordx4 v{VQS}, {rs(R_OUT)}, s{S_QR} offen lds")
        vq.add(("X", u))
    def issueW1(j, mat):
        a(f"s_add_u32 m0, s{S_M0B}, {WL + (j % OPT['nw']) * 8192 + mat*4096}\ns_nop 0")
        a(f"buffer_load_dwordx4 v{(VGS,VUS)[mat]}, {rs((R_W0,R_W1)[mat])}, s{S_D} offen lds"); vq.add(("W", j))
        if mat:
            a(f"s_add_u32 s{S_D}, s{S_D}, {RS}")
            if j % 4 == 3: a(f"s_cmp_eq_u32 s{S_D}, s{S_WEND}\ns_cselect_b32 s{S_D}, s{S_WB}, s{S_D}")
    def setup(ql):
        finish_tag_ack(a, 20, 21); vq.add(("ack", 0))
        a(f"s_lshl_b32 s{S_T}, s{W}, 12")
        x_read_addr(a, VXR, T0, T1, T2, S_T)
        a(f"v_bfe_u32 v{T0}, v0, 2, 2\nv_lshl_add_u32 v{T0}, v{T1}, 3, v{T0}\nv_and_b32 v{T2}, 3, v0\nv_lshlrev_b32 v{T2}, 3, v{T2}")
        a(f"v_lshl_add_u32 v{VQR}, v{T0}, 6, v{T2}\nv_bfe_u32 v{T0}, v0, 4, 1\nv_lshl_add_u32 v{VQR}, v{T0}, 5, v{VQR}\nv_add_u32 v{VQR}, {ql}, v{VQR}")
        a(f"v_lshlrev_b32 v{T0}, 2, v0\nv_add_u32 v{T0}, {LDS_C}, v{T0}\nv_mov_b32 v{T1}, 0\nds_write_b32 v{T0}, v{T1}")
        a(f"v_lshlrev_b32 v{VL16}, 4, v0\nv_and_b32 v{VL4}, 31, v0\nv_lshlrev_b32 v{VL4}, 2, v{VL4}\nv_mov_b32 v{VIDX}, 0xdddddddd")
        a(f"v_add_u32 v{VLQ}, {LDS_Q}, v{VL16}\nv_lshlrev_b32 v{VRA}, 3, v0\ns_mov_b32 s{S_K0}, {WS_RECK}")
        a(f"v_bfe_u32 v{T0}, v0, 4, 1\nv_lshlrev_b32 v{VO}, 10, v{T0}\nv_and_b32 v{T0}, 32, v0\nv_lshl_add_u32 v{VO}, v{T0}, 4, v{VO}")
        a(f"v_and_b32 v{T0}, 15, v0\nv_lshl_add_u32 v{VO}, v{T0}, 4, v{VO}\nv_lshlrev_b32 v{VGO}, 2, v{T0}")
        a(f"s_lshl_b32 s{S_T}, s{W}, 11\ns_add_u32 s{S_T}, s{S_T}, {LDS_Q}\nv_add_u32 v{VQW}, s{S_T}, v{VO}")
        a(f"v_and_b32 v{T0}, 11, v0\nv_cmp_eq_u32 vcc, 0, v{T0}\nv_mov_b32 v{T0}, 0x3f803f80\ns_nop 0\nv_cndmask_b32 v{T0}, 0, v{T0}, vcc\nv_mov_b32 v{T0+1}, v{T0}")
        for t in range(16):
            for j in range(4, 8, 2): a(f"v_mov_b64 {vr(VR_+8*t+j,2)}, {vr(T0,2)}")
        zero_o()
        a(f"s_lshl_b32 s{S_E}, s{W}, 3\ns_lshr_b32 s{S_T}, s{S_ID}, 3\ns_add_u32 s{S_E}, s{S_E}, s{S_T}")
    def zero_o():
        for j in range(0, 8, 2): a(f"v_mov_b64 {vr(OA+j,2)}, 0")
        a(f"v_mov_b32 v{OA+8}, 0")
    def qreads(j, xoff, qoff):
        b = j & 1
        a(f"ds_read_b128 {vr(XF+4*b,4)}, v{VXR + j%4} offset:{xoff}")
        a(f"ds_read_b64_tr_b16 {vr(WF+4*b,2)}, v{VQR} offset:{qoff + (j%4)*1024}\nds_read_b64_tr_b16 {vr(WF+4*b+2,2)}, v{VQR} offset:{qoff + (j%4)*1024 + 256}")
    def qmfma(j):
        b = j & 1
        a(f"v_mfma_f32_32x32x16_bf16 {vr(ACC,16)}, {vr(WF+4*b,4)}, {vr(XF+4*b,4)}, {'0' if j == 0 else vr(ACC,16)}")
    rec_loads = [f"buffer_load_dwordx2 {vr(VREC,2)}, v{VRA}, {WSR}, s{S_K0} offen sc1",
                 f"buffer_load_dwordx2 {vr(VREC+2,2)}, v{VRA}, {WSR}, s{S_K0} offen offset:512 sc1"]
    def rec_finish(looked):
        lab = a.newlabel("norec"); seen = a.newlabel("seen")
        a(f"s_cmp_lg_u32 s{W}, 0\ns_cbranch_scc1 {lab}")
        if looked is not None:
            a(f"s_waitcnt vmcnt({looked})")
            a(f"v_cmp_ne_u32 vcc, s{S_TAG}, v{VREC}\nv_cmp_ne_u32 s[{S_T+6}:{S_T+7}], s{S_TAG}, v{VREC+2}\ns_or_b64 vcc, vcc, s[{S_T+6}:{S_T+7}]\ns_cbranch_vccz {seen}")
        poll(a, rec_loads, [VREC, VREC + 2], sleep=8)
        a.label(seen)
        wave_max(a, VREC + 1)
        a(f"v_mov_b32 v{VREC}, {LDS_X + 1024}\ns_mov_b32 exec_lo, 0\ns_mov_b32 exec_hi, 0x80000000\nds_write_b32 v{VREC}, v{VREC+1}\ns_mov_b64 exec, -1")
        a.label(lab)
    def kvload(t):
        if t % 2 == 0:
            a(f"s_add_u32 s{S_T}, s{S_E}, {t//2}\ns_and_b32 s{S_T}, s{S_T}, 31\ns_lshl_b32 s{S_T}, s{S_T}, 11")
            a(f"s_add_u32 s{S_T+1}, s{S_T}, {WS_VP}\ns_add_u32 s{S_T}, s{S_T}, {WS_KP}")
        a(f"buffer_load_dwordx4 {vr(KR+4*t,4)}, v{VL16}, {WSR}, s{S_T} offen offset:{(t%2)*1024}{SC()}")
        a(f"buffer_load_dwordx4 {vr(VR_+8*t,4)}, v{VL16}, {WSR}, s{S_T+1} offen offset:{(t%2)*1024}{SC()}")
        vq.add(("KV", t), 2)
    lidle = a.newlabel("Aidle"); ljoin = a.newlabel("Ajoin")
    a(f"s_cmp_ge_u32 s{S_ID}, 224\ns_cbranch_scc1 {lidle}")
    X = lambda u, j: issueX1(u, j, XL + (u % 3) * 16384, QWL + (u % 3) * 4096)
    for j in range(5): X(0, j)
    srd(a, R_W0, S_WG, 512 * 3584); srd(a, R_W1, S_WU, 512 * 3584)
    W0 = OPT["w0"]
    nextW, nextX, xp = W0, 1, 0
    for j in range(W0):
        issueW1(j, 0); issueW1(j, 1)
        if OPT.get("xup") and j == OPT["xup"] - 1:
            for p in range(5): X(1, p)
            nextX = 2
    if OPT.get("st4") == 1: stamp(a, 4)
    setup(QWL)
    if OPT.get("st4") == 2: stamp(a, 4)
    vq.wait({("X", 0), ("W", 0)})
    if OPT.get("st4") == 3: stamp(a, 4)
    a("s_waitcnt lgkmcnt(0)")
    a("s_barrier")
    stamp(a, 1)
    qreads(0, XL, 0)
    kvt = 0
    for j in range(32):
        if j == OPT["kvat"]: rec_finish(vq.total - look_at)
        if j < 31:
            tags = {("W", j + 1)}
            if (j + 1) % 4 == 0: tags.add(("X", (j + 1) // 4))
            assert nextW > j + 1 and ((j + 1) % 4 or nextX > (j + 1) // 4)
            vq.wait(tags)
        a("s_waitcnt lgkmcnt(0)")
        a("s_barrier")
        qmfma(j)
        if j < 31: qreads(j + 1, XL + (((j + 1) // 4) % 3) * 16384, (((j + 1) // 4) % 3) * 4096)
        for _ in range(5 if nextX == 1 else OPT["xper"]):
            if nextX < 8 and j >= 4 * (nextX - 3) + 3:
                X(nextX, xp); xp += 1
                if xp == 5: nextX += 1; xp = 0; break
        for _ in range(OPT["ramp"]):
            if nextW < 32 and nextW <= j + OPT['nw']:
                issueW1(nextW, 0); issueW1(nextW, 1); nextW += 1
        if j == OPT["look"]:
            lab = a.newlabel("nolook")
            a(f"s_cmp_lg_u32 s{W}, 0\ns_cbranch_scc1 {lab}")
            for l in rec_loads: a(l)
            a.label(lab)
            look_at = vq.total
        if j >= OPT["kvat"]:
            for _ in range(OPT["kvper"] if j < 31 else 16):
                if kvt < 16: kvload(kvt); kvt += 1
    a(f"s_branch {ljoin}")
    a.label(lidle)
    vq.q = []
    a(f"s_cmp_eq_u32 s{S_B}, 14\ns_cselect_b32 s{R_W0}, s{S_WK}, s{S_WV}\ns_cselect_b32 s{R_W0+1}, s{S_WK+1}, s{S_WV+1}")
    a(f"s_movk_i32 s{R_W0+2}, 16384\ns_mov_b32 s{R_W0+3}, 0x20000\ns_mov_b32 s{S_F}, 0")
    srd(a, R_W1, S_GW, 1024)
    a(f"v_lshlrev_b32 v{VGS}, 4, v0")
    dma(a, VGS, R_W1, S_T, S_M0B, 0, IGL)
    for p in range(4): dma(a, VGS, R_W0, S_T, S_M0B, p * 4096, IEL + p * 4096)
    XI = lambda u: [issueX1(u, p, IXL + (u % 4) * 16384, IQL + (u % 4) * 4096) for p in range(5)]
    for u in range(4): XI(u)
    setup(IQL)
    for u in range(8):
        vq.wait({("X", u)})
        a("s_waitcnt lgkmcnt(0)")
        a("s_barrier")
        if u == 0: stamp(a, 1)
        if 1 <= u <= 4: XI(u + 3)
        qreads(4 * u, (u % 4) * 16384, (u % 4) * 4096)
        for ks in range(4):
            j = 4 * u + ks
            if ks < 3:
                qreads(j + 1, (u % 4) * 16384, (u % 4) * 4096); a("s_waitcnt lgkmcnt(3)")
            else: a("s_waitcnt lgkmcnt(0)")
            qmfma(j)
    rec_finish(None)
    a("s_waitcnt lgkmcnt(0)")
    a("s_barrier")
    for t in range(16): kvload(t)
    a.label(ljoin)
    stamp(a, 2)
    a(f"s_lshl_b32 s{S_T}, s{S_A}, 2\ns_add_u32 s{S_T}, s{S_T}, s{W}\ns_lshl_b32 s{S_D}, s{S_T}, 15\ns_lshl_b32 s{S_C}, s{S_T}, 7")
    a(f"s_lshl_b32 s{S_T}, s{S_B}, 11\ns_add_u32 s{S_D}, s{S_D}, s{S_T}\ns_add_u32 s{S_D}, s{S_D}, {WS_OP}\ns_add_u32 s{S_C}, s{S_C}, {WS_G}")
    a(f"s_mul_i32 s{S_T}, s{W}, {PART}\ns_add_u32 s{S_T}, s{S_T}, {LDS_P}")
    a(f"v_add_u32 v{VL16}, s{S_T}, v{VL16}\nv_add_u32 v{VL4}, s{S_T}, v{VL4}")
    a(f"s_lshl_b32 s{S_T}, s{W}, 8\ns_add_u32 s{S_T}, s{S_T}, {LDS_X}\nv_lshl_add_u32 v15, v0, 2, s{S_T}")
    for j in range(8): a(f"v_cvt_pk_bf16_f32 v{16+j}, v{ACC+2*j}, v{ACC+2*j+1}")
    a(f"ds_write_b128 v{VQW}, v[16:19]\nds_write_b128 v{VQW}, v[20:23] offset:256")
    a(f"v_mul_f32 v24, v{ACC}, v{ACC}\nv_mul_f32 v25, v{ACC+8}, v{ACC+8}")
    for i in range(1, 8): a(f"v_fmac_f32 v24, v{ACC+i}, v{ACC+i}\nv_fmac_f32 v25, v{ACC+8+i}, v{ACC+8+i}")
    a(f"v_mov_b32 v26, {LDS_X + 1024}\ns_nop 0\nv_permlane32_swap_b32 v24, v25\nv_add_f32 v24, v24, v25\nds_write_b32 v15, v24")
    a(f"v_lshlrev_b32 v15, 2, v0\nv_add_u32 v15, {LDS_X}, v15")
    lsync(a, 0, 4, 27, 28)
    a(f"ds_read_b128 {vr(QB,4)}, v{VLQ}")
    a(f"ds_read2st64_b32 v[20:21], v15 offset0:0 offset1:1\nds_read2st64_b32 v[22:23], v15 offset0:2 offset1:3\nds_read_b32 v24, v26")
    a("s_waitcnt lgkmcnt(0)")
    a("v_max3_u32 v20, v20, v21, v22\nv_max_u32 v20, v20, v23\nv_mul_f32 v20, v20, v24")
    slow = a.newlabel("slow"); red = a.newlabel("reduce")
    a(f"v_cmp_nge_f32 vcc, {f2u(float(OPT['thr'])**2):#x}, v20")
    a(f"s_setprio {OPT['prioA']}")
    a(f"s_cbranch_vccnz {slow}")
    def vfix(t):
        for j in range(4): a(f"v_permlane16_swap_b32 v{VR_+8*t+j}, v{VR_+8*t+4+j}")
    def S(t, buf, c="0"): a(f"v_mfma_f32_32x32x16_bf16 {vr(SB[buf],16)}, {vr(KR+4*t,4)}, {vr(QB,4)}, {c}")
    def PV(t, s, buf): a(f"v_smfmac_f32_32x32x32_bf16 {vr(OA,16)}, {vr(VR_+8*t+4*s,4)}, {vr(SB[buf]+8*s,8)}, v{VIDX}")
    def EX(buf, i): a(f"v_exp_f32 v{SB[buf]+i}, v{SB[buf]+i}")
    def flush(base):
        a(f"ds_write_b128 v{VL16}, {vr(OA,4)} offset:{base}")
        a(f"ds_write_b128 v{VL16}, {vr(OA+4,4)} offset:{base+1024}")
        a(f"ds_write_b32 v{VL4}, v{OA+8} offset:{base+2048}")
    a("s_waitcnt vmcnt(31)")
    stamp(a, 5)
    S(0, 0)
    a("s_nop 10")
    gl = lambda j, r: a(f"buffer_load_dword v{r}, v{VGO}, {WSR}, s{S_C} offen offset:{64*j}{SC()}")
    for q in range(8):
        for t in range(16):
            g = q * 16 + t
            cur, oth = g & 1, (g & 1) ^ 1
            nt = (t + 1) % 16
            def kv():
                if q == 0: a(f"s_waitcnt vmcnt({max(0, 29 - 2*t)})"); vfix(t)
            if t == 0:
                if q == 1: stamp(a, 6)
                if q == 4: stamp(a, 7)
                EX(cur, 0); EX(cur, 1)
                if q > 0: PV(15, 1, oth)
                EX(cur, 2); EX(cur, 3); EX(cur, 4)
                kv(); S(nt, oth)
                for i in range(5, 16): EX(cur, i)
                if q > 0:
                    flush((q - 1) * 4 * PART); zero_o()
                if q == 7: gl(0, 6); gl(1, 7)
            elif t == 1:
                EX(cur, 0); EX(cur, 1)
                PV(0, 0, oth)
                EX(cur, 2); EX(cur, 3); EX(cur, 4)
                PV(0, 1, oth)
                EX(cur, 5); EX(cur, 6); EX(cur, 7)
                kv(); S(nt, oth)
                EX(cur, 8); EX(cur, 9); EX(cur, 10)
                PV(1, 0, cur)
                for i in range(11, 16): EX(cur, i)
                a("s_nop 2")
            else:
                EX(cur, 0); EX(cur, 1)
                PV(t - 1, 1, oth)
                EX(cur, 2); EX(cur, 3); EX(cur, 4)
                if g != 127:
                    if t == 15: a("s_waitcnt lgkmcnt(0)")
                    kv(); S(nt, oth)
                EX(cur, 5); EX(cur, 6)
                if t == 14 and q < 7: a(f"ds_read_b128 {vr(QB,4)}, v{VLQ} offset:{(q+1)*1024}")
                for i in range(7, 10): EX(cur, i)
                PV(t, 0, cur)
                for i in range(10, 16): EX(cur, i)
    stamp(a, 8)
    a("s_nop 1")
    PV(15, 1, 1)
    a("s_nop 15")
    flush(7 * 4 * PART)
    a.label(red)
    a(f"s_mul_i32 s{S_T}, s{W}, {2*4*PART}\ns_add_u32 s{S_T}, s{S_T}, {LDS_P}")
    a(f"v_lshl_add_u32 v{VL16}, v0, 4, s{S_T}\nv_and_b32 v{VL4}, 31, v0\nv_lshl_add_u32 v{VL4}, v{VL4}, 2, s{S_T}")
    lsync(a, 1, 4, 16, 17)
    R = 64
    for j in range(2):
        for p in range(4):
            b = (j * 4 + p) * PART; r = R + (j * 4 + p) * 12
            a(f"ds_read_b32 v{r+8}, v{VL4} offset:{b+2048}")
        for p in range(4):
            b = (j * 4 + p) * PART; r = R + (j * 4 + p) * 12
            a(f"ds_read_b128 {vr(r,4)}, v{VL16} offset:{b}")
            a(f"ds_read_b128 {vr(r+4,4)}, v{VL16} offset:{b+1024}")
        r0 = R + j * 48
        a(f"s_waitcnt lgkmcnt(8)")
        a(f"v_add_f32 v{r0+8}, v{r0+8}, v{r0+20}\nv_add_f32 v{r0+32}, v{r0+32}, v{r0+44}\nv_add_f32 v{r0+8}, v{r0+8}, v{r0+32}")
        a(f"v_rcp_f32 v{r0+8}, v{r0+8}")
    for j in range(2):
        r0 = R + j * 48
        a("s_waitcnt vmcnt(0)" if j == 0 else "s_waitcnt lgkmcnt(0)")
        for i in range(0, 8, 2):
            a(f"v_pk_add_f32 {vr(r0+i,2)}, {vr(r0+i,2)}, {vr(r0+12+i,2)}")
            a(f"v_pk_add_f32 {vr(r0+24+i,2)}, {vr(r0+24+i,2)}, {vr(r0+36+i,2)}")
        a(f"v_mul_f32 v{r0+8}, v{r0+8}, v{6+j}")
        for i in range(0, 8, 2):
            a(f"v_pk_add_f32 {vr(r0+i,2)}, {vr(r0+i,2)}, {vr(r0+24+i,2)}")
        for i in range(0, 8, 2):
            a(f"v_pk_mul_f32 {vr(r0+i,2)}, {vr(r0+i,2)}, {vr(r0+8,2)} op_sel_hi:[1,0]")
        for i in range(4):
            a(f"v_cvt_pk_bf16_f32 v{r0+12+i}, v{r0+2*i}, v{r0+2*i+1}")
        a(f"buffer_store_dwordx4 {vr(r0+12,4)}, v{VO}, {WSR}, s{S_D} offen offset:{256*j} sc1")
    a(f"s_lshl_b32 s{S_T}, s{S_A}, 13\ns_lshl_b32 s{S_T+1}, s{S_B}, 9\ns_add_u32 s{S_T}, s{S_T}, s{S_T+1}")
    a(f"s_lshl_b32 s{S_T+1}, s{W}, 7\ns_add_u32 s{S_T}, s{S_T}, s{S_T+1}\ns_add_u32 s{S_T}, s{S_T}, {WS_FLO}")
    a(f"v_mov_b32 v16, s{S_TAG}\nv_mov_b32 v17, 0\ns_mov_b64 exec, 1")
    a("s_waitcnt vmcnt(0)")
    stamp(a, 9)
    a(f"buffer_store_dword v16, v17, {WSR}, s{S_T} offen sc1")
    stamp_dump(a)
    a("s_endpgm")
    a.label(slow)
    loop = a.newlabel("slowq"); spin = a.newlabel("slows")
    a("s_waitcnt vmcnt(0)")
    for t in range(16): vfix(t)
    a(f"v_lshlrev_b32 v6, 2, v0\nv_add_u32 v6, {LDS_X + 2048}, v6")
    a(f"s_lshl_b32 s{S_K1}, s{W}, 8\ns_mov_b32 s{S_K0}, 4")
    a.label(loop)
    a(f"ds_read_b128 {vr(QB,4)}, v{VLQ}\nv_add_u32 v{VLQ}, 1024, v{VLQ}")
    zero_o()
    a(f"v_mov_b32 v7, 0xff800000")
    a("s_waitcnt lgkmcnt(0)")
    for t in range(16):
        S(t, 0)
        a("s_nop 12")
        for i in range(0, 16, 2): a(f"v_max3_f32 v7, v7, v{SB[0]+i}, v{SB[0]+i+1}")
    a(f"v_mov_b32 v13, v7\ns_nop 1\nv_permlane32_swap_b32 v7, v13\nv_max_f32 v7, v7, v13")
    a(f"v_add_u32 v13, s{S_K1}, v6\nds_write_b32 v13, v7")
    a(f"v_mov_b32 v14, {LDS_C + 8}\nv_mov_b32 v15, 1\ns_mov_b64 exec, 1\nds_add_u32 v14, v15\ns_mov_b64 exec, -1")
    a.label(spin)
    a(f"ds_read_b32 v15, v14\ns_waitcnt lgkmcnt(0)\nv_readfirstlane_b32 s{S_T}, v15\ns_cmp_lt_u32 s{S_T}, s{S_K0}\ns_cbranch_scc1 {spin}")
    a(f"ds_read2st64_b32 v[14:15], v6 offset0:0 offset1:1\nds_read2st64_b32 v[16:17], v6 offset0:2 offset1:3")
    a("s_waitcnt lgkmcnt(0)")
    a("v_max3_f32 v7, v14, v15, v16\nv_max_f32 v7, v7, v17")
    for i in range(16): a(f"v_sub_f32 v{SB[1]+i}, 0, v7")
    a("s_nop 1")
    for t in range(16):
        S(t, 0, vr(SB[1], 16))
        a("s_nop 12")
        for i in range(16): EX(0, i)
        a("s_nop 1")
        PV(t, 0, 0); PV(t, 1, 0)
    a("s_nop 15")
    flush(0)
    a(f"v_add_u32 v{VL16}, {4*PART}, v{VL16}\nv_add_u32 v{VL4}, {4*PART}, v{VL4}\nv_xor_b32 v6, 1024, v6")
    a(f"s_add_u32 s{S_K0}, s{S_K0}, 4\ns_cmp_le_u32 s{S_K0}, 32\ns_cbranch_scc1 {loop}")
    gl(0, 6); gl(1, 7)
    a(f"s_branch {red}")

def ffn1(a):
    VXR, VWR = 8, 12
    T0, T1, T2 = 5, 6, 7
    lidle = a.newlabel("Fidle"); lend = a.newlabel("s1end")
    a(f"s_cmp_ge_u32 s{S_ID}, 224\ns_cbranch_scc1 {lidle}")
    a(f"s_and_b32 s{S_T}, s{W}, 1\ns_lshl_b32 s{S_T}, s{S_T}, 13")
    x_read_addr(a, VXR, T0, T1, T2, S_T)
    a(f"v_bfe_u32 v{T0}, v0, 2, 2\nv_bfe_u32 v{T2}, v0, 4, 1\nv_lshl_add_u32 v16, v{T1}, 3, v{T0}\nv_lshlrev_b32 v16, 8, v16")
    a(f"v_lshl_add_u32 v16, v{T2}, 12, v16\nv_and_b32 v17, 3, v0\nv_lshl_add_u32 v16, v17, 3, v16\nv_add_u32 v16, {WL}, v16")
    a(f"v_lshl_or_b32 v{T0}, v{T2}, 2, v{T0}\ns_and_b32 s{S_T}, s{W}, 2\ns_lshl_b32 s{S_T}, s{S_T}, 1\nv_xor_b32 v{T0}, s{S_T}, v{T0}")
    for jj in range(4):
        a(f"v_xor_b32 v{VWR+jj}, {jj}, v{T0}\nv_lshl_add_u32 v{VWR+jj}, v{VWR+jj}, 5, v16\nv_add_u32 v{68+jj}, 0x10000, v{VWR+jj}")
    kernarg_wait(a)
    finish_tag_ack(a, 64, 65)
    ACC = 128
    FX = (16, 40); FW = (24, 48)
    def rd_list(j):
        b = j & 1
        xs = XL + ((j // 4) % 3) * 16384; sl = j % OPT["nw"]; wsl = (sl % 8) * 8192; wr = VWR if sl < 8 else 68
        X = [f"ds_read_b128 {vr(FX[b]+4*m,4)}, v{VXR + j%4} offset:{xs + m*4096}" for m in range(2)]
        Wl = [f"ds_read_b64_tr_b16 {vr(FW[b]+4*jj+2*hf,2)}, v{wr+jj} offset:{wsl + hf*1024}" for jj in range(4) for hf in range(2)]
        return [X[0], Wl[0], Wl[1], X[1]] + Wl[2:]
    a("s_barrier")
    stamp(a, 1)
    for l in rd_list(0): a(l)
    for j in range(32):
        b = j & 1
        if OPT.get("fst") and j in (4, 8, 16, 24): stamp(a, {4: 5, 8: 6, 16: 7, 24: 8}[j], True)
        a("s_waitcnt lgkmcnt(0)")
        BP = OPT["barpos"]
        if BP == 0: a("s_barrier")
        rl = rd_list(j + 1) if j < 31 else []
        for n in range(8):
            jj, m = n // 2, n % 2
            acc = ACC + 16 * n
            a(f"v_mfma_f32_32x32x16_bf16 {vr(acc,16)}, {vr(FW[b]+4*jj,4)}, {vr(FX[b]+4*m,4)}, {'0' if j == 0 else vr(acc,16)}")
            if n == BP - 1: a("s_barrier")
            if n >= BP - 1:
                for _ in range(2 if BP < 3 else 3):
                    if rl: a(rl.pop(0))
        assert not rl
    stamp(a, 2)
    a(f"v_lshlrev_b32 v2, 4, v0")
    a(f"s_lshl_b32 s{S_T}, s{S_A}, 2\ns_and_b32 s{S_T+1}, s{W}, 1\ns_lshl_b32 s{S_T+1}, s{S_T+1}, 1\ns_add_u32 s{S_T}, s{S_T}, s{S_T+1}")
    a(f"s_setprio {OPT['prioG']}")
    c0 = -2.0 * LOG2E * math.sqrt(2.0 / math.pi); c1 = c0 * 0.044715
    a(f"s_mov_b32 s{S_K2}, {f2u(c1):#x}\ns_mov_b32 s{S_K2+1}, {f2u(c1):#x}")
    a(f"v_mov_b32 v4, {f2u(c0):#x}\nv_mov_b32 v5, {f2u(c0):#x}")
    a(f"s_mul_i32 s{S_T}, s{S_T}, 112\ns_lshl_b32 s{S_T+1}, s{S_B}, 3\ns_add_u32 s{S_T}, s{S_T}, s{S_T+1}")
    a(f"s_and_b32 s{S_T+1}, s{W}, 2\ns_lshl_b32 s{S_T+1}, s{S_T+1}, 1\ns_add_u32 s{S_T}, s{S_T}, s{S_T+1}\ns_lshl_b32 s{S_T}, s{S_T}, 10")
    a(f"s_add_u32 s{S_E}, s{S_T}, {WS_HP}\ns_add_u32 s{S_F}, s{S_E}, {112*1024}")
    for jj in range(4):
        A2 = [ACC + 32 * jj, ACC + 32 * jj + 16]
        TT = [16 + 24 * (jj & 1), 16 + 24 * (jj & 1) + 12]
        P2 = [(A2[m] + i, TT[m] + i) for m in range(2) for i in range(0, 8, 2)]
        if OPT.get("nopk"):
            P1 = [(A2[m] + i, TT[m] + i) for m in range(2) for i in range(8)]
            for g_, t_ in P1: a(f"v_mul_f32 v{t_}, v{g_}, v{g_}")
            for g_, t_ in P1: a(f"v_fma_f32 v{t_}, v{t_}, s{S_K2}, v4")
            for g_, t_ in P1: a(f"v_mul_f32 v{t_}, v{t_}, v{g_}")
            for g_, t_ in P1: a(f"v_exp_f32 v{t_}, v{t_}")
            for g_, t_ in P1: a(f"v_mul_f32 v{g_}, v{g_}, v{g_+8}")
            for g_, t_ in P1: a(f"v_add_f32 v{t_}, 1.0, v{t_}")
            for g_, t_ in P1: a(f"v_rcp_f32 v{t_}, v{t_}")
            for g_, t_ in P1: a(f"v_mul_f32 v{g_}, v{g_}, v{t_}")
        else:
            for g_, t_ in P2: a(f"v_pk_mul_f32 {vr(t_,2)}, {vr(g_,2)}, {vr(g_,2)}")
            for g_, t_ in P2: a(f"v_pk_fma_f32 {vr(t_,2)}, {vr(t_,2)}, s[{S_K2}:{S_K2+1}], v[4:5]")
            for g_, t_ in P2: a(f"v_pk_mul_f32 {vr(t_,2)}, {vr(t_,2)}, {vr(g_,2)}")
            for g_, t_ in P2: a(f"v_exp_f32 v{t_}, v{t_}\nv_exp_f32 v{t_+1}, v{t_+1}")
            for g_, t_ in P2: a(f"v_pk_mul_f32 {vr(g_,2)}, {vr(g_,2)}, {vr(g_+8,2)}")
            for g_, t_ in P2: a(f"v_pk_add_f32 {vr(t_,2)}, {vr(t_,2)}, 1.0 op_sel_hi:[1,0]")
            for g_, t_ in P2: a(f"v_rcp_f32 v{t_}, v{t_}\nv_rcp_f32 v{t_+1}, v{t_+1}")
            a("s_nop 0")
            for g_, t_ in P2: a(f"v_pk_mul_f32 {vr(g_,2)}, {vr(g_,2)}, {vr(t_,2)}")
        for m in range(2):
            for i in range(4): a(f"v_cvt_pk_bf16_f32 v{TT[m]+8+i}, v{A2[m]+2*i}, v{A2[m]+2*i+1}")
            a(f"buffer_store_dwordx4 {vr(TT[m]+8,4)}, v2, {WSR}, s{S_E if m == 0 else S_F} offen offset:{jj*1024} sc1")
    a(f"s_lshl_b32 s{S_T}, s{S_A}, 11\ns_lshl_b32 s{S_T+1}, s{S_B}, 7\ns_add_u32 s{S_T}, s{S_T}, s{S_T+1}\ns_add_u32 s{S_T}, s{S_T}, {WS_FLH}")
    stamp(a, 3)
    a("s_waitcnt vmcnt(0)")
    lsync(a, 3, 4, 6, 7, OPT['lsl'])
    stamp(a, 4)
    a(f"s_cmp_lg_u32 s{W}, 0\ns_cbranch_scc1 {lend}")
    a(f"s_mov_b64 exec, 1\nbuffer_store_dword v64, v65, {WSR}, s{S_T} offen sc1\ns_mov_b64 exec, -1")
    a(f"s_branch {lend}")
    a.label(lidle)
    VER, VGR, VLIN = 12, 13, 4
    a(f"s_lshl_b32 s{S_T}, s{W}, 12")
    x_read_addr(a, VXR, T0, T1, T2, S_T)
    a(f"v_bfe_u32 v{T0}, v0, 2, 2\nv_lshl_add_u32 v{T0}, v{T1}, 3, v{T0}\nv_and_b32 v{T2}, 3, v0\nv_lshlrev_b32 v{T2}, 3, v{T2}")
    a(f"v_lshl_add_u32 v{VER}, v{T0}, 5, v{T2}\nv_add_u32 v{VER}, {IEL}, v{VER}\nv_lshlrev_b32 v{VGR}, 4, v{T1}\nv_add_u32 v{VGR}, {IGL}, v{VGR}")
    a(f"v_lshlrev_b32 v{VLIN}, 4, v0\ns_lshl_b32 s{S_F}, s{S_A}, 2\ns_add_u32 s{S_F}, s{S_F}, s{W}   ; tt")
    kernarg_wait(a)
    finish_tag_ack(a, 64, 65)
    lv = a.newlabel("FV"); pub = a.newlabel("Fpub")
    ACK, ACG, XF, EF, GF, P = 32, 48, 16, 24, 72, 80
    a(f"s_cmp_eq_u32 s{S_B}, 15\ns_cbranch_scc1 {lv}")
    for v in "KV":
        if v == "V": a.label(lv)
        def reads(j):
            b = j & 1; u = j // 4
            a(f"ds_read_b128 {vr(XF+4*b,4)}, v{VXR + j%4} offset:{(u%4)*16384}")
            a(f"ds_read_b64_tr_b16 {vr(EF+4*b,2)}, v{VER} offset:{j*512}\nds_read_b64_tr_b16 {vr(EF+4*b+2,2)}, v{VER} offset:{j*512 + 128}")
            if v == "K": a(f"ds_read_b128 {vr(GF+4*b,4)}, v{VGR} offset:{j*32}")
        for u in range(8):
            a("s_barrier")
            reads(4 * u)
            for ks in range(4):
                j = 4 * u + ks; b = j & 1
                if ks < 3: reads(j + 1); a(f"s_waitcnt lgkmcnt({4 if v == 'K' else 3})")
                else: a("s_waitcnt lgkmcnt(0)")
                cc = (lambda r: "0") if j == 0 else (lambda r: vr(r, 16))
                if v == "K":
                    a(f"v_mfma_f32_32x32x16_bf16 {vr(ACK,16)}, {vr(EF+4*b,4)}, {vr(XF+4*b,4)}, {cc(ACK)}")
                    a(f"v_mfma_f32_32x32x16_bf16 {vr(ACG,16)}, {vr(GF+4*b,4)}, {vr(XF+4*b,4)}, {cc(ACG)}")
                else:
                    a(f"v_mfma_f32_32x32x16_bf16 {vr(ACK,16)}, {vr(XF+4*b,4)}, {vr(EF+4*b,4)}, {cc(ACK)}")
        stamp(a, 2)
        a("s_nop 15")
        if v == "K":
            for j in range(8): a(f"v_mul_f32 v{ACK+j}, {f2u(0.25*LOG2E):#x}, v{ACK+j}")
            for j in range(4): a(f"v_cvt_pk_bf16_f32 v{P+j}, v{ACK+2*j}, v{ACK+2*j+1}")
            a(f"v_and_b32 v{T1}, 0x33, v0\nv_bfe_u32 v{T2}, v0, 2, 1\nv_lshl_or_b32 v{T1}, v{T2}, 3, v{T1}")
            a(f"v_bfe_u32 v{T2}, v0, 3, 1\nv_lshl_or_b32 v{T1}, v{T2}, 2, v{T1}\nv_lshlrev_b32 v{T1}, 4, v{T1}")
            a(f"s_lshl_b32 s{S_T}, s{S_F}, 10\ns_add_u32 s{S_T}, s{S_T}, {WS_KP}")
            a(f"buffer_store_dwordx4 {vr(P,4)}, v{T1}, {WSR}, s{S_T} offen sc1")
            a(f"v_mul_f32 v20, {f2u(-LOG2E):#x}, v{ACG}\nv_exp_f32 v20, v20\nv_and_b32 v21, 31, v0")
            a(f"v_add_f32 v20, 1.0, v20\nv_rcp_f32 v20, v20\nv_lshlrev_b32 v21, 2, v21")
            a(f"s_lshl_b32 s{S_T}, s{S_F}, 7\ns_add_u32 s{S_T}, s{S_T}, {WS_G}")
            a(f"buffer_store_dword v20, v21, {WSR}, s{S_T} offen sc1")
            a(f"v_mul_f32 v{T0}, v{ACK}, v{ACK}")
            for j in range(1, 8): a(f"v_fmac_f32 v{T0}, v{ACK+j}, v{ACK+j}")
            a(f"v_mov_b32 v67, v{T0}\ns_nop 1\nv_permlane32_swap_b32 v{T0}, v67\nv_add_f32 v67, v{T0}, v67")
            wave_max(a, 67)
            a(f"s_mov_b32 s{S_T+1}, {WS_RECK}")
            a(f"s_branch {pub}")
        else:
            for j in range(8): a(f"v_cvt_pk_bf16_f32 v{P+j}, v{ACK+2*j}, v{ACK+2*j+1}")
            a(f"v_and_b32 v{T1}, 16, v0\nv_cmp_ne_u32 vcc, 0, v{T1}")
            a(f"s_lshl_b32 s{S_T}, s{S_F}, 10\ns_add_u32 s{S_T}, s{S_T}, {WS_VP}")
            for j in range(4): a(f"v_cndmask_b32 v{P+j}, v{P+j}, v{P+4+j}, vcc")
            a(f"buffer_store_dwordx4 {vr(P,4)}, v{VLIN}, {WSR}, s{S_T} offen sc1")
            a(f"s_mov_b32 s{S_T+1}, {WS_RECK + 512}\nv_mov_b32 v67, 0")
    a.label(pub)
    a(f"s_lshl_b32 s{S_T}, s{S_F}, 3\ns_add_u32 s{S_T+1}, s{S_T+1}, s{S_T}\nv_mov_b32 v66, s{S_TAG}")
    a("s_mov_b32 exec_lo, 0\ns_mov_b32 exec_hi, 0x80000000\ns_waitcnt vmcnt(0)")
    stamp(a, 3)
    a(f"buffer_store_dwordx2 v[66:67], v65, {WSR}, s{S_T+1} offen sc1\ns_mov_b64 exec, -1")
    a("s_barrier")
    epoch_update(a)
    a.label(lend)

def epoch_update(a):
    lab = a.newlabel("noepoch")
    a(f"s_cmp_lg_u32 s{S_ID}, 224\ns_cbranch_scc1 {lab}\ns_cmp_lg_u32 s{W}, 1\ns_cbranch_scc1 {lab}")
    a(f"v_lshlrev_b32 v2, 4, v0\ns_mov_b32 s{S_T+6}, {WS_ACK}\ns_mov_b32 s{S_T+7}, {WS_ACK+4096}")
    loads, regs = [], []
    for i in range(8):
        loads.append(f"buffer_load_dwordx4 {vr(16+4*i,4)}, v2, {WSR}, s{S_T+6+i//4} offen offset:{(i%4)*1024} sc1")
        regs += [16 + 4*i + j for j in range(4)]
    poll(a, loads, regs, sleep=64)
    a(f"s_mov_b64 exec, 1\nbuffer_store_dword v64, v65, {WSR}, 0 offen offset:{WS_EPOCH} sc1\ns_mov_b64 exec, -1")
    a.label(lab)

def ffn2(a):
    a(f"s_and_b32 s{S_T}, s{S_ID}, 1\ns_lshl_b32 s{S_T}, s{S_T}, 4\ns_and_b32 s{S_T+1}, s{S_ID}, 2\ns_lshl_b32 s{S_T+1}, s{S_T+1}, 2")
    a(f"s_add_u32 s{S_T}, s{S_T}, s{S_T+1}\ns_bfe_u32 s{S_T+1}, s{S_ID}, 0x30003\ns_add_u32 s{S_A}, s{S_T}, s{S_T+1}   ; tb64")
    a(f"s_and_b32 s{S_T}, s{S_ID}, 4\ns_lshr_b32 s{S_T+1}, s{S_ID}, 6\ns_add_u32 s{S_B}, s{S_T}, s{S_T+1}   ; cb")
    srd(a, R_W0, S_WD, 1792 * 1024); srd(a, R_W1, S_WO, 512 * 1024); srd(a, R_OUT, S_OUT, 2048 * 1024)
    VWS, VLIN, VR0, VR1, VG = 2, 3, 4, 5, 6
    T0, T1, T2 = 8, 9, 10
    a(f"v_lshrrev_b32 v{T0}, 3, v0\nv_and_b32 v{T1}, 7, v0\nv_bfe_u32 v{T2}, v0, 4, 1\nv_lshlrev_b32 v{T2}, 2, v{T2}")
    a(f"v_xor_b32 v{VWS}, v{T2}, v{T1}\nv_lshlrev_b32 v{VWS}, 4, v{VWS}\nv_lshl_add_u32 v{VWS}, v{T0}, 10, v{VWS}")
    a(f"v_lshlrev_b32 v{VLIN}, 4, v0")
    a(f"v_lshrrev_b32 v{T1}, 5, v0\nv_bfe_u32 v{T0}, v0, 2, 2\nv_lshl_add_u32 v{T0}, v{T1}, 2, v{T0}\nv_and_b32 v{T2}, 3, v0")
    a(f"v_lshlrev_b32 v{T2}, 3, v{T2}\nv_lshl_add_u32 v{VR0}, v{T0}, 7, v{T2}\nv_bfe_u32 v{T0}, v0, 4, 1\nv_bfe_u32 v{T2}, v0, 3, 1")
    a(f"v_lshl_or_b32 v{T0}, v{T2}, 1, v{T0}\nv_xor_b32 v{T2}, 2, v{T0}")
    a(f"v_lshl_add_u32 v{VR1}, v{T2}, 5, v{VR0}\nv_lshl_add_u32 v{VR0}, v{T0}, 5, v{VR0}")
    a(f"s_lshl_b32 s{S_M0B}, s{W}, 14")
    a(f"v_add_u32 v{VR0}, s{S_M0B}, v{VR0}\nv_add_u32 v{VR1}, s{S_M0B}, v{VR1}")
    a(f"s_lshl_b32 s{S_T}, s{S_B}, 7\ns_add_u32 s{S_C}, s{S_M0B}, s{S_T}")
    a(f"s_mul_i32 s{S_D}, s{S_A}, {2*112*1024}\ns_lshl_b32 s{S_T}, s{W}, 10\ns_add_u32 s{S_D}, s{S_D}, s{S_T}")
    a(f"s_add_u32 s{S_D}, s{S_D}, {WS_HP}\ns_add_u32 s{S_E}, s{S_D}, {112*1024}")
    a(f"s_lshl_b32 s{S_T}, s{S_B}, 1\ns_add_u32 s{S_T}, s{S_T}, s{S_A}\ns_and_b32 s{S_T}, s{S_T}, {OPT['rot2']}")
    a(f"s_mul_i32 s{S_T}, s{S_T}, 7\ns_lshr_b32 s{S_T}, s{S_T}, 1\ns_lshl_b32 s{S_K2}, s{S_T}, 16\ns_lshl_b32 s{S_K3}, s{S_T}, 12")
    ACC, HF, FW = 64, 128, (16, 24)
    NS, D = 28, 8
    q = []
    def issueW(n):
        a(f"s_add_u32 s{S_T+1}, s{S_C}, s{S_K2}")
        for p in range(2):
            dma(a, VWS, R_W0, S_T, S_T + 1, p * 8192, (n % D) * 2048 + p * 1024); q.append(("W", n))
        a(f"s_add_u32 s{S_K2}, s{S_K2}, 65536\ns_cmp_eq_u32 s{S_K2}, {28*65536}\ns_cselect_b32 s{S_K2}, 0, s{S_K2}")
    def issueWo(n):
        for p in range(2):
            dma(a, VWS, R_W1, S_T, S_G, (n - NS) * 16384 + p * 8192, (n % D) * 2048 + p * 1024); q.append(("W", n))
    def issueH(n):
        a(f"s_add_u32 s{S_T}, s{S_D}, s{S_K3}\ns_add_u32 s{S_T+1}, s{S_E}, s{S_K3}")
        a(f"s_add_u32 s{S_K3}, s{S_K3}, 4096\ns_cmp_eq_u32 s{S_K3}, {28*4096}\ns_cselect_b32 s{S_K3}, 0, s{S_K3}")
        a(f"buffer_load_dwordx4 {vr(HF+(n%D)*8,4)}, v{VLIN}, {WSR}, s{S_T} offen{SC()}"); q.append(("H", n))
        a(f"buffer_load_dwordx4 {vr(HF+(n%D)*8+4,4)}, v{VLIN}, {WSR}, s{S_T+1} offen{SC()}"); q.append(("H", n))
    def waitfor(tags):
        idx = max((i for i, t in enumerate(q) if t in tags), default=-1)
        n = len(q) - 1 - idx
        del q[:idx + 1]
        a(f"s_waitcnt vmcnt({n})")
    def rd_list(n):
        b = n & 1
        return [f"ds_read_b64_tr_b16 {vr(FW[b]+4*ct+2*hf,2)}, v{(VR0,VR1)[ct]} offset:{(n%D)*2048 + hf*1024}" for ct in range(2) for hf in range(2)]
    for n in range(OPT.get("wpre", 2)): issueW(n)
    lab = a.newlabel("nopoll")
    a(f"s_cmp_lg_u32 s{W}, 0\ns_cbranch_scc1 {lab}")
    a(f"s_lshr_b32 s{S_T+4}, s{S_A}, 1\ns_lshl_b32 s{S_T+4}, s{S_T+4}, 11\ns_add_u32 s{S_T+4}, s{S_T+4}, {WS_FLH}")
    a(f"s_lshl_b32 s{S_T+5}, s{S_A}, 4\ns_add_u32 s{S_T+5}, s{S_T+5}, {WS_RECK}")
    a(f"v_lshlrev_b32 v11, 7, v0\nv_add_u32 v11, s{S_T+4}, v11\nv_and_b32 v12, 1, v0\nv_lshlrev_b32 v12, 3, v12\nv_add_u32 v12, s{S_T+5}, v12")
    a(f"v_cmp_gt_u32 vcc, 14, v0\ns_nop 1\nv_cndmask_b32 v11, v12, v11, vcc")
    poll(a, [f"buffer_load_dword v13, v11, {WSR}, 0 offen sc1"], [13], sleep=12)
    a.label(lab)
    a("s_waitcnt vmcnt(0)")
    lsync(a, 4, 4, 11, 12, 4 * OPT['lsl'])
    q.clear()
    stamp(a, 5)
    a(f"s_setprio {OPT['prioD']}")
    for n in range(D):
        if n >= OPT.get("wpre", 2): issueW(n)
        issueH(n)
    a(f"s_lshl_b32 s{S_T}, s{S_A}, 8\ns_add_u32 s{S_T}, s{S_T}, {WS_G}\nv_and_b32 v{T0}, 31, v0\nv_lshlrev_b32 v{T0}, 2, v{T0}")
    for m in range(2):
        a(f"buffer_load_dword v{VG+m}, v{T0}, {WSR}, s{S_T} offen offset:{128*m}{SC()}"); q.append(("G", 0))
    waitfor({("W", 0)})
    for l in rd_list(0): a(l)
    def step(n, bsrc, extra=None):
        b = n & 1
        rl = rd_list(n + 1) if n + 1 < NS else []
        for k in range(4):
            ct, m = k // 2, k % 2
            acc = ACC + 16 * k
            c = "0" if n == 0 else vr(acc, 16)
            a(f"v_mfma_f32_32x32x16_bf16 {vr(acc,16)}, {vr(FW[b]+4*ct,4)}, {vr(bsrc+4*m,4)}, {c}")
            for _ in range(2):
                if rl: a(rl.pop(0))
            if k == 2 and extra: extra()
            if OPT.get("space") and k != 2: a(f"s_nop {OPT['space']}")
    for n in range(NS):
        waitfor({("H", n), ("W", n + 1)})
        a("s_waitcnt lgkmcnt(0)")
        step(n, HF + (n % D) * 8, (lambda: issueW(n + D)) if n + D < NS else None)
        if n + D < NS: issueH(n + D)
    stamp(a, 6)
    a(f"s_setprio {OPT['prioG']}")
    a(f"v_lshl_add_u32 v{T0}, v0, 4, s{S_M0B}")
    a(f"v_lshlrev_b32 v{T1}, 4, v0\ns_lshl_b32 s{S_T}, s{W}, 12\nv_add_u32 v{T1}, s{S_T}, v{T1}")
    a(f"s_bitcmp1_b32 s{W}, 0\ns_cselect_b64 vcc, -1, 0\nv_cndmask_b32 v{VG}, v{VG}, v{VG+1}, vcc\nv_sub_f32 v{VG}, 1.0, v{VG}")
    a("s_nop 7")
    for d in range(4):
        for i in range(4): a(f"ds_write_b128 v{T0}, {vr(ACC+16*d+4*i,4)} offset:{d*4096 + i*1024}")
    lsync(a, 5, 4, 11, 12, 2 * OPT['lsl'])
    RB = 128
    for src in range(4):
        for i in range(4): a(f"ds_read_b128 {vr(RB+16*src+4*i,4)}, v{T1} offset:{src*16384 + i*1024}")
        if src == 1 or src == 3:
            a(f"s_waitcnt lgkmcnt(0)")
            if src == 3: lsync(a, 6, 4, 11, 12, OPT['lsl'])
            for i in range(0, 16, 2):
                a(f"v_pk_add_f32 {vr(RB+16*(src-1)+i,2)}, {vr(RB+16*(src-1)+i,2)}, {vr(RB+16*src+i,2)}")
    a(f"s_lshl_b32 s{S_M0B}, s{W}, 10\ns_lshl_b32 s{S_C}, s{W}, 13\ns_lshl_b32 s{S_T}, s{S_B}, 7\ns_add_u32 s{S_C}, s{S_C}, s{S_T}")
    for p in range(16): dma(a, VWS, R_W1, S_T, S_C, p * 32768, p * 4096)
    OWN, OTH = 64, 80
    for i in range(0, 16, 2): a(f"v_pk_add_f32 {vr(RB+i,2)}, {vr(RB+i,2)}, {vr(RB+32+i,2)}")
    for i in range(0, 16, 2): a(f"v_pk_mul_f32 {vr(OWN+i,2)}, {vr(RB+i,2)}, {vr(VG,2)} op_sel_hi:[1,0]")
    a(f"s_lshl_b32 s{S_T}, s{W}, 14\nv_subrev_u32 v{VR0}, s{S_T}, v{VR0}\nv_subrev_u32 v{VR1}, s{S_T}, v{VR1}")
    a(f"s_and_b32 s{S_T}, s{W}, 2\ns_lshl_b32 s{S_T}, s{S_T}, 14\nv_add_u32 v{VR0}, s{S_T}, v{VR0}\nv_add_u32 v{VR1}, s{S_T}, v{VR1}")
    a(f"s_bitcmp1_b32 s{W}, 1\ns_cselect_b64 vcc, -1, 0\nv_cndmask_b32 v12, v{VR0}, v{VR1}, vcc\nv_cndmask_b32 v{VR1}, v{VR1}, v{VR0}, vcc\nv_mov_b32 v{VR0}, v12")
    a(f"s_lshl_b32 s{S_F}, s{S_A}, 1\ns_and_b32 s{S_T}, s{W}, 1\ns_add_u32 s{S_F}, s{S_F}, s{S_T}   ; tt")
    a(f"s_lshl_b32 s{S_D}, s{S_F}, 15\ns_and_b32 s{S_T}, s{W}, 2\ns_lshl_b32 s{S_T}, s{S_T}, 13\ns_add_u32 s{S_D}, s{S_D}, s{S_T}\ns_add_u32 s{S_D}, s{S_D}, {WS_OP}")
    a(f"s_lshr_b32 s{S_T+4}, s{S_F}, 2\ns_lshl_b32 s{S_T+4}, s{S_T+4}, 13\ns_and_b32 s{S_T}, s{W}, 2\ns_lshl_b32 s{S_T}, s{S_T}, 11\ns_add_u32 s{S_T+4}, s{S_T+4}, s{S_T}")
    a(f"s_and_b32 s{S_T}, s{S_F}, 3\ns_lshl_b32 s{S_T}, s{S_T}, 7\ns_add_u32 s{S_T+4}, s{S_T+4}, s{S_T}\ns_add_u32 s{S_T+4}, s{S_T+4}, {WS_FLO}")
    a(f"v_and_b32 v11, 7, v0\nv_lshlrev_b32 v11, 9, v11")
    a(f"s_lshl_b32 s{S_T}, s{W}, 12\ns_add_u32 s{S_T}, s{S_T}, 65536\nv_lshl_add_u32 v{T0}, v0, 4, s{S_T}")
    a(f"s_xor_b32 s{S_T}, s{S_T}, 8192\nv_lshl_add_u32 v{T1}, v0, 4, s{S_T}")
    a(f"v_and_b32 v{T2}, 31, v0\nv_lshlrev_b32 v{T2}, 10, v{T2}\nv_and_b32 v12, 32, v0\nv_lshrrev_b32 v12, 1, v12\nv_add_u32 v{T2}, v{T2}, v12")
    a(f"s_lshl_b32 s{S_E}, s{S_F}, 15\ns_lshl_b32 s{S_T+1}, s{S_B}, 7\ns_add_u32 s{S_E}, s{S_E}, s{S_T+1}")
    a(f"s_and_b32 s{S_T+1}, s{W}, 2\ns_lshl_b32 s{S_T+1}, s{S_T+1}, 5\ns_add_u32 s{S_E}, s{S_E}, s{S_T+1}")
    a("s_waitcnt vmcnt(0)")
    lsync(a, 7, 4, 13, 12, OPT['lsl'])
    def rdo(j):
        b = 16 + 8 * (j % 3)
        return [f"ds_read_b64_tr_b16 {vr(b+4*o+2*hf,2)}, v{(VR0,VR1)[o]} offset:{j*2048 + hf*1024}" for o in range(2) for hf in range(2)]
    for j in range(2):
        for l in rdo(j): a(l)
    stamp(a, 7)
    poll(a, [f"buffer_load_dword v13, v11, {WSR}, s{S_T+4} offen sc1"], [13], sleep=2)
    stamp(a, 8)
    for j in range(16):
        if j % 4 == 0 and j: a(f"s_add_u32 s{S_D}, s{S_D}, 4096")
        a(f"buffer_load_dwordx4 {vr(HF+4*j,4)}, v{VLIN}, {WSR}, s{S_D} offen offset:{(j%4)*1024}{SC()}")
    for j in range(16):
        if j + 2 < 16:
            for l in rdo(j + 2): a(l)
        a(f"s_waitcnt vmcnt({15-j}) lgkmcnt({4*min(2, 15-j)})")
        b = 16 + 8 * (j % 3)
        a(f"v_mfma_f32_32x32x16_bf16 {vr(OTH,16)}, {vr(b+4,4)}, {vr(HF+4*j,4)}, {'0' if j == 0 else vr(OTH,16)}")
        a(f"v_mfma_f32_32x32x16_bf16 {vr(OWN,16)}, {vr(b,4)}, {vr(HF+4*j,4)}, {vr(OWN,16)}")
    stamp(a, 9)
    a("s_nop 10")
    for i in range(4): a(f"ds_write_b128 v{T0}, {vr(OTH+4*i,4)} offset:{i*1024}")
    lsync(a, 8, 4, 11, 12)
    for i in range(4): a(f"ds_read_b128 {vr(OTH+4*i,4)}, v{T1} offset:{i*1024}")
    for i in range(4):
        a(f"s_waitcnt lgkmcnt({3-i})")
        a(f"v_pk_add_f32 {vr(OWN+4*i,2)}, {vr(OWN+4*i,2)}, {vr(OTH+4*i,2)}\nv_pk_add_f32 {vr(OWN+4*i+2,2)}, {vr(OWN+4*i+2,2)}, {vr(OTH+4*i+2,2)}")
        a(f"v_cvt_pk_bf16_f32 v{32+2*i}, v{OWN+4*i}, v{OWN+4*i+1}\nv_cvt_pk_bf16_f32 v{33+2*i}, v{OWN+4*i+2}, v{OWN+4*i+3}")
    a("s_nop 1")
    a("v_permlane32_swap_b32 v32, v34\nv_permlane32_swap_b32 v33, v35\nv_permlane32_swap_b32 v36, v38\nv_permlane32_swap_b32 v37, v39")
    a(f"buffer_store_dwordx4 v[32:35], v{T2}, {rs(R_OUT)}, s{S_E} offen{['', ' sc1', ' nt', ' sc0 sc1'][OPT['outsc']]}")
    a(f"buffer_store_dwordx4 v[36:39], v{T2}, {rs(R_OUT)}, s{S_E} offen offset:32{['', ' sc1', ' nt', ' sc0 sc1'][OPT['outsc']]}")

KD = """.section .rodata,"a"
.p2align 6
.amdhsa_kernel {k}
  .amdhsa_next_free_vgpr 256
  .amdhsa_next_free_sgpr 102
  .amdhsa_accum_offset 256
  .amdhsa_group_segment_fixed_size 0
  .amdhsa_kernarg_size 104
  .amdhsa_user_sgpr_count 2
  .amdhsa_user_sgpr_kernarg_segment_ptr 1
  .amdhsa_system_sgpr_workgroup_id_x 1
.end_amdhsa_kernel
"""

def gen():
    a = Asm()
    ref = open(f"cdna_kernels/{NAME}.s.ref").read().split("\n")
    H = [l for l in ref if l.startswith(";") and "@launch" not in l]
    H += ["; @launch grid=(256,1,1) block=(512,1,1) lds=163840"]
    k = NAME + "_kernel"
    a.raw(f'.amdgcn_target "amdgcn-amd-amdhsa--gfx950"\n.text\n.globl {k}\n.p2align 8\n.type {k},@function\n{k}:')
    a("s_cmp_ge_u32 s2, 256\ns_cbranch_scc1 L_exit")
    stamp(a, 0); stamp_init(a)
    if OPT.get("dbg"): a("s_memrealtime s[4:5]")
    a("s_load_dwordx16 s[16:31], s[0:1], 0\ns_load_dwordx8 s[32:39], s[0:1], 64\ns_load_dwordx2 s[40:41], s[0:1], 96")
    a(f"v_lshrrev_b32 v1, 6, v0\nv_and_b32 v0, 63, v0\nv_readfirstlane_b32 s3, v1\ns_mov_b32 s{S_ID}, s2")
    decode(a)
    a(f"s_and_b32 s{W}, s3, 3\ns_lshl_b32 s{S_M0B}, s{W}, 10")
    a("s_cmp_ge_u32 s3, 4\ns_cbranch_scc1 L_roleF")
    a(f"s_setprio {OPT['prioL']}")
    roleA(a)
    a.raw(".p2align 6"); a.label("L_roleF"); a.roleF = 1
    a(f"s_setprio {OPT['prioF']}")
    ffn1(a)
    ffn2(a); stamp_dump(a)
    if OPT.get("dbg"):
        a(f"s_cmp_ge_u32 s2, 8\ns_cbranch_scc1 L_exit\ns_cmp_lg_u32 s{W}, 0\ns_cbranch_scc1 L_exit")
        a("s_waitcnt vmcnt(0)\ns_memrealtime s[6:7]\ns_waitcnt lgkmcnt(0)")
        srd(a, R_W0, S_DBG, 256)
        a(f"s_lshl_b32 s8, s2, 2\nv_mov_b32 v1, s8\nv_mov_b32 v2, s4\nv_mov_b32 v3, s6\ns_mov_b64 exec, 1")
        a(f"buffer_store_dword v2, v1, {rs(R_W0)}, 0 offen\nbuffer_store_dword v3, v1, {rs(R_W0)}, 0 offen offset:32")
    a.label("L_exit")
    a("s_endpgm")
    return "\n".join(H) + "\n" + a.text() + KD.format(k=k)

if __name__ == "__main__":
    if "--diag" in sys.argv: DIAG = True
    for x in sys.argv[2:]:
        if "=" in x:
            k, v = x.split("="); OPT[k] = int(v)
    open(sys.argv[1], "w").write(gen())
```

```python
import sys, math, struct

NAME = "gated_mix__grouped_kv_mqa__glu_gated_geglu__prompt"

WS_EPOCH = 0x0
WS_ACK = 0x6000
WS_KP = 0x10000
WS_VP = 0x20000
WS_G = 0x30000
WS_RECK = 0x40000
WS_PRE = 0x50000
WS_FLH = 0x80000
WS_FLO = 0xA0000
WS_QP = 0x100000
WS_OP = 0x300000
WS_HP = 0x500000
WS_DIAG = 0xE00000
WS_SIZE = 0x10000000
OPT = dict(prioA=1, prioF=2, prioG=2, prioD=0, prioL=3, sleep=4, sc1=0, rot=6, rot2=7, thr=60, clk=0, look=19, kvat=24, kvper=2, wpre=2, w0=4, ramp=2, xper=2, barpos=0, lsl=0, outsc=0, nw=11)
DIAG = False

LOG2E = 1.4426950408889634
def f2u(x): return struct.unpack("<I", struct.pack("<f", x))[0]
def SC(): return " sc1" if OPT["sc1"] else ""

class Asm:
    def __init__(self): self.L = []; self.uid = 0
    def __call__(self, s):
        for line in s.split("\n"): self.L.append("    " + line.strip())
    def label(self, n): self.L.append(n + ":")
    def raw(self, s): self.L.append(s)
    def newlabel(self, p):
        self.uid += 1
        return f"L_{p}_{self.uid}"
    def text(self): return "\n".join(self.L) + "\n"

def vr(a, n=1): return f"v{a}" if n == 1 else f"v[{a}:{a+n-1}]"

S_X, S_WQ, S_WK, S_WV, S_WO, S_BX, S_WG, S_WU = 16, 18, 20, 22, 24, 26, 28, 30
S_WD, S_GW, S_OUT, S_DBG, S_WSP = 32, 34, 36, 38, 40
R_X, R_WS, R_W0, R_W1, R_OUT = 44, 48, 52, 56, 60
S_WAVE, S_TAG = 64, 65
S_T = 66
S_ID, S_M0B = 80, 81
S_A, S_B, S_C, S_D, S_E, S_F = 82, 83, 84, 85, 86, 87
S_G, S_H = 88, 89
S_K0, S_K1, S_K2, S_K3 = 90, 91, 92, 93
W = S_WAVE
WSR = f"s[{R_WS}:{R_WS+3}]"
def rs(r): return f"s[{r}:{r+3}]"

STAMP_REGS = [4, 6, 8, 10, 12, 14, 42, 94, 96, 98, 100]
def stamp(a, i, force=False):
    if OPT.get("fst") and getattr(a, "roleF", 0) and 5 <= i <= 9 and not force: return
    if DIAG: a(f"{'s_memtime' if OPT['clk'] else 's_memrealtime'} s[{STAMP_REGS[i]}:{STAMP_REGS[i]+1}]")
def stamp_init(a):
    if DIAG:
        for r in STAMP_REGS[1:]: a(f"s_mov_b32 s{r}, 0")
def stamp_dump(a):
    if not DIAG: return
    a("s_waitcnt vmcnt(0) lgkmcnt(0)")
    stamp(a, 10)
    a("s_waitcnt lgkmcnt(0)")
    a(f"s_lshl_b32 s{S_T}, s2, 2\ns_add_u32 s{S_T}, s{S_T}, s{W}\ns_add_u32 s{S_T}, s{S_T}, {1024 if getattr(a, 'roleF', 0) else 0}\ns_lshl_b32 s{S_T}, s{S_T}, 6\ns_add_u32 s{S_T}, s{S_T}, {WS_DIAG}")
    a("s_mov_b64 exec, 1\nv_mov_b32 v1, 0")
    for i, r in enumerate(STAMP_REGS):
        a(f"v_mov_b32 v2, s{r}\nbuffer_store_dword v2, v1, {WSR}, s{S_T} offen offset:{4*i}\ns_nop 1")

def srd(a, r, p, size):
    a(f"s_mov_b32 s{r}, s{p}\ns_mov_b32 s{r+1}, s{p+1}\ns_mov_b32 s{r+2}, {size:#x}\ns_mov_b32 s{r+3}, 0x20000")

def kernarg_wait(a):
    a("s_waitcnt lgkmcnt(0)")
    a(f"s_load_dword s{S_TAG}, s[40:41], {WS_EPOCH}")
    srd(a, R_X, S_X, 2048 * 1024)

def finish_tag_ack(a, v0_, v1_):
    srd(a, R_WS, S_WSP, WS_SIZE)
    a(f"s_lshl_b32 s{S_T+2}, s2, 5\ns_lshl_b32 s{S_T+3}, s{W}, 2\ns_add_u32 s{S_T+2}, s{S_T+2}, s{S_T+3}")
    a(f"s_add_u32 s{S_T+2}, s{S_T+2}, {WS_ACK + (16 if getattr(a, 'roleF', 0) else 0)}")
    a(f"v_mov_b32 v{v1_}, 0")
    a("s_waitcnt lgkmcnt(0)")
    a(f"s_mul_i32 s{S_TAG}, s{S_TAG}, 0x9E3779B1")
    a(f"s_add_u32 s{S_TAG}, s{S_TAG}, 0x7F4A7C15")
    a(f"v_mov_b32 v{v0_}, s{S_TAG}")
    a("s_mov_b64 exec, 1")
    a(f"buffer_store_dword v{v0_}, v{v1_}, {WSR}, s{S_T+2} offen sc1")
    a("s_mov_b64 exec, -1")

def dma(a, vaddr, r, soff_reg, soff_base, soff_imm, lds_imm):
    a(f"s_add_u32 m0, s{S_M0B}, {lds_imm}")
    a(f"s_add_u32 s{soff_reg}, s{soff_base}, {soff_imm}")
    a(f"buffer_load_dwordx4 v{vaddr}, {rs(r)}, s{soff_reg} offen lds")

def wave_max(a, v):
    for m in ("row_shr:1", "row_shr:2", "row_shr:4", "row_shr:8", "row_bcast:15 row_mask:0xa", "row_bcast:31 row_mask:0xc"):
        a("s_nop 1")
        a(f"v_max_u32_dpp v{v}, v{v}, v{v} {m}")

def poll(a, loads, regs, sleep=None):
    lab = a.newlabel("poll"); out = a.newlabel("polled")
    sleep = sleep or OPT["sleep"]
    masked = len(loads) == 1 and len(regs) == 1
    a(f"s_mov_b32 s{S_T+10}, 0x40000")
    a.label(lab)
    for l in loads: a(l)
    a("s_waitcnt vmcnt(0)")
    a(f"v_cmp_ne_u32 vcc, s{S_TAG}, v{regs[0]}")
    for r in regs[1:]:
        a(f"v_cmp_ne_u32 s[{S_T+12}:{S_T+13}], s{S_TAG}, v{r}")
        a(f"s_or_b64 vcc, vcc, s[{S_T+12}:{S_T+13}]")
    a(f"s_cbranch_vccz {out}")
    if masked: a("s_mov_b64 exec, vcc")
    a(f"s_sleep {sleep}")
    a(f"s_sub_u32 s{S_T+10}, s{S_T+10}, 1\ns_cmp_lg_u32 s{S_T+10}, 0\ns_cbranch_scc1 {lab}")
    a.label(out)
    if masked: a("s_mov_b64 exec, -1")

def x_src_addr(a, V, T0, T1, T2):
    a(f"v_lshrrev_b32 v{T0}, 3, v0\nv_and_b32 v{T1}, 7, v0\nv_lshrrev_b32 v{T2}, 1, v{T0}")
    a(f"s_and_b32 s{S_T}, s{W}, 1\ns_lshl_b32 s{S_T}, s{S_T}, 2")
    a(f"v_or_b32 v{V}, s{S_T}, v{T2}\nv_xor_b32 v{V}, v{V}, v{T1}\nv_lshlrev_b32 v{V}, 4, v{V}")
    a(f"v_lshl_add_u32 v{V}, v{T0}, 10, v{V}")

def x_read_addr(a, V, T0, T1, T2, sbase=None):
    a(f"v_and_b32 v{T0}, 31, v0\nv_lshrrev_b32 v{T1}, 5, v0\nv_bfe_u32 v{T2}, v0, 1, 3\nv_xor_b32 v{T2}, v{T2}, v{T1}")
    a(f"v_lshlrev_b32 v{T0}, 7, v{T0}")
    if sbase is not None: a(f"v_add_u32 v{T0}, s{sbase}, v{T0}")
    for ks in range(4):
        a(f"v_xor_b32 v{V+ks}, {2*ks}, v{T2}\nv_lshl_add_u32 v{V+ks}, v{V+ks}, 4, v{T0}")

XL, QWL, WL = 0, 49152, 61440
IXL, IQL, IEL, IGL = 0, 65536, 81920, 98304
PART = 2176
LDS_P = 81920
LDS_Q = LDS_P + 32 * PART
LDS_X = LDS_Q + 8192
LDS_C = LDS_X + 1088
assert LDS_X + 4096 == 163840

def lsync(a, idx, n, va, vb, slp=0):
    lab = a.newlabel("ls")
    a(f"v_mov_b32 v{va}, {LDS_C + 4*idx}\nv_mov_b32 v{vb}, 1\ns_mov_b64 exec, 1\nds_add_u32 v{va}, v{vb}\ns_mov_b64 exec, -1")
    if slp:
        l2 = a.newlabel("ls")
        a(f"s_branch {l2}")
        a.label(lab)
        a(f"s_sleep {slp}")
        a.label(l2)
    else:
        a.label(lab)
    a(f"ds_read_b32 v{vb}, v{va}\ns_waitcnt lgkmcnt(0)\nv_readfirstlane_b32 s{S_T+10}, v{vb}\ns_cmp_lt_u32 s{S_T+10}, {n}\ns_cbranch_scc1 {lab}")

def decode(a):
    a(f"s_lshr_b32 s{S_T+1}, s{S_ID}, 3\ns_bfe_u32 s{S_T}, s{S_ID}, 0x20001\ns_and_b32 s{S_T+2}, s{S_ID}, 1\ns_lshl_b32 s{S_T+2}, s{S_T+2}, 3")
    a(f"s_mul_i32 s{S_T+3}, s{S_T}, 28\ns_add_u32 s{S_T+3}, s{S_T+3}, s{S_T+1}\ns_lshr_b32 s{S_B}, s{S_T+3}, 3\ns_and_b32 s{S_A}, s{S_T+3}, 7")
    a(f"s_lshl_b32 s{S_T}, s{S_T}, 1\ns_bfe_u32 s{S_T+3}, s{S_T+1}, 0x10001\ns_add_u32 s{S_T}, s{S_T}, s{S_T+3}")
    a(f"s_and_b32 s{S_T+3}, s{S_T+1}, 1\ns_add_u32 s{S_T+3}, s{S_T+3}, 14")
    a(f"s_cmp_ge_u32 s{S_ID}, 224\ns_cselect_b32 s{S_A}, s{S_T}, s{S_A}\ns_cselect_b32 s{S_B}, s{S_T+3}, s{S_B}")
    a(f"s_add_u32 s{S_A}, s{S_A}, s{S_T+2}")
    a(f"s_lshl_b32 s{S_F}, s{S_B}, 1\ns_add_u32 s{S_F}, s{S_F}, s{S_A}\ns_and_b32 s{S_F}, s{S_F}, {OPT['rot']}")

class VQ:
    def __init__(self, a): self.a = a; self.q = []
    def add(self, t, n=1): self.q += [t] * n; self.total = getattr(self, "total", 0) + n
    def wait(self, tags):
        idx = max((i for i, t in enumerate(self.q) if t in tags), default=-1)
        n = len(self.q) - 1 - idx
        del self.q[:idx + 1]
        assert n < 64
        self.a(f"s_waitcnt vmcnt({n})")

def roleA(a):
    VL16, VIDX, VL4, VO, VGO, VLQ = 1, 2, 3, 4, 5, 12
    VXS, VQS, VXR, VQR, VGS, VUS = 6, 7, 8, 13, 14, 15
    QB = 8; SB = (16, 32); OA = 48; KR, VR_ = 64, 128
    XF, WF, ACC = 16, 24, 32
    T0, T1, T2 = 16, 17, 18
    VREC, VRA, VQW = 58, 62, 57
    S_WB, S_WEND, S_XR, S_QR = S_K2, S_K3, S_T + 11, S_T + 12
    RS = 3584 * 16
    x_src_addr(a, VXS, T0, T1, T2)
    a(f"v_lshrrev_b32 v{T0}, 2, v0\nv_and_b32 v{T1}, 3, v0\nv_lshlrev_b32 v{T1}, 4, v{T1}\nv_lshl_add_u32 v{VQS}, v{T0}, 10, v{T1}")
    a(f"v_lshrrev_b32 v{T0}, 4, v0\nv_and_b32 v{T1}, 15, v0\nv_lshlrev_b32 v{T2}, 1, v{T0}\nv_xor_b32 v{T1}, v{T1}, v{T2}")
    a(f"v_lshlrev_b32 v{T1}, 4, v{T1}\nv_mul_u32_u24 v{T0}, 3584, v{T0}\nv_add_u32 v{VGS}, v{T0}, v{T1}")
    a(f"v_xor_b32 v{T1}, 128, v{T1}\nv_add_u32 v{VUS}, v{T0}, v{T1}")
    a(f"s_lshl_b32 s{S_C}, s{S_A}, 17\ns_lshl_b32 s{S_T}, s{W}, 13\ns_add_u32 s{S_C}, s{S_C}, s{S_T}   ; x base")
    a(f"s_lshl_b32 s{S_H}, s{W}, 14\ns_lshl_b32 s{S_T}, s{S_B}, 6\ns_add_u32 s{S_H}, s{S_H}, s{S_T}")
    a(f"s_mul_i32 s{S_T}, s{W}, {4*3584}\ns_lshl_b32 s{S_WB}, s{S_B}, 8\ns_add_u32 s{S_WB}, s{S_WB}, s{S_T}")
    a(f"s_add_u32 s{S_WEND}, s{S_WB}, {32*RS}\ns_mul_i32 s{S_T}, s{S_F}, {4*RS}\ns_add_u32 s{S_D}, s{S_WB}, s{S_T}")
    kernarg_wait(a)
    stamp(a, 3)
    srd(a, R_OUT, S_WQ, 512 * 1024)
    vq = VQ(a)
    def issueX1(u, j, xl, ql):
        if j == 0:
            a(f"s_add_u32 s{S_XR}, s{S_F}, {u}\ns_and_b32 s{S_XR}, s{S_XR}, 7\ns_lshl_b32 s{S_QR}, s{S_XR}, 16\ns_lshl_b32 s{S_XR}, s{S_XR}, 7")
            a(f"s_add_u32 s{S_XR}, s{S_XR}, s{S_C}\ns_add_u32 s{S_QR}, s{S_QR}, s{S_H}")
        if j < 4: dma(a, VXS, R_X, S_T, S_XR, j * 32768, xl + j * 4096)
        else: a(f"s_add_u32 m0, s{S_M0B}, {ql}\ns_nop 0\nbuffer_load_dwordx4 v{VQS}, {rs(R_OUT)}, s{S_QR} offen lds")
        vq.add(("X", u))
    def issueW1(j, mat):
        a(f"s_add_u32 m0, s{S_M0B}, {WL + (j % OPT['nw']) * 8192 + mat*4096}\ns_nop 0")
        a(f"buffer_load_dwordx4 v{(VGS,VUS)[mat]}, {rs((R_W0,R_W1)[mat])}, s{S_D} offen lds"); vq.add(("W", j))
        if mat:
            a(f"s_add_u32 s{S_D}, s{S_D}, {RS}")
            if j % 4 == 3: a(f"s_cmp_eq_u32 s{S_D}, s{S_WEND}\ns_cselect_b32 s{S_D}, s{S_WB}, s{S_D}")
    def setup(ql):
        finish_tag_ack(a, 20, 21); vq.add(("ack", 0))
        a(f"s_lshl_b32 s{S_T}, s{W}, 12")
        x_read_addr(a, VXR, T0, T1, T2, S_T)
        a(f"v_bfe_u32 v{T0}, v0, 2, 2\nv_lshl_add_u32 v{T0}, v{T1}, 3, v{T0}\nv_and_b32 v{T2}, 3, v0\nv_lshlrev_b32 v{T2}, 3, v{T2}")
        a(f"v_lshl_add_u32 v{VQR}, v{T0}, 6, v{T2}\nv_bfe_u32 v{T0}, v0, 4, 1\nv_lshl_add_u32 v{VQR}, v{T0}, 5, v{VQR}\nv_add_u32 v{VQR}, {ql}, v{VQR}")
        a(f"v_lshlrev_b32 v{T0}, 2, v0\nv_add_u32 v{T0}, {LDS_C}, v{T0}\nv_mov_b32 v{T1}, 0\nds_write_b32 v{T0}, v{T1}")
        a(f"v_lshlrev_b32 v{VL16}, 4, v0\nv_and_b32 v{VL4}, 31, v0\nv_lshlrev_b32 v{VL4}, 2, v{VL4}\nv_mov_b32 v{VIDX}, 0xdddddddd")
        a(f"v_add_u32 v{VLQ}, {LDS_Q}, v{VL16}\nv_lshlrev_b32 v{VRA}, 3, v0\ns_mov_b32 s{S_K0}, {WS_RECK}")
        a(f"v_bfe_u32 v{T0}, v0, 4, 1\nv_lshlrev_b32 v{VO}, 10, v{T0}\nv_and_b32 v{T0}, 32, v0\nv_lshl_add_u32 v{VO}, v{T0}, 4, v{VO}")
        a(f"v_and_b32 v{T0}, 15, v0\nv_lshl_add_u32 v{VO}, v{T0}, 4, v{VO}\nv_lshlrev_b32 v{VGO}, 2, v{T0}")
        a(f"s_lshl_b32 s{S_T}, s{W}, 11\ns_add_u32 s{S_T}, s{S_T}, {LDS_Q}\nv_add_u32 v{VQW}, s{S_T}, v{VO}")
        a(f"v_and_b32 v{T0}, 11, v0\nv_cmp_eq_u32 vcc, 0, v{T0}\nv_mov_b32 v{T0}, 0x3f803f80\ns_nop 0\nv_cndmask_b32 v{T0}, 0, v{T0}, vcc\nv_mov_b32 v{T0+1}, v{T0}")
        for t in range(16):
            for j in range(4, 8, 2): a(f"v_mov_b64 {vr(VR_+8*t+j,2)}, {vr(T0,2)}")
        zero_o()
        a(f"s_lshl_b32 s{S_E}, s{W}, 3\ns_lshr_b32 s{S_T}, s{S_ID}, 3\ns_add_u32 s{S_E}, s{S_E}, s{S_T}")
    def zero_o():
        for j in range(0, 8, 2): a(f"v_mov_b64 {vr(OA+j,2)}, 0")
        a(f"v_mov_b32 v{OA+8}, 0")
    def qreads(j, xoff, qoff):
        b = j & 1
        a(f"ds_read_b128 {vr(XF+4*b,4)}, v{VXR + j%4} offset:{xoff}")
        a(f"ds_read_b64_tr_b16 {vr(WF+4*b,2)}, v{VQR} offset:{qoff + (j%4)*1024}\nds_read_b64_tr_b16 {vr(WF+4*b+2,2)}, v{VQR} offset:{qoff + (j%4)*1024 + 256}")
    def qmfma(j):
        b = j & 1
        a(f"v_mfma_f32_32x32x16_bf16 {vr(ACC,16)}, {vr(WF+4*b,4)}, {vr(XF+4*b,4)}, {'0' if j == 0 else vr(ACC,16)}")
    rec_loads = [f"buffer_load_dwordx2 {vr(VREC,2)}, v{VRA}, {WSR}, s{S_K0} offen sc1",
                 f"buffer_load_dwordx2 {vr(VREC+2,2)}, v{VRA}, {WSR}, s{S_K0} offen offset:512 sc1"]
    def rec_finish(looked):
        lab = a.newlabel("norec"); seen = a.newlabel("seen")
        a(f"s_cmp_lg_u32 s{W}, 0\ns_cbranch_scc1 {lab}")
        if looked is not None:
            a(f"s_waitcnt vmcnt({looked})")
            a(f"v_cmp_ne_u32 vcc, s{S_TAG}, v{VREC}\nv_cmp_ne_u32 s[{S_T+6}:{S_T+7}], s{S_TAG}, v{VREC+2}\ns_or_b64 vcc, vcc, s[{S_T+6}:{S_T+7}]\ns_cbranch_vccz {seen}")
        poll(a, rec_loads, [VREC, VREC + 2], sleep=8)
        a.label(seen)
        wave_max(a, VREC + 1)
        a(f"v_mov_b32 v{VREC}, {LDS_X + 1024}\ns_mov_b32 exec_lo, 0\ns_mov_b32 exec_hi, 0x80000000\nds_write_b32 v{VREC}, v{VREC+1}\ns_mov_b64 exec, -1")
        a.label(lab)
    def kvload(t):
        if t % 2 == 0:
            a(f"s_add_u32 s{S_T}, s{S_E}, {t//2}\ns_and_b32 s{S_T}, s{S_T}, 31\ns_lshl_b32 s{S_T}, s{S_T}, 11")
            a(f"s_add_u32 s{S_T+1}, s{S_T}, {WS_VP}\ns_add_u32 s{S_T}, s{S_T}, {WS_KP}")
        a(f"buffer_load_dwordx4 {vr(KR+4*t,4)}, v{VL16}, {WSR}, s{S_T} offen offset:{(t%2)*1024}{SC()}")
        a(f"buffer_load_dwordx4 {vr(VR_+8*t,4)}, v{VL16}, {WSR}, s{S_T+1} offen offset:{(t%2)*1024}{SC()}")
        vq.add(("KV", t), 2)
    lidle = a.newlabel("Aidle"); ljoin = a.newlabel("Ajoin")
    a(f"s_cmp_ge_u32 s{S_ID}, 224\ns_cbranch_scc1 {lidle}")
    X = lambda u, j: issueX1(u, j, XL + (u % 3) * 16384, QWL + (u % 3) * 4096)
    for j in range(5): X(0, j)
    srd(a, R_W0, S_WG, 512 * 3584); srd(a, R_W1, S_WU, 512 * 3584)
    W0 = OPT["w0"]
    nextW, nextX, xp = W0, 1, 0
    for j in range(W0):
        issueW1(j, 0); issueW1(j, 1)
        if OPT.get("xup") and j == OPT["xup"] - 1:
            for p in range(5): X(1, p)
            nextX = 2
    if OPT.get("st4") == 1: stamp(a, 4)
    setup(QWL)
    if OPT.get("st4") == 2: stamp(a, 4)
    vq.wait({("X", 0), ("W", 0)})
    if OPT.get("st4") == 3: stamp(a, 4)
    a("s_waitcnt lgkmcnt(0)")
    a("s_barrier")
    stamp(a, 1)
    qreads(0, XL, 0)
    kvt = 0
    for j in range(32):
        if j == OPT["kvat"]: rec_finish(vq.total - look_at)
        if j < 31:
            tags = {("W", j + 1)}
            if (j + 1) % 4 == 0: tags.add(("X", (j + 1) // 4))
            assert nextW > j + 1 and ((j + 1) % 4 or nextX > (j + 1) // 4)
            vq.wait(tags)
        a("s_waitcnt lgkmcnt(0)")
        a("s_barrier")
        qmfma(j)
        if j < 31: qreads(j + 1, XL + (((j + 1) // 4) % 3) * 16384, (((j + 1) // 4) % 3) * 4096)
        for _ in range(5 if nextX == 1 else OPT["xper"]):
            if nextX < 8 and j >= 4 * (nextX - 3) + 3:
                X(nextX, xp); xp += 1
                if xp == 5: nextX += 1; xp = 0; break
        for _ in range(OPT["ramp"]):
            if nextW < 32 and nextW <= j + OPT['nw']:
                issueW1(nextW, 0); issueW1(nextW, 1); nextW += 1
        if j == OPT["look"]:
            lab = a.newlabel("nolook")
            a(f"s_cmp_lg_u32 s{W}, 0\ns_cbranch_scc1 {lab}")
            for l in rec_loads: a(l)
            a.label(lab)
            look_at = vq.total
        if j >= OPT["kvat"]:
            for _ in range(OPT["kvper"] if j < 31 else 16):
                if kvt < 16: kvload(kvt); kvt += 1
    a(f"s_branch {ljoin}")
    a.label(lidle)
    vq.q = []
    a(f"s_cmp_eq_u32 s{S_B}, 14\ns_cselect_b32 s{R_W0}, s{S_WK}, s{S_WV}\ns_cselect_b32 s{R_W0+1}, s{S_WK+1}, s{S_WV+1}")
    a(f"s_movk_i32 s{R_W0+2}, 16384\ns_mov_b32 s{R_W0+3}, 0x20000\ns_mov_b32 s{S_F}, 0")
    srd(a, R_W1, S_GW, 1024)
    a(f"v_lshlrev_b32 v{VGS}, 4, v0")
    dma(a, VGS, R_W1, S_T, S_M0B, 0, IGL)
    for p in range(4): dma(a, VGS, R_W0, S_T, S_M0B, p * 4096, IEL + p * 4096)
    XI = lambda u: [issueX1(u, p, IXL + (u % 4) * 16384, IQL + (u % 4) * 4096) for p in range(5)]
    for u in range(4): XI(u)
    setup(IQL)
    for u in range(8):
        vq.wait({("X", u)})
        a("s_waitcnt lgkmcnt(0)")
        a("s_barrier")
        if u == 0: stamp(a, 1)
        if 1 <= u <= 4: XI(u + 3)
        qreads(4 * u, (u % 4) * 16384, (u % 4) * 4096)
        for ks in range(4):
            j = 4 * u + ks
            if ks < 3:
                qreads(j + 1, (u % 4) * 16384, (u % 4) * 4096); a("s_waitcnt lgkmcnt(3)")
            else: a("s_waitcnt lgkmcnt(0)")
            qmfma(j)
    rec_finish(None)
    a("s_waitcnt lgkmcnt(0)")
    a("s_barrier")
    for t in range(16): kvload(t)
    a.label(ljoin)
    stamp(a, 2)
    a(f"s_lshl_b32 s{S_T}, s{S_A}, 2\ns_add_u32 s{S_T}, s{S_T}, s{W}\ns_lshl_b32 s{S_D}, s{S_T}, 15\ns_lshl_b32 s{S_C}, s{S_T}, 7")
    a(f"s_lshl_b32 s{S_T}, s{S_B}, 11\ns_add_u32 s{S_D}, s{S_D}, s{S_T}\ns_add_u32 s{S_D}, s{S_D}, {WS_OP}\ns_add_u32 s{S_C}, s{S_C}, {WS_G}")
    a(f"s_mul_i32 s{S_T}, s{W}, {PART}\ns_add_u32 s{S_T}, s{S_T}, {LDS_P}")
    a(f"v_add_u32 v{VL16}, s{S_T}, v{VL16}\nv_add_u32 v{VL4}, s{S_T}, v{VL4}")
    a(f"s_lshl_b32 s{S_T}, s{W}, 8\ns_add_u32 s{S_T}, s{S_T}, {LDS_X}\nv_lshl_add_u32 v15, v0, 2, s{S_T}")
    for j in range(8): a(f"v_cvt_pk_bf16_f32 v{16+j}, v{ACC+2*j}, v{ACC+2*j+1}")
    a(f"ds_write_b128 v{VQW}, v[16:19]\nds_write_b128 v{VQW}, v[20:23] offset:256")
    a(f"v_mul_f32 v24, v{ACC}, v{ACC}\nv_mul_f32 v25, v{ACC+8}, v{ACC+8}")
    for i in range(1, 8): a(f"v_fmac_f32 v24, v{ACC+i}, v{ACC+i}\nv_fmac_f32 v25, v{ACC+8+i}, v{ACC+8+i}")
    a(f"v_mov_b32 v26, {LDS_X + 1024}\ns_nop 0\nv_permlane32_swap_b32 v24, v25\nv_add_f32 v24, v24, v25\nds_write_b32 v15, v24")
    a(f"v_lshlrev_b32 v15, 2, v0\nv_add_u32 v15, {LDS_X}, v15")
    lsync(a, 0, 4, 27, 28)
    a(f"ds_read_b128 {vr(QB,4)}, v{VLQ}")
    a(f"ds_read2st64_b32 v[20:21], v15 offset0:0 offset1:1\nds_read2st64_b32 v[22:23], v15 offset0:2 offset1:3\nds_read_b32 v24, v26")
    a("s_waitcnt lgkmcnt(0)")
    a("v_max3_u32 v20, v20, v21, v22\nv_max_u32 v20, v20, v23\nv_mul_f32 v20, v20, v24")
    slow = a.newlabel("slow"); red = a.newlabel("reduce")
    a(f"v_cmp_nge_f32 vcc, {f2u(float(OPT['thr'])**2):#x}, v20")
    a(f"s_setprio {OPT['prioA']}")
    a(f"s_cbranch_vccnz {slow}")
    def vfix(t):
        for j in range(4): a(f"v_permlane16_swap_b32 v{VR_+8*t+j}, v{VR_+8*t+4+j}")
    def S(t, buf, c="0"): a(f"v_mfma_f32_32x32x16_bf16 {vr(SB[buf],16)}, {vr(KR+4*t,4)}, {vr(QB,4)}, {c}")
    def PV(t, s, buf): a(f"v_smfmac_f32_32x32x32_bf16 {vr(OA,16)}, {vr(VR_+8*t+4*s,4)}, {vr(SB[buf]+8*s,8)}, v{VIDX}")
    def EX(buf, i): a(f"v_exp_f32 v{SB[buf]+i}, v{SB[buf]+i}")
    def flush(base):
        a(f"ds_write_b128 v{VL16}, {vr(OA,4)} offset:{base}")
        a(f"ds_write_b128 v{VL16}, {vr(OA+4,4)} offset:{base+1024}")
        a(f"ds_write_b32 v{VL4}, v{OA+8} offset:{base+2048}")
    a("s_waitcnt vmcnt(31)")
    stamp(a, 5)
    S(0, 0)
    a("s_nop 10")
    gl = lambda j, r: a(f"buffer_load_dword v{r}, v{VGO}, {WSR}, s{S_C} offen offset:{64*j}{SC()}")
    for q in range(8):
        for t in range(16):
            g = q * 16 + t
            cur, oth = g & 1, (g & 1) ^ 1
            nt = (t + 1) % 16
            def kv():
                if q == 0: a(f"s_waitcnt vmcnt({max(0, 29 - 2*t)})"); vfix(t)
            if t == 0:
                if q == 1: stamp(a, 6)
                if q == 4: stamp(a, 7)
                EX(cur, 0); EX(cur, 1)
                if q > 0: PV(15, 1, oth)
                EX(cur, 2); EX(cur, 3); EX(cur, 4)
                kv(); S(nt, oth)
                for i in range(5, 16): EX(cur, i)
                if q > 0:
                    flush((q - 1) * 4 * PART); zero_o()
                if q == 7: gl(0, 6); gl(1, 7)
            elif t == 1:
                EX(cur, 0); EX(cur, 1)
                PV(0, 0, oth)
                EX(cur, 2); EX(cur, 3); EX(cur, 4)
                PV(0, 1, oth)
                EX(cur, 5); EX(cur, 6); EX(cur, 7)
                kv(); S(nt, oth)
                EX(cur, 8); EX(cur, 9); EX(cur, 10)
                PV(1, 0, cur)
                for i in range(11, 16): EX(cur, i)
                a("s_nop 2")
            else:
                EX(cur, 0); EX(cur, 1)
                PV(t - 1, 1, oth)
                EX(cur, 2); EX(cur, 3); EX(cur, 4)
                if g != 127:
                    if t == 15: a("s_waitcnt lgkmcnt(0)")
                    kv(); S(nt, oth)
                EX(cur, 5); EX(cur, 6)
                if t == 14 and q < 7: a(f"ds_read_b128 {vr(QB,4)}, v{VLQ} offset:{(q+1)*1024}")
                for i in range(7, 10): EX(cur, i)
                PV(t, 0, cur)
                for i in range(10, 16): EX(cur, i)
    stamp(a, 8)
    a("s_nop 1")
    PV(15, 1, 1)
    a("s_nop 15")
    flush(7 * 4 * PART)
    a.label(red)
    a(f"s_mul_i32 s{S_T}, s{W}, {2*4*PART}\ns_add_u32 s{S_T}, s{S_T}, {LDS_P}")
    a(f"v_lshl_add_u32 v{VL16}, v0, 4, s{S_T}\nv_and_b32 v{VL4}, 31, v0\nv_lshl_add_u32 v{VL4}, v{VL4}, 2, s{S_T}")
    lsync(a, 1, 4, 16, 17)
    R = 64
    for j in range(2):
        for p in range(4):
            b = (j * 4 + p) * PART; r = R + (j * 4 + p) * 12
            a(f"ds_read_b32 v{r+8}, v{VL4} offset:{b+2048}")
        for p in range(4):
            b = (j * 4 + p) * PART; r = R + (j * 4 + p) * 12
            a(f"ds_read_b128 {vr(r,4)}, v{VL16} offset:{b}")
            a(f"ds_read_b128 {vr(r+4,4)}, v{VL16} offset:{b+1024}")
        r0 = R + j * 48
        a(f"s_waitcnt lgkmcnt(8)")
        a(f"v_add_f32 v{r0+8}, v{r0+8}, v{r0+20}\nv_add_f32 v{r0+32}, v{r0+32}, v{r0+44}\nv_add_f32 v{r0+8}, v{r0+8}, v{r0+32}")
        a(f"v_rcp_f32 v{r0+8}, v{r0+8}")
    for j in range(2):
        r0 = R + j * 48
        a("s_waitcnt vmcnt(0)" if j == 0 else "s_waitcnt lgkmcnt(0)")
        for i in range(0, 8, 2):
            a(f"v_pk_add_f32 {vr(r0+i,2)}, {vr(r0+i,2)}, {vr(r0+12+i,2)}")
            a(f"v_pk_add_f32 {vr(r0+24+i,2)}, {vr(r0+24+i,2)}, {vr(r0+36+i,2)}")
        a(f"v_mul_f32 v{r0+8}, v{r0+8}, v{6+j}")
        for i in range(0, 8, 2):
            a(f"v_pk_add_f32 {vr(r0+i,2)}, {vr(r0+i,2)}, {vr(r0+24+i,2)}")
        for i in range(0, 8, 2):
            a(f"v_pk_mul_f32 {vr(r0+i,2)}, {vr(r0+i,2)}, {vr(r0+8,2)} op_sel_hi:[1,0]")
        for i in range(4):
            a(f"v_cvt_pk_bf16_f32 v{r0+12+i}, v{r0+2*i}, v{r0+2*i+1}")
        a(f"buffer_store_dwordx4 {vr(r0+12,4)}, v{VO}, {WSR}, s{S_D} offen offset:{256*j} sc1")
    a(f"s_lshl_b32 s{S_T}, s{S_A}, 13\ns_lshl_b32 s{S_T+1}, s{S_B}, 9\ns_add_u32 s{S_T}, s{S_T}, s{S_T+1}")
    a(f"s_lshl_b32 s{S_T+1}, s{W}, 7\ns_add_u32 s{S_T}, s{S_T}, s{S_T+1}\ns_add_u32 s{S_T}, s{S_T}, {WS_FLO}")
    a(f"v_mov_b32 v16, s{S_TAG}\nv_mov_b32 v17, 0\ns_mov_b64 exec, 1")
    a("s_waitcnt vmcnt(0)")
    stamp(a, 9)
    a(f"buffer_store_dword v16, v17, {WSR}, s{S_T} offen sc1")
    stamp_dump(a)
    a("s_endpgm")
    a.label(slow)
    loop = a.newlabel("slowq"); spin = a.newlabel("slows")
    a("s_waitcnt vmcnt(0)")
    for t in range(16): vfix(t)
    a(f"v_lshlrev_b32 v6, 2, v0\nv_add_u32 v6, {LDS_X + 2048}, v6")
    a(f"s_lshl_b32 s{S_K1}, s{W}, 8\ns_mov_b32 s{S_K0}, 4")
    a.label(loop)
    a(f"ds_read_b128 {vr(QB,4)}, v{VLQ}\nv_add_u32 v{VLQ}, 1024, v{VLQ}")
    zero_o()
    a(f"v_mov_b32 v7, 0xff800000")
    a("s_waitcnt lgkmcnt(0)")
    for t in range(16):
        S(t, 0)
        a("s_nop 12")
        for i in range(0, 16, 2): a(f"v_max3_f32 v7, v7, v{SB[0]+i}, v{SB[0]+i+1}")
    a(f"v_mov_b32 v13, v7\ns_nop 1\nv_permlane32_swap_b32 v7, v13\nv_max_f32 v7, v7, v13")
    a(f"v_add_u32 v13, s{S_K1}, v6\nds_write_b32 v13, v7")
    a(f"v_mov_b32 v14, {LDS_C + 8}\nv_mov_b32 v15, 1\ns_mov_b64 exec, 1\nds_add_u32 v14, v15\ns_mov_b64 exec, -1")
    a.label(spin)
    a(f"ds_read_b32 v15, v14\ns_waitcnt lgkmcnt(0)\nv_readfirstlane_b32 s{S_T}, v15\ns_cmp_lt_u32 s{S_T}, s{S_K0}\ns_cbranch_scc1 {spin}")
    a(f"ds_read2st64_b32 v[14:15], v6 offset0:0 offset1:1\nds_read2st64_b32 v[16:17], v6 offset0:2 offset1:3")
    a("s_waitcnt lgkmcnt(0)")
    a("v_max3_f32 v7, v14, v15, v16\nv_max_f32 v7, v7, v17")
    for i in range(16): a(f"v_sub_f32 v{SB[1]+i}, 0, v7")
    a("s_nop 1")
    for t in range(16):
        S(t, 0, vr(SB[1], 16))
        a("s_nop 12")
        for i in range(16): EX(0, i)
        a("s_nop 1")
        PV(t, 0, 0); PV(t, 1, 0)
    a("s_nop 15")
    flush(0)
    a(f"v_add_u32 v{VL16}, {4*PART}, v{VL16}\nv_add_u32 v{VL4}, {4*PART}, v{VL4}\nv_xor_b32 v6, 1024, v6")
    a(f"s_add_u32 s{S_K0}, s{S_K0}, 4\ns_cmp_le_u32 s{S_K0}, 32\ns_cbranch_scc1 {loop}")
    gl(0, 6); gl(1, 7)
    a(f"s_branch {red}")

def ffn1(a):
    VXR, VWR = 8, 12
    T0, T1, T2 = 5, 6, 7
    lidle = a.newlabel("Fidle"); lend = a.newlabel("s1end")
    a(f"s_cmp_ge_u32 s{S_ID}, 224\ns_cbranch_scc1 {lidle}")
    a(f"s_and_b32 s{S_T}, s{W}, 1\ns_lshl_b32 s{S_T}, s{S_T}, 13")
    x_read_addr(a, VXR, T0, T1, T2, S_T)
    a(f"v_bfe_u32 v{T0}, v0, 2, 2\nv_bfe_u32 v{T2}, v0, 4, 1\nv_lshl_add_u32 v16, v{T1}, 3, v{T0}\nv_lshlrev_b32 v16, 8, v16")
    a(f"v_lshl_add_u32 v16, v{T2}, 12, v16\nv_and_b32 v17, 3, v0\nv_lshl_add_u32 v16, v17, 3, v16\nv_add_u32 v16, {WL}, v16")
    a(f"v_lshl_or_b32 v{T0}, v{T2}, 2, v{T0}\ns_and_b32 s{S_T}, s{W}, 2\ns_lshl_b32 s{S_T}, s{S_T}, 1\nv_xor_b32 v{T0}, s{S_T}, v{T0}")
    for jj in range(4):
        a(f"v_xor_b32 v{VWR+jj}, {jj}, v{T0}\nv_lshl_add_u32 v{VWR+jj}, v{VWR+jj}, 5, v16\nv_add_u32 v{68+jj}, 0x10000, v{VWR+jj}")
    kernarg_wait(a)
    finish_tag_ack(a, 64, 65)
    ACC = 128
    FX = (16, 40); FW = (24, 48)
    def rd_list(j):
        b = j & 1
        xs = XL + ((j // 4) % 3) * 16384; sl = j % OPT["nw"]; wsl = (sl % 8) * 8192; wr = VWR if sl < 8 else 68
        X = [f"ds_read_b128 {vr(FX[b]+4*m,4)}, v{VXR + j%4} offset:{xs + m*4096}" for m in range(2)]
        Wl = [f"ds_read_b64_tr_b16 {vr(FW[b]+4*jj+2*hf,2)}, v{wr+jj} offset:{wsl + hf*1024}" for jj in range(4) for hf in range(2)]
        return [X[0], Wl[0], Wl[1], X[1]] + Wl[2:]
    a("s_barrier")
    stamp(a, 1)
    for l in rd_list(0): a(l)
    for j in range(32):
        b = j & 1
        if OPT.get("fst") and j in (4, 8, 16, 24): stamp(a, {4: 5, 8: 6, 16: 7, 24: 8}[j], True)
        a("s_waitcnt lgkmcnt(0)")
        BP = OPT["barpos"]
        if BP == 0: a("s_barrier")
        rl = rd_list(j + 1) if j < 31 else []
        for n in range(8):
            jj, m = n // 2, n % 2
            acc = ACC + 16 * n
            a(f"v_mfma_f32_32x32x16_bf16 {vr(acc,16)}, {vr(FW[b]+4*jj,4)}, {vr(FX[b]+4*m,4)}, {'0' if j == 0 else vr(acc,16)}")
            if n == BP - 1: a("s_barrier")
            if n >= BP - 1:
                for _ in range(2 if BP < 3 else 3):
                    if rl: a(rl.pop(0))
        assert not rl
    stamp(a, 2)
    a(f"v_lshlrev_b32 v2, 4, v0")
    a(f"s_lshl_b32 s{S_T}, s{S_A}, 2\ns_and_b32 s{S_T+1}, s{W}, 1\ns_lshl_b32 s{S_T+1}, s{S_T+1}, 1\ns_add_u32 s{S_T}, s{S_T}, s{S_T+1}")
    a(f"s_setprio {OPT['prioG']}")
    c0 = -2.0 * LOG2E * math.sqrt(2.0 / math.pi); c1 = c0 * 0.044715
    a(f"s_mov_b32 s{S_K2}, {f2u(c1):#x}\ns_mov_b32 s{S_K2+1}, {f2u(c1):#x}")
    a(f"v_mov_b32 v4, {f2u(c0):#x}\nv_mov_b32 v5, {f2u(c0):#x}")
    a(f"s_mul_i32 s{S_T}, s{S_T}, 112\ns_lshl_b32 s{S_T+1}, s{S_B}, 3\ns_add_u32 s{S_T}, s{S_T}, s{S_T+1}")
    a(f"s_and_b32 s{S_T+1}, s{W}, 2\ns_lshl_b32 s{S_T+1}, s{S_T+1}, 1\ns_add_u32 s{S_T}, s{S_T}, s{S_T+1}\ns_lshl_b32 s{S_T}, s{S_T}, 10")
    a(f"s_add_u32 s{S_E}, s{S_T}, {WS_HP}\ns_add_u32 s{S_F}, s{S_E}, {112*1024}")
    for jj in range(4):
        A2 = [ACC + 32 * jj, ACC + 32 * jj + 16]
        TT = [16 + 24 * (jj & 1), 16 + 24 * (jj & 1) + 12]
        P2 = [(A2[m] + i, TT[m] + i) for m in range(2) for i in range(0, 8, 2)]
        if OPT.get("nopk"):
            P1 = [(A2[m] + i, TT[m] + i) for m in range(2) for i in range(8)]
            for g_, t_ in P1: a(f"v_mul_f32 v{t_}, v{g_}, v{g_}")
            for g_, t_ in P1: a(f"v_fma_f32 v{t_}, v{t_}, s{S_K2}, v4")
            for g_, t_ in P1: a(f"v_mul_f32 v{t_}, v{t_}, v{g_}")
            for g_, t_ in P1: a(f"v_exp_f32 v{t_}, v{t_}")
            for g_, t_ in P1: a(f"v_mul_f32 v{g_}, v{g_}, v{g_+8}")
            for g_, t_ in P1: a(f"v_add_f32 v{t_}, 1.0, v{t_}")
            for g_, t_ in P1: a(f"v_rcp_f32 v{t_}, v{t_}")
            for g_, t_ in P1: a(f"v_mul_f32 v{g_}, v{g_}, v{t_}")
        else:
            for g_, t_ in P2: a(f"v_pk_mul_f32 {vr(t_,2)}, {vr(g_,2)}, {vr(g_,2)}")
            for g_, t_ in P2: a(f"v_pk_fma_f32 {vr(t_,2)}, {vr(t_,2)}, s[{S_K2}:{S_K2+1}], v[4:5]")
            for g_, t_ in P2: a(f"v_pk_mul_f32 {vr(t_,2)}, {vr(t_,2)}, {vr(g_,2)}")
            for g_, t_ in P2: a(f"v_exp_f32 v{t_}, v{t_}\nv_exp_f32 v{t_+1}, v{t_+1}")
            for g_, t_ in P2: a(f"v_pk_mul_f32 {vr(g_,2)}, {vr(g_,2)}, {vr(g_+8,2)}")
            for g_, t_ in P2: a(f"v_pk_add_f32 {vr(t_,2)}, {vr(t_,2)}, 1.0 op_sel_hi:[1,0]")
            for g_, t_ in P2: a(f"v_rcp_f32 v{t_}, v{t_}\nv_rcp_f32 v{t_+1}, v{t_+1}")
            a("s_nop 0")
            for g_, t_ in P2: a(f"v_pk_mul_f32 {vr(g_,2)}, {vr(g_,2)}, {vr(t_,2)}")
        for m in range(2):
            for i in range(4): a(f"v_cvt_pk_bf16_f32 v{TT[m]+8+i}, v{A2[m]+2*i}, v{A2[m]+2*i+1}")
            a(f"buffer_store_dwordx4 {vr(TT[m]+8,4)}, v2, {WSR}, s{S_E if m == 0 else S_F} offen offset:{jj*1024} sc1")
    a(f"s_lshl_b32 s{S_T}, s{S_A}, 11\ns_lshl_b32 s{S_T+1}, s{S_B}, 7\ns_add_u32 s{S_T}, s{S_T}, s{S_T+1}\ns_add_u32 s{S_T}, s{S_T}, {WS_FLH}")
    stamp(a, 3)
    a("s_waitcnt vmcnt(0)")
    lsync(a, 3, 4, 6, 7, OPT['lsl'])
    stamp(a, 4)
    a(f"s_cmp_lg_u32 s{W}, 0\ns_cbranch_scc1 {lend}")
    a(f"s_mov_b64 exec, 1\nbuffer_store_dword v64, v65, {WSR}, s{S_T} offen sc1\ns_mov_b64 exec, -1")
    a(f"s_branch {lend}")
    a.label(lidle)
    VER, VGR, VLIN = 12, 13, 4
    a(f"s_lshl_b32 s{S_T}, s{W}, 12")
    x_read_addr(a, VXR, T0, T1, T2, S_T)
    a(f"v_bfe_u32 v{T0}, v0, 2, 2\nv_lshl_add_u32 v{T0}, v{T1}, 3, v{T0}\nv_and_b32 v{T2}, 3, v0\nv_lshlrev_b32 v{T2}, 3, v{T2}")
    a(f"v_lshl_add_u32 v{VER}, v{T0}, 5, v{T2}\nv_add_u32 v{VER}, {IEL}, v{VER}\nv_lshlrev_b32 v{VGR}, 4, v{T1}\nv_add_u32 v{VGR}, {IGL}, v{VGR}")
    a(f"v_lshlrev_b32 v{VLIN}, 4, v0\ns_lshl_b32 s{S_F}, s{S_A}, 2\ns_add_u32 s{S_F}, s{S_F}, s{W}   ; tt")
    kernarg_wait(a)
    finish_tag_ack(a, 64, 65)
    lv = a.newlabel("FV"); pub = a.newlabel("Fpub")
    ACK, ACG, XF, EF, GF, P = 32, 48, 16, 24, 72, 80
    a(f"s_cmp_eq_u32 s{S_B}, 15\ns_cbranch_scc1 {lv}")
    for v in "KV":
        if v == "V": a.label(lv)
        def reads(j):
            b = j & 1; u = j // 4
            a(f"ds_read_b128 {vr(XF+4*b,4)}, v{VXR + j%4} offset:{(u%4)*16384}")
            a(f"ds_read_b64_tr_b16 {vr(EF+4*b,2)}, v{VER} offset:{j*512}\nds_read_b64_tr_b16 {vr(EF+4*b+2,2)}, v{VER} offset:{j*512 + 128}")
            if v == "K": a(f"ds_read_b128 {vr(GF+4*b,4)}, v{VGR} offset:{j*32}")
        for u in range(8):
            a("s_barrier")
            reads(4 * u)
            for ks in range(4):
                j = 4 * u + ks; b = j & 1
                if ks < 3: reads(j + 1); a(f"s_waitcnt lgkmcnt({4 if v == 'K' else 3})")
                else: a("s_waitcnt lgkmcnt(0)")
                cc = (lambda r: "0") if j == 0 else (lambda r: vr(r, 16))
                if v == "K":
                    a(f"v_mfma_f32_32x32x16_bf16 {vr(ACK,16)}, {vr(EF+4*b,4)}, {vr(XF+4*b,4)}, {cc(ACK)}")
                    a(f"v_mfma_f32_32x32x16_bf16 {vr(ACG,16)}, {vr(GF+4*b,4)}, {vr(XF+4*b,4)}, {cc(ACG)}")
                else:
                    a(f"v_mfma_f32_32x32x16_bf16 {vr(ACK,16)}, {vr(XF+4*b,4)}, {vr(EF+4*b,4)}, {cc(ACK)}")
        stamp(a, 2)
        a("s_nop 15")
        if v == "K":
            for j in range(8): a(f"v_mul_f32 v{ACK+j}, {f2u(0.25*LOG2E):#x}, v{ACK+j}")
            for j in range(4): a(f"v_cvt_pk_bf16_f32 v{P+j}, v{ACK+2*j}, v{ACK+2*j+1}")
            a(f"v_and_b32 v{T1}, 0x33, v0\nv_bfe_u32 v{T2}, v0, 2, 1\nv_lshl_or_b32 v{T1}, v{T2}, 3, v{T1}")
            a(f"v_bfe_u32 v{T2}, v0, 3, 1\nv_lshl_or_b32 v{T1}, v{T2}, 2, v{T1}\nv_lshlrev_b32 v{T1}, 4, v{T1}")
            a(f"s_lshl_b32 s{S_T}, s{S_F}, 10\ns_add_u32 s{S_T}, s{S_T}, {WS_KP}")
            a(f"buffer_store_dwordx4 {vr(P,4)}, v{T1}, {WSR}, s{S_T} offen sc1")
            a(f"v_mul_f32 v20, {f2u(-LOG2E):#x}, v{ACG}\nv_exp_f32 v20, v20\nv_and_b32 v21, 31, v0")
            a(f"v_add_f32 v20, 1.0, v20\nv_rcp_f32 v20, v20\nv_lshlrev_b32 v21, 2, v21")
            a(f"s_lshl_b32 s{S_T}, s{S_F}, 7\ns_add_u32 s{S_T}, s{S_T}, {WS_G}")
            a(f"buffer_store_dword v20, v21, {WSR}, s{S_T} offen sc1")
            a(f"v_mul_f32 v{T0}, v{ACK}, v{ACK}")
            for j in range(1, 8): a(f"v_fmac_f32 v{T0}, v{ACK+j}, v{ACK+j}")
            a(f"v_mov_b32 v67, v{T0}\ns_nop 1\nv_permlane32_swap_b32 v{T0}, v67\nv_add_f32 v67, v{T0}, v67")
            wave_max(a, 67)
            a(f"s_mov_b32 s{S_T+1}, {WS_RECK}")
            a(f"s_branch {pub}")
        else:
            for j in range(8): a(f"v_cvt_pk_bf16_f32 v{P+j}, v{ACK+2*j}, v{ACK+2*j+1}")
            a(f"v_and_b32 v{T1}, 16, v0\nv_cmp_ne_u32 vcc, 0, v{T1}")
            a(f"s_lshl_b32 s{S_T}, s{S_F}, 10\ns_add_u32 s{S_T}, s{S_T}, {WS_VP}")
            for j in range(4): a(f"v_cndmask_b32 v{P+j}, v{P+j}, v{P+4+j}, vcc")
            a(f"buffer_store_dwordx4 {vr(P,4)}, v{VLIN}, {WSR}, s{S_T} offen sc1")
            a(f"s_mov_b32 s{S_T+1}, {WS_RECK + 512}\nv_mov_b32 v67, 0")
    a.label(pub)
    a(f"s_lshl_b32 s{S_T}, s{S_F}, 3\ns_add_u32 s{S_T+1}, s{S_T+1}, s{S_T}\nv_mov_b32 v66, s{S_TAG}")
    a("s_mov_b32 exec_lo, 0\ns_mov_b32 exec_hi, 0x80000000\ns_waitcnt vmcnt(0)")
    stamp(a, 3)
    a(f"buffer_store_dwordx2 v[66:67], v65, {WSR}, s{S_T+1} offen sc1\ns_mov_b64 exec, -1")
    a("s_barrier")
    epoch_update(a)
    a.label(lend)

def epoch_update(a):
    lab = a.newlabel("noepoch")
    a(f"s_cmp_lg_u32 s{S_ID}, 224\ns_cbranch_scc1 {lab}\ns_cmp_lg_u32 s{W}, 1\ns_cbranch_scc1 {lab}")
    a(f"v_lshlrev_b32 v2, 4, v0\ns_mov_b32 s{S_T+6}, {WS_ACK}\ns_mov_b32 s{S_T+7}, {WS_ACK+4096}")
    loads, regs = [], []
    for i in range(8):
        loads.append(f"buffer_load_dwordx4 {vr(16+4*i,4)}, v2, {WSR}, s{S_T+6+i//4} offen offset:{(i%4)*1024} sc1")
        regs += [16 + 4*i + j for j in range(4)]
    poll(a, loads, regs, sleep=64)
    a(f"s_mov_b64 exec, 1\nbuffer_store_dword v64, v65, {WSR}, 0 offen offset:{WS_EPOCH} sc1\ns_mov_b64 exec, -1")
    a.label(lab)

def ffn2(a):
    a(f"s_and_b32 s{S_T}, s{S_ID}, 1\ns_lshl_b32 s{S_T}, s{S_T}, 4\ns_and_b32 s{S_T+1}, s{S_ID}, 2\ns_lshl_b32 s{S_T+1}, s{S_T+1}, 2")
    a(f"s_add_u32 s{S_T}, s{S_T}, s{S_T+1}\ns_bfe_u32 s{S_T+1}, s{S_ID}, 0x30003\ns_add_u32 s{S_A}, s{S_T}, s{S_T+1}   ; tb64")
    a(f"s_and_b32 s{S_T}, s{S_ID}, 4\ns_lshr_b32 s{S_T+1}, s{S_ID}, 6\ns_add_u32 s{S_B}, s{S_T}, s{S_T+1}   ; cb")
    srd(a, R_W0, S_WD, 1792 * 1024); srd(a, R_W1, S_WO, 512 * 1024); srd(a, R_OUT, S_OUT, 2048 * 1024)
    VWS, VLIN, VR0, VR1, VG = 2, 3, 4, 5, 6
    T0, T1, T2 = 8, 9, 10
    a(f"v_lshrrev_b32 v{T0}, 3, v0\nv_and_b32 v{T1}, 7, v0\nv_bfe_u32 v{T2}, v0, 4, 1\nv_lshlrev_b32 v{T2}, 2, v{T2}")
    a(f"v_xor_b32 v{VWS}, v{T2}, v{T1}\nv_lshlrev_b32 v{VWS}, 4, v{VWS}\nv_lshl_add_u32 v{VWS}, v{T0}, 10, v{VWS}")
    a(f"v_lshlrev_b32 v{VLIN}, 4, v0")
    a(f"v_lshrrev_b32 v{T1}, 5, v0\nv_bfe_u32 v{T0}, v0, 2, 2\nv_lshl_add_u32 v{T0}, v{T1}, 2, v{T0}\nv_and_b32 v{T2}, 3, v0")
    a(f"v_lshlrev_b32 v{T2}, 3, v{T2}\nv_lshl_add_u32 v{VR0}, v{T0}, 7, v{T2}\nv_bfe_u32 v{T0}, v0, 4, 1\nv_bfe_u32 v{T2}, v0, 3, 1")
    a(f"v_lshl_or_b32 v{T0}, v{T2}, 1, v{T0}\nv_xor_b32 v{T2}, 2, v{T0}")
    a(f"v_lshl_add_u32 v{VR1}, v{T2}, 5, v{VR0}\nv_lshl_add_u32 v{VR0}, v{T0}, 5, v{VR0}")
    a(f"s_lshl_b32 s{S_M0B}, s{W}, 14")
    a(f"v_add_u32 v{VR0}, s{S_M0B}, v{VR0}\nv_add_u32 v{VR1}, s{S_M0B}, v{VR1}")
    a(f"s_lshl_b32 s{S_T}, s{S_B}, 7\ns_add_u32 s{S_C}, s{S_M0B}, s{S_T}")
    a(f"s_mul_i32 s{S_D}, s{S_A}, {2*112*1024}\ns_lshl_b32 s{S_T}, s{W}, 10\ns_add_u32 s{S_D}, s{S_D}, s{S_T}")
    a(f"s_add_u32 s{S_D}, s{S_D}, {WS_HP}\ns_add_u32 s{S_E}, s{S_D}, {112*1024}")
    a(f"s_lshl_b32 s{S_T}, s{S_B}, 1\ns_add_u32 s{S_T}, s{S_T}, s{S_A}\ns_and_b32 s{S_T}, s{S_T}, {OPT['rot2']}")
    a(f"s_mul_i32 s{S_T}, s{S_T}, 7\ns_lshr_b32 s{S_T}, s{S_T}, 1\ns_lshl_b32 s{S_K2}, s{S_T}, 16\ns_lshl_b32 s{S_K3}, s{S_T}, 12")
    ACC, HF, FW = 64, 128, (16, 24)
    NS, D = 28, 8
    q = []
    def issueW(n):
        a(f"s_add_u32 s{S_T+1}, s{S_C}, s{S_K2}")
        for p in range(2):
            dma(a, VWS, R_W0, S_T, S_T + 1, p * 8192, (n % D) * 2048 + p * 1024); q.append(("W", n))
        a(f"s_add_u32 s{S_K2}, s{S_K2}, 65536\ns_cmp_eq_u32 s{S_K2}, {28*65536}\ns_cselect_b32 s{S_K2}, 0, s{S_K2}")
    def issueWo(n):
        for p in range(2):
            dma(a, VWS, R_W1, S_T, S_G, (n - NS) * 16384 + p * 8192, (n % D) * 2048 + p * 1024); q.append(("W", n))
    def issueH(n):
        a(f"s_add_u32 s{S_T}, s{S_D}, s{S_K3}\ns_add_u32 s{S_T+1}, s{S_E}, s{S_K3}")
        a(f"s_add_u32 s{S_K3}, s{S_K3}, 4096\ns_cmp_eq_u32 s{S_K3}, {28*4096}\ns_cselect_b32 s{S_K3}, 0, s{S_K3}")
        a(f"buffer_load_dwordx4 {vr(HF+(n%D)*8,4)}, v{VLIN}, {WSR}, s{S_T} offen{SC()}"); q.append(("H", n))
        a(f"buffer_load_dwordx4 {vr(HF+(n%D)*8+4,4)}, v{VLIN}, {WSR}, s{S_T+1} offen{SC()}"); q.append(("H", n))
    def waitfor(tags):
        idx = max((i for i, t in enumerate(q) if t in tags), default=-1)
        n = len(q) - 1 - idx
        del q[:idx + 1]
        a(f"s_waitcnt vmcnt({n})")
    def rd_list(n):
        b = n & 1
        return [f"ds_read_b64_tr_b16 {vr(FW[b]+4*ct+2*hf,2)}, v{(VR0,VR1)[ct]} offset:{(n%D)*2048 + hf*1024}" for ct in range(2) for hf in range(2)]
    for n in range(OPT.get("wpre", 2)): issueW(n)
    lab = a.newlabel("nopoll")
    a(f"s_cmp_lg_u32 s{W}, 0\ns_cbranch_scc1 {lab}")
    a(f"s_lshr_b32 s{S_T+4}, s{S_A}, 1\ns_lshl_b32 s{S_T+4}, s{S_T+4}, 11\ns_add_u32 s{S_T+4}, s{S_T+4}, {WS_FLH}")
    a(f"s_lshl_b32 s{S_T+5}, s{S_A}, 4\ns_add_u32 s{S_T+5}, s{S_T+5}, {WS_RECK}")
    a(f"v_lshlrev_b32 v11, 7, v0\nv_add_u32 v11, s{S_T+4}, v11\nv_and_b32 v12, 1, v0\nv_lshlrev_b32 v12, 3, v12\nv_add_u32 v12, s{S_T+5}, v12")
    a(f"v_cmp_gt_u32 vcc, 14, v0\ns_nop 1\nv_cndmask_b32 v11, v12, v11, vcc")
    poll(a, [f"buffer_load_dword v13, v11, {WSR}, 0 offen sc1"], [13], sleep=12)
    a.label(lab)
    a("s_waitcnt vmcnt(0)")
    lsync(a, 4, 4, 11, 12, 4 * OPT['lsl'])
    q.clear()
    stamp(a, 5)
    a(f"s_setprio {OPT['prioD']}")
    for n in range(D):
        if n >= OPT.get("wpre", 2): issueW(n)
        issueH(n)
    a(f"s_lshl_b32 s{S_T}, s{S_A}, 8\ns_add_u32 s{S_T}, s{S_T}, {WS_G}\nv_and_b32 v{T0}, 31, v0\nv_lshlrev_b32 v{T0}, 2, v{T0}")
    for m in range(2):
        a(f"buffer_load_dword v{VG+m}, v{T0}, {WSR}, s{S_T} offen offset:{128*m}{SC()}"); q.append(("G", 0))
    waitfor({("W", 0)})
    for l in rd_list(0): a(l)
    def step(n, bsrc, extra=None):
        b = n & 1
        rl = rd_list(n + 1) if n + 1 < NS else []
        for k in range(4):
            ct, m = k // 2, k % 2
            acc = ACC + 16 * k
            c = "0" if n == 0 else vr(acc, 16)
            a(f"v_mfma_f32_32x32x16_bf16 {vr(acc,16)}, {vr(FW[b]+4*ct,4)}, {vr(bsrc+4*m,4)}, {c}")
            for _ in range(2):
                if rl: a(rl.pop(0))
            if k == 2 and extra: extra()
            if OPT.get("space") and k != 2: a(f"s_nop {OPT['space']}")
    for n in range(NS):
        waitfor({("H", n), ("W", n + 1)})
        a("s_waitcnt lgkmcnt(0)")
        step(n, HF + (n % D) * 8, (lambda: issueW(n + D)) if n + D < NS else None)
        if n + D < NS: issueH(n + D)
    stamp(a, 6)
    a(f"s_setprio {OPT['prioG']}")
    a(f"v_lshl_add_u32 v{T0}, v0, 4, s{S_M0B}")
    a(f"v_lshlrev_b32 v{T1}, 4, v0\ns_lshl_b32 s{S_T}, s{W}, 12\nv_add_u32 v{T1}, s{S_T}, v{T1}")
    a(f"s_bitcmp1_b32 s{W}, 0\ns_cselect_b64 vcc, -1, 0\nv_cndmask_b32 v{VG}, v{VG}, v{VG+1}, vcc\nv_sub_f32 v{VG}, 1.0, v{VG}")
    a("s_nop 7")
    for d in range(4):
        for i in range(4): a(f"ds_write_b128 v{T0}, {vr(ACC+16*d+4*i,4)} offset:{d*4096 + i*1024}")
    lsync(a, 5, 4, 11, 12, 2 * OPT['lsl'])
    RB = 128
    for src in range(4):
        for i in range(4): a(f"ds_read_b128 {vr(RB+16*src+4*i,4)}, v{T1} offset:{src*16384 + i*1024}")
        if src == 1 or src == 3:
            a(f"s_waitcnt lgkmcnt(0)")
            if src == 3: lsync(a, 6, 4, 11, 12, OPT['lsl'])
            for i in range(0, 16, 2):
                a(f"v_pk_add_f32 {vr(RB+16*(src-1)+i,2)}, {vr(RB+16*(src-1)+i,2)}, {vr(RB+16*src+i,2)}")
    a(f"s_lshl_b32 s{S_M0B}, s{W}, 10\ns_lshl_b32 s{S_C}, s{W}, 13\ns_lshl_b32 s{S_T}, s{S_B}, 7\ns_add_u32 s{S_C}, s{S_C}, s{S_T}")
    for p in range(16): dma(a, VWS, R_W1, S_T, S_C, p * 32768, p * 4096)
    OWN, OTH = 64, 80
    for i in range(0, 16, 2): a(f"v_pk_add_f32 {vr(RB+i,2)}, {vr(RB+i,2)}, {vr(RB+32+i,2)}")
    for i in range(0, 16, 2): a(f"v_pk_mul_f32 {vr(OWN+i,2)}, {vr(RB+i,2)}, {vr(VG,2)} op_sel_hi:[1,0]")
    a(f"s_lshl_b32 s{S_T}, s{W}, 14\nv_subrev_u32 v{VR0}, s{S_T}, v{VR0}\nv_subrev_u32 v{VR1}, s{S_T}, v{VR1}")
    a(f"s_and_b32 s{S_T}, s{W}, 2\ns_lshl_b32 s{S_T}, s{S_T}, 14\nv_add_u32 v{VR0}, s{S_T}, v{VR0}\nv_add_u32 v{VR1}, s{S_T}, v{VR1}")
    a(f"s_bitcmp1_b32 s{W}, 1\ns_cselect_b64 vcc, -1, 0\nv_cndmask_b32 v12, v{VR0}, v{VR1}, vcc\nv_cndmask_b32 v{VR1}, v{VR1}, v{VR0}, vcc\nv_mov_b32 v{VR0}, v12")
    a(f"s_lshl_b32 s{S_F}, s{S_A}, 1\ns_and_b32 s{S_T}, s{W}, 1\ns_add_u32 s{S_F}, s{S_F}, s{S_T}   ; tt")
    a(f"s_lshl_b32 s{S_D}, s{S_F}, 15\ns_and_b32 s{S_T}, s{W}, 2\ns_lshl_b32 s{S_T}, s{S_T}, 13\ns_add_u32 s{S_D}, s{S_D}, s{S_T}\ns_add_u32 s{S_D}, s{S_D}, {WS_OP}")
    a(f"s_lshr_b32 s{S_T+4}, s{S_F}, 2\ns_lshl_b32 s{S_T+4}, s{S_T+4}, 13\ns_and_b32 s{S_T}, s{W}, 2\ns_lshl_b32 s{S_T}, s{S_T}, 11\ns_add_u32 s{S_T+4}, s{S_T+4}, s{S_T}")
    a(f"s_and_b32 s{S_T}, s{S_F}, 3\ns_lshl_b32 s{S_T}, s{S_T}, 7\ns_add_u32 s{S_T+4}, s{S_T+4}, s{S_T}\ns_add_u32 s{S_T+4}, s{S_T+4}, {WS_FLO}")
    a(f"v_and_b32 v11, 7, v0\nv_lshlrev_b32 v11, 9, v11")
    a(f"s_lshl_b32 s{S_T}, s{W}, 12\ns_add_u32 s{S_T}, s{S_T}, 65536\nv_lshl_add_u32 v{T0}, v0, 4, s{S_T}")
    a(f"s_xor_b32 s{S_T}, s{S_T}, 8192\nv_lshl_add_u32 v{T1}, v0, 4, s{S_T}")
    a(f"v_and_b32 v{T2}, 31, v0\nv_lshlrev_b32 v{T2}, 10, v{T2}\nv_and_b32 v12, 32, v0\nv_lshrrev_b32 v12, 1, v12\nv_add_u32 v{T2}, v{T2}, v12")
    a(f"s_lshl_b32 s{S_E}, s{S_F}, 15\ns_lshl_b32 s{S_T+1}, s{S_B}, 7\ns_add_u32 s{S_E}, s{S_E}, s{S_T+1}")
    a(f"s_and_b32 s{S_T+1}, s{W}, 2\ns_lshl_b32 s{S_T+1}, s{S_T+1}, 5\ns_add_u32 s{S_E}, s{S_E}, s{S_T+1}")
    a("s_waitcnt vmcnt(0)")
    lsync(a, 7, 4, 13, 12, OPT['lsl'])
    def rdo(j):
        b = 16 + 8 * (j % 3)
        return [f"ds_read_b64_tr_b16 {vr(b+4*o+2*hf,2)}, v{(VR0,VR1)[o]} offset:{j*2048 + hf*1024}" for o in range(2) for hf in range(2)]
    for j in range(2):
        for l in rdo(j): a(l)
    stamp(a, 7)
    poll(a, [f"buffer_load_dword v13, v11, {WSR}, s{S_T+4} offen sc1"], [13], sleep=2)
    stamp(a, 8)
    for j in range(16):
        if j % 4 == 0 and j: a(f"s_add_u32 s{S_D}, s{S_D}, 4096")
        a(f"buffer_load_dwordx4 {vr(HF+4*j,4)}, v{VLIN}, {WSR}, s{S_D} offen offset:{(j%4)*1024}{SC()}")
    for j in range(16):
        if j + 2 < 16:
            for l in rdo(j + 2): a(l)
        a(f"s_waitcnt vmcnt({15-j}) lgkmcnt({4*min(2, 15-j)})")
        b = 16 + 8 * (j % 3)
        a(f"v_mfma_f32_32x32x16_bf16 {vr(OTH,16)}, {vr(b+4,4)}, {vr(HF+4*j,4)}, {'0' if j == 0 else vr(OTH,16)}")
        a(f"v_mfma_f32_32x32x16_bf16 {vr(OWN,16)}, {vr(b,4)}, {vr(HF+4*j,4)}, {vr(OWN,16)}")
    stamp(a, 9)
    a("s_nop 10")
    for i in range(4): a(f"ds_write_b128 v{T0}, {vr(OTH+4*i,4)} offset:{i*1024}")
    lsync(a, 8, 4, 11, 12)
    for i in range(4): a(f"ds_read_b128 {vr(OTH+4*i,4)}, v{T1} offset:{i*1024}")
    for i in range(4):
        a(f"s_waitcnt lgkmcnt({3-i})")
        a(f"v_pk_add_f32 {vr(OWN+4*i,2)}, {vr(OWN+4*i,2)}, {vr(OTH+4*i,2)}\nv_pk_add_f32 {vr(OWN+4*i+2,2)}, {vr(OWN+4*i+2,2)}, {vr(OTH+4*i+2,2)}")
        a(f"v_cvt_pk_bf16_f32 v{32+2*i}, v{OWN+4*i}, v{OWN+4*i+1}\nv_cvt_pk_bf16_f32 v{33+2*i}, v{OWN+4*i+2}, v{OWN+4*i+3}")
    a("s_nop 1")
    a("v_permlane32_swap_b32 v32, v34\nv_permlane32_swap_b32 v33, v35\nv_permlane32_swap_b32 v36, v38\nv_permlane32_swap_b32 v37, v39")
    a(f"buffer_store_dwordx4 v[32:35], v{T2}, {rs(R_OUT)}, s{S_E} offen{['', ' sc1', ' nt', ' sc0 sc1'][OPT['outsc']]}")
    a(f"buffer_store_dwordx4 v[36:39], v{T2}, {rs(R_OUT)}, s{S_E} offen offset:32{['', ' sc1', ' nt', ' sc0 sc1'][OPT['outsc']]}")

KD = """.section .rodata,"a"
.p2align 6
.amdhsa_kernel {k}
  .amdhsa_next_free_vgpr 256
  .amdhsa_next_free_sgpr 102
  .amdhsa_accum_offset 256
  .amdhsa_group_segment_fixed_size 0
  .amdhsa_kernarg_size 104
  .amdhsa_user_sgpr_count 2
  .amdhsa_user_sgpr_kernarg_segment_ptr 1
  .amdhsa_system_sgpr_workgroup_id_x 1
.end_amdhsa_kernel
"""

def gen():
    a = Asm()
    ref = open(f"cdna_kernels/{NAME}.s.ref").read().split("\n")
    H = [l for l in ref if l.startswith(";") and "@launch" not in l]
    H += ["; @launch grid=(256,1,1) block=(512,1,1) lds=163840"]
    k = NAME + "_kernel"
    a.raw(f'.amdgcn_target "amdgcn-amd-amdhsa--gfx950"\n.text\n.globl {k}\n.p2align 8\n.type {k},@function\n{k}:')
    a("s_cmp_ge_u32 s2, 256\ns_cbranch_scc1 L_exit")
    stamp(a, 0); stamp_init(a)
    if OPT.get("dbg"): a("s_memrealtime s[4:5]")
    a("s_load_dwordx16 s[16:31], s[0:1], 0\ns_load_dwordx8 s[32:39], s[0:1], 64\ns_load_dwordx2 s[40:41], s[0:1], 96")
    a(f"v_lshrrev_b32 v1, 6, v0\nv_and_b32 v0, 63, v0\nv_readfirstlane_b32 s3, v1\ns_mov_b32 s{S_ID}, s2")
    decode(a)
    a(f"s_and_b32 s{W}, s3, 3\ns_lshl_b32 s{S_M0B}, s{W}, 10")
    a("s_cmp_ge_u32 s3, 4\ns_cbranch_scc1 L_roleF")
    a(f"s_setprio {OPT['prioL']}")
    roleA(a)
    a.raw(".p2align 6"); a.label("L_roleF"); a.roleF = 1
    a(f"s_setprio {OPT['prioF']}")
    ffn1(a)
    ffn2(a); stamp_dump(a)
    if OPT.get("dbg"):
        a(f"s_cmp_ge_u32 s2, 8\ns_cbranch_scc1 L_exit\ns_cmp_lg_u32 s{W}, 0\ns_cbranch_scc1 L_exit")
        a("s_waitcnt vmcnt(0)")
        a.label("L_dbgspin")
        a("s_memrealtime s[6:7]\ns_waitcnt lgkmcnt(0)")
        if OPT.get("spin"): a(f"s_sub_u32 s8, s6, s4\ns_cmp_lt_u32 s8, {OPT['spin']}\ns_cbranch_scc1 L_dbgspin")
        srd(a, R_W0, S_DBG, 256)
        a(f"s_lshl_b32 s8, s2, 2\nv_mov_b32 v1, s8\nv_mov_b32 v2, s4\nv_mov_b32 v3, s6\ns_mov_b64 exec, 1")
        a(f"buffer_store_dword v2, v1, {rs(R_W0)}, 0 offen\nbuffer_store_dword v3, v1, {rs(R_W0)}, 0 offen offset:32")
    a.label("L_exit")
    a("s_endpgm")
    return "\n".join(H) + "\n" + a.text() + KD.format(k=k)

if __name__ == "__main__":
    if "--diag" in sys.argv: DIAG = True
    for x in sys.argv[2:]:
        if "=" in x:
            k, v = x.split("="); OPT[k] = int(v)
    open(sys.argv[1], "w").write(gen())
```

```python
import sys, math, struct

NAME = "gated_mix__grouped_kv_mqa__glu_gated_geglu__prompt"

WS_EPOCH = 0x0
WS_ACK = 0x6000
WS_KP = 0x10000
WS_VP = 0x20000
WS_G = 0x30000
WS_RECK = 0x40000
WS_PRE = 0x50000
WS_FLH = 0x80000
WS_FLO = 0xA0000
WS_QP = 0x100000
WS_OP = 0x300000
WS_HP = 0x500000
WS_DIAG = 0xE00000
WS_SIZE = 0x10000000
OPT = dict(prioA=1, prioF=2, prioG=2, prioD=0, prioL=3, sleep=4, sc1=0, rot=6, rot2=7, thr=60, clk=0, look=19, kvper=4, wpre=2, w0=4, ramp=2, xper=2, barpos=0, lsl=0, outsc=0, nw=11, lastbar=24, hold=14, cpf=1, prioT=3, sentat=30, pfx=0, pfw=0)
DIAG = False

LOG2E = 1.4426950408889634
def f2u(x): return struct.unpack("<I", struct.pack("<f", x))[0]
def SC(): return " sc1" if OPT["sc1"] else ""

class Asm:
    def __init__(self): self.L = []; self.uid = 0
    def __call__(self, s):
        for line in s.split("\n"): self.L.append("    " + line.strip())
    def label(self, n): self.L.append(n + ":")
    def raw(self, s): self.L.append(s)
    def newlabel(self, p):
        self.uid += 1
        return f"L_{p}_{self.uid}"
    def text(self): return "\n".join(self.L) + "\n"

def vr(a, n=1): return f"v{a}" if n == 1 else f"v[{a}:{a+n-1}]"

S_X, S_WQ, S_WK, S_WV, S_WO, S_BX, S_WG, S_WU = 16, 18, 20, 22, 24, 26, 28, 30
S_WD, S_GW, S_OUT, S_DBG, S_WSP = 32, 34, 36, 38, 40
R_X, R_WS, R_W0, R_W1, R_OUT = 44, 48, 52, 56, 60
S_WAVE, S_TAG = 64, 65
S_T = 66
S_ID, S_M0B = 80, 81
S_A, S_B, S_C, S_D, S_E, S_F = 82, 83, 84, 85, 86, 87
S_G, S_H = 88, 89
S_K0, S_K1, S_K2, S_K3 = 90, 91, 92, 93
W = S_WAVE
WSR = f"s[{R_WS}:{R_WS+3}]"
def rs(r): return f"s[{r}:{r+3}]"

STAMP_REGS = [4, 6, 8, 10, 12, 14, 42, 94, 96, 98, 100]
def stamp(a, i, force=False):
    if OPT.get("fst") and getattr(a, "roleF", 0) and 5 <= i <= 9 and not force: return
    if DIAG: a(f"{'s_memtime' if OPT['clk'] else 's_memrealtime'} s[{STAMP_REGS[i]}:{STAMP_REGS[i]+1}]")
def stamp_init(a):
    if DIAG:
        for r in STAMP_REGS[1:]: a(f"s_mov_b32 s{r}, 0")
def stamp_dump(a):
    if not DIAG: return
    a("s_waitcnt vmcnt(0) lgkmcnt(0)")
    stamp(a, 10)
    a("s_waitcnt lgkmcnt(0)")
    a(f"s_lshl_b32 s{S_T}, s2, 2\ns_add_u32 s{S_T}, s{S_T}, s{W}\ns_add_u32 s{S_T}, s{S_T}, {1024 if getattr(a, 'roleF', 0) else 0}\ns_lshl_b32 s{S_T}, s{S_T}, 6\ns_add_u32 s{S_T}, s{S_T}, {WS_DIAG}")
    a("s_mov_b64 exec, 1\nv_mov_b32 v1, 0")
    for i, r in enumerate(STAMP_REGS):
        a(f"v_mov_b32 v2, s{r}\nbuffer_store_dword v2, v1, {WSR}, s{S_T} offen offset:{4*i}\ns_nop 1")

def srd(a, r, p, size):
    a(f"s_mov_b32 s{r}, s{p}\ns_mov_b32 s{r+1}, s{p+1}\ns_mov_b32 s{r+2}, {size:#x}\ns_mov_b32 s{r+3}, 0x20000")

def kernarg_wait(a):
    a("s_waitcnt lgkmcnt(0)")
    a(f"s_load_dword s{S_TAG}, s[40:41], {WS_EPOCH}")
    srd(a, R_X, S_X, 2048 * 1024)

def finish_tag_ack(a, v0_, v1_):
    srd(a, R_WS, S_WSP, WS_SIZE)
    a(f"s_lshl_b32 s{S_T+2}, s2, 5\ns_lshl_b32 s{S_T+3}, s{W}, 2\ns_add_u32 s{S_T+2}, s{S_T+2}, s{S_T+3}")
    a(f"s_add_u32 s{S_T+2}, s{S_T+2}, {WS_ACK + (16 if getattr(a, 'roleF', 0) else 0)}")
    a(f"v_mov_b32 v{v1_}, 0")
    a("s_waitcnt lgkmcnt(0)")
    a(f"s_mul_i32 s{S_TAG}, s{S_TAG}, 0x9E3779B1")
    a(f"s_add_u32 s{S_TAG}, s{S_TAG}, 0x7F4A7C15")
    a(f"v_mov_b32 v{v0_}, s{S_TAG}")
    a("s_mov_b64 exec, 1")
    a(f"buffer_store_dword v{v0_}, v{v1_}, {WSR}, s{S_T+2} offen sc1")
    a("s_mov_b64 exec, -1")

def dma(a, vaddr, r, soff_reg, soff_base, soff_imm, lds_imm):
    a(f"s_add_u32 m0, s{S_M0B}, {lds_imm}")
    a(f"s_add_u32 s{soff_reg}, s{soff_base}, {soff_imm}")
    nt = " nt" if (OPT.get("ntx") and r == R_X) or (OPT.get("nt2") and getattr(a, "roleF", 0)) else ""
    a(f"buffer_load_dwordx4 v{vaddr}, {rs(r)}, s{soff_reg} offen{nt} lds")

def wave_max(a, v):
    for m in ("row_shr:1", "row_shr:2", "row_shr:4", "row_shr:8", "row_bcast:15 row_mask:0xa", "row_bcast:31 row_mask:0xc"):
        a("s_nop 1")
        a(f"v_max_u32_dpp v{v}, v{v}, v{v} {m}")

def poll(a, loads, regs, sleep=None):
    lab = a.newlabel("poll"); out = a.newlabel("polled")
    sleep = sleep or OPT["sleep"]
    masked = len(loads) == 1 and len(regs) == 1
    a(f"s_mov_b32 s{S_T+10}, 0x40000")
    a.label(lab)
    for l in loads: a(l)
    a("s_waitcnt vmcnt(0)")
    a(f"v_cmp_ne_u32 vcc, s{S_TAG}, v{regs[0]}")
    for r in regs[1:]:
        a(f"v_cmp_ne_u32 s[{S_T+12}:{S_T+13}], s{S_TAG}, v{r}")
        a(f"s_or_b64 vcc, vcc, s[{S_T+12}:{S_T+13}]")
    a(f"s_cbranch_vccz {out}")
    if masked: a("s_mov_b64 exec, vcc")
    a(f"s_sleep {sleep}")
    a(f"s_sub_u32 s{S_T+10}, s{S_T+10}, 1\ns_cmp_lg_u32 s{S_T+10}, 0\ns_cbranch_scc1 {lab}")
    a.label(out)
    if masked: a("s_mov_b64 exec, -1")

def x_src_addr(a, V, T0, T1, T2):
    a(f"v_lshrrev_b32 v{T0}, 3, v0\nv_and_b32 v{T1}, 7, v0\nv_lshrrev_b32 v{T2}, 1, v{T0}")
    a(f"s_and_b32 s{S_T}, s{W}, 1\ns_lshl_b32 s{S_T}, s{S_T}, 2")
    a(f"v_or_b32 v{V}, s{S_T}, v{T2}\nv_xor_b32 v{V}, v{V}, v{T1}\nv_lshlrev_b32 v{V}, 4, v{V}")
    a(f"v_lshl_add_u32 v{V}, v{T0}, 10, v{V}")

def x_read_addr(a, V, T0, T1, T2, sbase=None):
    a(f"v_and_b32 v{T0}, 31, v0\nv_lshrrev_b32 v{T1}, 5, v0\nv_bfe_u32 v{T2}, v0, 1, 3\nv_xor_b32 v{T2}, v{T2}, v{T1}")
    a(f"v_lshlrev_b32 v{T0}, 7, v{T0}")
    if sbase is not None: a(f"v_add_u32 v{T0}, s{sbase}, v{T0}")
    for ks in range(4):
        a(f"v_xor_b32 v{V+ks}, {2*ks}, v{T2}\nv_lshl_add_u32 v{V+ks}, v{V+ks}, 4, v{T0}")

XL, QWL, WL = 0, 49152, 61440
IXL, IQL, IEL, IGL = 0, 65536, 81920, 98304
PART = 2176
LDS_P = 81920
LDS_Q = LDS_P + 32 * PART
LDS_X = LDS_Q + 8192
LDS_C = LDS_X + 1088
assert LDS_X + 4096 == 163840

def lsync(a, idx, n, va, vb, slp=0):
    lab = a.newlabel("ls")
    a(f"v_mov_b32 v{va}, {LDS_C + 4*idx}\nv_mov_b32 v{vb}, 1\ns_mov_b64 exec, 1\nds_add_u32 v{va}, v{vb}\ns_mov_b64 exec, -1")
    if slp:
        l2 = a.newlabel("ls")
        a(f"s_branch {l2}")
        a.label(lab)
        a(f"s_sleep {slp}")
        a.label(l2)
    else:
        a.label(lab)
    a(f"ds_read_b32 v{vb}, v{va}\ns_waitcnt lgkmcnt(0)\nv_readfirstlane_b32 s{S_T+10}, v{vb}\ns_cmp_lt_u32 s{S_T+10}, {n}\ns_cbranch_scc1 {lab}")

def decode(a):
    a(f"s_lshr_b32 s{S_T+1}, s{S_ID}, 3\ns_bfe_u32 s{S_T}, s{S_ID}, 0x20001\ns_and_b32 s{S_T+2}, s{S_ID}, 1\ns_lshl_b32 s{S_T+2}, s{S_T+2}, 3")
    a(f"s_mul_i32 s{S_T+3}, s{S_T}, 28\ns_add_u32 s{S_T+3}, s{S_T+3}, s{S_T+1}\ns_lshr_b32 s{S_B}, s{S_T+3}, 3\ns_and_b32 s{S_A}, s{S_T+3}, 7")
    a(f"s_lshl_b32 s{S_T}, s{S_T}, 1\ns_bfe_u32 s{S_T+3}, s{S_T+1}, 0x10001\ns_add_u32 s{S_T}, s{S_T}, s{S_T+3}")
    a(f"s_and_b32 s{S_T+3}, s{S_T+1}, 1\ns_add_u32 s{S_T+3}, s{S_T+3}, 14")
    a(f"s_cmp_ge_u32 s{S_ID}, 224\ns_cselect_b32 s{S_A}, s{S_T}, s{S_A}\ns_cselect_b32 s{S_B}, s{S_T+3}, s{S_B}")
    a(f"s_add_u32 s{S_A}, s{S_A}, s{S_T+2}")
    a(f"s_lshl_b32 s{S_F}, s{S_B}, 1\ns_add_u32 s{S_F}, s{S_F}, s{S_A}\ns_and_b32 s{S_F}, s{S_F}, {OPT['rot']}")

class VQ:
    def __init__(self, a): self.a = a; self.q = []
    def add(self, t, n=1): self.q += [t] * n; self.total = getattr(self, "total", 0) + n
    def wait(self, tags):
        idx = max((i for i, t in enumerate(self.q) if t in tags), default=-1)
        n = len(self.q) - 1 - idx
        del self.q[:idx + 1]
        assert n < 64
        self.a(f"s_waitcnt vmcnt({n})")

def roleA(a):
    VL16, VIDX, VL4, VO, VGO, VLQ = 1, 2, 3, 4, 5, 12
    VXS, VQS, VXR, VQR, VGS, VUS = 6, 7, 8, 13, 14, 15
    QB = 8; SB = (16, 32); OA = 48; KR, VR_ = 64, 128
    XF, WF, ACC = 16, 24, 32
    T0, T1, T2 = 16, 17, 18
    VREC, VRA, VQW = 58, 62, 57
    S_WB, S_WEND, S_XR, S_QR = S_K2, S_K3, S_T + 11, S_T + 12
    RS = 3584 * 16
    x_src_addr(a, VXS, T0, T1, T2)
    a(f"v_lshrrev_b32 v{T0}, 2, v0\nv_and_b32 v{T1}, 3, v0\nv_lshlrev_b32 v{T1}, 4, v{T1}\nv_lshl_add_u32 v{VQS}, v{T0}, 10, v{T1}")
    a(f"v_lshrrev_b32 v{T0}, 4, v0\nv_and_b32 v{T1}, 15, v0\nv_lshlrev_b32 v{T2}, 1, v{T0}\nv_xor_b32 v{T1}, v{T1}, v{T2}")
    a(f"v_lshlrev_b32 v{T1}, 4, v{T1}\nv_mul_u32_u24 v{T0}, 3584, v{T0}\nv_add_u32 v{VGS}, v{T0}, v{T1}")
    a(f"v_xor_b32 v{T1}, 128, v{T1}\nv_add_u32 v{VUS}, v{T0}, v{T1}")
    a(f"s_lshl_b32 s{S_C}, s{S_A}, 17\ns_lshl_b32 s{S_T}, s{W}, 13\ns_add_u32 s{S_C}, s{S_C}, s{S_T}   ; x base")
    a(f"s_lshl_b32 s{S_H}, s{W}, 14\ns_lshl_b32 s{S_T}, s{S_B}, 6\ns_add_u32 s{S_H}, s{S_H}, s{S_T}")
    a(f"s_mul_i32 s{S_T}, s{W}, {4*3584}\ns_lshl_b32 s{S_WB}, s{S_B}, 8\ns_add_u32 s{S_WB}, s{S_WB}, s{S_T}")
    a(f"s_add_u32 s{S_WEND}, s{S_WB}, {32*RS}\ns_mul_i32 s{S_T}, s{S_F}, {4*RS}\ns_add_u32 s{S_D}, s{S_WB}, s{S_T}")
    kernarg_wait(a)
    srd(a, R_OUT, S_WQ, 512 * 1024)
    vq = VQ(a)
    def issueX1(u, j, xl, ql):
        if j == 0:
            a(f"s_add_u32 s{S_XR}, s{S_F}, {u}\ns_and_b32 s{S_XR}, s{S_XR}, 7\ns_lshl_b32 s{S_QR}, s{S_XR}, 16\ns_lshl_b32 s{S_XR}, s{S_XR}, 7")
            a(f"s_add_u32 s{S_XR}, s{S_XR}, s{S_C}\ns_add_u32 s{S_QR}, s{S_QR}, s{S_H}")
        if j < 4: dma(a, VXS, R_X, S_T, S_XR, j * 32768, xl + j * 4096)
        else: a(f"s_add_u32 m0, s{S_M0B}, {ql}\ns_nop 0\nbuffer_load_dwordx4 v{VQS}, {rs(R_OUT)}, s{S_QR} offen lds")
        vq.add(("X", u))
    def issueW1(j, mat):
        a(f"s_add_u32 m0, s{S_M0B}, {WL + (j % OPT['nw']) * 8192 + mat*4096}\ns_nop 0")
        a(f"buffer_load_dwordx4 v{(VGS,VUS)[mat]}, {rs((R_W0,R_W1)[mat])}, s{S_D} offen{' nt' if OPT.get('ntw') else ''} lds"); vq.add(("W", j))
        if mat:
            a(f"s_add_u32 s{S_D}, s{S_D}, {RS}")
            if j % 4 == 3: a(f"s_cmp_eq_u32 s{S_D}, s{S_WEND}\ns_cselect_b32 s{S_D}, s{S_WB}, s{S_D}")
    def setup(ql):
        finish_tag_ack(a, 20, 21); vq.add(("ack", 0))
        a(f"s_lshl_b32 s{S_T}, s{W}, 12")
        x_read_addr(a, VXR, T0, T1, T2, S_T)
        a(f"v_bfe_u32 v{T0}, v0, 2, 2\nv_lshl_add_u32 v{T0}, v{T1}, 3, v{T0}\nv_and_b32 v{T2}, 3, v0\nv_lshlrev_b32 v{T2}, 3, v{T2}")
        a(f"v_lshl_add_u32 v{VQR}, v{T0}, 6, v{T2}\nv_bfe_u32 v{T0}, v0, 4, 1\nv_lshl_add_u32 v{VQR}, v{T0}, 5, v{VQR}\nv_add_u32 v{VQR}, {ql}, v{VQR}")
        a(f"v_lshlrev_b32 v{T0}, 2, v0\nv_add_u32 v{T0}, {LDS_C}, v{T0}\nv_mov_b32 v{T1}, 0\nds_write_b32 v{T0}, v{T1}")
        a(f"v_lshlrev_b32 v{VL16}, 4, v0\nv_and_b32 v{VL4}, 31, v0\nv_lshlrev_b32 v{VL4}, 2, v{VL4}\nv_mov_b32 v{VIDX}, 0xdddddddd")
        a(f"v_add_u32 v{VLQ}, {LDS_Q}, v{VL16}\nv_lshlrev_b32 v{VRA}, 3, v0\ns_mov_b32 s{S_K0}, {WS_RECK}")
        a(f"v_bfe_u32 v{T0}, v0, 4, 1\nv_lshlrev_b32 v{VO}, 10, v{T0}\nv_and_b32 v{T0}, 32, v0\nv_lshl_add_u32 v{VO}, v{T0}, 4, v{VO}")
        a(f"v_and_b32 v{T0}, 15, v0\nv_lshl_add_u32 v{VO}, v{T0}, 4, v{VO}\nv_lshlrev_b32 v{VGO}, 2, v{T0}")
        a(f"s_lshl_b32 s{S_T}, s{W}, 11\ns_add_u32 s{S_T}, s{S_T}, {LDS_Q}\nv_add_u32 v{VQW}, s{S_T}, v{VO}")
        a(f"v_and_b32 v{T0}, 11, v0\nv_cmp_eq_u32 vcc, 0, v{T0}\nv_mov_b32 v{T0}, 0x3f803f80\ns_nop 0\nv_cndmask_b32 v{T0}, 0, v{T0}, vcc\nv_mov_b32 v{T0+1}, v{T0}")
        for t in range(16):
            for j in range(4, 8, 2): a(f"v_mov_b64 {vr(VR_+8*t+j,2)}, {vr(T0,2)}")
        zero_o()
        a(f"s_lshl_b32 s{S_T}, s{S_A}, 2\ns_add_u32 s{S_T}, s{S_T}, s{W}\ns_lshl_b32 s{S_G}, s{S_T}, 15")
        a(f"s_lshl_b32 s{S_T}, s{S_B}, 11\ns_add_u32 s{S_G}, s{S_G}, s{S_T}\ns_add_u32 s{S_G}, s{S_G}, {WS_OP}")
        a(f"s_lshl_b32 s{S_E}, s{W}, 3\ns_lshr_b32 s{S_T}, s{S_ID}, 3\ns_add_u32 s{S_E}, s{S_E}, s{S_T}")
    def zero_o():
        for j in range(0, 8, 2): a(f"v_mov_b64 {vr(OA+j,2)}, 0")
        a(f"v_mov_b32 v{OA+8}, 0")
    def qreads(j, xoff, qoff):
        b = j & 1
        a(f"ds_read_b128 {vr(XF+4*b,4)}, v{VXR + j%4} offset:{xoff}")
        a(f"ds_read_b64_tr_b16 {vr(WF+4*b,2)}, v{VQR} offset:{qoff + (j%4)*1024}\nds_read_b64_tr_b16 {vr(WF+4*b+2,2)}, v{VQR} offset:{qoff + (j%4)*1024 + 256}")
    def qmfma(j):
        b = j & 1
        a(f"v_mfma_f32_32x32x16_bf16 {vr(ACC,16)}, {vr(WF+4*b,4)}, {vr(XF+4*b,4)}, {'0' if j == 0 else vr(ACC,16)}")
    rec_loads = [f"buffer_load_dwordx2 {vr(VREC,2)}, v{VRA}, {WSR}, s{S_K0} offen sc1",
                 f"buffer_load_dwordx2 {vr(VREC+2,2)}, v{VRA}, {WSR}, s{S_K0} offen offset:512 sc1"]
    def rec_finish(looked):
        lab = a.newlabel("norec"); seen = a.newlabel("seen")
        a(f"s_cmp_lg_u32 s{W}, 0\ns_cbranch_scc1 {lab}")
        if looked is not None:
            a(f"s_waitcnt vmcnt({looked})")
            a(f"v_cmp_ne_u32 vcc, s{S_TAG}, v{VREC}\nv_cmp_ne_u32 s[{S_T+6}:{S_T+7}], s{S_TAG}, v{VREC+2}\ns_or_b64 vcc, vcc, s[{S_T+6}:{S_T+7}]\ns_cbranch_vccz {seen}")
        poll(a, rec_loads, [VREC, VREC + 2], sleep=8)
        a.label(seen)
        wave_max(a, VREC + 1)
        a(f"v_mov_b32 v{VREC}, {LDS_X + 1024}\ns_mov_b32 exec_lo, 0\ns_mov_b32 exec_hi, 0x80000000\nds_write_b32 v{VREC}, v{VREC+1}\ns_mov_b64 exec, -1")
        a.label(lab)
    def kvload(t):
        if t % 2 == 0:
            a(f"s_add_u32 s{S_T}, s{S_E}, {t//2}\ns_and_b32 s{S_T}, s{S_T}, 31\ns_lshl_b32 s{S_T}, s{S_T}, 11")
            a(f"s_add_u32 s{S_T+1}, s{S_T}, {WS_VP}\ns_add_u32 s{S_T}, s{S_T}, {WS_KP}")
        a(f"buffer_load_dwordx4 {vr(KR+4*t,4)}, v{VL16}, {WSR}, s{S_T} offen offset:{(t%2)*1024}{SC()}")
        a(f"buffer_load_dwordx4 {vr(VR_+8*t,4)}, v{VL16}, {WSR}, s{S_T+1} offen offset:{(t%2)*1024}{SC()}")
        vq.add(("KV", t), 2)
    lidle = a.newlabel("Aidle"); ljoin = a.newlabel("Ajoin")
    a(f"s_cmp_ge_u32 s{S_ID}, 224\ns_cbranch_scc1 {lidle}")
    X = lambda u, j: issueX1(u, j, XL + (u % 3) * 16384, QWL + (u % 3) * 4096)
    for j in range(5): X(0, j)
    srd(a, R_W0, S_WG, 512 * 3584); srd(a, R_W1, S_WU, 512 * 3584)
    W0 = OPT["w0"]
    nextW, nextX, xp = W0, 1, 0
    for j in range(W0):
        issueW1(j, 0); issueW1(j, 1)
        if OPT.get("xup") and j == OPT["xup"] - 1:
            for p in range(5): X(1, p)
            nextX = 2
    if OPT.get("st4") == 1: stamp(a, 4)
    setup(QWL)
    if OPT.get("st4") == 2: stamp(a, 4)
    vq.wait({("X", 0), ("W", 0)})
    if OPT.get("st4") == 3: stamp(a, 4)
    a("s_waitcnt lgkmcnt(0)")
    a("s_barrier")
    stamp(a, 1)
    qreads(0, XL, 0)
    kvt = 0
    LB = OPT["lastbar"]
    for j in range(32):
        if j < LB:
            tags = {("W", j + 1)}
            if (j + 1) % 4 == 0: tags.add(("X", (j + 1) // 4))
            assert nextW > j + 1 and ((j + 1) % 4 or nextX > (j + 1) // 4)
            vq.wait(tags)
        elif j == LB:
            assert nextW == 32 and nextX == 8
            a("s_waitcnt vmcnt(0)"); vq.q = []
        a("s_waitcnt lgkmcnt(0)")
        if j <= LB: a("s_barrier")
        qmfma(j)
        if j < 31: qreads(j + 1, XL + (((j + 1) // 4) % 3) * 16384, (((j + 1) // 4) % 3) * 4096)
        for _ in range(5 if nextX in (1, 7) else OPT["xper"]):
            if nextX < 8 and j >= 4 * (nextX - 3) + 3:
                X(nextX, xp); xp += 1
                if xp == 5: nextX += 1; xp = 0; break
        for _ in range(OPT["ramp"]):
            if nextW < 32 and nextW <= j + OPT['nw']:
                issueW1(nextW, 0); issueW1(nextW, 1); nextW += 1
        if j == OPT["look"]:
            lab = a.newlabel("nolook")
            a(f"s_cmp_lg_u32 s{W}, 0\ns_cbranch_scc1 {lab}")
            for l in rec_loads: a(l)
            a.label(lab)
        if j == LB:
            rec_finish(0)
            lsync(a, 9, 4, VREC, VREC + 1)
        if j >= LB:
            for _ in range(OPT["kvper"] if j < 31 else 16):
                if kvt < 16: kvload(kvt); kvt += 1
    a(f"v_mov_b32 v{VREC}, {LDS_C + 4*10}\nv_mov_b32 v{VREC+1}, 1\ns_mov_b64 exec, 1\nds_add_u32 v{VREC}, v{VREC+1}\ns_mov_b64 exec, -1")
    a(f"s_branch {ljoin}")
    a.label(lidle)
    vq.q = []
    a(f"s_cmp_eq_u32 s{S_B}, 14\ns_cselect_b32 s{R_W0}, s{S_WK}, s{S_WV}\ns_cselect_b32 s{R_W0+1}, s{S_WK+1}, s{S_WV+1}")
    a(f"s_movk_i32 s{R_W0+2}, 16384\ns_mov_b32 s{R_W0+3}, 0x20000\ns_mov_b32 s{S_F}, 0")
    srd(a, R_W1, S_GW, 1024)
    a(f"v_lshlrev_b32 v{VGS}, 4, v0")
    dma(a, VGS, R_W1, S_T, S_M0B, 0, IGL)
    for p in range(4): dma(a, VGS, R_W0, S_T, S_M0B, p * 4096, IEL + p * 4096)
    XI = lambda u: [issueX1(u, p, IXL + (u % 4) * 16384, IQL + (u % 4) * 4096) for p in range(5)]
    for u in range(4): XI(u)
    setup(IQL)
    for u in range(8):
        vq.wait({("X", u)})
        a("s_waitcnt lgkmcnt(0)")
        a("s_barrier")
        if u == 0: stamp(a, 1)
        if 1 <= u <= 4: XI(u + 3)
        qreads(4 * u, (u % 4) * 16384, (u % 4) * 4096)
        for ks in range(4):
            j = 4 * u + ks
            if ks < 3:
                qreads(j + 1, (u % 4) * 16384, (u % 4) * 4096); a("s_waitcnt lgkmcnt(3)")
            else: a("s_waitcnt lgkmcnt(0)")
            qmfma(j)
    rec_finish(None)
    a(f"v_mov_b32 v{VREC}, {LDS_C + 4*10}\nv_mov_b32 v{VREC+1}, 2\ns_mov_b64 exec, 1\nds_add_u32 v{VREC}, v{VREC+1}\ns_mov_b64 exec, -1")
    a("s_waitcnt lgkmcnt(0)")
    a("s_barrier")
    for t in range(16): kvload(t)
    a.label(ljoin)
    stamp(a, 2)
    a(f"s_lshl_b32 s{S_T}, s{S_A}, 2\ns_add_u32 s{S_T}, s{S_T}, s{W}\ns_lshl_b32 s{S_C}, s{S_T}, 7\ns_add_u32 s{S_C}, s{S_C}, {WS_G}")
    a("s_nop 3")
    a(f"s_mul_i32 s{S_T}, s{W}, {PART}\ns_add_u32 s{S_T}, s{S_T}, {LDS_P}")
    a(f"v_add_u32 v{VL16}, s{S_T}, v{VL16}\nv_add_u32 v{VL4}, s{S_T}, v{VL4}")
    a(f"s_lshl_b32 s{S_T}, s{W}, 8\ns_add_u32 s{S_T}, s{S_T}, {LDS_X}\nv_lshl_add_u32 v15, v0, 2, s{S_T}")
    for j in range(8): a(f"v_cvt_pk_bf16_f32 v{16+j}, v{ACC+2*j}, v{ACC+2*j+1}")
    a(f"ds_write_b128 v{VQW}, v[16:19]\nds_write_b128 v{VQW}, v[20:23] offset:256")
    a(f"v_mul_f32 v24, v{ACC}, v{ACC}\nv_mul_f32 v25, v{ACC+8}, v{ACC+8}")
    for i in range(1, 8): a(f"v_fmac_f32 v24, v{ACC+i}, v{ACC+i}\nv_fmac_f32 v25, v{ACC+8+i}, v{ACC+8+i}")
    a(f"v_mov_b32 v26, {LDS_X + 1024}\ns_nop 0\nv_permlane32_swap_b32 v24, v25\nv_add_f32 v24, v24, v25\nds_write_b32 v15, v24")
    a(f"v_lshlrev_b32 v15, 2, v0\nv_add_u32 v15, {LDS_X}, v15")
    lsync(a, 0, 4, 27, 28)
    lab = a.newlabel("ringdead")
    a(f"v_mov_b32 v27, {LDS_C + 4*10}")
    a.label(lab)
    a(f"ds_read_b32 v28, v27\ns_waitcnt lgkmcnt(0)\nv_readfirstlane_b32 s{S_T}, v28\ns_cmp_lt_u32 s{S_T}, 8\ns_cbranch_scc1 {lab}")
    a(f"ds_read_b128 {vr(QB,4)}, v{VLQ}")
    a(f"ds_read2st64_b32 v[20:21], v15 offset0:0 offset1:1\nds_read2st64_b32 v[22:23], v15 offset0:2 offset1:3\nds_read_b32 v24, v26")
    a("s_waitcnt lgkmcnt(0)")
    a("v_max3_u32 v20, v20, v21, v22\nv_max_u32 v20, v20, v23\nv_mul_f32 v20, v20, v24")
    slow = a.newlabel("slow"); red = a.newlabel("reduce")
    a(f"v_cmp_nge_f32 vcc, {f2u(float(OPT['thr'])**2):#x}, v20")
    a(f"s_setprio {OPT['prioA']}")
    a(f"s_cbranch_vccnz {slow}")
    def vfix(t):
        for j in range(4): a(f"v_permlane16_swap_b32 v{VR_+8*t+j}, v{VR_+8*t+4+j}")
    def S(t, buf, c="0"): a(f"v_mfma_f32_32x32x16_bf16 {vr(SB[buf],16)}, {vr(KR+4*t,4)}, {vr(QB,4)}, {c}")
    def PV(t, s, buf): a(f"v_smfmac_f32_32x32x32_bf16 {vr(OA,16)}, {vr(VR_+8*t+4*s,4)}, {vr(SB[buf]+8*s,8)}, v{VIDX}")
    def EX(buf, i): a(f"v_exp_f32 v{SB[buf]+i}, v{SB[buf]+i}")
    def flush(base):
        a(f"ds_write_b128 v{VL16}, {vr(OA,4)} offset:{base}")
        a(f"ds_write_b128 v{VL16}, {vr(OA+4,4)} offset:{base+1024}")
        a(f"ds_write_b32 v{VL4}, v{OA+8} offset:{base+2048}")
    a("s_waitcnt vmcnt(31)")
    stamp(a, 5)
    S(0, 0)
    a("s_nop 10")
    gl = lambda j, r: a(f"buffer_load_dword v{r}, v{VGO}, {WSR}, s{S_C} offen offset:{64*j}{SC()}")
    for q in range(8):
        for t in range(16):
            g = q * 16 + t
            cur, oth = g & 1, (g & 1) ^ 1
            nt = (t + 1) % 16
            def kv():
                if q == 0: a(f"s_waitcnt vmcnt({max(0, 29 - 2*t)})"); vfix(t)
            if t == 0:
                if q == 1: stamp(a, 6)
                if q == 4: stamp(a, 7)
                EX(cur, 0); EX(cur, 1)
                if q > 0: PV(15, 1, oth)
                EX(cur, 2); EX(cur, 3); EX(cur, 4)
                kv(); S(nt, oth)
                for i in range(5, 16): EX(cur, i)
                if q > 0:
                    flush((q - 1) * 4 * PART); zero_o()
                if q == 7: gl(0, 6); gl(1, 7)
            elif t == 1:
                EX(cur, 0); EX(cur, 1)
                PV(0, 0, oth)
                EX(cur, 2); EX(cur, 3); EX(cur, 4)
                PV(0, 1, oth)
                EX(cur, 5); EX(cur, 6); EX(cur, 7)
                kv(); S(nt, oth)
                EX(cur, 8); EX(cur, 9); EX(cur, 10)
                PV(1, 0, cur)
                for i in range(11, 16): EX(cur, i)
                a("s_nop 2")
            else:
                EX(cur, 0); EX(cur, 1)
                PV(t - 1, 1, oth)
                EX(cur, 2); EX(cur, 3); EX(cur, 4)
                if g != 127:
                    if t == 15: a("s_waitcnt lgkmcnt(0)")
                    kv(); S(nt, oth)
                EX(cur, 5); EX(cur, 6)
                if t == 14 and q < 7: a(f"ds_read_b128 {vr(QB,4)}, v{VLQ} offset:{(q+1)*1024}")
                for i in range(7, 10): EX(cur, i)
                PV(t, 0, cur)
                for i in range(10, 16): EX(cur, i)
    stamp(a, 8)
    a(f"s_setprio {OPT['prioT']}\ns_nop 0")
    PV(15, 1, 1)
    a("s_nop 11")
    flush(7 * 4 * PART)
    a.label(red)
    a(f"s_mul_i32 s{S_T}, s{W}, {2*4*PART}\ns_add_u32 s{S_T}, s{S_T}, {LDS_P}")
    a(f"v_lshl_add_u32 v{VL16}, v0, 4, s{S_T}\nv_and_b32 v{VL4}, 31, v0\nv_lshl_add_u32 v{VL4}, v{VL4}, 2, s{S_T}")
    lab = a.newlabel("marked")
    a(f"v_mov_b32 v18, {LDS_C + 4*3}")
    a.label(lab)
    a(f"ds_read_b32 v19, v18")
    lsync(a, 1, 4, 16, 17)
    stamp(a, 3)
    ok = a.newlabel("markok"); lab = a.newlabel("markw")
    a.label(lab)
    a(f"v_readfirstlane_b32 s{S_T}, v19\ns_cmp_ge_u32 s{S_T}, 4\ns_cbranch_scc1 {ok}")
    a(f"ds_read_b32 v19, v18\ns_waitcnt lgkmcnt(0)\ns_branch {lab}")
    a.label(ok)
    R = 64
    for j in range(2):
        for p in range(4):
            b = (j * 4 + p) * PART; r = R + (j * 4 + p) * 12
            a(f"ds_read_b32 v{r+8}, v{VL4} offset:{b+2048}")
        for p in range(4):
            b = (j * 4 + p) * PART; r = R + (j * 4 + p) * 12
            a(f"ds_read_b128 {vr(r,4)}, v{VL16} offset:{b}")
            a(f"ds_read_b128 {vr(r+4,4)}, v{VL16} offset:{b+1024}")
        r0 = R + j * 48
        a(f"s_waitcnt lgkmcnt(8)")
        a(f"v_add_f32 v{r0+8}, v{r0+8}, v{r0+20}\nv_add_f32 v{r0+32}, v{r0+32}, v{r0+44}\nv_add_f32 v{r0+8}, v{r0+8}, v{r0+32}")
        a(f"v_rcp_f32 v{r0+8}, v{r0+8}")
    for j in range(2):
        r0 = R + j * 48
        a("s_waitcnt vmcnt(0)" if j == 0 else "s_waitcnt lgkmcnt(0)")
        a(f"v_mul_f32 v{r0+8}, v{r0+8}, v{6+j}")
        for i in range(8): a(f"v_add_f32 v{r0+i}, v{r0+i}, v{r0+12+i}\nv_add_f32 v{r0+24+i}, v{r0+24+i}, v{r0+36+i}")
        for i in range(8): a(f"v_add_f32 v{r0+i}, v{r0+i}, v{r0+24+i}")
        for i in range(8): a(f"v_mul_f32 v{r0+i}, v{r0+i}, v{r0+8}")
        for i in range(4):
            a(f"v_cvt_pk_bf16_f32 v{r0+12+i}, v{r0+2*i}, v{r0+2*i+1}")
        a(f"buffer_store_dwordx4 {vr(r0+12,4)}, v{VO}, {WSR}, s{S_G} offen offset:{256*j} sc1")
    stamp(a, 4)
    stamp_dump(a)
    a("s_endpgm")
    a.label(slow)
    loop = a.newlabel("slowq"); spin = a.newlabel("slows")
    a("s_waitcnt vmcnt(0)")
    for t in range(16): vfix(t)
    a(f"v_lshlrev_b32 v6, 2, v0\nv_add_u32 v6, {LDS_X + 2048}, v6")
    a(f"s_lshl_b32 s{S_K1}, s{W}, 8\ns_mov_b32 s{S_K0}, 4")
    a.label(loop)
    a(f"ds_read_b128 {vr(QB,4)}, v{VLQ}\nv_add_u32 v{VLQ}, 1024, v{VLQ}")
    zero_o()
    a(f"v_mov_b32 v7, 0xff800000")
    a("s_waitcnt lgkmcnt(0)")
    for t in range(16):
        S(t, 0)
        a("s_nop 12")
        for i in range(0, 16, 2): a(f"v_max3_f32 v7, v7, v{SB[0]+i}, v{SB[0]+i+1}")
    a(f"v_mov_b32 v13, v7\ns_nop 1\nv_permlane32_swap_b32 v7, v13\nv_max_f32 v7, v7, v13")
    a(f"v_add_u32 v13, s{S_K1}, v6\nds_write_b32 v13, v7")
    a(f"v_mov_b32 v14, {LDS_C + 8}\nv_mov_b32 v15, 1\ns_mov_b64 exec, 1\nds_add_u32 v14, v15\ns_mov_b64 exec, -1")
    a.label(spin)
    a(f"ds_read_b32 v15, v14\ns_waitcnt lgkmcnt(0)\nv_readfirstlane_b32 s{S_T}, v15\ns_cmp_lt_u32 s{S_T}, s{S_K0}\ns_cbranch_scc1 {spin}")
    a(f"ds_read2st64_b32 v[14:15], v6 offset0:0 offset1:1\nds_read2st64_b32 v[16:17], v6 offset0:2 offset1:3")
    a("s_waitcnt lgkmcnt(0)")
    a("v_max3_f32 v7, v14, v15, v16\nv_max_f32 v7, v7, v17")
    for i in range(16): a(f"v_sub_f32 v{SB[1]+i}, 0, v7")
    a("s_nop 1")
    for t in range(16):
        S(t, 0, vr(SB[1], 16))
        a("s_nop 12")
        for i in range(16): EX(0, i)
        a("s_nop 1")
        PV(t, 0, 0); PV(t, 1, 0)
    a("s_nop 15")
    flush(0)
    a(f"v_add_u32 v{VL16}, {4*PART}, v{VL16}\nv_add_u32 v{VL4}, {4*PART}, v{VL4}\nv_xor_b32 v6, 1024, v6")
    a(f"s_add_u32 s{S_K0}, s{S_K0}, 4\ns_cmp_le_u32 s{S_K0}, 32\ns_cbranch_scc1 {loop}")
    gl(0, 6); gl(1, 7)
    a(f"s_branch {red}")

def ffn1(a):
    VXR, VWR = 8, 12
    T0, T1, T2 = 5, 6, 7
    lidle = a.newlabel("Fidle"); lend = a.newlabel("s1end")
    a(f"v_bfe_u32 v{T0}, v0, 4, 1\nv_lshlrev_b32 v72, 10, v{T0}\nv_and_b32 v{T0}, 32, v0\nv_lshl_add_u32 v72, v{T0}, 4, v72")
    a(f"v_and_b32 v{T0}, 15, v0\nv_lshl_add_u32 v72, v{T0}, 4, v72\nv_mov_b64 v[76:77], -1\nv_mov_b64 v[78:79], -1")
    a(f"s_lshl_b32 s{S_T}, s{S_A}, 2\ns_add_u32 s{S_T}, s{S_T}, s{W}\ns_lshl_b32 s{S_G}, s{S_T}, 15")
    a(f"s_lshl_b32 s{S_T}, s{S_B}, 11\ns_add_u32 s{S_G}, s{S_G}, s{S_T}\ns_add_u32 s{S_G}, s{S_G}, {WS_OP}")
    def sentinels():
        for j in range(2): a(f"buffer_store_dwordx4 v[76:79], v72, {WSR}, s{S_G} offen offset:{256*j} sc1")
    a(f"s_cmp_ge_u32 s{S_ID}, 224\ns_cbranch_scc1 {lidle}")
    a(f"s_and_b32 s{S_T}, s{W}, 1\ns_lshl_b32 s{S_T}, s{S_T}, 13")
    x_read_addr(a, VXR, T0, T1, T2, S_T)
    a(f"v_bfe_u32 v{T0}, v0, 2, 2\nv_bfe_u32 v{T2}, v0, 4, 1\nv_lshl_add_u32 v16, v{T1}, 3, v{T0}\nv_lshlrev_b32 v16, 8, v16")
    a(f"v_lshl_add_u32 v16, v{T2}, 12, v16\nv_and_b32 v17, 3, v0\nv_lshl_add_u32 v16, v17, 3, v16\nv_add_u32 v16, {WL}, v16")
    a(f"v_lshl_or_b32 v{T0}, v{T2}, 2, v{T0}\ns_and_b32 s{S_T}, s{W}, 2\ns_lshl_b32 s{S_T}, s{S_T}, 1\nv_xor_b32 v{T0}, s{S_T}, v{T0}")
    for jj in range(4):
        a(f"v_xor_b32 v{VWR+jj}, {jj}, v{T0}\nv_lshl_add_u32 v{VWR+jj}, v{VWR+jj}, 5, v16\nv_add_u32 v{68+jj}, 0x10000, v{VWR+jj}")
    kernarg_wait(a)
    if OPT.get("pfm"):
        a(f"s_lshl_b32 s{S_T+4}, s{S_ID}, 2\ns_add_u32 s{S_T+4}, s{S_T+4}, s{W}\nv_lshlrev_b32 v80, 4, v0")
        srd(a, R_W0, S_WG, 512 * 3584); srd(a, R_W1, S_WU, 512 * 3584)
        a(f"s_lshl_b32 s{S_T}, s{S_T+4}, 11\ns_mul_i32 s{S_T+1}, s{S_T+4}, 2560")
        for i in range(3): a(f"buffer_load_dwordx4 v[84:87], v80, {rs(R_X)}, s{S_T+1} offen offset:{1024*i}")
        for i in range(2):
            a(f"buffer_load_dwordx4 v[84:87], v80, {rs(R_W0)}, s{S_T} offen offset:{1024*i}\nbuffer_load_dwordx4 v[84:87], v80, {rs(R_W1)}, s{S_T} offen offset:{1024*i}")
    if OPT["pfx"] or OPT["pfw"]:
        a(f"s_lshr_b32 s{S_T+4}, s{S_ID}, 3\ns_lshl_b32 s{S_T+4}, s{S_T+4}, 2\ns_add_u32 s{S_T+4}, s{S_T+4}, s{W}\nv_lshlrev_b32 v80, 4, v0")
        if OPT.get("pfd"): a(f"s_sleep {OPT['pfd']}")
        if OPT["pfx"]:
            a(f"s_and_b32 s{S_T}, s{S_ID}, 1\ns_lshl_b32 s{S_T}, s{S_T}, 20\ns_mul_i32 s{S_T+1}, s{S_T+4}, {9*1024}\ns_add_u32 s{S_T}, s{S_T}, s{S_T+1}")
            for i in range(9):
                a(f"buffer_load_dwordx4 v[84:87], v80, {rs(R_X)}, s{S_T} offen\ns_add_u32 s{S_T}, s{S_T}, 1024")
        if OPT["pfw"]:
            srd(a, R_W0, S_WG, 512 * 3584); srd(a, R_W1, S_WU, 512 * 3584)
            a(f"s_bfe_u32 s{S_T}, s{S_ID}, 0x20001\ns_mul_i32 s{S_T}, s{S_T}, 28\ns_lshr_b32 s{S_T}, s{S_T}, 3\ns_lshl_b32 s{S_T}, s{S_T}, 8")
            a(f"s_mul_i32 s{S_T+1}, s{S_T+4}, 3584\ns_add_u32 s{S_T}, s{S_T}, s{S_T+1}")
            for i in range(5):
                a(f"buffer_load_dwordx4 v[84:87], v80, {rs(R_W0)}, s{S_T} offen\nbuffer_load_dwordx4 v[84:87], v80, {rs(R_W1)}, s{S_T} offen\ns_add_u32 s{S_T}, s{S_T}, {112*3584}")
    finish_tag_ack(a, 64, 65)
    ACC = 128
    FX = (16, 40); FW = (24, 48)
    def rd_list(j):
        b = j & 1
        xs = XL + ((j // 4) % 3) * 16384; sl = j % OPT["nw"]; wsl = (sl % 8) * 8192; wr = VWR if sl < 8 else 68
        X = [f"ds_read_b128 {vr(FX[b]+4*m,4)}, v{VXR + j%4} offset:{xs + m*4096}" for m in range(2)]
        Wl = [f"ds_read_b64_tr_b16 {vr(FW[b]+4*jj+2*hf,2)}, v{wr+jj} offset:{wsl + hf*1024}" for jj in range(4) for hf in range(2)]
        return [X[0], Wl[0], Wl[1], X[1]] + Wl[2:]
    a("s_barrier")
    stamp(a, 1)
    for l in rd_list(0): a(l)
    for j in range(32):
        b = j & 1
        if OPT.get("fst") and j in (4, 8, 16, 24): stamp(a, {4: 5, 8: 6, 16: 7, 24: 8}[j], True)
        a("s_waitcnt lgkmcnt(0)")
        BP = OPT["barpos"]
        if BP == 0 and j <= OPT["lastbar"]: a("s_barrier")
        if j == 31: a(f"v_mov_b32 v2, {LDS_C + 4*10}\nv_mov_b32 v3, 1\ns_mov_b64 exec, 1\nds_add_u32 v2, v3\ns_mov_b64 exec, -1")
        rl = rd_list(j + 1) if j < 31 else []
        for n in range(8):
            jj, m = n // 2, n % 2
            acc = ACC + 16 * n
            a(f"v_mfma_f32_32x32x16_bf16 {vr(acc,16)}, {vr(FW[b]+4*jj,4)}, {vr(FX[b]+4*m,4)}, {'0' if j == 0 else vr(acc,16)}")
            if n == BP - 1: a("s_barrier")
            if n >= BP - 1:
                for _ in range(2 if BP < 3 else 3):
                    if rl: a(rl.pop(0))
        assert not rl
        if j == OPT["sentat"]: sentinels()
    stamp(a, 2)
    a(f"v_lshlrev_b32 v2, 4, v0")
    a(f"s_lshl_b32 s{S_T}, s{S_A}, 2\ns_and_b32 s{S_T+1}, s{W}, 1\ns_lshl_b32 s{S_T+1}, s{S_T+1}, 1\ns_add_u32 s{S_T}, s{S_T}, s{S_T+1}")
    a(f"s_setprio {OPT['prioG']}")
    c0 = -2.0 * LOG2E * math.sqrt(2.0 / math.pi); c1 = c0 * 0.044715
    a(f"s_mov_b32 s{S_K2}, {f2u(c1):#x}\ns_mov_b32 s{S_K2+1}, {f2u(c1):#x}")
    a(f"v_mov_b32 v4, {f2u(c0):#x}\nv_mov_b32 v5, {f2u(c0):#x}")
    a(f"s_mul_i32 s{S_T}, s{S_T}, 112\ns_lshl_b32 s{S_T+1}, s{S_B}, 3\ns_add_u32 s{S_T}, s{S_T}, s{S_T+1}")
    a(f"s_and_b32 s{S_T+1}, s{W}, 2\ns_lshl_b32 s{S_T+1}, s{S_T+1}, 1\ns_add_u32 s{S_T}, s{S_T}, s{S_T+1}\ns_lshl_b32 s{S_T}, s{S_T}, 10")
    a(f"s_add_u32 s{S_E}, s{S_T}, {WS_HP}\ns_add_u32 s{S_F}, s{S_E}, {112*1024}")
    for jj in range(4):
        A2 = [ACC + 32 * jj, ACC + 32 * jj + 16]
        TT = [16 + 24 * (jj & 1), 16 + 24 * (jj & 1) + 12]
        P2 = [(A2[m] + i, TT[m] + i) for m in range(2) for i in range(0, 8, 2)]
        if OPT.get("nopk"):
            P1 = [(A2[m] + i, TT[m] + i) for m in range(2) for i in range(8)]
            for g_, t_ in P1: a(f"v_mul_f32 v{t_}, v{g_}, v{g_}")
            for g_, t_ in P1: a(f"v_fma_f32 v{t_}, v{t_}, s{S_K2}, v4")
            for g_, t_ in P1: a(f"v_mul_f32 v{t_}, v{t_}, v{g_}")
            for g_, t_ in P1: a(f"v_exp_f32 v{t_}, v{t_}")
            for g_, t_ in P1: a(f"v_mul_f32 v{g_}, v{g_}, v{g_+8}")
            for g_, t_ in P1: a(f"v_add_f32 v{t_}, 1.0, v{t_}")
            for g_, t_ in P1: a(f"v_rcp_f32 v{t_}, v{t_}")
            for g_, t_ in P1: a(f"v_mul_f32 v{g_}, v{g_}, v{t_}")
        else:
            for g_, t_ in P2: a(f"v_pk_mul_f32 {vr(t_,2)}, {vr(g_,2)}, {vr(g_,2)}")
            for g_, t_ in P2: a(f"v_pk_fma_f32 {vr(t_,2)}, {vr(t_,2)}, s[{S_K2}:{S_K2+1}], v[4:5]")
            for g_, t_ in P2: a(f"v_pk_mul_f32 {vr(t_,2)}, {vr(t_,2)}, {vr(g_,2)}")
            for g_, t_ in P2: a(f"v_exp_f32 v{t_}, v{t_}\nv_exp_f32 v{t_+1}, v{t_+1}")
            for g_, t_ in P2: a(f"v_pk_mul_f32 {vr(g_,2)}, {vr(g_,2)}, {vr(g_+8,2)}")
            for g_, t_ in P2: a(f"v_pk_add_f32 {vr(t_,2)}, {vr(t_,2)}, 1.0 op_sel_hi:[1,0]")
            for g_, t_ in P2: a(f"v_rcp_f32 v{t_}, v{t_}\nv_rcp_f32 v{t_+1}, v{t_+1}")
            a("s_nop 0")
            for g_, t_ in P2: a(f"v_pk_mul_f32 {vr(g_,2)}, {vr(g_,2)}, {vr(t_,2)}")
        for m in range(2):
            for i in range(4): a(f"v_cvt_pk_bf16_f32 v{TT[m]+8+i}, v{A2[m]+2*i}, v{A2[m]+2*i+1}")
            a(f"buffer_store_dwordx4 {vr(TT[m]+8,4)}, v2, {WSR}, s{S_E if m == 0 else S_F} offen offset:{jj*1024} sc1")
    a(f"s_lshl_b32 s{S_T}, s{S_A}, 11\ns_lshl_b32 s{S_T+1}, s{S_B}, 7\ns_add_u32 s{S_T}, s{S_T}, s{S_T+1}\ns_add_u32 s{S_T}, s{S_T}, {WS_FLH}")
    stamp(a, 3)
    a("s_waitcnt vmcnt(0)")
    lsync(a, 3, 4, 6, 7, OPT['lsl'])
    lab = a.newlabel("ringdead")
    a(f"v_mov_b32 v6, {LDS_C + 4*10}")
    a.label(lab)
    a(f"ds_read_b32 v7, v6\ns_waitcnt lgkmcnt(0)\nv_readfirstlane_b32 s{S_T+10}, v7\ns_cmp_lt_u32 s{S_T+10}, 8\ns_cbranch_scc1 {lab}")
    stamp(a, 4)
    a(f"s_cmp_lg_u32 s{W}, 0\ns_cbranch_scc1 {lend}")
    a(f"s_mov_b64 exec, 1\nbuffer_store_dword v64, v65, {WSR}, s{S_T} offen sc1\ns_mov_b64 exec, -1")
    a(f"s_branch {lend}")
    a.label(lidle)
    VER, VGR, VLIN = 12, 13, 4
    a(f"s_lshl_b32 s{S_T}, s{W}, 12")
    x_read_addr(a, VXR, T0, T1, T2, S_T)
    a(f"v_bfe_u32 v{T0}, v0, 2, 2\nv_lshl_add_u32 v{T0}, v{T1}, 3, v{T0}\nv_and_b32 v{T2}, 3, v0\nv_lshlrev_b32 v{T2}, 3, v{T2}")
    a(f"v_lshl_add_u32 v{VER}, v{T0}, 5, v{T2}\nv_add_u32 v{VER}, {IEL}, v{VER}\nv_lshlrev_b32 v{VGR}, 4, v{T1}\nv_add_u32 v{VGR}, {IGL}, v{VGR}")
    a(f"v_lshlrev_b32 v{VLIN}, 4, v0\ns_lshl_b32 s{S_F}, s{S_A}, 2\ns_add_u32 s{S_F}, s{S_F}, s{W}   ; tt")
    kernarg_wait(a)
    finish_tag_ack(a, 64, 65)
    lv = a.newlabel("FV"); pub = a.newlabel("Fpub")
    ACK, ACG, XF, EF, GF, P = 32, 48, 16, 24, 88, 80
    sentinels()
    a(f"s_cmp_eq_u32 s{S_B}, 15\ns_cbranch_scc1 {lv}")
    for v in "KV":
        if v == "V": a.label(lv)
        def reads(j):
            b = j & 1; u = j // 4
            a(f"ds_read_b128 {vr(XF+4*b,4)}, v{VXR + j%4} offset:{(u%4)*16384}")
            a(f"ds_read_b64_tr_b16 {vr(EF+4*b,2)}, v{VER} offset:{j*512}\nds_read_b64_tr_b16 {vr(EF+4*b+2,2)}, v{VER} offset:{j*512 + 128}")
            if v == "K": a(f"ds_read_b128 {vr(GF+4*b,4)}, v{VGR} offset:{j*32}")
        for u in range(8):
            a("s_barrier")
            reads(4 * u)
            for ks in range(4):
                j = 4 * u + ks; b = j & 1
                if ks < 3: reads(j + 1); a(f"s_waitcnt lgkmcnt({4 if v == 'K' else 3})")
                else: a("s_waitcnt lgkmcnt(0)")
                cc = (lambda r: "0") if j == 0 else (lambda r: vr(r, 16))
                if v == "K":
                    a(f"v_mfma_f32_32x32x16_bf16 {vr(ACK,16)}, {vr(EF+4*b,4)}, {vr(XF+4*b,4)}, {cc(ACK)}")
                    a(f"v_mfma_f32_32x32x16_bf16 {vr(ACG,16)}, {vr(GF+4*b,4)}, {vr(XF+4*b,4)}, {cc(ACG)}")
                else:
                    a(f"v_mfma_f32_32x32x16_bf16 {vr(ACK,16)}, {vr(XF+4*b,4)}, {vr(EF+4*b,4)}, {cc(ACK)}")
        stamp(a, 2)
        a("s_nop 15")
        if v == "K":
            for j in range(8): a(f"v_mul_f32 v{ACK+j}, {f2u(0.25*LOG2E):#x}, v{ACK+j}")
            for j in range(4): a(f"v_cvt_pk_bf16_f32 v{P+j}, v{ACK+2*j}, v{ACK+2*j+1}")
            a(f"v_and_b32 v{T1}, 0x33, v0\nv_bfe_u32 v{T2}, v0, 2, 1\nv_lshl_or_b32 v{T1}, v{T2}, 3, v{T1}")
            a(f"v_bfe_u32 v{T2}, v0, 3, 1\nv_lshl_or_b32 v{T1}, v{T2}, 2, v{T1}\nv_lshlrev_b32 v{T1}, 4, v{T1}")
            a(f"s_lshl_b32 s{S_T}, s{S_F}, 10\ns_add_u32 s{S_T}, s{S_T}, {WS_KP}")
            a(f"buffer_store_dwordx4 {vr(P,4)}, v{T1}, {WSR}, s{S_T} offen sc1")
            a(f"v_mul_f32 v20, {f2u(-LOG2E):#x}, v{ACG}\nv_exp_f32 v20, v20\nv_and_b32 v21, 31, v0")
            a(f"v_add_f32 v20, 1.0, v20\nv_rcp_f32 v20, v20\nv_lshlrev_b32 v21, 2, v21")
            a(f"s_lshl_b32 s{S_T}, s{S_F}, 7\ns_add_u32 s{S_T}, s{S_T}, {WS_G}")
            a(f"buffer_store_dword v20, v21, {WSR}, s{S_T} offen sc1")
            a(f"v_mul_f32 v{T0}, v{ACK}, v{ACK}")
            for j in range(1, 8): a(f"v_fmac_f32 v{T0}, v{ACK+j}, v{ACK+j}")
            a(f"v_mov_b32 v67, v{T0}\ns_nop 1\nv_permlane32_swap_b32 v{T0}, v67\nv_add_f32 v67, v{T0}, v67")
            wave_max(a, 67)
            a(f"s_mov_b32 s{S_T+1}, {WS_RECK}")
            a(f"s_branch {pub}")
        else:
            for j in range(8): a(f"v_cvt_pk_bf16_f32 v{P+j}, v{ACK+2*j}, v{ACK+2*j+1}")
            a(f"v_and_b32 v{T1}, 16, v0\nv_cmp_ne_u32 vcc, 0, v{T1}")
            a(f"s_lshl_b32 s{S_T}, s{S_F}, 10\ns_add_u32 s{S_T}, s{S_T}, {WS_VP}")
            for j in range(4): a(f"v_cndmask_b32 v{P+j}, v{P+j}, v{P+4+j}, vcc")
            a(f"buffer_store_dwordx4 {vr(P,4)}, v{VLIN}, {WSR}, s{S_T} offen sc1")
            a(f"s_mov_b32 s{S_T+1}, {WS_RECK + 512}\nv_mov_b32 v67, 0")
    a.label(pub)
    a(f"s_lshl_b32 s{S_T}, s{S_F}, 3\ns_add_u32 s{S_T+1}, s{S_T+1}, s{S_T}\nv_mov_b32 v66, s{S_TAG}")
    a("s_mov_b32 exec_lo, 0\ns_mov_b32 exec_hi, 0x80000000\ns_waitcnt vmcnt(0)")
    stamp(a, 3)
    a(f"buffer_store_dwordx2 v[66:67], v65, {WSR}, s{S_T+1} offen sc1\ns_mov_b64 exec, 1")
    a(f"v_mov_b32 v6, {LDS_C + 4*3}\nv_mov_b32 v7, 1\nds_add_u32 v6, v7\ns_mov_b64 exec, -1")
    a("s_barrier")
    epoch_update(a)
    a.label(lend)

def epoch_update(a):
    lab = a.newlabel("noepoch")
    a(f"s_cmp_lg_u32 s{S_ID}, 224\ns_cbranch_scc1 {lab}\ns_cmp_lg_u32 s{W}, 1\ns_cbranch_scc1 {lab}")
    a(f"v_lshlrev_b32 v2, 4, v0\ns_mov_b32 s{S_T+6}, {WS_ACK}\ns_mov_b32 s{S_T+7}, {WS_ACK+4096}")
    loads, regs = [], []
    for i in range(8):
        loads.append(f"buffer_load_dwordx4 {vr(16+4*i,4)}, v2, {WSR}, s{S_T+6+i//4} offen offset:{(i%4)*1024} sc1")
        regs += [16 + 4*i + j for j in range(4)]
    poll(a, loads, regs, sleep=64)
    a(f"s_mov_b64 exec, 1\nbuffer_store_dword v64, v65, {WSR}, 0 offen offset:{WS_EPOCH} sc1\ns_mov_b64 exec, -1")
    a.label(lab)

def ffn2(a):
    a(f"s_and_b32 s{S_T}, s{S_ID}, 1\ns_lshl_b32 s{S_T}, s{S_T}, 4\ns_and_b32 s{S_T+1}, s{S_ID}, 2\ns_lshl_b32 s{S_T+1}, s{S_T+1}, 2")
    a(f"s_add_u32 s{S_T}, s{S_T}, s{S_T+1}\ns_bfe_u32 s{S_T+1}, s{S_ID}, 0x30003\ns_add_u32 s{S_A}, s{S_T}, s{S_T+1}   ; tb64")
    a(f"s_and_b32 s{S_T}, s{S_ID}, 4\ns_lshr_b32 s{S_T+1}, s{S_ID}, 6\ns_add_u32 s{S_B}, s{S_T}, s{S_T+1}   ; cb")
    srd(a, R_W0, S_WD, 1792 * 1024); srd(a, R_W1, S_WO, 512 * 1024); srd(a, R_OUT, S_OUT, 2048 * 1024)
    VWS, VLIN, VR0, VR1, VG = 2, 3, 4, 5, 6
    T0, T1, T2 = 8, 9, 10
    a(f"v_lshrrev_b32 v{T0}, 3, v0\nv_and_b32 v{T1}, 7, v0\nv_bfe_u32 v{T2}, v0, 4, 1\nv_lshlrev_b32 v{T2}, 2, v{T2}")
    a(f"v_xor_b32 v{VWS}, v{T2}, v{T1}\nv_lshlrev_b32 v{VWS}, 4, v{VWS}\nv_lshl_add_u32 v{VWS}, v{T0}, 10, v{VWS}")
    a(f"v_lshlrev_b32 v{VLIN}, 4, v0")
    a(f"v_lshrrev_b32 v{T1}, 5, v0\nv_bfe_u32 v{T0}, v0, 2, 2\nv_lshl_add_u32 v{T0}, v{T1}, 2, v{T0}\nv_and_b32 v{T2}, 3, v0")
    a(f"v_lshlrev_b32 v{T2}, 3, v{T2}\nv_lshl_add_u32 v{VR0}, v{T0}, 7, v{T2}\nv_bfe_u32 v{T0}, v0, 4, 1\nv_bfe_u32 v{T2}, v0, 3, 1")
    a(f"v_lshl_or_b32 v{T0}, v{T2}, 1, v{T0}\nv_xor_b32 v{T2}, 2, v{T0}")
    a(f"v_lshl_add_u32 v{VR1}, v{T2}, 5, v{VR0}\nv_lshl_add_u32 v{VR0}, v{T0}, 5, v{VR0}")
    a(f"s_mul_i32 s{S_M0B}, s{W}, 20480")
    a(f"v_add_u32 v{VR0}, s{S_M0B}, v{VR0}\nv_add_u32 v{VR1}, s{S_M0B}, v{VR1}")
    a(f"s_lshl_b32 s{S_T}, s{S_B}, 7\ns_lshl_b32 s{S_C}, s{W}, 14\ns_add_u32 s{S_C}, s{S_C}, s{S_T}")
    a(f"s_mul_i32 s{S_D}, s{S_A}, {2*112*1024}\ns_lshl_b32 s{S_T}, s{W}, 10\ns_add_u32 s{S_D}, s{S_D}, s{S_T}")
    a(f"s_add_u32 s{S_D}, s{S_D}, {WS_HP}\ns_add_u32 s{S_E}, s{S_D}, {112*1024}")
    a(f"s_lshl_b32 s{S_T}, s{S_B}, 1\ns_add_u32 s{S_T}, s{S_T}, s{S_A}\ns_and_b32 s{S_T}, s{S_T}, {OPT['rot2']}")
    a(f"s_mul_i32 s{S_T}, s{S_T}, 7\ns_lshr_b32 s{S_T}, s{S_T}, 1\ns_lshl_b32 s{S_K2}, s{S_T}, 16\ns_lshl_b32 s{S_K3}, s{S_T}, 12")
    ACC, HF, FW = 64, 128, (16, 24)
    NS, D = 28, 8
    q = []
    def issueW(n):
        a(f"s_add_u32 s{S_T+1}, s{S_C}, s{S_K2}")
        for p in range(2):
            dma(a, VWS, R_W0, S_T, S_T + 1, p * 8192, (n % D) * 2048 + p * 1024); q.append(("W", n))
        a(f"s_add_u32 s{S_K2}, s{S_K2}, 65536\ns_cmp_eq_u32 s{S_K2}, {28*65536}\ns_cselect_b32 s{S_K2}, 0, s{S_K2}")
    def issueWo(n):
        for p in range(2):
            dma(a, VWS, R_W1, S_T, S_G, (n - NS) * 16384 + p * 8192, (n % D) * 2048 + p * 1024); q.append(("W", n))
    def issueH(n):
        a(f"s_add_u32 s{S_T}, s{S_D}, s{S_K3}\ns_add_u32 s{S_T+1}, s{S_E}, s{S_K3}")
        a(f"s_add_u32 s{S_K3}, s{S_K3}, 4096\ns_cmp_eq_u32 s{S_K3}, {28*4096}\ns_cselect_b32 s{S_K3}, 0, s{S_K3}")
        a(f"buffer_load_dwordx4 {vr(HF+(n%D)*8,4)}, v{VLIN}, {WSR}, s{S_T} offen{SC()}"); q.append(("H", n))
        a(f"buffer_load_dwordx4 {vr(HF+(n%D)*8+4,4)}, v{VLIN}, {WSR}, s{S_T+1} offen{SC()}"); q.append(("H", n))
    def waitfor(tags):
        idx = max((i for i, t in enumerate(q) if t in tags), default=-1)
        n = len(q) - 1 - idx
        del q[:idx + 1]
        a(f"s_waitcnt vmcnt({n})")
    def rd_list(n):
        b = n & 1
        return [f"ds_read_b64_tr_b16 {vr(FW[b]+4*ct+2*hf,2)}, v{(VR0,VR1)[ct]} offset:{(n%D)*2048 + hf*1024}" for ct in range(2) for hf in range(2)]
    a(f"s_lshl_b32 s{S_G}, s{W}, 17\ns_lshl_b32 s{S_T}, s{S_B}, 7\ns_add_u32 s{S_G}, s{S_G}, s{S_T}")
    for n in range(OPT.get("wpre", 2)): issueW(n)
    lab = a.newlabel("nopoll")
    a(f"s_cmp_lg_u32 s{W}, 0\ns_cbranch_scc1 {lab}")
    a(f"s_lshr_b32 s{S_T+4}, s{S_A}, 1\ns_lshl_b32 s{S_T+4}, s{S_T+4}, 11\ns_add_u32 s{S_T+4}, s{S_T+4}, {WS_FLH}")
    a(f"s_lshl_b32 s{S_T+5}, s{S_A}, 4\ns_add_u32 s{S_T+5}, s{S_T+5}, {WS_RECK}")
    a(f"v_lshlrev_b32 v11, 7, v0\nv_add_u32 v11, s{S_T+4}, v11\nv_and_b32 v12, 1, v0\nv_lshlrev_b32 v12, 3, v12\nv_add_u32 v12, s{S_T+5}, v12")
    a(f"v_and_b32 v13, 32, v0\nv_lshl_add_u32 v12, v13, 4, v12")
    a(f"v_cmp_gt_u32 vcc, 14, v0\ns_nop 1\nv_cndmask_b32 v11, v12, v11, vcc")
    poll(a, [f"buffer_load_dword v13, v11, {WSR}, 0 offen sc1"], [13], sleep=12)
    a.label(lab)
    a("s_waitcnt vmcnt(0)")
    lsync(a, 4, 4, 11, 12, 4 * OPT['lsl'])
    q.clear()
    stamp(a, 5)
    a(f"s_setprio {OPT['prioD']}")
    for n in range(D):
        if n >= OPT.get("wpre", 2): issueW(n)
        issueH(n)
    a(f"s_lshl_b32 s{S_T}, s{S_A}, 8\ns_add_u32 s{S_T}, s{S_T}, {WS_G}\nv_and_b32 v{T0}, 31, v0\nv_lshlrev_b32 v{T0}, 2, v{T0}")
    for m in range(2):
        a(f"buffer_load_dword v{VG+m}, v{T0}, {WSR}, s{S_T} offen offset:{128*m}{SC()}"); q.append(("G", 0))
    waitfor({("W", 0)})
    for l in rd_list(0): a(l)
    def step(n, bsrc, extra=None):
        b = n & 1
        rl = rd_list(n + 1) if n + 1 < NS + 8 else []
        for k in range(4):
            ct, m = k // 2, k % 2
            acc = ACC + 16 * k
            c = "0" if n == 0 else vr(acc, 16)
            a(f"v_mfma_f32_32x32x16_bf16 {vr(acc,16)}, {vr(FW[b]+4*ct,4)}, {vr(bsrc+4*m,4)}, {c}")
            for _ in range(2):
                if rl: a(rl.pop(0))
            if k == 2 and extra: extra()
            if OPT.get("space") and k != 2: a(f"s_nop {OPT['space']}")
    a(f"s_lshl_b32 s{S_F}, s{S_A}, 16\ns_lshl_b32 s{S_T}, s{W}, 13\ns_add_u32 s{S_F}, s{S_F}, s{S_T}\ns_add_u32 s{S_F}, s{S_F}, {WS_OP}")
    a(f"v_and_b32 v11, 3, v0\nv_lshlrev_b32 v11, 11, v11\nv_and_b32 v12, 4, v0\nv_lshl_add_u32 v11, v12, 13, v11")
    a(f"v_lshl_add_u32 v{T0}, v0, 4, s{S_M0B}")
    a(f"v_lshlrev_b32 v{T1}, 4, v0\ns_lshl_b32 s{S_T}, s{W}, 12\nv_add_u32 v{T1}, s{S_T}, v{T1}")
    a(f"v_and_b32 v{T2}, 31, v0\nv_lshlrev_b32 v{T2}, 10, v{T2}\nv_and_b32 v12, 32, v0\nv_lshrrev_b32 v12, 1, v12\nv_add_u32 v{T2}, v{T2}, v12")
    a(f"s_lshl_b32 s{S_K0}, s{S_A}, 16\ns_lshl_b32 s{S_T+1}, s{S_B}, 7\ns_add_u32 s{S_K0}, s{S_K0}, s{S_T+1}")
    a(f"s_and_b32 s{S_T+1}, s{W}, 1\ns_lshl_b32 s{S_T+1}, s{S_T+1}, 15\ns_add_u32 s{S_K0}, s{S_K0}, s{S_T+1}")
    a(f"s_and_b32 s{S_T+1}, s{W}, 2\ns_lshl_b32 s{S_T+1}, s{S_T+1}, 5\ns_add_u32 s{S_K0}, s{S_K0}, s{S_T+1}")
    HOLD = OPT["hold"]; NF = NS - HOLD; R_ = HOLD - 8
    assert 8 <= HOLD <= 16
    WX, HX, NSL = 192, 32, 10
    def mm(n, wsrc, bsrc, rl=(), extra=None, dst=None, src=None):
        rl = list(rl)
        for k in range(4):
            ct, m = k // 2, k % 2
            acc = ACC + 16 * k
            d_ = (dst or ACC) + 16 * k; c_ = (src or dst or ACC) + 16 * k
            a(f"v_mfma_f32_32x32x16_bf16 {vr(d_,16)}, {vr(wsrc+4*ct,4)}, {vr(bsrc+4*m,4)}, {'0' if n == 0 else vr(c_,16)}")
            for _ in range(2):
                if rl: a(rl.pop(0))
            if k == 2 and extra: extra()
    def rd(dst, slot): return [f"ds_read_b64_tr_b16 {vr(dst+4*ct+2*hf,2)}, v{(VR0,VR1)[ct]} offset:{slot*2048 + hf*1024}" for ct in range(2) for hf in range(2)]
    def wo_dma(j, slot):
        for p in range(2): dma(a, VWS, R_W1, S_T, S_G, j * 16384 + p * 8192, slot * 2048 + p * 1024); q.append(("O", j))
    def h_load(dst, tag):
        a(f"s_add_u32 s{S_T}, s{S_D}, s{S_K3}\ns_add_u32 s{S_T+1}, s{S_E}, s{S_K3}")
        a(f"s_add_u32 s{S_K3}, s{S_K3}, 4096\ns_cmp_eq_u32 s{S_K3}, {28*4096}\ns_cselect_b32 s{S_K3}, 0, s{S_K3}")
        a(f"buffer_load_dwordx4 {vr(dst,4)}, v{VLIN}, {WSR}, s{S_T} offen{SC()}\nbuffer_load_dwordx4 {vr(dst+4,4)}, v{VLIN}, {WSR}, s{S_T+1} offen{SC()}")
        q.append(tag); q.append(tag)
    for n in range(NF):
        waitfor({("H", n), ("W", n + 1)})
        a("s_waitcnt lgkmcnt(0)")
        mm(n, FW[n & 1], HF + (n % D) * 8, rd(FW[(n + 1) & 1], (n + 1) % D) if n + 1 < NF else [], lambda: issueW(n + D))
        issueH(n + D)
    a("s_waitcnt vmcnt(0)"); q.clear()
    for i in range(8):
        for l in rd(WX + 8 * i, (NF + i) % D): a(l)
        if i % 3 == 2: a("s_waitcnt lgkmcnt(4)")
    a("s_waitcnt lgkmcnt(0)")
    for i in range(R_):
        a(f"s_add_u32 s{S_T+1}, s{S_C}, s{S_K2}")
        for p in range(2): dma(a, VWS, R_W0, S_T, S_T + 1, p * 8192, i * 2048 + p * 1024)
        a(f"s_add_u32 s{S_K2}, s{S_K2}, 65536\ns_cmp_eq_u32 s{S_K2}, {28*65536}\ns_cselect_b32 s{S_K2}, 0, s{S_K2}")
        if i < 4: h_load(HX + 8 * i, ("h", i))
    NPRE = min(8, NSL - R_)
    oslot = lambda j: R_ + j if j < NPRE else j - NPRE
    for j in range(NPRE): wo_dma(j, oslot(j))
    a("s_waitcnt vmcnt(0)"); q.clear()
    A1 = list(range(min(R_, 4))); A2 = list(range(4, R_))
    ringseq = A1 + A2 + [oslot(0)]
    for l in rd(FW[0], ringseq[0]): a(l)
    stamp(a, 6)
    lab = a.newlabel("hold")
    a(f"v_mov_b32 v12, {LDS_C + 4*1}")
    a.label(lab)
    a(f"s_sleep 2\nds_read_b32 v13, v12\ns_waitcnt lgkmcnt(0)\nv_readfirstlane_b32 s{S_T+10}, v13\ns_cmp_lt_u32 s{S_T+10}, {OPT.get('holdn', 1)}\ns_cbranch_scc1 {lab}")
    a(f"s_setprio {OPT['prioG']}")
    def free_slot(i):
        if NPRE + i < 8: wo_dma(NPRE + i, i)
    for i in A1:
        a("s_waitcnt lgkmcnt(0)")
        mm(1, FW[i & 1], HX + 8 * i, rd(FW[(i + 1) & 1], ringseq[i + 1]))
        if i + 4 < R_: h_load(HX + 8 * i, ("h", i + 4))
    for i in range(8): mm(1, WX + 8 * i, HF + ((NF + i) % D) * 8, extra=(lambda: free_slot(i)) if i in A1 else None)
    for i in A2:
        waitfor({("h", i)})
        a("s_waitcnt lgkmcnt(0)")
        mm(1, FW[i & 1], HX + 8 * (i - 4), rd(FW[(i + 1) & 1], ringseq[i + 1]), lambda: free_slot(i))
    a(f"v_sub_f32 v{VG}, 1.0, v{VG}\nv_sub_f32 v{VG+1}, 1.0, v{VG+1}")
    a(f"s_add_u32 s{S_D}, s{S_F}, 4096\ns_add_u32 s{S_E}, s{S_F}, 32768\ns_add_u32 s{S_C}, s{S_E}, 4096")
    a("s_nop 7")
    for k in range(4):
        for i in range(0, 16, 2):
            sel = "op_sel:[0,0] op_sel_hi:[1,0]" if k % 2 == 0 else "op_sel:[0,1] op_sel_hi:[1,1]"
            a(f"v_pk_mul_f32 {vr(ACC+16*k+i,2)}, {vr(ACC+16*k+i,2)}, {vr(VG,2)} {sel}")
    stamp(a, 7)
    again = a.newlabel("oagain"); ok = a.newlabel("ook"); fin = a.newlabel("ofin")
    a(f"s_mov_b32 s{S_T+10}, 0x40000")
    a.label(again)
    a(f"buffer_load_dword v13, v11, {WSR}, s{S_F} offen offset:2044 sc1")
    a(f"s_sub_u32 s{S_T+10}, s{S_T+10}, 1")
    a(f"s_waitcnt vmcnt(0)\nv_cmp_eq_u32 vcc, -1, v13\ns_cbranch_vccz {ok}")
    a(f"s_mov_b64 exec, vcc\ns_sleep 1\ns_cmp_gt_i32 s{S_T+10}, 0\ns_cbranch_scc1 {again}")
    a.label(ok)
    a("s_mov_b64 exec, -1")
    q.clear()
    stamp(a, 8)
    for j in range(8):
        for m in range(2):
            sreg = (S_F, S_E, S_D, S_C)[m + 2 * (j // 4)]
            a(f"buffer_load_dwordx4 {vr(HF+8*j+4*m,4)}, v{VLIN}, {WSR}, s{sreg} offen offset:{(j%4)*1024} sc1")
    a("v_mov_b32 v12, 0")
    for j in range(8):
        a(f"s_waitcnt vmcnt({14 - 2*j}) lgkmcnt(0)")
        chk = [f"v_max3_u32 v12, v12, v{HF+8*j+2*i}, v{HF+8*j+2*i+1}" for i in range(4)]
        rl = rd(FW[(R_ + j + 1) & 1], oslot(j + 1)) if j < 7 else []
        mm(1, FW[(R_ + j) & 1], HF + 8 * j, [x for p in zip(rl or chk, chk) for x in p] if rl else chk, dst=WX, src=ACC if j == 0 else WX)
    a(f"v_cmp_eq_u32 vcc, -1, v12\ns_cbranch_vccz {fin}")
    a(f"s_cmp_le_i32 s{S_T+10}, 0\ns_cbranch_scc1 {fin}")
    for l in rd(FW[R_ & 1], oslot(0)): a(l)
    a(f"s_branch {again}")
    a.label(fin)
    stamp(a, 9)
    RB = 128
    for w in range(4):
        lab = a.newlabel("red")
        if w < 3: a(f"s_cmp_lg_u32 s{W}, {w}\ns_cbranch_scc1 {lab}")
        a("s_nop 7")
        others = [d for d in range(4) if d != w]
        for d in others:
            for i in range(4): a(f"ds_write_b128 v{T0}, {vr(WX+16*d+4*i,4)} offset:{d*4096 + i*1024}")
        lsync(a, 5, 4, 11, 12)
        for k, d in enumerate(others):
            for i in range(4): a(f"ds_read_b128 {vr(RB+16*k+4*i,4)}, v{T1} offset:{d*20480 + i*1024}")
        own = WX + 16 * w
        for k in range(3):
            a(f"s_waitcnt lgkmcnt({8 - 4*k})")
            for i in range(0, 16, 2): a(f"v_pk_add_f32 {vr(own+i,2)}, {vr(own+i,2)}, {vr(RB+16*k+i,2)}")
        for i in range(8): a(f"v_cvt_pk_bf16_f32 v{32+i}, v{own+2*i}, v{own+2*i+1}")
        if w < 3:
            a("s_branch L_out"); a.label(lab)
    a.label("L_out")
    a("s_nop 1")
    a("v_permlane32_swap_b32 v32, v34\nv_permlane32_swap_b32 v33, v35\nv_permlane32_swap_b32 v36, v38\nv_permlane32_swap_b32 v37, v39")
    a(f"buffer_store_dwordx4 v[32:35], v{T2}, {rs(R_OUT)}, s{S_K0} offen{['', ' sc1', ' nt', ' sc0 sc1', ' sc0'][OPT['outsc']]}")
    a(f"buffer_store_dwordx4 v[36:39], v{T2}, {rs(R_OUT)}, s{S_K0} offen offset:32{['', ' sc1', ' nt', ' sc0 sc1', ' sc0'][OPT['outsc']]}")

KD = """.section .rodata,"a"
.p2align 6
.amdhsa_kernel {k}
  .amdhsa_next_free_vgpr 256
  .amdhsa_next_free_sgpr 102
  .amdhsa_accum_offset 256
  .amdhsa_group_segment_fixed_size 0
  .amdhsa_kernarg_size 104
  .amdhsa_user_sgpr_count 2
  .amdhsa_user_sgpr_kernarg_segment_ptr 1
  .amdhsa_system_sgpr_workgroup_id_x 1
.end_amdhsa_kernel
"""

def gen():
    a = Asm()
    ref = open(f"cdna_kernels/{NAME}.s.ref").read().split("\n")
    H = [l for l in ref if l.startswith(";") and "@launch" not in l]
    H += ["; @launch grid=(256,1,1) block=(512,1,1) lds=163840"]
    k = NAME + "_kernel"
    a.raw(f'.amdgcn_target "amdgcn-amd-amdhsa--gfx950"\n.text\n.globl {k}\n.p2align 8\n.type {k},@function\n{k}:')
    a("s_cmp_ge_u32 s2, 256\ns_cbranch_scc1 L_exit")
    stamp(a, 0); stamp_init(a)
    if OPT.get("dbg"): a("s_memrealtime s[4:5]")
    a("s_load_dwordx16 s[16:31], s[0:1], 0\ns_load_dwordx8 s[32:39], s[0:1], 64\ns_load_dwordx2 s[40:41], s[0:1], 96")
    a(f"v_lshrrev_b32 v1, 6, v0\nv_and_b32 v0, 63, v0\nv_readfirstlane_b32 s3, v1\ns_mov_b32 s{S_ID}, s2")
    decode(a)
    a(f"s_and_b32 s{W}, s3, 3\ns_lshl_b32 s{S_M0B}, s{W}, 10")
    a("s_cmp_ge_u32 s3, 4\ns_cbranch_scc1 L_roleF")
    a(f"s_setprio {OPT['prioL']}")
    roleA(a)
    a.raw(".p2align 6"); a.label("L_roleF"); a.roleF = 1
    a(f"s_setprio {OPT['prioF']}")
    if OPT["cpf"]:
        a("s_getpc_b64 s[70:71]")
        a.label("L_pc")
        a(f"s_sub_u32 s70, s70, L_pc - {k}\ns_subb_u32 s71, s71, 0")
        a(f"s_lshr_b32 s72, s{S_ID}, 3\ns_lshl_b32 s72, s72, 2\ns_add_u32 s72, s72, s{W}\ns_lshl_b32 s72, s72, 10")
        a(f"s_cmp_ge_u32 s72, L_exit - {k} - 1024\ns_cbranch_scc1 L_nocpf")
        a("s_add_u32 s70, s70, s72\ns_addc_u32 s71, s71, 0")
        a("v_lshlrev_b32 v30, 4, v0\nv_mov_b32 v31, s71\nv_add_co_u32 v30, vcc, s70, v30\ns_nop 1\nv_addc_co_u32 v31, vcc, 0, v31, vcc")
        a("global_load_dwordx4 v[100:103], v[30:31], off")
        a.label("L_nocpf")
    ffn1(a)
    ffn2(a); stamp_dump(a)
    if OPT.get("dbg"):
        a(f"s_cmp_ge_u32 s2, 8\ns_cbranch_scc1 L_exit\ns_cmp_lg_u32 s{W}, 0\ns_cbranch_scc1 L_exit")
        a("s_waitcnt vmcnt(0)")
        a.label("L_dbgspin")
        a("s_memrealtime s[6:7]\ns_waitcnt lgkmcnt(0)")
        if OPT.get("spin"): a(f"s_sub_u32 s8, s6, s4\ns_cmp_lt_u32 s8, {OPT['spin']}\ns_cbranch_scc1 L_dbgspin")
        srd(a, R_W0, S_DBG, 256)
        a(f"s_lshl_b32 s8, s2, 2\nv_mov_b32 v1, s8\nv_mov_b32 v2, s4\nv_mov_b32 v3, s6\ns_mov_b64 exec, 1")
        a(f"buffer_store_dword v2, v1, {rs(R_W0)}, 0 offen\nbuffer_store_dword v3, v1, {rs(R_W0)}, 0 offen offset:32")
    a.label("L_exit")
    a("s_endpgm")
    return "\n".join(H) + "\n" + a.text() + KD.format(k=k)

if __name__ == "__main__":
    if "--diag" in sys.argv: DIAG = True
    for x in sys.argv[2:]:
        if "=" in x:
            k, v = x.split("="); OPT[k] = int(v)
    open(sys.argv[1], "w").write(gen())
```

```python
import sys, math, struct

NAME = "gated_mix__grouped_kv_mqa__glu_gated_geglu__prompt"

WS_EPOCH = 0x0
WS_ACK = 0x6000
WS_KP = 0x10000
WS_VP = 0x20000
WS_G = 0x30000
WS_RECK = 0x40000
WS_PRE = 0x50000
WS_FLH = 0x80000
WS_FLO = 0xA0000
WS_QP = 0x100000
WS_OP = 0x300000
WS_HP = 0x500000
WS_DIAG = 0xE00000
WS_SIZE = 0x10000000
OPT = dict(prioA=1, prioF=2, prioG=2, prioD=0, prioL=3, sleep=4, sc1=1, rot=7, rot2=7, thr=60, clk=0, look=11, kvat=13, kvpre=3, kvper=4, wpre=2, w0=6, xup=3, ramp=2, xper=2, barpos=0, lsl=0, outsc=0, nw=10, lastbar=13, hold=14, cpf=1, prioT=3, sentat=99, pfx=0, pfw=0, vlag=8, hst=0, fbar=1, wsl=1, jm=1, bud=20)
DIAG = False

LOG2E = 1.4426950408889634
def f2u(x): return struct.unpack("<I", struct.pack("<f", x))[0]
def SC(): return " sc1" if OPT["sc1"] else ""

class Asm:
    def __init__(self): self.L = []; self.uid = 0
    def __call__(self, s):
        for line in s.split("\n"): self.L.append("    " + line.strip())
    def label(self, n): self.L.append(n + ":")
    def raw(self, s): self.L.append(s)
    def newlabel(self, p):
        self.uid += 1
        return f"L_{p}_{self.uid}"
    def text(self): return "\n".join(self.L) + "\n"

def vr(a, n=1): return f"v{a}" if n == 1 else f"v[{a}:{a+n-1}]"

S_X, S_WQ, S_WK, S_WV, S_WO, S_BX, S_WG, S_WU = 16, 18, 20, 22, 24, 26, 28, 30
S_WD, S_GW, S_OUT, S_DBG, S_WSP = 32, 34, 36, 38, 40
R_X, R_WS, R_W0, R_W1, R_OUT = 44, 48, 52, 56, 60
S_WAVE, S_TAG = 64, 65
S_T = 66
S_ID, S_M0B = 80, 81
S_A, S_B, S_C, S_D, S_E, S_F = 82, 83, 84, 85, 86, 87
S_G, S_H = 88, 89
S_K0, S_K1, S_K2, S_K3 = 90, 91, 92, 93
W = S_WAVE
WSR = f"s[{R_WS}:{R_WS+3}]"
def rs(r): return f"s[{r}:{r+3}]"

STAMP_REGS = [4, 6, 8, 10, 12, 14, 42, 94, 96, 98, 100]
def stamp(a, i, force=False):
    if OPT.get("dbgat") == i and getattr(a, "roleF", 0): a("s_memrealtime s[8:9]")
    if OPT.get("fst") and getattr(a, "roleF", 0) and 5 <= i <= 9 and not force: return
    if DIAG: a(f"{'s_memtime' if OPT['clk'] else 's_memrealtime'} s[{STAMP_REGS[i]}:{STAMP_REGS[i]+1}]")
def stamp_init(a):
    if DIAG:
        for r in STAMP_REGS[1:]: a(f"s_mov_b32 s{r}, 0")
def stamp_dump(a):
    if not DIAG: return
    a("s_waitcnt vmcnt(0) lgkmcnt(0)")
    stamp(a, 10)
    a("s_waitcnt lgkmcnt(0)")
    a(f"s_lshl_b32 s{S_T}, s2, 2\ns_add_u32 s{S_T}, s{S_T}, s{W}\ns_add_u32 s{S_T}, s{S_T}, {1024 if getattr(a, 'roleF', 0) else 0}\ns_lshl_b32 s{S_T}, s{S_T}, 6\ns_add_u32 s{S_T}, s{S_T}, {WS_DIAG}")
    a("s_mov_b64 exec, 1\nv_mov_b32 v1, 0")
    for i, r in enumerate(STAMP_REGS):
        a(f"v_mov_b32 v2, s{r}\nbuffer_store_dword v2, v1, {WSR}, s{S_T} offen offset:{4*i}\ns_nop 1")

def srd(a, r, p, size):
    a(f"s_mov_b32 s{r}, s{p}\ns_mov_b32 s{r+1}, s{p+1}\ns_mov_b32 s{r+2}, {size:#x}\ns_mov_b32 s{r+3}, 0x20000")

def kernarg_wait(a):
    a("s_waitcnt lgkmcnt(0)")
    a(f"s_load_dword s{S_TAG}, s[40:41], {WS_EPOCH}")
    srd(a, R_X, S_X, 2048 * 1024)

def finish_tag_ack(a, v0_, v1_):
    srd(a, R_WS, S_WSP, WS_SIZE)
    a(f"s_lshl_b32 s{S_T+2}, s2, 5\ns_lshl_b32 s{S_T+3}, s{W}, 2\ns_add_u32 s{S_T+2}, s{S_T+2}, s{S_T+3}")
    a(f"s_add_u32 s{S_T+2}, s{S_T+2}, {WS_ACK + (16 if getattr(a, 'roleF', 0) else 0)}")
    a(f"v_mov_b32 v{v1_}, 0")
    a("s_waitcnt lgkmcnt(0)")
    a(f"s_mul_i32 s{S_TAG}, s{S_TAG}, 0x9E3779B1")
    a(f"s_add_u32 s{S_TAG}, s{S_TAG}, 0x7F4A7C15")
    a(f"v_mov_b32 v{v0_}, s{S_TAG}")
    a("s_mov_b64 exec, 1")
    a(f"buffer_store_dword v{v0_}, v{v1_}, {WSR}, s{S_T+2} offen sc1")
    a("s_mov_b64 exec, -1")

def dma(a, vaddr, r, soff_reg, soff_base, soff_imm, lds_imm):
    a(f"s_add_u32 m0, s{S_M0B}, {lds_imm}")
    a(f"s_add_u32 s{soff_reg}, s{soff_base}, {soff_imm}")
    nt = " nt" if (OPT.get("ntx") and r == R_X) or (OPT.get("nt2") and getattr(a, "roleF", 0)) else ""
    a(f"buffer_load_dwordx4 v{vaddr}, {rs(r)}, s{soff_reg} offen{nt} lds")

def wave_max(a, v):
    for m in ("row_shr:1", "row_shr:2", "row_shr:4", "row_shr:8", "row_bcast:15 row_mask:0xa", "row_bcast:31 row_mask:0xc"):
        a("s_nop 1")
        a(f"v_max_u32_dpp v{v}, v{v}, v{v} {m}")

def poll(a, loads, regs, sleep=None):
    lab = a.newlabel("poll"); out = a.newlabel("polled")
    sleep = sleep or OPT["sleep"]
    masked = len(loads) == 1 and len(regs) == 1
    a(f"s_mov_b32 s{S_T+10}, 0x40000")
    a.label(lab)
    for l in loads: a(l)
    a("s_waitcnt vmcnt(0)")
    a(f"v_cmp_ne_u32 vcc, s{S_TAG}, v{regs[0]}")
    for r in regs[1:]:
        a(f"v_cmp_ne_u32 s[{S_T+12}:{S_T+13}], s{S_TAG}, v{r}")
        a(f"s_or_b64 vcc, vcc, s[{S_T+12}:{S_T+13}]")
    a(f"s_cbranch_vccz {out}")
    if masked: a("s_mov_b64 exec, vcc")
    a(f"s_sleep {sleep}")
    a(f"s_sub_u32 s{S_T+10}, s{S_T+10}, 1\ns_cmp_lg_u32 s{S_T+10}, 0\ns_cbranch_scc1 {lab}")
    a.label(out)
    if masked: a("s_mov_b64 exec, -1")

def x_src_addr(a, V, T0, T1, T2):
    a(f"v_lshrrev_b32 v{T0}, 3, v0\nv_and_b32 v{T1}, 7, v0\nv_lshrrev_b32 v{T2}, 1, v{T0}")
    a(f"s_and_b32 s{S_T}, s{W}, 1\ns_lshl_b32 s{S_T}, s{S_T}, 2")
    a(f"v_or_b32 v{V}, s{S_T}, v{T2}\nv_xor_b32 v{V}, v{V}, v{T1}\nv_lshlrev_b32 v{V}, 4, v{V}")
    a(f"v_lshl_add_u32 v{V}, v{T0}, 10, v{V}")

def x_read_addr(a, V, T0, T1, T2, sbase=None):
    a(f"v_and_b32 v{T0}, 31, v0\nv_lshrrev_b32 v{T1}, 5, v0\nv_bfe_u32 v{T2}, v0, 1, 3\nv_xor_b32 v{T2}, v{T2}, v{T1}")
    a(f"v_lshlrev_b32 v{T0}, 7, v{T0}")
    if sbase is not None: a(f"v_add_u32 v{T0}, s{sbase}, v{T0}")
    for ks in range(4):
        a(f"v_xor_b32 v{V+ks}, {2*ks}, v{T2}\nv_lshl_add_u32 v{V+ks}, v{V+ks}, 4, v{T0}")

XL, QWL, WL = 0, 49152, 61440
IXL, IQL, IEL, IGL = 0, 65536, 81920, 98304
PART = 2176
LDS_P = 81920
LDS_Q = LDS_P + 32 * PART
LDS_X = LDS_Q + 8192
LDS_C = LDS_X + 1088
assert LDS_X + 4096 == 163840

def lsync(a, idx, n, va, vb, slp=0):
    lab = a.newlabel("ls")
    a(f"v_mov_b32 v{va}, {LDS_C + 4*idx}\nv_mov_b32 v{vb}, 1\ns_mov_b64 exec, 1\nds_add_u32 v{va}, v{vb}\ns_mov_b64 exec, -1")
    if slp:
        l2 = a.newlabel("ls")
        a(f"s_branch {l2}")
        a.label(lab)
        a(f"s_sleep {slp}")
        a.label(l2)
    else:
        a.label(lab)
    a(f"ds_read_b32 v{vb}, v{va}\ns_waitcnt lgkmcnt(0)\nv_readfirstlane_b32 s{S_T+10}, v{vb}\ns_cmp_lt_u32 s{S_T+10}, {n}\ns_cbranch_scc1 {lab}")

def decode(a):
    a(f"s_lshr_b32 s{S_T+1}, s{S_ID}, 3\ns_bfe_u32 s{S_T}, s{S_ID}, 0x20001\ns_and_b32 s{S_T+2}, s{S_ID}, 1\ns_lshl_b32 s{S_T+2}, s{S_T+2}, 3")
    a(f"s_mul_i32 s{S_T+3}, s{S_T}, 28\ns_add_u32 s{S_T+3}, s{S_T+3}, s{S_T+1}\ns_lshr_b32 s{S_B}, s{S_T+3}, 3\ns_and_b32 s{S_A}, s{S_T+3}, 7")
    a(f"s_lshl_b32 s{S_T}, s{S_T}, 1\ns_bfe_u32 s{S_T+3}, s{S_T+1}, 0x10001\ns_add_u32 s{S_T}, s{S_T}, s{S_T+3}")
    a(f"s_and_b32 s{S_T+3}, s{S_T+1}, 1\ns_add_u32 s{S_T+3}, s{S_T+3}, 14")
    a(f"s_cmp_ge_u32 s{S_ID}, 224\ns_cselect_b32 s{S_A}, s{S_T}, s{S_A}\ns_cselect_b32 s{S_B}, s{S_T+3}, s{S_B}")
    a(f"s_add_u32 s{S_A}, s{S_A}, s{S_T+2}")
    a(f"s_lshl_b32 s{S_F}, s{S_B}, 1\ns_add_u32 s{S_F}, s{S_F}, s{S_A}\ns_and_b32 s{S_F}, s{S_F}, {OPT['rot']}")

class VQ:
    def __init__(self, a): self.a = a; self.q = []
    def add(self, t, n=1): self.q += [t] * n; self.total = getattr(self, "total", 0) + n
    def wait(self, tags):
        idx = max((i for i, t in enumerate(self.q) if t in tags), default=-1)
        n = len(self.q) - 1 - idx
        del self.q[:idx + 1]
        assert n < 64
        self.a(f"s_waitcnt vmcnt({n})")

def roleA(a):
    VL16, VIDX, VL4, VO, VGO, VLQ = 1, 2, 3, 4, 5, 12
    VXS, VQS, VXR, VQR, VGS, VUS = 6, 7, 8, 13, 14, 15
    QB = 8; SB = (16, 32); OA = 48; KR, VR_ = 64, 128
    XF, WF, ACC = 16, 24, 32
    T0, T1, T2 = 16, 17, 18
    VREC, VRA, VQW = 58, 62, 57
    S_WB, S_WEND, S_XR, S_QR = S_K2, S_K3, S_T + 11, S_T + 12
    RS = 3584 * 16
    x_src_addr(a, VXS, T0, T1, T2)
    a(f"v_lshrrev_b32 v{T0}, 2, v0\nv_and_b32 v{T1}, 3, v0\nv_lshlrev_b32 v{T1}, 4, v{T1}\nv_lshl_add_u32 v{VQS}, v{T0}, 10, v{T1}")
    a(f"v_lshrrev_b32 v{T0}, 4, v0\nv_and_b32 v{T1}, 15, v0\nv_lshlrev_b32 v{T2}, 1, v{T0}\nv_xor_b32 v{T1}, v{T1}, v{T2}")
    a(f"s_and_b32 s{S_T}, s{W}, 2\ns_lshl_b32 s{S_T}, s{S_T}, 2\nv_xor_b32 v{T1}, s{S_T}, v{T1}")
    a(f"v_lshlrev_b32 v{T1}, 4, v{T1}\nv_mul_u32_u24 v{T0}, 3584, v{T0}\nv_add_u32 v{VGS}, v{T0}, v{T1}\nv_mov_b32 v{VUS}, v{VGS}")
    a(f"s_lshl_b32 s{S_C}, s{S_A}, 17\ns_lshl_b32 s{S_T}, s{W}, 13\ns_add_u32 s{S_C}, s{S_C}, s{S_T}   ; x base")
    a(f"s_lshl_b32 s{S_H}, s{W}, 14\ns_lshl_b32 s{S_T}, s{S_B}, 6\ns_add_u32 s{S_H}, s{S_H}, s{S_T}")
    a(f"s_mul_i32 s{S_T}, s{W}, {4*3584}\ns_lshl_b32 s{S_WB}, s{S_B}, 8\ns_add_u32 s{S_WB}, s{S_WB}, s{S_T}")
    a(f"s_add_u32 s{S_WEND}, s{S_WB}, {32*RS}\ns_mul_i32 s{S_T}, s{S_F}, {4*RS}\ns_add_u32 s{S_D}, s{S_WB}, s{S_T}")
    kernarg_wait(a)
    srd(a, R_OUT, S_WQ, 512 * 1024)
    vq = VQ(a)
    def issueX1(u, j, xl, ql):
        if j == 0:
            a(f"s_add_u32 s{S_XR}, s{S_F}, {u}\ns_and_b32 s{S_XR}, s{S_XR}, 7\ns_lshl_b32 s{S_QR}, s{S_XR}, 16\ns_lshl_b32 s{S_XR}, s{S_XR}, 7")
            a(f"s_add_u32 s{S_XR}, s{S_XR}, s{S_C}\ns_add_u32 s{S_QR}, s{S_QR}, s{S_H}")
        if j < 4: dma(a, VXS, R_X, S_T, S_XR, j * 32768, xl + j * 4096)
        else: a(f"s_add_u32 m0, s{S_M0B}, {ql}\ns_nop 0\nbuffer_load_dwordx4 v{VQS}, {rs(R_OUT)}, s{S_QR} offen lds")
        vq.add(("X", u))
    def issueW1(j, mat):
        a(f"s_add_u32 m0, s{S_M0B}, {WL + (j % OPT['nw']) * 8192 + mat*4096}\ns_nop 0")
        a(f"buffer_load_dwordx4 v{(VGS,VUS)[mat]}, {rs((R_W0,R_W1)[mat])}, s{S_D} offen{' nt' if OPT.get('ntw') else ''} lds"); vq.add(("W", j))
        if mat:
            a(f"s_add_u32 s{S_D}, s{S_D}, {RS}")
            if j % 4 == 3: a(f"s_cmp_eq_u32 s{S_D}, s{S_WEND}\ns_cselect_b32 s{S_D}, s{S_WB}, s{S_D}")
    def setup(ql):
        finish_tag_ack(a, 20, 21); vq.add(("ack", 0))
        a(f"s_lshl_b32 s{S_T}, s{W}, 12")
        x_read_addr(a, VXR, T0, T1, T2, S_T)
        a(f"v_bfe_u32 v{T0}, v0, 2, 2\nv_lshl_add_u32 v{T0}, v{T1}, 3, v{T0}\nv_and_b32 v{T2}, 3, v0\nv_lshlrev_b32 v{T2}, 3, v{T2}")
        a(f"v_lshl_add_u32 v{VQR}, v{T0}, 6, v{T2}\nv_bfe_u32 v{T0}, v0, 4, 1\nv_lshl_add_u32 v{VQR}, v{T0}, 5, v{VQR}\nv_add_u32 v{VQR}, {ql}, v{VQR}")
        a(f"v_lshlrev_b32 v{T0}, 2, v0\nv_add_u32 v{T0}, {LDS_C}, v{T0}\nv_mov_b32 v{T1}, 0\nds_write_b32 v{T0}, v{T1}")
        a(f"v_lshlrev_b32 v{VL16}, 4, v0\nv_and_b32 v{VL4}, 31, v0\nv_lshlrev_b32 v{VL4}, 2, v{VL4}\nv_mov_b32 v{VIDX}, 0xdddddddd")
        a(f"v_add_u32 v{VLQ}, {LDS_Q}, v{VL16}\nv_lshlrev_b32 v{VRA}, 3, v0\ns_mov_b32 s{S_K0}, {WS_RECK}")
        a(f"v_bfe_u32 v{T0}, v0, 4, 1\nv_lshlrev_b32 v{VO}, 10, v{T0}\nv_and_b32 v{T0}, 32, v0\nv_lshl_add_u32 v{VO}, v{T0}, 4, v{VO}")
        a(f"v_and_b32 v{T0}, 15, v0\nv_lshl_add_u32 v{VO}, v{T0}, 4, v{VO}\nv_lshlrev_b32 v{VGO}, 2, v{T0}")
        a(f"s_lshl_b32 s{S_T}, s{W}, 11\ns_add_u32 s{S_T}, s{S_T}, {LDS_Q}\nv_add_u32 v{VQW}, s{S_T}, v{VO}")
        a(f"v_and_b32 v{T0}, 11, v0\nv_cmp_eq_u32 vcc, 0, v{T0}\nv_mov_b32 v{T0}, 0x3f803f80\ns_nop 0\nv_cndmask_b32 v{T0}, 0, v{T0}, vcc\nv_mov_b32 v{T0+1}, v{T0}")
        for t in range(16):
            for j in range(4, 8, 2): a(f"v_mov_b64 {vr(VR_+8*t+j,2)}, {vr(T0,2)}")
        zero_o()
        a(f"s_lshl_b32 s{S_T}, s{S_A}, 2\ns_add_u32 s{S_T}, s{S_T}, s{W}\ns_lshl_b32 s{S_G}, s{S_T}, 15")
        a(f"s_lshl_b32 s{S_T}, s{S_B}, 11\ns_add_u32 s{S_G}, s{S_G}, s{S_T}\ns_add_u32 s{S_G}, s{S_G}, {WS_OP}")
        a(f"s_lshl_b32 s{S_E}, s{W}, 3\ns_lshr_b32 s{S_T}, s{S_ID}, 3\ns_add_u32 s{S_E}, s{S_E}, s{S_T}")
    def zero_o():
        for j in range(0, 8, 2): a(f"v_mov_b64 {vr(OA+j,2)}, 0")
        a(f"v_mov_b32 v{OA+8}, 0")
    def qreads(j, xoff, qoff):
        b = j & 1
        a(f"ds_read_b128 {vr(XF+4*b,4)}, v{VXR + j%4} offset:{xoff}")
        a(f"ds_read_b64_tr_b16 {vr(WF+4*b,2)}, v{VQR} offset:{qoff + (j%4)*1024}\nds_read_b64_tr_b16 {vr(WF+4*b+2,2)}, v{VQR} offset:{qoff + (j%4)*1024 + 256}")
    def qmfma(j):
        b = j & 1
        a(f"v_mfma_f32_32x32x16_bf16 {vr(ACC,16)}, {vr(WF+4*b,4)}, {vr(XF+4*b,4)}, {'0' if j == 0 else vr(ACC,16)}")
    rec_loads = [f"buffer_load_dwordx2 {vr(VREC,2)}, v{VRA}, {WSR}, s{S_K0} offen sc1",
                 f"buffer_load_dwordx2 {vr(VREC+2,2)}, v{VRA}, {WSR}, s{S_K0} offen offset:512 sc1"]
    def rec_finish(looked):
        lab = a.newlabel("norec"); seen = a.newlabel("seen")
        a(f"s_cmp_lg_u32 s{W}, 0\ns_cbranch_scc1 {lab}")
        if looked is not None:
            a(f"s_waitcnt vmcnt({looked})")
            a(f"v_cmp_ne_u32 vcc, s{S_TAG}, v{VREC}\nv_cmp_ne_u32 s[{S_T+6}:{S_T+7}], s{S_TAG}, v{VREC+2}\ns_or_b64 vcc, vcc, s[{S_T+6}:{S_T+7}]\ns_cbranch_vccz {seen}")
        poll(a, rec_loads, [VREC, VREC + 2], sleep=8)
        a.label(seen)
        wave_max(a, VREC + 1)
        a(f"v_mov_b32 v{VREC}, {LDS_X + 1024}\ns_mov_b32 exec_lo, 0\ns_mov_b32 exec_hi, 0x80000000\nds_write_b32 v{VREC}, v{VREC+1}\ns_mov_b64 exec, -1")
        a.label(lab)
    def vfix(t):
        for j in range(4): a(f"v_permlane16_swap_b32 v{VR_+8*t+j}, v{VR_+8*t+4+j}")
    VL = OPT["vlag"]; NFIX = 16 - VL
    def kvload(t):
        if t % 2 == 0:
            a(f"s_add_u32 s{S_T}, s{S_E}, {t//2}\ns_and_b32 s{S_T}, s{S_T}, 31\ns_lshl_b32 s{S_T}, s{S_T}, 11")
            a(f"s_add_u32 s{S_T+1}, s{S_T}, {WS_VP}\ns_add_u32 s{S_T}, s{S_T}, {WS_KP}")
        a(f"buffer_load_dwordx4 {vr(KR+4*t,4)}, v{VL16}, {WSR}, s{S_T} offen offset:{(t%2)*1024}{SC()}")
        a(f"buffer_load_dwordx4 {vr(VR_+8*t,4)}, v{VL16}, {WSR}, s{S_T+1} offen offset:{(t%2)*1024}{SC()}")
        vq.add(("KV", t), 2)
        if t >= VL: a(f"s_waitcnt vmcnt({2*VL})"); vfix(t - VL)
    lidle = a.newlabel("Aidle"); ljoin = a.newlabel("Ajoin")
    a(f"s_cmp_ge_u32 s{S_ID}, 224\ns_cbranch_scc1 {lidle}")
    X = lambda u, j: issueX1(u, j, XL + (u % 3) * 16384, QWL + (u % 3) * 4096)
    for j in range(5): X(0, j)
    srd(a, R_W0, S_WG, 512 * 3584); srd(a, R_W1, S_WU, 512 * 3584)
    W0 = OPT["w0"]
    nextW, nextX, xp = W0, 1, 0
    for j in range(W0):
        issueW1(j, 0); issueW1(j, 1)
        if OPT.get("xup") and j == OPT["xup"] - 1:
            for p in range(5): X(1, p)
            nextX = 2
    if OPT.get("st4") == 1: stamp(a, 4)
    setup(QWL)
    if OPT.get("st4") == 2: stamp(a, 4)
    vq.wait({("X", 0), ("W", 0), ("W", 1)})
    a("s_waitcnt lgkmcnt(0)")
    a("s_barrier")
    stamp(a, 1)
    xo = lambda j: (XL + ((j // 4) % 3) * 16384, ((j // 4) % 3) * 4096)
    qreads(0, *xo(0))
    kvt = 0
    LB = OPT["lastbar"]
    for J in range(16):
        if J < LB:
            tags = {("W", 2 * J + 2), ("W", 2 * J + 3)}
            if J % 2 == 1: tags.add(("X", (J + 1) // 2))
            assert nextW > 2 * J + 3 and (J % 2 == 0 or nextX > (J + 1) // 2), J
            vq.wait(tags)
        elif J == LB:
            assert nextW == 32 and nextX == 8
            vq.wait({("W", 31), ("X", 7)})
        a("s_waitcnt lgkmcnt(0)")
        if J <= LB: a("s_barrier")
        qmfma(2 * J)
        qreads(2 * J + 1, *xo(2 * J + 1))
        for _ in range(5 if nextX in (1, 7) else 3):
            if nextX < 8 and J >= 2 * (nextX - 3) + 2:
                X(nextX, xp); xp += 1
                if xp == 5: nextX += 1; xp = 0; break
        a("s_waitcnt lgkmcnt(0)")
        qmfma(2 * J + 1)
        if J < 15: qreads(2 * J + 2, *xo(2 * J + 2))
        for _ in range(2 * OPT["ramp"]):
            if nextW < 32 and nextW <= max(OPT['nw'] - 1, 2 * J + OPT['nw'] - 1):
                issueW1(nextW, 0); issueW1(nextW, 1); nextW += 1
        if J == OPT["kvat"]:
            assert OPT["kvat"] >= OPT["look"] + 2 and nextW == 32 and nextX == 8
            lab = a.newlabel("kvok")
            a(f"v_mov_b32 v{VREC}, {LDS_X + 1028}\nds_read_b32 v{VREC+1}, v{VREC}\ns_waitcnt lgkmcnt(0)\nv_readfirstlane_b32 s{S_T}, v{VREC+1}")
            a(f"s_cmp_eq_u32 s{S_T}, 1\ns_cbranch_scc1 {lab}")
            rec_finish(None)
            lsync(a, 9, 4, VREC, VREC + 1)
            a.label(lab)
        if J >= OPT["kvat"]:
            for _ in range(OPT["kvpre"] if J < LB else 2 * OPT["kvper"] if J < 15 else 16):
                if kvt < 16: kvload(kvt); kvt += 1
    a(f"v_mov_b32 v{VREC}, {LDS_C + 4*10}\nv_mov_b32 v{VREC+1}, 1\ns_mov_b64 exec, 1\nds_add_u32 v{VREC}, v{VREC+1}\ns_mov_b64 exec, -1")
    a(f"s_branch {ljoin}")
    a.label(lidle)
    vq.q = []
    a(f"s_cmp_eq_u32 s{S_B}, 14\ns_cselect_b32 s{R_W0}, s{S_WK}, s{S_WV}\ns_cselect_b32 s{R_W0+1}, s{S_WK+1}, s{S_WV+1}")
    a(f"s_movk_i32 s{R_W0+2}, 16384\ns_mov_b32 s{R_W0+3}, 0x20000\ns_mov_b32 s{S_F}, 0")
    srd(a, R_W1, S_GW, 1024)
    a(f"v_lshlrev_b32 v{VGS}, 4, v0")
    dma(a, VGS, R_W1, S_T, S_M0B, 0, IGL)
    for p in range(4): dma(a, VGS, R_W0, S_T, S_M0B, p * 4096, IEL + p * 4096)
    XI = lambda u: [issueX1(u, p, IXL + (u % 4) * 16384, IQL + (u % 4) * 4096) for p in range(5)]
    for u in range(4): XI(u)
    setup(IQL)
    for u in range(8):
        vq.wait({("X", u)})
        a("s_waitcnt lgkmcnt(0)")
        a("s_barrier")
        if u == 0: stamp(a, 1)
        if 1 <= u <= 4: XI(u + 3)
        qreads(4 * u, (u % 4) * 16384, (u % 4) * 4096)
        for ks in range(4):
            j = 4 * u + ks
            if ks < 3:
                qreads(j + 1, (u % 4) * 16384, (u % 4) * 4096); a("s_waitcnt lgkmcnt(3)")
            else: a("s_waitcnt lgkmcnt(0)")
            qmfma(j)
    rec_finish(None)
    a(f"v_mov_b32 v{VREC}, {LDS_C + 4*10}\nv_mov_b32 v{VREC+1}, 2\ns_mov_b64 exec, 1\nds_add_u32 v{VREC}, v{VREC+1}\ns_mov_b64 exec, -1")
    a("s_waitcnt lgkmcnt(0)")
    a("s_barrier")
    for t in range(16): kvload(t)
    a.label(ljoin)
    stamp(a, 2)
    a(f"s_lshl_b32 s{S_T}, s{S_A}, 2\ns_add_u32 s{S_T}, s{S_T}, s{W}\ns_lshl_b32 s{S_C}, s{S_T}, 7\ns_add_u32 s{S_C}, s{S_C}, {WS_G}")
    a("s_nop 3")
    a(f"s_mul_i32 s{S_T}, s{W}, {PART}\ns_add_u32 s{S_T}, s{S_T}, {LDS_P}")
    a(f"v_add_u32 v{VL16}, s{S_T}, v{VL16}\nv_add_u32 v{VL4}, s{S_T}, v{VL4}")
    a(f"s_lshl_b32 s{S_T}, s{W}, 8\ns_add_u32 s{S_T}, s{S_T}, {LDS_X}\nv_lshl_add_u32 v15, v0, 2, s{S_T}")
    for j in range(8): a(f"v_cvt_pk_bf16_f32 v{16+j}, v{ACC+2*j}, v{ACC+2*j+1}")
    a(f"ds_write_b128 v{VQW}, v[16:19]\nds_write_b128 v{VQW}, v[20:23] offset:256")
    a(f"v_mul_f32 v24, v{ACC}, v{ACC}\nv_mul_f32 v25, v{ACC+8}, v{ACC+8}")
    for i in range(1, 8): a(f"v_fmac_f32 v24, v{ACC+i}, v{ACC+i}\nv_fmac_f32 v25, v{ACC+8+i}, v{ACC+8+i}")
    a(f"v_mov_b32 v26, {LDS_X + 1024}\ns_nop 0\nv_permlane32_swap_b32 v24, v25\nv_add_f32 v24, v24, v25\nds_write_b32 v15, v24")
    a(f"v_lshlrev_b32 v15, 2, v0\nv_add_u32 v15, {LDS_X}, v15")
    lsync(a, 0, 4, 27, 28)
    lab = a.newlabel("ringdead")
    a(f"v_mov_b32 v27, {LDS_C + 4*10}")
    a.label(lab)
    a(f"ds_read_b32 v28, v27\ns_waitcnt lgkmcnt(0)\nv_readfirstlane_b32 s{S_T}, v28\ns_cmp_lt_u32 s{S_T}, 8\ns_cbranch_scc1 {lab}")
    a(f"ds_read_b128 {vr(QB,4)}, v{VLQ}")
    a(f"ds_read2st64_b32 v[20:21], v15 offset0:0 offset1:1\nds_read2st64_b32 v[22:23], v15 offset0:2 offset1:3\nds_read_b32 v24, v26")
    a("s_waitcnt lgkmcnt(0)")
    a("v_max3_u32 v20, v20, v21, v22\nv_max_u32 v20, v20, v23\nv_mul_f32 v20, v20, v24")
    slow = a.newlabel("slow"); red = a.newlabel("reduce")
    a(f"v_cmp_nge_f32 vcc, {f2u(float(OPT['thr'])**2):#x}, v20")
    a(f"s_setprio {OPT['prioA']}")
    a(f"s_cbranch_vccnz {slow}")
    def S(t, buf, c="0"): a(f"v_mfma_f32_32x32x16_bf16 {vr(SB[buf],16)}, {vr(KR+4*t,4)}, {vr(QB,4)}, {c}")
    def PV(t, s, buf): a(f"v_smfmac_f32_32x32x32_bf16 {vr(OA,16)}, {vr(VR_+8*t+4*s,4)}, {vr(SB[buf]+8*s,8)}, v{VIDX}")
    def EX(buf, i): a(f"v_exp_f32 v{SB[buf]+i}, v{SB[buf]+i}")
    def flush(base):
        a(f"ds_write_b128 v{VL16}, {vr(OA,4)} offset:{base}")
        a(f"ds_write_b128 v{VL16}, {vr(OA+4,4)} offset:{base+1024}")
        a(f"ds_write_b32 v{VL4}, v{OA+8} offset:{base+2048}")
    a("s_waitcnt vmcnt(31)")
    stamp(a, 5)
    S(0, 0)
    a("s_nop 10")
    gl = lambda j, r: a(f"buffer_load_dword v{r}, v{VGO}, {WSR}, s{S_C} offen offset:{64*j}{SC()}")
    for q in range(8):
        for t in range(16):
            g = q * 16 + t
            cur, oth = g & 1, (g & 1) ^ 1
            nt = (t + 1) % 16
            def kv():
                if q == 0 and t + 1 >= NFIX: a(f"s_waitcnt vmcnt({max(0, 29 - 2*t)})")
                if q == 0 and t >= NFIX: vfix(t)
            if t == 0:
                if q == 1: stamp(a, 6)
                if q == 4: stamp(a, 7)
                EX(cur, 0); EX(cur, 1)
                if q > 0: PV(15, 1, oth)
                EX(cur, 2); EX(cur, 3); EX(cur, 4)
                kv(); S(nt, oth)
                for i in range(5, 16): EX(cur, i)
                if q > 0:
                    flush((q - 1) * 4 * PART); zero_o()
                if q == 7: gl(0, 6); gl(1, 7)
            elif t == 1:
                EX(cur, 0); EX(cur, 1)
                PV(0, 0, oth)
                EX(cur, 2); EX(cur, 3); EX(cur, 4)
                PV(0, 1, oth)
                EX(cur, 5); EX(cur, 6); EX(cur, 7)
                kv(); S(nt, oth)
                EX(cur, 8); EX(cur, 9); EX(cur, 10)
                PV(1, 0, cur)
                for i in range(11, 16): EX(cur, i)
                a("s_nop 2")
            else:
                EX(cur, 0); EX(cur, 1)
                PV(t - 1, 1, oth)
                EX(cur, 2); EX(cur, 3); EX(cur, 4)
                if g != 127:
                    if t == 15: a("s_waitcnt lgkmcnt(0)")
                    kv(); S(nt, oth)
                EX(cur, 5); EX(cur, 6)
                if t == 14 and q < 7: a(f"ds_read_b128 {vr(QB,4)}, v{VLQ} offset:{(q+1)*1024}")
                for i in range(7, 10): EX(cur, i)
                PV(t, 0, cur)
                for i in range(10, 16): EX(cur, i)
    stamp(a, 8)
    a(f"s_setprio {OPT['prioT']}\ns_nop 0")
    PV(15, 1, 1)
    a("s_nop 11")
    flush(7 * 4 * PART)
    a.label(red)
    a(f"s_mul_i32 s{S_T}, s{W}, {2*4*PART}\ns_add_u32 s{S_T}, s{S_T}, {LDS_P}")
    a(f"v_lshl_add_u32 v{VL16}, v0, 4, s{S_T}\nv_and_b32 v{VL4}, 31, v0\nv_lshl_add_u32 v{VL4}, v{VL4}, 2, s{S_T}")
    lab = a.newlabel("marked")
    a(f"v_mov_b32 v18, {LDS_C + 4*3}")
    a.label(lab)
    a(f"ds_read_b32 v19, v18")
    lsync(a, 1, 4, 16, 17)
    stamp(a, 3)
    ok = a.newlabel("markok"); lab = a.newlabel("markw")
    a.label(lab)
    a(f"v_readfirstlane_b32 s{S_T}, v19\ns_cmp_ge_u32 s{S_T}, 4\ns_cbranch_scc1 {ok}")
    a(f"ds_read_b32 v19, v18\ns_waitcnt lgkmcnt(0)\ns_branch {lab}")
    a.label(ok)
    R = 64
    for j in range(2):
        for p in range(4):
            b = (j * 4 + p) * PART; r = R + (j * 4 + p) * 12
            a(f"ds_read_b32 v{r+8}, v{VL4} offset:{b+2048}")
        for p in range(4):
            b = (j * 4 + p) * PART; r = R + (j * 4 + p) * 12
            a(f"ds_read_b128 {vr(r,4)}, v{VL16} offset:{b}")
            a(f"ds_read_b128 {vr(r+4,4)}, v{VL16} offset:{b+1024}")
        r0 = R + j * 48
        a(f"s_waitcnt lgkmcnt(8)")
        a(f"v_add_f32 v{r0+8}, v{r0+8}, v{r0+20}\nv_add_f32 v{r0+32}, v{r0+32}, v{r0+44}\nv_add_f32 v{r0+8}, v{r0+8}, v{r0+32}")
        a(f"v_rcp_f32 v{r0+8}, v{r0+8}")
    for j in range(2):
        r0 = R + j * 48
        a("s_waitcnt vmcnt(0)" if j == 0 else "s_waitcnt lgkmcnt(0)")
        a(f"v_mul_f32 v{r0+8}, v{r0+8}, v{6+j}")
        for i in range(8): a(f"v_add_f32 v{r0+i}, v{r0+i}, v{r0+12+i}\nv_add_f32 v{r0+24+i}, v{r0+24+i}, v{r0+36+i}")
        for i in range(8): a(f"v_add_f32 v{r0+i}, v{r0+i}, v{r0+24+i}")
        for i in range(8): a(f"v_mul_f32 v{r0+i}, v{r0+i}, v{r0+8}")
        for i in range(4):
            a(f"v_cvt_pk_bf16_f32 v{r0+12+i}, v{r0+2*i}, v{r0+2*i+1}")
        a(f"buffer_store_dwordx4 {vr(r0+12,4)}, v{VO}, {WSR}, s{S_G} offen offset:{256*j} sc1")
    stamp(a, 4)
    stamp_dump(a)
    a("s_endpgm")
    a.label(slow)
    loop = a.newlabel("slowq"); spin = a.newlabel("slows")
    a("s_waitcnt vmcnt(0)")
    for t in range(NFIX, 16): vfix(t)
    a(f"v_lshlrev_b32 v6, 2, v0\nv_add_u32 v6, {LDS_X + 2048}, v6")
    a(f"s_lshl_b32 s{S_K1}, s{W}, 8\ns_mov_b32 s{S_K0}, 4")
    a.label(loop)
    a(f"ds_read_b128 {vr(QB,4)}, v{VLQ}\nv_add_u32 v{VLQ}, 1024, v{VLQ}")
    zero_o()
    a(f"v_mov_b32 v7, 0xff800000")
    a("s_waitcnt lgkmcnt(0)")
    for t in range(16):
        S(t, 0)
        a("s_nop 12")
        for i in range(0, 16, 2): a(f"v_max3_f32 v7, v7, v{SB[0]+i}, v{SB[0]+i+1}")
    a(f"v_mov_b32 v13, v7\ns_nop 1\nv_permlane32_swap_b32 v7, v13\nv_max_f32 v7, v7, v13")
    a(f"v_add_u32 v13, s{S_K1}, v6\nds_write_b32 v13, v7")
    a(f"v_mov_b32 v14, {LDS_C + 8}\nv_mov_b32 v15, 1\ns_mov_b64 exec, 1\nds_add_u32 v14, v15\ns_mov_b64 exec, -1")
    a.label(spin)
    a(f"ds_read_b32 v15, v14\ns_waitcnt lgkmcnt(0)\nv_readfirstlane_b32 s{S_T}, v15\ns_cmp_lt_u32 s{S_T}, s{S_K0}\ns_cbranch_scc1 {spin}")
    a(f"ds_read2st64_b32 v[14:15], v6 offset0:0 offset1:1\nds_read2st64_b32 v[16:17], v6 offset0:2 offset1:3")
    a("s_waitcnt lgkmcnt(0)")
    a("v_max3_f32 v7, v14, v15, v16\nv_max_f32 v7, v7, v17")
    for i in range(16): a(f"v_sub_f32 v{SB[1]+i}, 0, v7")
    a("s_nop 1")
    for t in range(16):
        S(t, 0, vr(SB[1], 16))
        a("s_nop 12")
        for i in range(16): EX(0, i)
        a("s_nop 1")
        PV(t, 0, 0); PV(t, 1, 0)
    a("s_nop 15")
    flush(0)
    a(f"v_add_u32 v{VL16}, {4*PART}, v{VL16}\nv_add_u32 v{VL4}, {4*PART}, v{VL4}\nv_xor_b32 v6, 1024, v6")
    a(f"s_add_u32 s{S_K0}, s{S_K0}, 4\ns_cmp_le_u32 s{S_K0}, 32\ns_cbranch_scc1 {loop}")
    gl(0, 6); gl(1, 7)
    a(f"s_branch {red}")

def ffn1(a):
    VXR, VWR = 8, 12
    T0, T1, T2 = 5, 6, 7
    lidle = a.newlabel("Fidle"); lend = a.newlabel("s1end")
    a(f"v_bfe_u32 v{T0}, v0, 4, 1\nv_lshlrev_b32 v66, 10, v{T0}\nv_and_b32 v{T0}, 32, v0\nv_lshl_add_u32 v66, v{T0}, 4, v66")
    a(f"v_and_b32 v{T0}, 15, v0\nv_lshl_add_u32 v66, v{T0}, 4, v66")
    a(f"s_lshl_b32 s{S_T}, s{S_A}, 2\ns_add_u32 s{S_T}, s{S_T}, s{W}\ns_lshl_b32 s{S_G}, s{S_T}, 15")
    a(f"s_lshl_b32 s{S_T}, s{S_B}, 11\ns_add_u32 s{S_G}, s{S_G}, s{S_T}\ns_add_u32 s{S_G}, s{S_G}, {WS_OP}")
    def sentinels():
        a("v_mov_b64 v[76:77], -1\nv_mov_b64 v[78:79], -1")
        for j in range(2): a(f"buffer_store_dwordx4 v[76:79], v66, {WSR}, s{S_G} offen offset:{256*j} sc1")
    a(f"s_cmp_ge_u32 s{S_ID}, 224\ns_cbranch_scc1 {lidle}")
    a(f"s_and_b32 s{S_T}, s{W}, 1\ns_lshl_b32 s{S_T}, s{S_T}, 13")
    a(f"v_and_b32 v{T0}, 15, v0\nv_lshrrev_b32 v{T1}, 4, v0\nv_bfe_u32 v{T2}, v0, 1, 3\nv_xor_b32 v{T2}, v{T2}, v{T1}")
    a(f"v_lshlrev_b32 v{T0}, 7, v{T0}\nv_add_u32 v{T0}, s{S_T}, v{T0}\nv_lshl_add_u32 v{VXR}, v{T2}, 4, v{T0}")
    a(f"v_xor_b32 v{T2}, 4, v{T2}\nv_lshl_add_u32 v{VXR+1}, v{T2}, 4, v{T0}")
    a(f"v_bfe_u32 v{T0}, v0, 2, 2\nv_bfe_u32 v{T2}, v0, 4, 1\nv_lshl_add_u32 v16, v{T2}, 3, v{T0}\nv_lshlrev_b32 v16, 8, v16")
    a(f"v_lshrrev_b32 v17, 5, v0\nv_lshl_add_u32 v16, v17, 13, v16\nv_and_b32 v17, 3, v0\nv_lshl_add_u32 v16, v17, 3, v16\nv_add_u32 v16, {WL}, v16")
    a(f"v_lshl_or_b32 v{T0}, v{T2}, 2, v{T0}\ns_and_b32 s{S_T}, s{W}, 2\ns_lshl_b32 s{S_T}, s{S_T}, 1\nv_xor_b32 v{T0}, s{S_T}, v{T0}")
    for jj in range(4):
        a(f"v_xor_b32 v{VWR+jj}, {jj}, v{T0}\nv_lshl_add_u32 v{VWR+jj}, v{VWR+jj}, 5, v16\nv_add_u32 v{68+jj}, 0x8000, v{VWR+jj}")
    kernarg_wait(a)
    def pfm():
        a(f"s_lshl_b32 s{S_T+4}, s{S_ID}, 2\ns_add_u32 s{S_T+4}, s{S_T+4}, s{W}\nv_lshlrev_b32 v80, 4, v0")
        srd(a, R_W0, S_WG, 512 * 3584); srd(a, R_W1, S_WU, 512 * 3584)
        a(f"s_lshl_b32 s{S_T}, s{S_T+4}, 11\ns_mul_i32 s{S_T+1}, s{S_T+4}, 2560")
        for i in range(3): a(f"buffer_load_dwordx4 v[84:87], v80, {rs(R_X)}, s{S_T+1} offen offset:{1024*i}")
        for i in range(2):
            a(f"buffer_load_dwordx4 v[84:87], v80, {rs(R_W0)}, s{S_T} offen offset:{1024*i}\nbuffer_load_dwordx4 v[84:87], v80, {rs(R_W1)}, s{S_T} offen offset:{1024*i}")
    if OPT.get("pfm") == 1: pfm()
    if OPT["pfx"] or OPT["pfw"]:
        a(f"s_lshr_b32 s{S_T+4}, s{S_ID}, 3\ns_lshl_b32 s{S_T+4}, s{S_T+4}, 2\ns_add_u32 s{S_T+4}, s{S_T+4}, s{W}\nv_lshlrev_b32 v80, 4, v0")
        if OPT.get("pfd"): a(f"s_sleep {OPT['pfd']}")
        if OPT["pfx"]:
            a(f"s_and_b32 s{S_T}, s{S_ID}, 1\ns_lshl_b32 s{S_T}, s{S_T}, 20\ns_mul_i32 s{S_T+1}, s{S_T+4}, {9*1024}\ns_add_u32 s{S_T}, s{S_T}, s{S_T+1}")
            for i in range(9):
                a(f"buffer_load_dwordx4 v[84:87], v80, {rs(R_X)}, s{S_T} offen\ns_add_u32 s{S_T}, s{S_T}, 1024")
        if OPT["pfw"]:
            srd(a, R_W0, S_WG, 512 * 3584); srd(a, R_W1, S_WU, 512 * 3584)
            a(f"s_bfe_u32 s{S_T}, s{S_ID}, 0x20001\ns_mul_i32 s{S_T}, s{S_T}, 28\ns_lshr_b32 s{S_T}, s{S_T}, 3\ns_lshl_b32 s{S_T}, s{S_T}, 8")
            a(f"s_mul_i32 s{S_T+1}, s{S_T+4}, 3584\ns_add_u32 s{S_T}, s{S_T}, s{S_T+1}")
            for i in range(5):
                a(f"buffer_load_dwordx4 v[84:87], v80, {rs(R_W0)}, s{S_T} offen\nbuffer_load_dwordx4 v[84:87], v80, {rs(R_W1)}, s{S_T} offen\ns_add_u32 s{S_T}, s{S_T}, {112*3584}")
    finish_tag_ack(a, 64, 65)
    ACC = 128
    FX = (16, 32); FW = 80
    acc_ = lambda jj, mat, p: ACC + 32 * jj + 16 * mat + 4 * p
    lq = []
    def lds(x, tag): a(x); lq.append(tag)
    def lwait(tags):
        idx = max((i for i, t in enumerate(lq) if t in tags), default=-1)
        n = len(lq) - 1 - idx
        del lq[:idx + 1]
        a(f"s_waitcnt lgkmcnt({min(n, 15)})")
    def rdX(J): return [(f"ds_read_b128 {vr(FX[J&1]+4*p,4)}, v{VXR + J%2} offset:{XL + ((J//2)%3)*16384 + p*2048}", ("X", J)) for p in range(4)]
    def rdW(J, fi):
        sl = (2 * J) % OPT["nw"]; wr = VWR if sl < 4 else 68; so = sl if sl < 4 else sl - 4
        return [(f"ds_read_b64_tr_b16 {vr(FW+4*fi+2*hf,2)}, v{wr+fi//2} offset:{so*8192 + (fi%2)*4096 + hf*1024}", ("W", J, fi)) for hf in range(2)]
    a("s_barrier")
    stamp(a, 1)
    for x in rdX(0) + [y for fi in range(8) for y in rdW(0, fi)][:10]: lds(*x)
    lwait({("X", 0), ("W", 0, 0)})
    for x in [y for fi in range(5, 8) for y in rdW(0, fi)]: lds(*x)
    LB = OPT["lastbar"]
    c0 = -2.0 * LOG2E * math.sqrt(2.0 / math.pi); c1 = c0 * 0.044715
    for J in range(16):
        if OPT.get("fst") and J in (2, 4, 8, 12): stamp(a, {2: 5, 4: 6, 8: 7, 12: 8}[J], True)
        if J == 4:
            a("s_waitcnt vmcnt(0)")
            a(f"v_lshlrev_b32 v2, 4, v0\nv_mov_b32 v4, {f2u(c0):#x}\nv_mov_b32 v5, {f2u(c0):#x}")
            a(f"s_mov_b32 s{S_K2}, {f2u(c1):#x}\ns_mov_b32 s{S_K2+1}, {f2u(c1):#x}")
            a(f"s_lshl_b32 s{S_T}, s{S_A}, 2\ns_and_b32 s{S_T+1}, s{W}, 1\ns_lshl_b32 s{S_T+1}, s{S_T+1}, 1\ns_add_u32 s{S_T}, s{S_T}, s{S_T+1}")
            a(f"s_mul_i32 s{S_T}, s{S_T}, 112\ns_lshl_b32 s{S_T+1}, s{S_B}, 3\ns_add_u32 s{S_T}, s{S_T}, s{S_T+1}")
            a(f"s_and_b32 s{S_T+1}, s{W}, 2\ns_lshl_b32 s{S_T+1}, s{S_T+1}, 1\ns_add_u32 s{S_T}, s{S_T}, s{S_T+1}\ns_lshl_b32 s{S_T}, s{S_T}, 10")
            a(f"s_add_u32 s{S_E}, s{S_T}, {WS_HP}\ns_add_u32 s{S_F}, s{S_E}, {112*1024}")
        if J in (OPT["look"], OPT["look"] + 2):
            lab = a.newlabel("nolook")
            a(f"s_cmp_lg_u32 s{W}, 0\ns_cbranch_scc1 {lab}")
            if J == OPT["look"]:
                a(f"v_lshlrev_b32 v72, 3, v0\ns_mov_b32 s{S_K0}, {WS_RECK}")
                a(f"buffer_load_dwordx2 v[74:75], v72, {WSR}, s{S_K0} offen sc1\nbuffer_load_dwordx2 v[76:77], v72, {WSR}, s{S_K0} offen offset:512 sc1")
            else:
                a(f"s_waitcnt vmcnt(0)\nv_cmp_ne_u32 vcc, s{S_TAG}, v74\nv_cmp_ne_u32 s[{S_T+6}:{S_T+7}], s{S_TAG}, v76")
                wave_max(a, 75)
                a(f"s_or_b64 vcc, vcc, s[{S_T+6}:{S_T+7}]\ns_cmp_eq_u64 vcc, 0\ns_cselect_b32 s{S_T}, 1, 0")
                a(f"v_mov_b32 v76, s{S_T}\nv_mov_b32 v72, {LDS_X + 1024}\ns_mov_b32 exec_lo, 0\ns_mov_b32 exec_hi, 0x80000000")
                a(f"ds_write2_b32 v72, v75, v76 offset0:0 offset1:1\ns_mov_b64 exec, -1\ns_waitcnt lgkmcnt(0)")
            a.label(lab)
        BP = OPT["barpos"]
        if J <= LB and BP == 0: a("s_barrier")
        pend = rdX(J + 1) if J < 15 else []
        for fi in range(8):
            if J <= LB and BP and fi == BP: a("s_barrier")
            lwait({("W", J, fi), ("X", J)})
            for p in range(4):
                ac = acc_(fi // 2, fi % 2, p)
                a(f"v_mfma_f32_16x16x32_bf16 {vr(ac,4)}, {vr(FW+4*fi,4)}, {vr(FX[J&1]+4*p,4)}, {'0' if J == 0 else vr(ac,4)}")
                if pend and (p != 3 or BP) and fi >= BP: lds(*pend.pop(0))
            if J < 15: pend += rdW(J + 1, fi)
        while pend: lds(*pend.pop(0))
        if J == 14: a(f"v_mov_b32 v6, {LDS_C + 4*10}\nv_mov_b32 v7, 1\ns_mov_b64 exec, 1\nds_add_u32 v6, v7\ns_mov_b64 exec, -1"); lq.append(("c", 0))
    stamp(a, 2)
    a(f"s_setprio {OPT['prioG']}")
    a("s_nop 7")
    for jj in range(4):
        G_ = ACC + 32 * jj; TT = 16 + 16 * (jj & 1)
        P2 = [(G_ + i, TT + i) for i in range(0, 16, 2)]
        for g_, t_ in P2: a(f"v_pk_mul_f32 {vr(t_,2)}, {vr(g_,2)}, {vr(g_,2)}")
        for g_, t_ in P2: a(f"v_pk_fma_f32 {vr(t_,2)}, {vr(t_,2)}, s[{S_K2}:{S_K2+1}], v[4:5]")
        for g_, t_ in P2: a(f"v_pk_mul_f32 {vr(t_,2)}, {vr(t_,2)}, {vr(g_,2)}")
        for g_, t_ in P2: a(f"v_exp_f32 v{t_}, v{t_}\nv_exp_f32 v{t_+1}, v{t_+1}")
        for g_, t_ in P2: a(f"v_pk_mul_f32 {vr(g_,2)}, {vr(g_,2)}, {vr(g_+16,2)}")
        for g_, t_ in P2: a(f"v_pk_add_f32 {vr(t_,2)}, {vr(t_,2)}, 1.0 op_sel_hi:[1,0]")
        for g_, t_ in P2: a(f"v_rcp_f32 v{t_}, v{t_}\nv_rcp_f32 v{t_+1}, v{t_+1}")
        a("s_nop 0")
        for g_, t_ in P2: a(f"v_pk_mul_f32 {vr(g_,2)}, {vr(g_,2)}, {vr(t_,2)}")
        for i in range(8): a(f"v_cvt_pk_bf16_f32 v{G_+16+i}, v{G_+2*i}, v{G_+2*i+1}")
        for m in range(2):
            h0 = G_ + 16 + 4 * m
            if m == 1 or True: a("s_nop 0") if m == 0 else None
            a(f"v_permlane16_swap_b32 v{h0}, v{h0+2}\nv_permlane16_swap_b32 v{h0+1}, v{h0+3}")
            a(f"buffer_store_dwordx4 {vr(h0,4)}, v2, {WSR}, s{S_E if m == 0 else S_F} offen offset:{jj*1024} sc1")
    if OPT["sentat"] > 31: sentinels()
    a(f"s_lshl_b32 s{S_T}, s{S_A}, 11\ns_lshl_b32 s{S_T+1}, s{S_B}, 7\ns_add_u32 s{S_T}, s{S_T}, s{S_T+1}\ns_add_u32 s{S_T}, s{S_T}, {WS_FLH}")
    stamp(a, 3)
    a("s_waitcnt vmcnt(0)")
    lsync(a, 3, 4, 6, 7, OPT['lsl'])
    lab = a.newlabel("ringdead")
    a(f"v_mov_b32 v6, {LDS_C + 4*10}")
    a.label(lab)
    a(f"ds_read_b32 v7, v6\ns_waitcnt lgkmcnt(0)\nv_readfirstlane_b32 s{S_T+10}, v7\ns_cmp_lt_u32 s{S_T+10}, 8\ns_cbranch_scc1 {lab}")
    stamp(a, 4)
    a(f"s_cmp_lg_u32 s{W}, 0\ns_cbranch_scc1 {lend}")
    a(f"s_mov_b64 exec, 1\nbuffer_store_dword v64, v65, {WSR}, s{S_T} offen sc1\ns_mov_b64 exec, -1")
    a(f"s_branch {lend}")
    a.label(lidle)
    VER, VGR, VLIN = 12, 13, 4
    a(f"s_lshl_b32 s{S_T}, s{W}, 12")
    x_read_addr(a, VXR, T0, T1, T2, S_T)
    a(f"v_bfe_u32 v{T0}, v0, 2, 2\nv_lshl_add_u32 v{T0}, v{T1}, 3, v{T0}\nv_and_b32 v{T2}, 3, v0\nv_lshlrev_b32 v{T2}, 3, v{T2}")
    a(f"v_lshl_add_u32 v{VER}, v{T0}, 5, v{T2}\nv_add_u32 v{VER}, {IEL}, v{VER}\nv_lshlrev_b32 v{VGR}, 4, v{T1}\nv_add_u32 v{VGR}, {IGL}, v{VGR}")
    a(f"v_lshlrev_b32 v{VLIN}, 4, v0\ns_lshl_b32 s{S_F}, s{S_A}, 2\ns_add_u32 s{S_F}, s{S_F}, s{W}   ; tt")
    kernarg_wait(a)
    finish_tag_ack(a, 64, 65)
    lv = a.newlabel("FV"); pub = a.newlabel("Fpub")
    ACK, ACG, XF, EF, GF, P = 32, 48, 16, 24, 88, 80
    sentinels()
    a(f"s_cmp_eq_u32 s{S_B}, 15\ns_cbranch_scc1 {lv}")
    for v in "KV":
        if v == "V": a.label(lv)
        def reads(j):
            b = j & 1; u = j // 4
            a(f"ds_read_b128 {vr(XF+4*b,4)}, v{VXR + j%4} offset:{(u%4)*16384}")
            a(f"ds_read_b64_tr_b16 {vr(EF+4*b,2)}, v{VER} offset:{j*512}\nds_read_b64_tr_b16 {vr(EF+4*b+2,2)}, v{VER} offset:{j*512 + 128}")
            if v == "K": a(f"ds_read_b128 {vr(GF+4*b,4)}, v{VGR} offset:{j*32}")
        for u in range(8):
            a("s_barrier")
            reads(4 * u)
            for ks in range(4):
                j = 4 * u + ks; b = j & 1
                if ks < 3: reads(j + 1); a(f"s_waitcnt lgkmcnt({4 if v == 'K' else 3})")
                else: a("s_waitcnt lgkmcnt(0)")
                cc = (lambda r: "0") if j == 0 else (lambda r: vr(r, 16))
                if v == "K":
                    a(f"v_mfma_f32_32x32x16_bf16 {vr(ACK,16)}, {vr(EF+4*b,4)}, {vr(XF+4*b,4)}, {cc(ACK)}")
                    a(f"v_mfma_f32_32x32x16_bf16 {vr(ACG,16)}, {vr(GF+4*b,4)}, {vr(XF+4*b,4)}, {cc(ACG)}")
                else:
                    a(f"v_mfma_f32_32x32x16_bf16 {vr(ACK,16)}, {vr(XF+4*b,4)}, {vr(EF+4*b,4)}, {cc(ACK)}")
        stamp(a, 2)
        a("s_nop 15")
        if v == "K":
            for j in range(8): a(f"v_mul_f32 v{ACK+j}, {f2u(0.25*LOG2E):#x}, v{ACK+j}")
            for j in range(4): a(f"v_cvt_pk_bf16_f32 v{P+j}, v{ACK+2*j}, v{ACK+2*j+1}")
            a(f"v_and_b32 v{T1}, 0x33, v0\nv_bfe_u32 v{T2}, v0, 2, 1\nv_lshl_or_b32 v{T1}, v{T2}, 3, v{T1}")
            a(f"v_bfe_u32 v{T2}, v0, 3, 1\nv_lshl_or_b32 v{T1}, v{T2}, 2, v{T1}\nv_lshlrev_b32 v{T1}, 4, v{T1}")
            a(f"s_lshl_b32 s{S_T}, s{S_F}, 10\ns_add_u32 s{S_T}, s{S_T}, {WS_KP}")
            a(f"buffer_store_dwordx4 {vr(P,4)}, v{T1}, {WSR}, s{S_T} offen sc1")
            a(f"v_mul_f32 v20, {f2u(-LOG2E):#x}, v{ACG}\nv_exp_f32 v20, v20\nv_and_b32 v21, 31, v0")
            a(f"v_add_f32 v20, 1.0, v20\nv_rcp_f32 v20, v20\nv_lshlrev_b32 v21, 2, v21")
            a(f"s_lshl_b32 s{S_T}, s{S_F}, 7\ns_add_u32 s{S_T}, s{S_T}, {WS_G}")
            a(f"buffer_store_dword v20, v21, {WSR}, s{S_T} offen sc1")
            a(f"v_mul_f32 v{T0}, v{ACK}, v{ACK}")
            for j in range(1, 8): a(f"v_fmac_f32 v{T0}, v{ACK+j}, v{ACK+j}")
            a(f"v_mov_b32 v67, v{T0}\ns_nop 1\nv_permlane32_swap_b32 v{T0}, v67\nv_add_f32 v67, v{T0}, v67")
            wave_max(a, 67)
            a(f"s_mov_b32 s{S_T+1}, {WS_RECK}")
            a(f"s_branch {pub}")
        else:
            for j in range(8): a(f"v_cvt_pk_bf16_f32 v{P+j}, v{ACK+2*j}, v{ACK+2*j+1}")
            a(f"v_and_b32 v{T1}, 16, v0\nv_cmp_ne_u32 vcc, 0, v{T1}")
            a(f"s_lshl_b32 s{S_T}, s{S_F}, 10\ns_add_u32 s{S_T}, s{S_T}, {WS_VP}")
            for j in range(4): a(f"v_cndmask_b32 v{P+j}, v{P+j}, v{P+4+j}, vcc")
            a(f"buffer_store_dwordx4 {vr(P,4)}, v{VLIN}, {WSR}, s{S_T} offen sc1")
            a(f"s_mov_b32 s{S_T+1}, {WS_RECK + 512}\nv_mov_b32 v67, 0")
    a.label(pub)
    a(f"s_lshl_b32 s{S_T}, s{S_F}, 3\ns_add_u32 s{S_T+1}, s{S_T+1}, s{S_T}\nv_mov_b32 v66, s{S_TAG}")
    a("s_mov_b32 exec_lo, 0\ns_mov_b32 exec_hi, 0x80000000\ns_waitcnt vmcnt(0)")
    stamp(a, 3)
    a(f"buffer_store_dwordx2 v[66:67], v65, {WSR}, s{S_T+1} offen sc1\ns_mov_b64 exec, 1")
    a(f"v_mov_b32 v6, {LDS_C + 4*3}\nv_mov_b32 v7, 1\nds_add_u32 v6, v7\ns_mov_b64 exec, -1")
    a("s_barrier")
    epoch_update(a)
    a.label(lend)

def epoch_update(a):
    lab = a.newlabel("noepoch")
    a(f"s_cmp_lg_u32 s{S_ID}, 224\ns_cbranch_scc1 {lab}\ns_cmp_lg_u32 s{W}, 1\ns_cbranch_scc1 {lab}")
    a(f"v_lshlrev_b32 v2, 4, v0\ns_mov_b32 s{S_T+6}, {WS_ACK}\ns_mov_b32 s{S_T+7}, {WS_ACK+4096}")
    loads, regs = [], []
    for i in range(8):
        loads.append(f"buffer_load_dwordx4 {vr(16+4*i,4)}, v2, {WSR}, s{S_T+6+i//4} offen offset:{(i%4)*1024} sc1")
        regs += [16 + 4*i + j for j in range(4)]
    poll(a, loads, regs, sleep=64)
    a(f"s_mov_b64 exec, 1\nbuffer_store_dword v64, v65, {WSR}, 0 offen offset:{WS_EPOCH} sc1\ns_mov_b64 exec, -1")
    a.label(lab)

def ffn2(a):
    a(f"s_and_b32 s{S_T}, s{S_ID}, 1\ns_lshl_b32 s{S_T}, s{S_T}, 4\ns_and_b32 s{S_T+1}, s{S_ID}, 2\ns_lshl_b32 s{S_T+1}, s{S_T+1}, 2")
    a(f"s_add_u32 s{S_T}, s{S_T}, s{S_T+1}\ns_bfe_u32 s{S_T+1}, s{S_ID}, 0x30003\ns_add_u32 s{S_A}, s{S_T}, s{S_T+1}   ; tb64")
    a(f"s_and_b32 s{S_T}, s{S_ID}, 4\ns_lshr_b32 s{S_T+1}, s{S_ID}, 6\ns_add_u32 s{S_B}, s{S_T}, s{S_T+1}   ; cb")
    srd(a, R_W0, S_WD, 1792 * 1024); srd(a, R_W1, S_WO, 512 * 1024); srd(a, R_OUT, S_OUT, 2048 * 1024)
    VWS, VLIN, VR0, VR1, VG = 2, 3, 4, 5, 6
    T0, T1, T2 = 8, 9, 10
    a(f"v_lshrrev_b32 v{T0}, 3, v0\nv_and_b32 v{T1}, 7, v0\nv_bfe_u32 v{T2}, v0, 4, 1\nv_lshlrev_b32 v{T2}, 2, v{T2}")
    a(f"v_xor_b32 v{VWS}, v{T2}, v{T1}\nv_lshlrev_b32 v{VWS}, 4, v{VWS}\nv_lshl_add_u32 v{VWS}, v{T0}, 10, v{VWS}")
    a(f"v_lshlrev_b32 v{VLIN}, 4, v0")
    a(f"v_lshrrev_b32 v{T1}, 5, v0\nv_bfe_u32 v{T0}, v0, 2, 2\nv_lshl_add_u32 v{T0}, v{T1}, 2, v{T0}\nv_and_b32 v{T2}, 3, v0")
    a(f"v_lshlrev_b32 v{T2}, 3, v{T2}\nv_lshl_add_u32 v{VR0}, v{T0}, 7, v{T2}\nv_bfe_u32 v{T0}, v0, 4, 1\nv_bfe_u32 v{T2}, v0, 3, 1")
    a(f"v_lshl_or_b32 v{T0}, v{T2}, 1, v{T0}\nv_xor_b32 v{T2}, 2, v{T0}")
    a(f"v_lshl_add_u32 v{VR1}, v{T2}, 5, v{VR0}\nv_lshl_add_u32 v{VR0}, v{T0}, 5, v{VR0}")
    a(f"s_mul_i32 s{S_M0B}, s{W}, 20480")
    a(f"v_add_u32 v{VR0}, s{S_M0B}, v{VR0}\nv_add_u32 v{VR1}, s{S_M0B}, v{VR1}")
    a(f"v_lshlrev_b32 v{T1}, 9, v{T1}\nv_add_u32 v14, v{VR0}, v{T1}\nv_add_u32 v15, v{VR1}, v{T1}")
    a(f"s_lshl_b32 s{S_T}, s{S_B}, 7\ns_lshl_b32 s{S_C}, s{W}, 14\ns_add_u32 s{S_C}, s{S_C}, s{S_T}")
    a(f"s_mul_i32 s{S_D}, s{S_A}, {2*112*1024}\ns_lshl_b32 s{S_T}, s{W}, 10\ns_add_u32 s{S_D}, s{S_D}, s{S_T}")
    a(f"s_add_u32 s{S_D}, s{S_D}, {WS_HP}\ns_add_u32 s{S_E}, s{S_D}, {112*1024}")
    a(f"s_lshl_b32 s{S_T}, s{S_B}, 1\ns_add_u32 s{S_T}, s{S_T}, s{S_A}\ns_and_b32 s{S_T}, s{S_T}, {OPT['rot2']}")
    a(f"s_mul_i32 s{S_T}, s{S_T}, 7\ns_lshr_b32 s{S_T}, s{S_T}, 1\ns_lshl_b32 s{S_K2}, s{S_T}, 16\ns_lshl_b32 s{S_K3}, s{S_T}, 12")
    ACC, HF, FW = 64, 128, (16, 24)
    NS, D = 28, 8
    q = []
    def issueW(n):
        a(f"s_add_u32 s{S_T+1}, s{S_C}, s{S_K2}")
        for p in range(2):
            dma(a, VWS, R_W0, S_T, S_T + 1, p * 8192, (n % D) * 2048 + p * 1024); q.append(("W", n))
        a(f"s_add_u32 s{S_K2}, s{S_K2}, 65536\ns_cmp_eq_u32 s{S_K2}, {28*65536}\ns_cselect_b32 s{S_K2}, 0, s{S_K2}")
    def issueWo(n):
        for p in range(2):
            dma(a, VWS, R_W1, S_T, S_G, (n - NS) * 16384 + p * 8192, (n % D) * 2048 + p * 1024); q.append(("W", n))
    def issueH(n):
        a(f"s_add_u32 s{S_T}, s{S_D}, s{S_K3}\ns_add_u32 s{S_T+1}, s{S_E}, s{S_K3}")
        a(f"s_add_u32 s{S_K3}, s{S_K3}, 4096\ns_cmp_eq_u32 s{S_K3}, {28*4096}\ns_cselect_b32 s{S_K3}, 0, s{S_K3}")
        a(f"buffer_load_dwordx4 {vr(HF+(n%D)*8,4)}, v{VLIN}, {WSR}, s{S_T} offen{SC()}"); q.append(("H", n))
        a(f"buffer_load_dwordx4 {vr(HF+(n%D)*8+4,4)}, v{VLIN}, {WSR}, s{S_T+1} offen{SC()}"); q.append(("H", n))
    def waitfor(tags):
        idx = max((i for i, t in enumerate(q) if t in tags), default=-1)
        n = len(q) - 1 - idx
        del q[:idx + 1]
        a(f"s_waitcnt vmcnt({n})")
    def rd_list(n):
        b = n & 1
        return [f"ds_read_b64_tr_b16 {vr(FW[b]+4*ct+2*hf,2)}, v{14+ct} offset:{(n%D)*2048 + hf*512}" for ct in range(2) for hf in range(2)]
    a(f"s_lshl_b32 s{S_G}, s{W}, 17\ns_lshl_b32 s{S_T}, s{S_B}, 7\ns_add_u32 s{S_G}, s{S_G}, s{S_T}")
    for n in range(OPT.get("wpre", 2)): issueW(n)
    lab = a.newlabel("nopoll")
    a(f"s_cmp_lg_u32 s{W}, 0\ns_cbranch_scc1 {lab}")
    a(f"s_lshr_b32 s{S_T+4}, s{S_A}, 1\ns_lshl_b32 s{S_T+4}, s{S_T+4}, 11\ns_add_u32 s{S_T+4}, s{S_T+4}, {WS_FLH}")
    a(f"s_lshl_b32 s{S_T+5}, s{S_A}, 4\ns_add_u32 s{S_T+5}, s{S_T+5}, {WS_RECK}")
    a(f"v_lshlrev_b32 v11, 7, v0\nv_add_u32 v11, s{S_T+4}, v11\nv_and_b32 v12, 1, v0\nv_lshlrev_b32 v12, 3, v12\nv_add_u32 v12, s{S_T+5}, v12")
    a(f"v_and_b32 v13, 32, v0\nv_lshl_add_u32 v12, v13, 4, v12")
    a(f"v_cmp_gt_u32 vcc, 14, v0\ns_nop 1\nv_cndmask_b32 v11, v12, v11, vcc")
    poll(a, [f"buffer_load_dword v13, v11, {WSR}, 0 offen sc1"], [13], sleep=12)
    a.label(lab)
    a("s_waitcnt vmcnt(0)")
    lsync(a, 4, 4, 11, 12, 4 * OPT['lsl'])
    q.clear()
    stamp(a, 5)
    a(f"s_setprio {OPT['prioD']}")
    for n in range(D):
        if n >= OPT.get("wpre", 2): issueW(n)
        issueH(n)
    a(f"s_lshl_b32 s{S_T}, s{S_A}, 8\ns_add_u32 s{S_T}, s{S_T}, {WS_G}\nv_and_b32 v{T0}, 31, v0\nv_lshlrev_b32 v{T0}, 2, v{T0}")
    for m in range(2):
        a(f"buffer_load_dword v{VG+m}, v{T0}, {WSR}, s{S_T} offen offset:{128*m}{SC()}"); q.append(("G", 0))
    waitfor({("W", 0)})
    for l in rd_list(0): a(l)
    def step(n, bsrc, extra=None):
        b = n & 1
        rl = rd_list(n + 1) if n + 1 < NS + 8 else []
        for k in range(4):
            ct, m = k // 2, k % 2
            acc = ACC + 16 * k
            c = "0" if n == 0 else vr(acc, 16)
            a(f"v_mfma_f32_32x32x16_bf16 {vr(acc,16)}, {vr(FW[b]+4*ct,4)}, {vr(bsrc+4*m,4)}, {c}")
            for _ in range(2):
                if rl: a(rl.pop(0))
            if k == 2 and extra: extra()
            if OPT.get("space") and k != 2: a(f"s_nop {OPT['space']}")
    a(f"s_lshl_b32 s{S_F}, s{S_A}, 16\ns_lshl_b32 s{S_T}, s{W}, 13\ns_add_u32 s{S_F}, s{S_F}, s{S_T}\ns_add_u32 s{S_F}, s{S_F}, {WS_OP}")
    a(f"v_and_b32 v11, 3, v0\nv_lshlrev_b32 v11, 11, v11\nv_and_b32 v12, 4, v0\nv_lshl_add_u32 v11, v12, 13, v11")
    a(f"v_lshl_add_u32 v{T0}, v0, 4, s{S_M0B}")
    a(f"v_lshlrev_b32 v{T1}, 4, v0\ns_lshl_b32 s{S_T}, s{W}, 12\nv_add_u32 v{T1}, s{S_T}, v{T1}")
    a(f"v_and_b32 v{T2}, 31, v0\nv_lshlrev_b32 v{T2}, 10, v{T2}\nv_and_b32 v12, 32, v0\nv_lshrrev_b32 v12, 1, v12\nv_add_u32 v{T2}, v{T2}, v12")
    a(f"s_lshl_b32 s{S_K0}, s{S_A}, 16\ns_lshl_b32 s{S_T+1}, s{S_B}, 7\ns_add_u32 s{S_K0}, s{S_K0}, s{S_T+1}")
    a(f"s_and_b32 s{S_T+1}, s{W}, 1\ns_lshl_b32 s{S_T+1}, s{S_T+1}, 15\ns_add_u32 s{S_K0}, s{S_K0}, s{S_T+1}")
    a(f"s_and_b32 s{S_T+1}, s{W}, 2\ns_lshl_b32 s{S_T+1}, s{S_T+1}, 5\ns_add_u32 s{S_K0}, s{S_K0}, s{S_T+1}")
    HOLD = OPT["hold"]; NF = NS - HOLD; R_ = HOLD - 8
    assert 8 <= HOLD <= 16
    WX, HX, NSL = 192, 32, 10
    def mm(n, wsrc, bsrc, rl=(), extra=None, dst=None, src=None):
        rl = list(rl)
        for k in range(4):
            ct, m = k // 2, k % 2
            acc = ACC + 16 * k
            d_ = (dst or ACC) + 16 * k; c_ = (src or dst or ACC) + 16 * k
            a(f"v_mfma_f32_32x32x16_bf16 {vr(d_,16)}, {vr(wsrc+4*ct,4)}, {vr(bsrc+4*m,4)}, {'0' if n == 0 else vr(c_,16)}")
            for _ in range(2):
                if rl: a(rl.pop(0))
            if k == 2 and extra: extra()
    def rd(dst, slot, wo=False): return [f"ds_read_b64_tr_b16 {vr(dst+4*ct+2*hf,2)}, v{(VR0,VR1)[ct] if wo else 14+ct} offset:{slot*2048 + hf*(1024 if wo else 512)}" for ct in range(2) for hf in range(2)]
    def wo_dma(j, slot):
        for p in range(2): dma(a, VWS, R_W1, S_T, S_G, j * 16384 + p * 8192, slot * 2048 + p * 1024); q.append(("O", j))
    def h_load(dst, tag):
        a(f"s_add_u32 s{S_T}, s{S_D}, s{S_K3}\ns_add_u32 s{S_T+1}, s{S_E}, s{S_K3}")
        a(f"s_add_u32 s{S_K3}, s{S_K3}, 4096\ns_cmp_eq_u32 s{S_K3}, {28*4096}\ns_cselect_b32 s{S_K3}, 0, s{S_K3}")
        a(f"buffer_load_dwordx4 {vr(dst,4)}, v{VLIN}, {WSR}, s{S_T} offen{SC()}\nbuffer_load_dwordx4 {vr(dst+4,4)}, v{VLIN}, {WSR}, s{S_T+1} offen{SC()}")
        q.append(tag); q.append(tag)
    for n in range(NF):
        waitfor({("H", n), ("W", n + 1)})
        a("s_waitcnt lgkmcnt(0)")
        mm(n, FW[n & 1], HF + (n % D) * 8, rd(FW[(n + 1) & 1], (n + 1) % D) if n + 1 < NF else [], lambda: issueW(n + D))
        issueH(n + D)
    a("s_waitcnt vmcnt(0)"); q.clear()
    for i in range(8):
        for l in rd(WX + 8 * i, (NF + i) % D): a(l)
        if i % 3 == 2: a("s_waitcnt lgkmcnt(4)")
    a("s_waitcnt lgkmcnt(0)")
    for i in range(R_):
        a(f"s_add_u32 s{S_T+1}, s{S_C}, s{S_K2}")
        for p in range(2): dma(a, VWS, R_W0, S_T, S_T + 1, p * 8192, i * 2048 + p * 1024)
        a(f"s_add_u32 s{S_K2}, s{S_K2}, 65536\ns_cmp_eq_u32 s{S_K2}, {28*65536}\ns_cselect_b32 s{S_K2}, 0, s{S_K2}")
        if i < 4: h_load(HX + 8 * i, ("h", i))
    NPRE = min(8, NSL - R_)
    oslot = lambda j: R_ + j if j < NPRE else j - NPRE
    for j in range(NPRE): wo_dma(j, oslot(j))
    a("s_waitcnt vmcnt(0)"); q.clear()
    A1 = list(range(min(R_, 4))); A2 = list(range(4, R_))
    ringseq = A1 + A2 + [oslot(0)]
    for l in rd(FW[0], ringseq[0], R_ == 0): a(l)
    stamp(a, 6)
    lab = a.newlabel("hold")
    a(f"v_mov_b32 v12, {LDS_C + 4*1}")
    a.label(lab)
    a(f"s_sleep 2\nds_read_b32 v13, v12\ns_waitcnt lgkmcnt(0)\nv_readfirstlane_b32 s{S_T+10}, v13\ns_cmp_lt_u32 s{S_T+10}, {OPT.get('holdn', 1)}\ns_cbranch_scc1 {lab}")
    if OPT.get("dbgat") == 11: a("s_memrealtime s[8:9]")
    a(f"s_setprio {OPT['prioG']}")
    def free_slot(i):
        if NPRE + i < 8: wo_dma(NPRE + i, i)
    for i in A1:
        a("s_waitcnt lgkmcnt(0)")
        mm(1, FW[i & 1], HX + 8 * i, rd(FW[(i + 1) & 1], ringseq[i + 1], i + 1 == R_))
        if i + 4 < R_: h_load(HX + 8 * i, ("h", i + 4))
    for i in range(8): mm(1, WX + 8 * i, HF + ((NF + i) % D) * 8, extra=(lambda: free_slot(i)) if i in A1 else None)
    for i in A2:
        waitfor({("h", i)})
        a("s_waitcnt lgkmcnt(0)")
        mm(1, FW[i & 1], HX + 8 * (i - 4), rd(FW[(i + 1) & 1], ringseq[i + 1], i + 1 == R_), lambda: free_slot(i))
    a(f"v_sub_f32 v{VG}, 1.0, v{VG}\nv_sub_f32 v{VG+1}, 1.0, v{VG+1}")
    a(f"s_add_u32 s{S_D}, s{S_F}, 4096\ns_add_u32 s{S_E}, s{S_F}, 32768\ns_add_u32 s{S_C}, s{S_E}, 4096")
    a("s_nop 7")
    for k in range(4):
        for i in range(0, 16, 2):
            sel = "op_sel:[0,0] op_sel_hi:[1,0]" if k % 2 == 0 else "op_sel:[0,1] op_sel_hi:[1,1]"
            a(f"v_pk_mul_f32 {vr(ACC+16*k+i,2)}, {vr(ACC+16*k+i,2)}, {vr(VG,2)} {sel}")
    stamp(a, 7)
    again = a.newlabel("oagain"); ok = a.newlabel("ook"); fin = a.newlabel("ofin")
    a(f"s_mov_b32 s{S_T+10}, 0x40000")
    a.label(again)
    a(f"buffer_load_dword v13, v11, {WSR}, s{S_F} offen offset:2044 sc1")
    a(f"s_sub_u32 s{S_T+10}, s{S_T+10}, 1")
    a(f"s_waitcnt vmcnt(0)\nv_cmp_eq_u32 vcc, -1, v13\ns_cbranch_vccz {ok}")
    a(f"s_mov_b64 exec, vcc\n{'s_sleep 1' if OPT['wsl'] else 's_nop 0'}\ns_cmp_gt_i32 s{S_T+10}, 0\ns_cbranch_scc1 {again}")
    a.label(ok)
    a("s_mov_b64 exec, -1")
    q.clear()
    stamp(a, 8)
    for j in range(8):
        for m in range(2):
            sreg = (S_F, S_E, S_D, S_C)[m + 2 * (j // 4)]
            a(f"buffer_load_dwordx4 {vr(HF+8*j+4*m,4)}, v{VLIN}, {WSR}, s{sreg} offen offset:{(j%4)*1024} sc1")
    a("v_mov_b32 v12, 0")
    for j in range(8):
        a(f"s_waitcnt vmcnt({14 - 2*j}) lgkmcnt(0)")
        chk = [f"v_max3_u32 v12, v12, v{HF+8*j+2*i}, v{HF+8*j+2*i+1}" for i in range(4)]
        rl = rd(FW[(R_ + j + 1) & 1], oslot(j + 1), True) if j < 7 else []
        mm(1, FW[(R_ + j) & 1], HF + 8 * j, [x for p in zip(rl or chk, chk) for x in p] if rl else chk, dst=WX, src=ACC if j == 0 else WX)
    a(f"v_cmp_eq_u32 vcc, -1, v12\ns_cbranch_vccz {fin}")
    a(f"s_cmp_le_i32 s{S_T+10}, 0\ns_cbranch_scc1 {fin}")
    for l in rd(FW[R_ & 1], oslot(0), True): a(l)
    a(f"s_branch {again}")
    a.label(fin)
    stamp(a, 9)
    RB = 128
    for w in range(4):
        lab = a.newlabel("red")
        if w < 3: a(f"s_cmp_lg_u32 s{W}, {w}\ns_cbranch_scc1 {lab}")
        a("s_nop 7")
        others = [d for d in range(4) if d != w]
        for d in others:
            for i in range(4): a(f"ds_write_b128 v{T0}, {vr(WX+16*d+4*i,4)} offset:{d*4096 + i*1024}")
        if OPT["fbar"]: a("s_waitcnt lgkmcnt(0)\ns_barrier")
        else: lsync(a, 5, 4, 11, 12)
        for k, d in enumerate(others):
            for i in range(4): a(f"ds_read_b128 {vr(RB+16*k+4*i,4)}, v{T1} offset:{d*20480 + i*1024}")
        own = WX + 16 * w
        for k in range(3):
            a(f"s_waitcnt lgkmcnt({8 - 4*k})")
            for i in range(0, 16, 2): a(f"v_pk_add_f32 {vr(own+i,2)}, {vr(own+i,2)}, {vr(RB+16*k+i,2)}")
        for i in range(8): a(f"v_cvt_pk_bf16_f32 v{32+i}, v{own+2*i}, v{own+2*i+1}")
        if w < 3:
            a("s_branch L_out"); a.label(lab)
    a.label("L_out")
    a("s_nop 1")
    a("v_permlane32_swap_b32 v32, v34\nv_permlane32_swap_b32 v33, v35\nv_permlane32_swap_b32 v36, v38\nv_permlane32_swap_b32 v37, v39")
    a(f"buffer_store_dwordx4 v[32:35], v{T2}, {rs(R_OUT)}, s{S_K0} offen{['', ' sc1', ' nt', ' sc0 sc1', ' sc0'][OPT['outsc']]}")
    a(f"buffer_store_dwordx4 v[36:39], v{T2}, {rs(R_OUT)}, s{S_K0} offen offset:32{['', ' sc1', ' nt', ' sc0 sc1', ' sc0'][OPT['outsc']]}")

KD = """.section .rodata,"a"
.p2align 6
.amdhsa_kernel {k}
  .amdhsa_next_free_vgpr 256
  .amdhsa_next_free_sgpr 102
  .amdhsa_accum_offset 256
  .amdhsa_group_segment_fixed_size 0
  .amdhsa_kernarg_size 104
  .amdhsa_user_sgpr_count 2
  .amdhsa_user_sgpr_kernarg_segment_ptr 1
  .amdhsa_system_sgpr_workgroup_id_x 1
.end_amdhsa_kernel
"""

def gen():
    a = Asm()
    ref = open(f"cdna_kernels/{NAME}.s.ref").read().split("\n")
    H = [l for l in ref if l.startswith(";") and "@launch" not in l]
    H += ["; @launch grid=(256,1,1) block=(512,1,1) lds=163840"]
    k = NAME + "_kernel"
    a.raw(f'.amdgcn_target "amdgcn-amd-amdhsa--gfx950"\n.text\n.globl {k}\n.p2align 8\n.type {k},@function\n{k}:')
    a("s_cmp_ge_u32 s2, 256\ns_cbranch_scc1 L_exit")
    stamp(a, 0); stamp_init(a)
    if OPT.get("dbg"): a("s_memrealtime s[4:5]")
    a("s_load_dwordx16 s[16:31], s[0:1], 0\ns_load_dwordx8 s[32:39], s[0:1], 64\ns_load_dwordx2 s[40:41], s[0:1], 96")
    a(f"v_lshrrev_b32 v1, 6, v0\nv_and_b32 v0, 63, v0\nv_readfirstlane_b32 s3, v1\ns_mov_b32 s{S_ID}, s2")
    decode(a)
    a(f"s_and_b32 s{W}, s3, 3\ns_lshl_b32 s{S_M0B}, s{W}, 10")
    a("s_cmp_ge_u32 s3, 4\ns_cbranch_scc1 L_roleF")
    a(f"s_setprio {OPT['prioL']}")
    roleA(a)
    a.raw(".p2align 6"); a.label("L_roleF"); a.roleF = 1
    a(f"s_setprio {OPT['prioF']}")
    if OPT["cpf"]:
        a("s_getpc_b64 s[70:71]")
        a.label("L_pc")
        a(f"s_sub_u32 s70, s70, L_pc - {k}\ns_subb_u32 s71, s71, 0")
        a(f"s_lshr_b32 s72, s{S_ID}, 3\ns_lshl_b32 s72, s72, 2\ns_add_u32 s72, s72, s{W}\ns_lshl_b32 s72, s72, 10")
        a(f"s_cmp_ge_u32 s72, L_exit - {k} - 1024\ns_cbranch_scc1 L_nocpf")
        a("s_add_u32 s70, s70, s72\ns_addc_u32 s71, s71, 0")
        a("v_lshlrev_b32 v30, 4, v0\nv_mov_b32 v31, s71\nv_add_co_u32 v30, vcc, s70, v30\ns_nop 1\nv_addc_co_u32 v31, vcc, 0, v31, vcc")
        a("global_load_dwordx4 v[112:115], v[30:31], off")
        a.label("L_nocpf")
    ffn1(a)
    ffn2(a); stamp_dump(a)
    if OPT.get("dbg"):
        a(f"s_cmp_ge_u32 s2, 8\ns_cbranch_scc1 L_exit\ns_cmp_lg_u32 s{W}, 0\ns_cbranch_scc1 L_exit")
        a("s_waitcnt vmcnt(0)")
        a.label("L_dbgspin")
        a("s_memrealtime s[6:7]\ns_waitcnt lgkmcnt(0)")
        if OPT.get("spin"): a(f"s_sub_u32 s10, s6, {'s8' if OPT.get('dbgat') else 's4'}\ns_cmp_lt_u32 s10, {OPT['spin']}\ns_cbranch_scc1 L_dbgspin")
        srd(a, R_W0, S_DBG, 256)
        a(f"s_lshl_b32 s8, s2, 2\nv_mov_b32 v1, s8\nv_mov_b32 v2, s4\nv_mov_b32 v3, s6\ns_mov_b64 exec, 1")
        a(f"buffer_store_dword v2, v1, {rs(R_W0)}, 0 offen\nbuffer_store_dword v3, v1, {rs(R_W0)}, 0 offen offset:32")
    a.label("L_exit")
    a("s_endpgm")
    return "\n".join(H) + "\n" + a.text() + KD.format(k=k)

if __name__ == "__main__":
    if "--diag" in sys.argv: DIAG = True
    for x in sys.argv[2:]:
        if "=" in x:
            k, v = x.split("="); OPT[k] = int(v)
    open(sys.argv[1], "w").write(gen())
```

```python
import sys, math, struct

NAME = "gated_mix__grouped_kv_mqa__glu_gated_geglu__prompt"

WS_EPOCH = 0x0
WS_ACK = 0x6000
WS_KP = 0x10000
WS_VP = 0x20000
WS_G = 0x30000
WS_RECK = 0x40000
WS_PRE = 0x50000
WS_FLH = 0x80000
WS_FLO = 0xA0000
WS_QP = 0x100000
WS_OP = 0x300000
WS_HP = 0x500000
WS_DIAG = 0xE00000
WS_SIZE = 0x10000000
OPT = dict(prioA=1, prioF=2, prioG=2, prioD=0, prioL=3, sleep=4, sc1=1, rot=7, rot2=7, thr=60, clk=0, look=11, kvat=13, kvpre=3, qfirst=16, kvper=4, wpre=2, w0=6, xup=3, ramp=2, xper=2, barpos=0, lsl=0, outsc=0, nw=10, lastbar=13, hold=14, cpf=1, prioT=3, sentat=99, pfx=0, pfw=0, vlag=8, hst=0, fbar=1, wsl=1, jm=1, bud=20)
DIAG = False

LOG2E = 1.4426950408889634
def f2u(x): return struct.unpack("<I", struct.pack("<f", x))[0]
def SC(): return " sc1" if OPT["sc1"] else ""

class Asm:
    def __init__(self): self.L = []; self.uid = 0
    def __call__(self, s):
        for line in s.split("\n"): self.L.append("    " + line.strip())
    def label(self, n): self.L.append(n + ":")
    def raw(self, s): self.L.append(s)
    def newlabel(self, p):
        self.uid += 1
        return f"L_{p}_{self.uid}"
    def text(self): return "\n".join(self.L) + "\n"

def vr(a, n=1): return f"v{a}" if n == 1 else f"v[{a}:{a+n-1}]"

S_X, S_WQ, S_WK, S_WV, S_WO, S_BX, S_WG, S_WU = 16, 18, 20, 22, 24, 26, 28, 30
S_WD, S_GW, S_OUT, S_DBG, S_WSP = 32, 34, 36, 38, 40
R_X, R_WS, R_W0, R_W1, R_OUT = 44, 48, 52, 56, 60
S_WAVE, S_TAG = 64, 65
S_T = 66
S_ID, S_M0B = 80, 81
S_A, S_B, S_C, S_D, S_E, S_F = 82, 83, 84, 85, 86, 87
S_G, S_H = 88, 89
S_K0, S_K1, S_K2, S_K3 = 90, 91, 92, 93
W = S_WAVE
WSR = f"s[{R_WS}:{R_WS+3}]"
def rs(r): return f"s[{r}:{r+3}]"

STAMP_REGS = [4, 6, 8, 10, 12, 14, 42, 94, 96, 98, 100]
def stamp(a, i, force=False):
    if OPT.get("dbgat") == i and getattr(a, "roleF", 0): a("s_memrealtime s[8:9]")
    if OPT.get("fst") and getattr(a, "roleF", 0) and 5 <= i <= 9 and not force: return
    if DIAG: a(f"{'s_memtime' if OPT['clk'] else 's_memrealtime'} s[{STAMP_REGS[i]}:{STAMP_REGS[i]+1}]")
def stamp_init(a):
    if DIAG:
        for r in STAMP_REGS[1:]: a(f"s_mov_b32 s{r}, 0")
def stamp_dump(a):
    if not DIAG: return
    a("s_waitcnt vmcnt(0) lgkmcnt(0)")
    stamp(a, 10)
    a("s_waitcnt lgkmcnt(0)")
    a(f"s_lshl_b32 s{S_T}, s2, 2\ns_add_u32 s{S_T}, s{S_T}, s{W}\ns_add_u32 s{S_T}, s{S_T}, {1024 if getattr(a, 'roleF', 0) else 0}\ns_lshl_b32 s{S_T}, s{S_T}, 6\ns_add_u32 s{S_T}, s{S_T}, {WS_DIAG}")
    a("s_mov_b64 exec, 1\nv_mov_b32 v1, 0")
    for i, r in enumerate(STAMP_REGS):
        a(f"v_mov_b32 v2, s{r}\nbuffer_store_dword v2, v1, {WSR}, s{S_T} offen offset:{4*i}\ns_nop 1")

def srd(a, r, p, size):
    a(f"s_mov_b32 s{r}, s{p}\ns_mov_b32 s{r+1}, s{p+1}\ns_mov_b32 s{r+2}, {size:#x}\ns_mov_b32 s{r+3}, 0x20000")

def kernarg_wait(a):
    a("s_waitcnt lgkmcnt(0)")
    a(f"s_load_dword s{S_TAG}, s[40:41], {WS_EPOCH}")
    srd(a, R_X, S_X, 2048 * 1024)

def finish_tag_ack(a, v0_, v1_):
    srd(a, R_WS, S_WSP, WS_SIZE)
    a(f"s_lshl_b32 s{S_T+2}, s2, 5\ns_lshl_b32 s{S_T+3}, s{W}, 2\ns_add_u32 s{S_T+2}, s{S_T+2}, s{S_T+3}")
    a(f"s_add_u32 s{S_T+2}, s{S_T+2}, {WS_ACK + (16 if getattr(a, 'roleF', 0) else 0)}")
    a(f"v_mov_b32 v{v1_}, 0")
    a("s_waitcnt lgkmcnt(0)")
    a(f"s_mul_i32 s{S_TAG}, s{S_TAG}, 0x9E3779B1")
    a(f"s_add_u32 s{S_TAG}, s{S_TAG}, 0x7F4A7C15")
    a(f"v_mov_b32 v{v0_}, s{S_TAG}")
    a("s_mov_b64 exec, 1")
    a(f"buffer_store_dword v{v0_}, v{v1_}, {WSR}, s{S_T+2} offen sc1")
    a("s_mov_b64 exec, -1")

def dma(a, vaddr, r, soff_reg, soff_base, soff_imm, lds_imm):
    a(f"s_add_u32 m0, s{S_M0B}, {lds_imm}")
    a(f"s_add_u32 s{soff_reg}, s{soff_base}, {soff_imm}")
    nt = " nt" if (OPT.get("ntx") and r == R_X) or (OPT.get("nt2") and getattr(a, "roleF", 0)) else ""
    a(f"buffer_load_dwordx4 v{vaddr}, {rs(r)}, s{soff_reg} offen{nt} lds")

def wave_max(a, v):
    for m in ("row_shr:1", "row_shr:2", "row_shr:4", "row_shr:8", "row_bcast:15 row_mask:0xa", "row_bcast:31 row_mask:0xc"):
        a("s_nop 1")
        a(f"v_max_u32_dpp v{v}, v{v}, v{v} {m}")

def poll(a, loads, regs, sleep=None):
    lab = a.newlabel("poll"); out = a.newlabel("polled")
    sleep = sleep or OPT["sleep"]
    masked = len(loads) == 1 and len(regs) == 1
    a(f"s_mov_b32 s{S_T+10}, 0x40000")
    a.label(lab)
    for l in loads: a(l)
    a("s_waitcnt vmcnt(0)")
    a(f"v_cmp_ne_u32 vcc, s{S_TAG}, v{regs[0]}")
    for r in regs[1:]:
        a(f"v_cmp_ne_u32 s[{S_T+12}:{S_T+13}], s{S_TAG}, v{r}")
        a(f"s_or_b64 vcc, vcc, s[{S_T+12}:{S_T+13}]")
    a(f"s_cbranch_vccz {out}")
    if masked: a("s_mov_b64 exec, vcc")
    a(f"s_sleep {sleep}")
    a(f"s_sub_u32 s{S_T+10}, s{S_T+10}, 1\ns_cmp_lg_u32 s{S_T+10}, 0\ns_cbranch_scc1 {lab}")
    a.label(out)
    if masked: a("s_mov_b64 exec, -1")

def x_src_addr(a, V, T0, T1, T2):
    a(f"v_lshrrev_b32 v{T0}, 3, v0\nv_and_b32 v{T1}, 7, v0\nv_lshrrev_b32 v{T2}, 1, v{T0}")
    a(f"s_and_b32 s{S_T}, s{W}, 1\ns_lshl_b32 s{S_T}, s{S_T}, 2")
    a(f"v_or_b32 v{V}, s{S_T}, v{T2}\nv_xor_b32 v{V}, v{V}, v{T1}\nv_lshlrev_b32 v{V}, 4, v{V}")
    a(f"v_lshl_add_u32 v{V}, v{T0}, 10, v{V}")

def x_read_addr(a, V, T0, T1, T2, sbase=None):
    a(f"v_and_b32 v{T0}, 31, v0\nv_lshrrev_b32 v{T1}, 5, v0\nv_bfe_u32 v{T2}, v0, 1, 3\nv_xor_b32 v{T2}, v{T2}, v{T1}")
    a(f"v_lshlrev_b32 v{T0}, 7, v{T0}")
    if sbase is not None: a(f"v_add_u32 v{T0}, s{sbase}, v{T0}")
    for ks in range(4):
        a(f"v_xor_b32 v{V+ks}, {2*ks}, v{T2}\nv_lshl_add_u32 v{V+ks}, v{V+ks}, 4, v{T0}")

XL, QWL, WL = 0, 49152, 61440
IXL, IQL, IEL, IGL = 0, 65536, 81920, 98304
PART = 2176
LDS_P = 81920
LDS_Q = LDS_P + 32 * PART
LDS_X = LDS_Q + 8192
LDS_C = LDS_X + 1088
assert LDS_X + 4096 == 163840

def lsync(a, idx, n, va, vb, slp=0):
    lab = a.newlabel("ls")
    a(f"v_mov_b32 v{va}, {LDS_C + 4*idx}\nv_mov_b32 v{vb}, 1\ns_mov_b64 exec, 1\nds_add_u32 v{va}, v{vb}\ns_mov_b64 exec, -1")
    if slp:
        l2 = a.newlabel("ls")
        a(f"s_branch {l2}")
        a.label(lab)
        a(f"s_sleep {slp}")
        a.label(l2)
    else:
        a.label(lab)
    a(f"ds_read_b32 v{vb}, v{va}\ns_waitcnt lgkmcnt(0)\nv_readfirstlane_b32 s{S_T+10}, v{vb}\ns_cmp_lt_u32 s{S_T+10}, {n}\ns_cbranch_scc1 {lab}")

def decode(a):
    a(f"s_lshr_b32 s{S_T+1}, s{S_ID}, 3\ns_bfe_u32 s{S_T}, s{S_ID}, 0x20001\ns_and_b32 s{S_T+2}, s{S_ID}, 1\ns_lshl_b32 s{S_T+2}, s{S_T+2}, 3")
    a(f"s_mul_i32 s{S_T+3}, s{S_T}, 28\ns_add_u32 s{S_T+3}, s{S_T+3}, s{S_T+1}\ns_lshr_b32 s{S_B}, s{S_T+3}, 3\ns_and_b32 s{S_A}, s{S_T+3}, 7")
    a(f"s_lshl_b32 s{S_T}, s{S_T}, 1\ns_bfe_u32 s{S_T+3}, s{S_T+1}, 0x10001\ns_add_u32 s{S_T}, s{S_T}, s{S_T+3}")
    a(f"s_and_b32 s{S_T+3}, s{S_T+1}, 1\ns_add_u32 s{S_T+3}, s{S_T+3}, 14")
    a(f"s_cmp_ge_u32 s{S_ID}, 224\ns_cselect_b32 s{S_A}, s{S_T}, s{S_A}\ns_cselect_b32 s{S_B}, s{S_T+3}, s{S_B}")
    a(f"s_add_u32 s{S_A}, s{S_A}, s{S_T+2}")
    a(f"s_lshl_b32 s{S_F}, s{S_B}, 1\ns_add_u32 s{S_F}, s{S_F}, s{S_A}\ns_and_b32 s{S_F}, s{S_F}, {OPT['rot']}")

class VQ:
    def __init__(self, a): self.a = a; self.q = []
    def add(self, t, n=1): self.q += [t] * n; self.total = getattr(self, "total", 0) + n
    def wait(self, tags):
        idx = max((i for i, t in enumerate(self.q) if t in tags), default=-1)
        n = len(self.q) - 1 - idx
        del self.q[:idx + 1]
        assert n < 64
        self.a(f"s_waitcnt vmcnt({n})")

def roleA(a):
    VL16, VIDX, VL4, VO, VGO, VLQ = 1, 2, 3, 4, 5, 12
    VXS, VQS, VXR, VQR, VGS, VUS = 6, 7, 8, 13, 14, 15
    QB = 8; SB = (16, 32); OA = 48; KR, VR_ = 64, 128
    XF, WF, ACC = 16, 24, 32
    T0, T1, T2 = 16, 17, 18
    VREC, VRA, VQW = 58, 62, 57
    S_WB, S_WEND, S_XR, S_QR = S_K2, S_K3, S_T + 11, S_T + 12
    RS = 3584 * 16
    x_src_addr(a, VXS, T0, T1, T2)
    a(f"v_lshrrev_b32 v{T0}, 2, v0\nv_and_b32 v{T1}, 3, v0\nv_lshlrev_b32 v{T1}, 4, v{T1}\nv_lshl_add_u32 v{VQS}, v{T0}, 10, v{T1}")
    a(f"v_lshrrev_b32 v{T0}, 4, v0\nv_and_b32 v{T1}, 15, v0\nv_lshlrev_b32 v{T2}, 1, v{T0}\nv_xor_b32 v{T1}, v{T1}, v{T2}")
    a(f"s_and_b32 s{S_T}, s{W}, 2\ns_lshl_b32 s{S_T}, s{S_T}, 2\nv_xor_b32 v{T1}, s{S_T}, v{T1}")
    a(f"v_lshlrev_b32 v{T1}, 4, v{T1}\nv_mul_u32_u24 v{T0}, 3584, v{T0}\nv_add_u32 v{VGS}, v{T0}, v{T1}\nv_mov_b32 v{VUS}, v{VGS}")
    a(f"s_lshl_b32 s{S_C}, s{S_A}, 17\ns_lshl_b32 s{S_T}, s{W}, 13\ns_add_u32 s{S_C}, s{S_C}, s{S_T}   ; x base")
    a(f"s_lshl_b32 s{S_H}, s{W}, 14\ns_lshl_b32 s{S_T}, s{S_B}, 6\ns_add_u32 s{S_H}, s{S_H}, s{S_T}")
    a(f"s_mul_i32 s{S_T}, s{W}, {4*3584}\ns_lshl_b32 s{S_WB}, s{S_B}, 8\ns_add_u32 s{S_WB}, s{S_WB}, s{S_T}")
    a(f"s_add_u32 s{S_WEND}, s{S_WB}, {32*RS}\ns_mul_i32 s{S_T}, s{S_F}, {4*RS}\ns_add_u32 s{S_D}, s{S_WB}, s{S_T}")
    kernarg_wait(a)
    srd(a, R_OUT, S_WQ, 512 * 1024)
    vq = VQ(a)
    def issueX1(u, j, xl, ql):
        if j == 0:
            a(f"s_add_u32 s{S_XR}, s{S_F}, {u}\ns_and_b32 s{S_XR}, s{S_XR}, 7\ns_lshl_b32 s{S_QR}, s{S_XR}, 16\ns_lshl_b32 s{S_XR}, s{S_XR}, 7")
            a(f"s_add_u32 s{S_XR}, s{S_XR}, s{S_C}\ns_add_u32 s{S_QR}, s{S_QR}, s{S_H}")
        if j < 4: dma(a, VXS, R_X, S_T, S_XR, j * 32768, xl + j * 4096)
        else: a(f"s_add_u32 m0, s{S_M0B}, {ql}\ns_nop 0\nbuffer_load_dwordx4 v{VQS}, {rs(R_OUT)}, s{S_QR} offen lds")
        vq.add(("X", u))
    def issueW1(j, mat):
        a(f"s_add_u32 m0, s{S_M0B}, {WL + (j % OPT['nw']) * 8192 + mat*4096}\ns_nop 0")
        a(f"buffer_load_dwordx4 v{(VGS,VUS)[mat]}, {rs((R_W0,R_W1)[mat])}, s{S_D} offen{' nt' if OPT.get('ntw') else ''} lds"); vq.add(("W", j))
        if mat:
            a(f"s_add_u32 s{S_D}, s{S_D}, {RS}")
            if j % 4 == 3: a(f"s_cmp_eq_u32 s{S_D}, s{S_WEND}\ns_cselect_b32 s{S_D}, s{S_WB}, s{S_D}")
    def setup(ql):
        finish_tag_ack(a, 20, 21); vq.add(("ack", 0))
        a(f"s_lshl_b32 s{S_T}, s{W}, 12")
        x_read_addr(a, VXR, T0, T1, T2, S_T)
        a(f"v_bfe_u32 v{T0}, v0, 2, 2\nv_lshl_add_u32 v{T0}, v{T1}, 3, v{T0}\nv_and_b32 v{T2}, 3, v0\nv_lshlrev_b32 v{T2}, 3, v{T2}")
        a(f"v_lshl_add_u32 v{VQR}, v{T0}, 6, v{T2}\nv_bfe_u32 v{T0}, v0, 4, 1\nv_lshl_add_u32 v{VQR}, v{T0}, 5, v{VQR}\nv_add_u32 v{VQR}, {ql}, v{VQR}")
        a(f"v_lshlrev_b32 v{T0}, 2, v0\nv_add_u32 v{T0}, {LDS_C}, v{T0}\nv_mov_b32 v{T1}, 0\nds_write_b32 v{T0}, v{T1}")
        a(f"v_lshlrev_b32 v{VL16}, 4, v0\nv_and_b32 v{VL4}, 31, v0\nv_lshlrev_b32 v{VL4}, 2, v{VL4}\nv_mov_b32 v{VIDX}, 0xdddddddd")
        a(f"v_add_u32 v{VLQ}, {LDS_Q}, v{VL16}\nv_lshlrev_b32 v{VRA}, 3, v0\ns_mov_b32 s{S_K0}, {WS_RECK}")
        a(f"v_bfe_u32 v{T0}, v0, 4, 1\nv_lshlrev_b32 v{VO}, 10, v{T0}\nv_and_b32 v{T0}, 32, v0\nv_lshl_add_u32 v{VO}, v{T0}, 4, v{VO}")
        a(f"v_and_b32 v{T0}, 15, v0\nv_lshl_add_u32 v{VO}, v{T0}, 4, v{VO}\nv_lshlrev_b32 v{VGO}, 2, v{T0}")
        a(f"s_lshl_b32 s{S_T}, s{W}, 11\ns_add_u32 s{S_T}, s{S_T}, {LDS_Q}\nv_add_u32 v{VQW}, s{S_T}, v{VO}")
        a(f"v_and_b32 v{T0}, 11, v0\nv_cmp_eq_u32 vcc, 0, v{T0}\nv_mov_b32 v{T0}, 0x3f803f80\ns_nop 0\nv_cndmask_b32 v{T0}, 0, v{T0}, vcc\nv_mov_b32 v{T0+1}, v{T0}")
        for t in range(16):
            for j in range(4, 8, 2): a(f"v_mov_b64 {vr(VR_+8*t+j,2)}, {vr(T0,2)}")
        zero_o()
        a(f"s_lshl_b32 s{S_T}, s{S_A}, 2\ns_add_u32 s{S_T}, s{S_T}, s{W}\ns_lshl_b32 s{S_G}, s{S_T}, 15")
        a(f"s_lshl_b32 s{S_T}, s{S_B}, 11\ns_add_u32 s{S_G}, s{S_G}, s{S_T}\ns_add_u32 s{S_G}, s{S_G}, {WS_OP}")
        a(f"s_lshl_b32 s{S_E}, s{W}, 3\ns_lshr_b32 s{S_T}, s{S_ID}, 3\ns_add_u32 s{S_E}, s{S_E}, s{S_T}")
    def zero_o():
        for j in range(0, 8, 2): a(f"v_mov_b64 {vr(OA+j,2)}, 0")
        a(f"v_mov_b32 v{OA+8}, 0")
    def qreads(j, xoff, qoff):
        b = j & 1
        a(f"ds_read_b128 {vr(XF+4*b,4)}, v{VXR + j%4} offset:{xoff}")
        a(f"ds_read_b64_tr_b16 {vr(WF+4*b,2)}, v{VQR} offset:{qoff + (j%4)*1024}\nds_read_b64_tr_b16 {vr(WF+4*b+2,2)}, v{VQR} offset:{qoff + (j%4)*1024 + 256}")
    def qmfma(j):
        b = j & 1
        a(f"v_mfma_f32_32x32x16_bf16 {vr(ACC,16)}, {vr(WF+4*b,4)}, {vr(XF+4*b,4)}, {'0' if j == 0 else vr(ACC,16)}")
    rec_loads = [f"buffer_load_dwordx2 {vr(VREC,2)}, v{VRA}, {WSR}, s{S_K0} offen sc1",
                 f"buffer_load_dwordx2 {vr(VREC+2,2)}, v{VRA}, {WSR}, s{S_K0} offen offset:512 sc1"]
    def rec_finish(looked):
        lab = a.newlabel("norec"); seen = a.newlabel("seen")
        a(f"s_cmp_lg_u32 s{W}, 0\ns_cbranch_scc1 {lab}")
        if looked is not None:
            a(f"s_waitcnt vmcnt({looked})")
            a(f"v_cmp_ne_u32 vcc, s{S_TAG}, v{VREC}\nv_cmp_ne_u32 s[{S_T+6}:{S_T+7}], s{S_TAG}, v{VREC+2}\ns_or_b64 vcc, vcc, s[{S_T+6}:{S_T+7}]\ns_cbranch_vccz {seen}")
        poll(a, rec_loads, [VREC, VREC + 2], sleep=8)
        a.label(seen)
        wave_max(a, VREC + 1)
        a(f"v_mov_b32 v{VREC}, {LDS_X + 1024}\ns_mov_b32 exec_lo, 0\ns_mov_b32 exec_hi, 0x80000000\nds_write_b32 v{VREC}, v{VREC+1}\ns_mov_b64 exec, -1")
        a.label(lab)
    def vfix(t):
        for j in range(4): a(f"v_permlane16_swap_b32 v{VR_+8*t+j}, v{VR_+8*t+4+j}")
    VL = OPT["vlag"]; NFIX = 16 - VL
    def kvload(t):
        if t % 2 == 0:
            a(f"s_add_u32 s{S_T}, s{S_E}, {t//2}\ns_and_b32 s{S_T}, s{S_T}, 31\ns_lshl_b32 s{S_T}, s{S_T}, 11")
            a(f"s_add_u32 s{S_T+1}, s{S_T}, {WS_VP}\ns_add_u32 s{S_T}, s{S_T}, {WS_KP}")
        a(f"buffer_load_dwordx4 {vr(KR+4*t,4)}, v{VL16}, {WSR}, s{S_T} offen offset:{(t%2)*1024}{SC()}")
        a(f"buffer_load_dwordx4 {vr(VR_+8*t,4)}, v{VL16}, {WSR}, s{S_T+1} offen offset:{(t%2)*1024}{SC()}")
        vq.add(("KV", t), 2)
        if t >= VL: a(f"s_waitcnt vmcnt({2*VL})"); vfix(t - VL)
    lidle = a.newlabel("Aidle"); ljoin = a.newlabel("Ajoin")
    a(f"s_cmp_ge_u32 s{S_ID}, 224\ns_cbranch_scc1 {lidle}")
    X = lambda u, j: issueX1(u, j, XL + (u % 3) * 16384, QWL + (u % 3) * 4096)
    for j in range(5): X(0, j)
    srd(a, R_W0, S_WG, 512 * 3584); srd(a, R_W1, S_WU, 512 * 3584)
    W0 = OPT["w0"]
    nextW, nextX, xp = W0, 1, 0
    for j in range(W0):
        issueW1(j, 0); issueW1(j, 1)
        if OPT.get("xup") and j == OPT["xup"] - 1:
            for p in range(5): X(1, p)
            nextX = 2
    if OPT.get("st4") == 1: stamp(a, 4)
    setup(QWL)
    if OPT.get("st4") == 2: stamp(a, 4)
    vq.wait({("X", 0), ("W", 0), ("W", 1)})
    a("s_waitcnt lgkmcnt(0)")
    a("s_barrier")
    stamp(a, 1)
    xo = lambda j: (XL + ((j // 4) % 3) * 16384, ((j // 4) % 3) * 4096)
    qreads(0, *xo(0))
    kvt = 0
    LB = OPT["lastbar"]
    for J in range(16):
        if J < LB:
            tags = {("W", 2 * J + 2), ("W", 2 * J + 3)}
            if J % 2 == 1: tags.add(("X", (J + 1) // 2))
            assert nextW > 2 * J + 3 and (J % 2 == 0 or nextX > (J + 1) // 2), J
            vq.wait(tags)
        elif J == LB:
            assert nextW == 32 and nextX == 8
            vq.wait({("W", 31), ("X", 7)})
        a("s_waitcnt lgkmcnt(0)")
        if J <= LB: a("s_barrier")
        qmfma(2 * J)
        qreads(2 * J + 1, *xo(2 * J + 1))
        for _ in range(5 if nextX in (1, 7) else 3):
            if nextX < 8 and J >= 2 * (nextX - 3) + 2:
                X(nextX, xp); xp += 1
                if xp == 5: nextX += 1; xp = 0; break
        a("s_waitcnt lgkmcnt(0)")
        qmfma(2 * J + 1)
        if J < 15: qreads(2 * J + 2, *xo(2 * J + 2))
        for _ in range(2 * OPT["ramp"]):
            if nextW < 32 and nextW <= max(OPT['nw'] - 1, 2 * J + OPT['nw'] - 1):
                issueW1(nextW, 0); issueW1(nextW, 1); nextW += 1
        if J == OPT["kvat"]:
            assert OPT["kvat"] >= OPT["look"] + 2 and nextW == 32 and nextX == 8
            lab = a.newlabel("kvok")
            a(f"v_mov_b32 v{VREC}, {LDS_X + 1028}\nds_read_b32 v{VREC+1}, v{VREC}\ns_waitcnt lgkmcnt(0)\nv_readfirstlane_b32 s{S_T}, v{VREC+1}")
            a(f"s_cmp_eq_u32 s{S_T}, 1\ns_cbranch_scc1 {lab}")
            rec_finish(None)
            lsync(a, 9, 4, VREC, VREC + 1)
            a.label(lab)
        if J >= OPT["kvat"]:
            for _ in range(OPT["kvpre"] if J < LB else 2 * OPT["kvper"] if J < 15 else 16):
                if kvt < OPT["qfirst"]: kvload(kvt); kvt += 1
    a(f"v_mov_b32 v{VREC}, {LDS_C + 4*10}\nv_mov_b32 v{VREC+1}, 1\ns_mov_b64 exec, 1\nds_add_u32 v{VREC}, v{VREC+1}\ns_mov_b64 exec, -1")
    a(f"s_branch {ljoin}")
    a.label(lidle)
    vq.q = []
    a(f"s_cmp_eq_u32 s{S_B}, 14\ns_cselect_b32 s{R_W0}, s{S_WK}, s{S_WV}\ns_cselect_b32 s{R_W0+1}, s{S_WK+1}, s{S_WV+1}")
    a(f"s_movk_i32 s{R_W0+2}, 16384\ns_mov_b32 s{R_W0+3}, 0x20000\ns_mov_b32 s{S_F}, 0")
    srd(a, R_W1, S_GW, 1024)
    a(f"v_lshlrev_b32 v{VGS}, 4, v0")
    dma(a, VGS, R_W1, S_T, S_M0B, 0, IGL)
    for p in range(4): dma(a, VGS, R_W0, S_T, S_M0B, p * 4096, IEL + p * 4096)
    XI = lambda u: [issueX1(u, p, IXL + (u % 4) * 16384, IQL + (u % 4) * 4096) for p in range(5)]
    for u in range(4): XI(u)
    setup(IQL)
    for u in range(8):
        vq.wait({("X", u)})
        a("s_waitcnt lgkmcnt(0)")
        a("s_barrier")
        if u == 0: stamp(a, 1)
        if 1 <= u <= 4: XI(u + 3)
        qreads(4 * u, (u % 4) * 16384, (u % 4) * 4096)
        for ks in range(4):
            j = 4 * u + ks
            if ks < 3:
                qreads(j + 1, (u % 4) * 16384, (u % 4) * 4096); a("s_waitcnt lgkmcnt(3)")
            else: a("s_waitcnt lgkmcnt(0)")
            qmfma(j)
    rec_finish(None)
    a(f"v_mov_b32 v{VREC}, {LDS_C + 4*10}\nv_mov_b32 v{VREC+1}, 2\ns_mov_b64 exec, 1\nds_add_u32 v{VREC}, v{VREC+1}\ns_mov_b64 exec, -1")
    a("s_waitcnt lgkmcnt(0)")
    a("s_barrier")
    for t in range(OPT["qfirst"]): kvload(t)
    a.label(ljoin)
    stamp(a, 2)
    a(f"s_lshl_b32 s{S_T}, s{S_A}, 2\ns_add_u32 s{S_T}, s{S_T}, s{W}\ns_lshl_b32 s{S_C}, s{S_T}, 7\ns_add_u32 s{S_C}, s{S_C}, {WS_G}")
    a("s_nop 7")
    a(f"s_lshl_b32 s{S_T}, s{W}, 8\ns_add_u32 s{S_T}, s{S_T}, {LDS_X}\nv_lshl_add_u32 v15, v0, 2, s{S_T}")
    for j in range(8): a(f"v_cvt_pk_bf16_f32 v{16+j}, v{ACC+2*j}, v{ACC+2*j+1}")
    a(f"ds_write_b128 v{VQW}, v[16:19]\nds_write_b128 v{VQW}, v[20:23] offset:256")
    a(f"v_mul_f32 v24, v{ACC}, v{ACC}\nv_mul_f32 v25, v{ACC+8}, v{ACC+8}")
    for i in range(1, 8): a(f"v_fmac_f32 v24, v{ACC+i}, v{ACC+i}\nv_fmac_f32 v25, v{ACC+8+i}, v{ACC+8+i}")
    a(f"v_mov_b32 v26, {LDS_X + 1024}\ns_nop 0\nv_permlane32_swap_b32 v24, v25\nv_add_f32 v24, v24, v25\nds_write_b32 v15, v24")
    a(f"v_lshlrev_b32 v15, 2, v0\nv_add_u32 v15, {LDS_X}, v15")
    a(f"v_mov_b32 v27, {LDS_C}\nv_mov_b32 v28, 1\ns_mov_b64 exec, 1\nds_add_u32 v27, v28\ns_mov_b64 exec, -1")
    for t in range(OPT["qfirst"], 16): kvload(t)
    a(f"s_mul_i32 s{S_T}, s{W}, {PART}\ns_add_u32 s{S_T}, s{S_T}, {LDS_P}")
    a(f"v_add_u32 v{VL16}, s{S_T}, v{VL16}\nv_add_u32 v{VL4}, s{S_T}, v{VL4}")
    lab = a.newlabel("qsync")
    a.label(lab)
    a(f"ds_read_b32 v28, v27\ns_waitcnt lgkmcnt(0)\nv_readfirstlane_b32 s{S_T}, v28\ns_cmp_lt_u32 s{S_T}, 4\ns_cbranch_scc1 {lab}")
    lab = a.newlabel("ringdead")
    a(f"v_mov_b32 v27, {LDS_C + 4*10}")
    a.label(lab)
    a(f"ds_read_b32 v28, v27\ns_waitcnt lgkmcnt(0)\nv_readfirstlane_b32 s{S_T}, v28\ns_cmp_lt_u32 s{S_T}, 8\ns_cbranch_scc1 {lab}")
    a(f"ds_read_b128 {vr(QB,4)}, v{VLQ}")
    a(f"ds_read2st64_b32 v[20:21], v15 offset0:0 offset1:1\nds_read2st64_b32 v[22:23], v15 offset0:2 offset1:3\nds_read_b32 v24, v26")
    a("s_waitcnt lgkmcnt(0)")
    a("v_max3_u32 v20, v20, v21, v22\nv_max_u32 v20, v20, v23\nv_mul_f32 v20, v20, v24")
    slow = a.newlabel("slow"); red = a.newlabel("reduce")
    a(f"v_cmp_nge_f32 vcc, {f2u(float(OPT['thr'])**2):#x}, v20")
    a(f"s_setprio {OPT['prioA']}")
    a(f"s_cbranch_vccnz {slow}")
    def S(t, buf, c="0"): a(f"v_mfma_f32_32x32x16_bf16 {vr(SB[buf],16)}, {vr(KR+4*t,4)}, {vr(QB,4)}, {c}")
    def PV(t, s, buf): a(f"v_smfmac_f32_32x32x32_bf16 {vr(OA,16)}, {vr(VR_+8*t+4*s,4)}, {vr(SB[buf]+8*s,8)}, v{VIDX}")
    def EX(buf, i): a(f"v_exp_f32 v{SB[buf]+i}, v{SB[buf]+i}")
    def flush(base):
        a(f"ds_write_b128 v{VL16}, {vr(OA,4)} offset:{base}")
        a(f"ds_write_b128 v{VL16}, {vr(OA+4,4)} offset:{base+1024}")
        a(f"ds_write_b32 v{VL4}, v{OA+8} offset:{base+2048}")
    a("s_waitcnt vmcnt(31)")
    stamp(a, 5)
    S(0, 0)
    a("s_nop 11")
    gl = lambda j, r: a(f"buffer_load_dword v{r}, v{VGO}, {WSR}, s{S_C} offen offset:{64*j}{SC()}")
    ROLL = OPT.get("roll", 0)
    for q in ((0, 1, 7) if ROLL else range(8)):
        if ROLL and q == 1:
            a(f"s_mov_b32 s{S_K0}, 6")
            a.raw(".p2align 6"); a.label("L_qloop")
        for t in range(16):
            g = q * 16 + t
            cur, oth = g & 1, (g & 1) ^ 1
            nt = (t + 1) % 16
            def kv():
                if q == 0 and t + 1 >= NFIX: a(f"s_waitcnt vmcnt({max(0, 29 - 2*t)})")
                if q == 0 and t >= NFIX: vfix(t)
            if t == 0:
                if q == 1 and not ROLL: stamp(a, 6)
                if q == 4: stamp(a, 7)
                EX(cur, 0); EX(cur, 1)
                if q > 0: PV(15, 1, oth)
                EX(cur, 2); EX(cur, 3); EX(cur, 4)
                kv(); S(nt, oth)
                for i in range(5, 16): EX(cur, i)
                if q == 0: a("s_nop 0")
                if q > 0:
                    flush(0 if ROLL else (q - 1) * 4 * PART); zero_o()
                    if ROLL: a(f"v_add_u32 v{VL16}, {4*PART}, v{VL16}\nv_add_u32 v{VL4}, {4*PART}, v{VL4}")
                if q == 7: gl(0, 6); gl(1, 7)
            elif t == 1:
                EX(cur, 0); EX(cur, 1)
                PV(0, 0, oth)
                EX(cur, 2); EX(cur, 3); EX(cur, 4)
                PV(0, 1, oth)
                if OPT.get("bs"):
                    EX(cur, 5); EX(cur, 6)
                    kv(); S(nt, oth)
                    for i in range(7, 11): EX(cur, i)
                    PV(1, 0, cur)
                    for i in range(11, 16): EX(cur, i)
                    a("s_nop 1")
                else:
                    EX(cur, 5); EX(cur, 6); EX(cur, 7)
                    kv(); S(nt, oth)
                    EX(cur, 8); EX(cur, 9); EX(cur, 10)
                    PV(1, 0, cur)
                    for i in range(11, 16): EX(cur, i)
                    a("s_nop 2")
            else:
                EX(cur, 0); EX(cur, 1)
                PV(t - 1, 1, oth)
                EX(cur, 2); EX(cur, 3); EX(cur, 4)
                if g != 127:
                    if t == 15: a("s_waitcnt lgkmcnt(0)")
                    kv(); S(nt, oth)
                EX(cur, 5); EX(cur, 6)
                if t == 14 and q < 7: a(f"ds_read_b128 {vr(QB,4)}, v{VLQ} offset:{1024 if ROLL else (q+1)*1024}")
                if t == 15 and q < 7 and ROLL: a(f"v_add_u32 v{VLQ}, 1024, v{VLQ}")
                for i in range(7, 10): EX(cur, i)
                PV(t, 0, cur)
                for i in range(10, 16): EX(cur, i)
        if ROLL and q == 1: a(f"s_sub_u32 s{S_K0}, s{S_K0}, 1\ns_cmp_lg_u32 s{S_K0}, 0\ns_cbranch_scc1 L_qloop")
    stamp(a, 8)
    a(f"s_setprio {OPT['prioT']}\ns_nop 0")
    PV(15, 1, 1)
    a("s_nop 11")
    flush(0 if ROLL else 7 * 4 * PART)
    a.label(red)
    a(f"s_mul_i32 s{S_T}, s{W}, {2*4*PART}\ns_add_u32 s{S_T}, s{S_T}, {LDS_P}")
    a(f"v_lshl_add_u32 v{VL16}, v0, 4, s{S_T}\nv_and_b32 v{VL4}, 31, v0\nv_lshl_add_u32 v{VL4}, v{VL4}, 2, s{S_T}")
    lab = a.newlabel("marked")
    a(f"v_mov_b32 v18, {LDS_C + 4*3}")
    a.label(lab)
    a(f"ds_read_b32 v19, v18")
    lsync(a, 1, 4, 16, 17)
    stamp(a, 3)
    ok = a.newlabel("markok"); lab = a.newlabel("markw")
    a.label(lab)
    a(f"v_readfirstlane_b32 s{S_T}, v19\ns_cmp_ge_u32 s{S_T}, 4\ns_cbranch_scc1 {ok}")
    a(f"ds_read_b32 v19, v18\ns_waitcnt lgkmcnt(0)\ns_branch {lab}")
    a.label(ok)
    R = 64
    for j in range(2):
        for p in range(4):
            b = (j * 4 + p) * PART; r = R + (j * 4 + p) * 12
            a(f"ds_read_b32 v{r+8}, v{VL4} offset:{b+2048}")
        for p in range(4):
            b = (j * 4 + p) * PART; r = R + (j * 4 + p) * 12
            a(f"ds_read_b128 {vr(r,4)}, v{VL16} offset:{b}")
            a(f"ds_read_b128 {vr(r+4,4)}, v{VL16} offset:{b+1024}")
        r0 = R + j * 48
        a(f"s_waitcnt lgkmcnt(8)")
        a(f"v_add_f32 v{r0+8}, v{r0+8}, v{r0+20}\nv_add_f32 v{r0+32}, v{r0+32}, v{r0+44}\nv_add_f32 v{r0+8}, v{r0+8}, v{r0+32}")
        a(f"v_rcp_f32 v{r0+8}, v{r0+8}")
    for j in range(2):
        r0 = R + j * 48
        a("s_waitcnt vmcnt(0)" if j == 0 else "s_waitcnt lgkmcnt(0)")
        a(f"v_mul_f32 v{r0+8}, v{r0+8}, v{6+j}")
        for i in range(8): a(f"v_add_f32 v{r0+i}, v{r0+i}, v{r0+12+i}\nv_add_f32 v{r0+24+i}, v{r0+24+i}, v{r0+36+i}")
        for i in range(8): a(f"v_add_f32 v{r0+i}, v{r0+i}, v{r0+24+i}")
        for i in range(8): a(f"v_mul_f32 v{r0+i}, v{r0+i}, v{r0+8}")
        for i in range(4):
            a(f"v_cvt_pk_bf16_f32 v{r0+12+i}, v{r0+2*i}, v{r0+2*i+1}")
        a(f"buffer_store_dwordx4 {vr(r0+12,4)}, v{VO}, {WSR}, s{S_G} offen offset:{256*j} sc1")
    stamp(a, 4)
    stamp_dump(a)
    a("s_endpgm")
    a.label(slow)
    loop = a.newlabel("slowq"); spin = a.newlabel("slows")
    a("s_waitcnt vmcnt(0)")
    for t in range(NFIX, 16): vfix(t)
    a(f"v_lshlrev_b32 v6, 2, v0\nv_add_u32 v6, {LDS_X + 2048}, v6")
    a(f"s_lshl_b32 s{S_K1}, s{W}, 8\ns_mov_b32 s{S_K0}, 4")
    a.label(loop)
    a(f"ds_read_b128 {vr(QB,4)}, v{VLQ}\nv_add_u32 v{VLQ}, 1024, v{VLQ}")
    zero_o()
    a(f"v_mov_b32 v7, 0xff800000")
    a("s_waitcnt lgkmcnt(0)")
    for t in range(16):
        S(t, 0)
        a("s_nop 12")
        for i in range(0, 16, 2): a(f"v_max3_f32 v7, v7, v{SB[0]+i}, v{SB[0]+i+1}")
    a(f"v_mov_b32 v13, v7\ns_nop 1\nv_permlane32_swap_b32 v7, v13\nv_max_f32 v7, v7, v13")
    a(f"v_add_u32 v13, s{S_K1}, v6\nds_write_b32 v13, v7")
    a(f"v_mov_b32 v14, {LDS_C + 8}\nv_mov_b32 v15, 1\ns_mov_b64 exec, 1\nds_add_u32 v14, v15\ns_mov_b64 exec, -1")
    a.label(spin)
    a(f"ds_read_b32 v15, v14\ns_waitcnt lgkmcnt(0)\nv_readfirstlane_b32 s{S_T}, v15\ns_cmp_lt_u32 s{S_T}, s{S_K0}\ns_cbranch_scc1 {spin}")
    a(f"ds_read2st64_b32 v[14:15], v6 offset0:0 offset1:1\nds_read2st64_b32 v[16:17], v6 offset0:2 offset1:3")
    a("s_waitcnt lgkmcnt(0)")
    a("v_max3_f32 v7, v14, v15, v16\nv_max_f32 v7, v7, v17")
    for i in range(16): a(f"v_sub_f32 v{SB[1]+i}, 0, v7")
    a("s_nop 1")
    for t in range(16):
        S(t, 0, vr(SB[1], 16))
        a("s_nop 12")
        for i in range(16): EX(0, i)
        a("s_nop 1")
        PV(t, 0, 0); PV(t, 1, 0)
    a("s_nop 15")
    flush(0)
    a(f"v_add_u32 v{VL16}, {4*PART}, v{VL16}\nv_add_u32 v{VL4}, {4*PART}, v{VL4}\nv_xor_b32 v6, 1024, v6")
    a(f"s_add_u32 s{S_K0}, s{S_K0}, 4\ns_cmp_le_u32 s{S_K0}, 32\ns_cbranch_scc1 {loop}")
    gl(0, 6); gl(1, 7)
    a(f"s_branch {red}")

def ffn1(a):
    VXR, VWR = 8, 12
    T0, T1, T2 = 5, 6, 7
    lidle = a.newlabel("Fidle"); lend = a.newlabel("s1end")
    a(f"v_bfe_u32 v{T0}, v0, 4, 1\nv_lshlrev_b32 v66, 10, v{T0}\nv_and_b32 v{T0}, 32, v0\nv_lshl_add_u32 v66, v{T0}, 4, v66")
    a(f"v_and_b32 v{T0}, 15, v0\nv_lshl_add_u32 v66, v{T0}, 4, v66")
    a(f"s_lshl_b32 s{S_T}, s{S_A}, 2\ns_add_u32 s{S_T}, s{S_T}, s{W}\ns_lshl_b32 s{S_G}, s{S_T}, 15")
    a(f"s_lshl_b32 s{S_T}, s{S_B}, 11\ns_add_u32 s{S_G}, s{S_G}, s{S_T}\ns_add_u32 s{S_G}, s{S_G}, {WS_OP}")
    def sentinels():
        a("v_mov_b64 v[76:77], -1\nv_mov_b64 v[78:79], -1")
        for j in range(2): a(f"buffer_store_dwordx4 v[76:79], v66, {WSR}, s{S_G} offen offset:{256*j} sc1")
    a(f"s_cmp_ge_u32 s{S_ID}, 224\ns_cbranch_scc1 {lidle}")
    a(f"s_and_b32 s{S_T}, s{W}, 1\ns_lshl_b32 s{S_T}, s{S_T}, 13")
    a(f"v_and_b32 v{T0}, 15, v0\nv_lshrrev_b32 v{T1}, 4, v0\nv_bfe_u32 v{T2}, v0, 1, 3\nv_xor_b32 v{T2}, v{T2}, v{T1}")
    a(f"v_lshlrev_b32 v{T0}, 7, v{T0}\nv_add_u32 v{T0}, s{S_T}, v{T0}\nv_lshl_add_u32 v{VXR}, v{T2}, 4, v{T0}")
    a(f"v_xor_b32 v{T2}, 4, v{T2}\nv_lshl_add_u32 v{VXR+1}, v{T2}, 4, v{T0}")
    a(f"v_bfe_u32 v{T0}, v0, 2, 2\nv_bfe_u32 v{T2}, v0, 4, 1\nv_lshl_add_u32 v16, v{T2}, 3, v{T0}\nv_lshlrev_b32 v16, 8, v16")
    a(f"v_lshrrev_b32 v17, 5, v0\nv_lshl_add_u32 v16, v17, 13, v16\nv_and_b32 v17, 3, v0\nv_lshl_add_u32 v16, v17, 3, v16\nv_add_u32 v16, {WL}, v16")
    a(f"v_lshl_or_b32 v{T0}, v{T2}, 2, v{T0}\ns_and_b32 s{S_T}, s{W}, 2\ns_lshl_b32 s{S_T}, s{S_T}, 1\nv_xor_b32 v{T0}, s{S_T}, v{T0}")
    for jj in range(4):
        a(f"v_xor_b32 v{VWR+jj}, {jj}, v{T0}\nv_lshl_add_u32 v{VWR+jj}, v{VWR+jj}, 5, v16\nv_add_u32 v{68+jj}, 0x8000, v{VWR+jj}")
    kernarg_wait(a)
    def pfm():
        a(f"s_lshl_b32 s{S_T+4}, s{S_ID}, 2\ns_add_u32 s{S_T+4}, s{S_T+4}, s{W}\nv_lshlrev_b32 v80, 4, v0")
        srd(a, R_W0, S_WG, 512 * 3584); srd(a, R_W1, S_WU, 512 * 3584)
        a(f"s_lshl_b32 s{S_T}, s{S_T+4}, 11\ns_mul_i32 s{S_T+1}, s{S_T+4}, 2560")
        for i in range(3): a(f"buffer_load_dwordx4 v[84:87], v80, {rs(R_X)}, s{S_T+1} offen offset:{1024*i}")
        for i in range(2):
            a(f"buffer_load_dwordx4 v[84:87], v80, {rs(R_W0)}, s{S_T} offen offset:{1024*i}\nbuffer_load_dwordx4 v[84:87], v80, {rs(R_W1)}, s{S_T} offen offset:{1024*i}")
    if OPT.get("pfm") == 1: pfm()
    if OPT["pfx"] or OPT["pfw"]:
        a(f"s_lshr_b32 s{S_T+4}, s{S_ID}, 3\ns_lshl_b32 s{S_T+4}, s{S_T+4}, 2\ns_add_u32 s{S_T+4}, s{S_T+4}, s{W}\nv_lshlrev_b32 v80, 4, v0")
        if OPT.get("pfd"): a(f"s_sleep {OPT['pfd']}")
        if OPT["pfx"]:
            a(f"s_and_b32 s{S_T}, s{S_ID}, 1\ns_lshl_b32 s{S_T}, s{S_T}, 20\ns_mul_i32 s{S_T+1}, s{S_T+4}, {9*1024}\ns_add_u32 s{S_T}, s{S_T}, s{S_T+1}")
            for i in range(9):
                a(f"buffer_load_dwordx4 v[84:87], v80, {rs(R_X)}, s{S_T} offen\ns_add_u32 s{S_T}, s{S_T}, 1024")
        if OPT["pfw"]:
            srd(a, R_W0, S_WG, 512 * 3584); srd(a, R_W1, S_WU, 512 * 3584)
            a(f"s_bfe_u32 s{S_T}, s{S_ID}, 0x20001\ns_mul_i32 s{S_T}, s{S_T}, 28\ns_lshr_b32 s{S_T}, s{S_T}, 3\ns_lshl_b32 s{S_T}, s{S_T}, 8")
            a(f"s_mul_i32 s{S_T+1}, s{S_T+4}, 3584\ns_add_u32 s{S_T}, s{S_T}, s{S_T+1}")
            for i in range(5):
                a(f"buffer_load_dwordx4 v[84:87], v80, {rs(R_W0)}, s{S_T} offen\nbuffer_load_dwordx4 v[84:87], v80, {rs(R_W1)}, s{S_T} offen\ns_add_u32 s{S_T}, s{S_T}, {112*3584}")
    finish_tag_ack(a, 64, 65)
    ACC = 128
    FX = (16, 32); FW = 80
    acc_ = lambda jj, mat, p: ACC + 32 * jj + 16 * mat + 4 * p
    lq = []
    def lds(x, tag): a(x); lq.append(tag)
    def lwait(tags):
        idx = max((i for i, t in enumerate(lq) if t in tags), default=-1)
        n = len(lq) - 1 - idx
        del lq[:idx + 1]
        a(f"s_waitcnt lgkmcnt({min(n, 15)})")
    def rdX(J): return [(f"ds_read_b128 {vr(FX[J&1]+4*p,4)}, v{VXR + J%2} offset:{XL + ((J//2)%3)*16384 + p*2048}", ("X", J)) for p in range(4)]
    def rdW(J, fi):
        sl = (2 * J) % OPT["nw"]; wr = VWR if sl < 4 else 68; so = sl if sl < 4 else sl - 4
        return [(f"ds_read_b64_tr_b16 {vr(FW+4*fi+2*hf,2)}, v{wr+fi//2} offset:{so*8192 + (fi%2)*4096 + hf*1024}", ("W", J, fi)) for hf in range(2)]
    a("s_barrier")
    stamp(a, 1)
    for x in rdX(0) + [y for fi in range(8) for y in rdW(0, fi)][:10]: lds(*x)
    lwait({("X", 0), ("W", 0, 0)})
    for x in [y for fi in range(5, 8) for y in rdW(0, fi)]: lds(*x)
    LB = OPT["lastbar"]
    c0 = -2.0 * LOG2E * math.sqrt(2.0 / math.pi); c1 = c0 * 0.044715
    for J in range(16):
        if OPT.get("fst") and J in (2, 4, 8, 12): stamp(a, {2: 5, 4: 6, 8: 7, 12: 8}[J], True)
        if J == 4:
            a("s_waitcnt vmcnt(0)")
            if OPT.get("st8"): a("v_and_b32 v3, 15, v0\nv_lshlrev_b32 v3, 4, v3\nv_and_b32 v2, 32, v0\nv_lshl_add_u32 v3, v2, 4, v3\nv_and_b32 v2, 16, v0\nv_lshrrev_b32 v2, 1, v2\nv_add_u32 v3, v3, v2")
            a(f"v_lshlrev_b32 v2, 4, v0\nv_mov_b32 v4, {f2u(c0):#x}\nv_mov_b32 v5, {f2u(c0):#x}")
            a(f"s_mov_b32 s{S_K2}, {f2u(c1):#x}\ns_mov_b32 s{S_K2+1}, {f2u(c1):#x}")
            a(f"s_lshl_b32 s{S_T}, s{S_A}, 2\ns_and_b32 s{S_T+1}, s{W}, 1\ns_lshl_b32 s{S_T+1}, s{S_T+1}, 1\ns_add_u32 s{S_T}, s{S_T}, s{S_T+1}")
            a(f"s_mul_i32 s{S_T}, s{S_T}, 112\ns_lshl_b32 s{S_T+1}, s{S_B}, 3\ns_add_u32 s{S_T}, s{S_T}, s{S_T+1}")
            a(f"s_and_b32 s{S_T+1}, s{W}, 2\ns_lshl_b32 s{S_T+1}, s{S_T+1}, 1\ns_add_u32 s{S_T}, s{S_T}, s{S_T+1}\ns_lshl_b32 s{S_T}, s{S_T}, 10")
            a(f"s_add_u32 s{S_E}, s{S_T}, {WS_HP}\ns_add_u32 s{S_F}, s{S_E}, {112*1024}")
        if J in (OPT["look"], OPT["look"] + 2):
            lab = a.newlabel("nolook")
            a(f"s_cmp_lg_u32 s{W}, 0\ns_cbranch_scc1 {lab}")
            if J == OPT["look"]:
                a(f"v_lshlrev_b32 v72, 3, v0\ns_mov_b32 s{S_K0}, {WS_RECK}")
                a(f"buffer_load_dwordx2 v[74:75], v72, {WSR}, s{S_K0} offen sc1\nbuffer_load_dwordx2 v[76:77], v72, {WSR}, s{S_K0} offen offset:512 sc1")
            else:
                a(f"s_waitcnt vmcnt(0)\nv_cmp_ne_u32 vcc, s{S_TAG}, v74\nv_cmp_ne_u32 s[{S_T+6}:{S_T+7}], s{S_TAG}, v76")
                wave_max(a, 75)
                a(f"s_or_b64 vcc, vcc, s[{S_T+6}:{S_T+7}]\ns_cmp_eq_u64 vcc, 0\ns_cselect_b32 s{S_T}, 1, 0")
                a(f"v_mov_b32 v76, s{S_T}\nv_mov_b32 v72, {LDS_X + 1024}\ns_mov_b32 exec_lo, 0\ns_mov_b32 exec_hi, 0x80000000")
                a(f"ds_write2_b32 v72, v75, v76 offset0:0 offset1:1\ns_mov_b64 exec, -1\ns_waitcnt lgkmcnt(0)")
            a.label(lab)
        BP = OPT["barpos"]
        if J <= LB and BP == 0: a("s_barrier")
        pend = rdX(J + 1) if J < 15 else []
        for fi in range(8):
            if J <= LB and BP and fi == BP: a("s_barrier")
            lwait({("W", J, fi), ("X", J)})
            for p in range(4):
                ac = acc_(fi // 2, fi % 2, p)
                a(f"v_mfma_f32_16x16x32_bf16 {vr(ac,4)}, {vr(FW+4*fi,4)}, {vr(FX[J&1]+4*p,4)}, {'0' if J == 0 else vr(ac,4)}")
                if pend and (p != 3 or BP) and fi >= BP: lds(*pend.pop(0))
            if J < 15: pend += rdW(J + 1, fi)
        while pend: lds(*pend.pop(0))
        if J == 14: a(f"v_mov_b32 v6, {LDS_C + 4*10}\nv_mov_b32 v7, 1\ns_mov_b64 exec, 1\nds_add_u32 v6, v7\ns_mov_b64 exec, -1"); lq.append(("c", 0))
    stamp(a, 2)
    a(f"s_setprio {OPT['prioG']}")
    a("s_nop 7")
    for jj in range(4):
        G_ = ACC + 32 * jj; TT = 16 + 16 * (jj & 1)
        P2 = [(G_ + i, TT + i) for i in range(0, 16, 2)]
        for g_, t_ in P2: a(f"v_pk_mul_f32 {vr(t_,2)}, {vr(g_,2)}, {vr(g_,2)}")
        for g_, t_ in P2: a(f"v_pk_fma_f32 {vr(t_,2)}, {vr(t_,2)}, s[{S_K2}:{S_K2+1}], v[4:5]")
        for g_, t_ in P2: a(f"v_pk_mul_f32 {vr(t_,2)}, {vr(t_,2)}, {vr(g_,2)}")
        for g_, t_ in P2: a(f"v_exp_f32 v{t_}, v{t_}\nv_exp_f32 v{t_+1}, v{t_+1}")
        for g_, t_ in P2: a(f"v_pk_mul_f32 {vr(g_,2)}, {vr(g_,2)}, {vr(g_+16,2)}")
        for g_, t_ in P2: a(f"v_pk_add_f32 {vr(t_,2)}, {vr(t_,2)}, 1.0 op_sel_hi:[1,0]")
        for g_, t_ in P2: a(f"v_rcp_f32 v{t_}, v{t_}\nv_rcp_f32 v{t_+1}, v{t_+1}")
        a("s_nop 0")
        for g_, t_ in P2: a(f"v_pk_mul_f32 {vr(g_,2)}, {vr(g_,2)}, {vr(t_,2)}")
        for i in range(8): a(f"v_cvt_pk_bf16_f32 v{G_+16+i}, v{G_+2*i}, v{G_+2*i+1}")
        if OPT.get("st8"):
            for p in range(4):
                a(f"buffer_store_dwordx2 {vr(G_+16+2*p,2)}, v3, {WSR}, s{S_E if p < 2 else S_F} offen offset:{jj*1024 + (p&1)*256} sc1")
        else:
            for m in range(2):
                h0 = G_ + 16 + 4 * m
                if m == 0: a("s_nop 0")
                a(f"v_permlane16_swap_b32 v{h0}, v{h0+2}\nv_permlane16_swap_b32 v{h0+1}, v{h0+3}")
                a(f"buffer_store_dwordx4 {vr(h0,4)}, v2, {WSR}, s{S_E if m == 0 else S_F} offen offset:{jj*1024} sc1")
    if OPT["sentat"] > 31: sentinels()
    a(f"s_lshl_b32 s{S_T}, s{S_A}, 11\ns_lshl_b32 s{S_T+1}, s{S_B}, 7\ns_add_u32 s{S_T}, s{S_T}, s{S_T+1}\ns_add_u32 s{S_T}, s{S_T}, {WS_FLH}")
    stamp(a, 3)
    a("s_waitcnt vmcnt(0)")
    lsync(a, 3, 4, 6, 7, OPT['lsl'])
    lab = a.newlabel("ringdead")
    a(f"v_mov_b32 v6, {LDS_C + 4*10}")
    a.label(lab)
    a(f"ds_read_b32 v7, v6\ns_waitcnt lgkmcnt(0)\nv_readfirstlane_b32 s{S_T+10}, v7\ns_cmp_lt_u32 s{S_T+10}, 8\ns_cbranch_scc1 {lab}")
    stamp(a, 4)
    a(f"s_cmp_lg_u32 s{W}, 0\ns_cbranch_scc1 {lend}")
    a(f"s_mov_b64 exec, 1\nbuffer_store_dword v64, v65, {WSR}, s{S_T} offen sc1\ns_mov_b64 exec, -1")
    a(f"s_branch {lend}")
    a.label(lidle)
    VER, VGR, VLIN = 12, 13, 4
    a(f"s_lshl_b32 s{S_T}, s{W}, 12")
    x_read_addr(a, VXR, T0, T1, T2, S_T)
    a(f"v_bfe_u32 v{T0}, v0, 2, 2\nv_lshl_add_u32 v{T0}, v{T1}, 3, v{T0}\nv_and_b32 v{T2}, 3, v0\nv_lshlrev_b32 v{T2}, 3, v{T2}")
    a(f"v_lshl_add_u32 v{VER}, v{T0}, 5, v{T2}\nv_add_u32 v{VER}, {IEL}, v{VER}\nv_lshlrev_b32 v{VGR}, 4, v{T1}\nv_add_u32 v{VGR}, {IGL}, v{VGR}")
    a(f"v_lshlrev_b32 v{VLIN}, 4, v0\ns_lshl_b32 s{S_F}, s{S_A}, 2\ns_add_u32 s{S_F}, s{S_F}, s{W}   ; tt")
    kernarg_wait(a)
    finish_tag_ack(a, 64, 65)
    lv = a.newlabel("FV"); pub = a.newlabel("Fpub")
    ACK, ACG, XF, EF, GF, P = 32, 48, 16, 24, 88, 80
    sentinels()
    a(f"s_cmp_eq_u32 s{S_B}, 15\ns_cbranch_scc1 {lv}")
    for v in "KV":
        if v == "V": a.label(lv)
        def reads(j):
            b = j & 1; u = j // 4
            a(f"ds_read_b128 {vr(XF+4*b,4)}, v{VXR + j%4} offset:{(u%4)*16384}")
            a(f"ds_read_b64_tr_b16 {vr(EF+4*b,2)}, v{VER} offset:{j*512}\nds_read_b64_tr_b16 {vr(EF+4*b+2,2)}, v{VER} offset:{j*512 + 128}")
            if v == "K": a(f"ds_read_b128 {vr(GF+4*b,4)}, v{VGR} offset:{j*32}")
        for u in range(8):
            a("s_barrier")
            reads(4 * u)
            for ks in range(4):
                j = 4 * u + ks; b = j & 1
                if ks < 3: reads(j + 1); a(f"s_waitcnt lgkmcnt({4 if v == 'K' else 3})")
                else: a("s_waitcnt lgkmcnt(0)")
                cc = (lambda r: "0") if j == 0 else (lambda r: vr(r, 16))
                if v == "K":
                    a(f"v_mfma_f32_32x32x16_bf16 {vr(ACK,16)}, {vr(EF+4*b,4)}, {vr(XF+4*b,4)}, {cc(ACK)}")
                    a(f"v_mfma_f32_32x32x16_bf16 {vr(ACG,16)}, {vr(GF+4*b,4)}, {vr(XF+4*b,4)}, {cc(ACG)}")
                else:
                    a(f"v_mfma_f32_32x32x16_bf16 {vr(ACK,16)}, {vr(XF+4*b,4)}, {vr(EF+4*b,4)}, {cc(ACK)}")
        stamp(a, 2)
        a("s_nop 15")
        if v == "K":
            for j in range(8): a(f"v_mul_f32 v{ACK+j}, {f2u(0.25*LOG2E):#x}, v{ACK+j}")
            for j in range(4): a(f"v_cvt_pk_bf16_f32 v{P+j}, v{ACK+2*j}, v{ACK+2*j+1}")
            a(f"v_and_b32 v{T1}, 0x33, v0\nv_bfe_u32 v{T2}, v0, 2, 1\nv_lshl_or_b32 v{T1}, v{T2}, 3, v{T1}")
            a(f"v_bfe_u32 v{T2}, v0, 3, 1\nv_lshl_or_b32 v{T1}, v{T2}, 2, v{T1}\nv_lshlrev_b32 v{T1}, 4, v{T1}")
            a(f"s_lshl_b32 s{S_T}, s{S_F}, 10\ns_add_u32 s{S_T}, s{S_T}, {WS_KP}")
            a(f"buffer_store_dwordx4 {vr(P,4)}, v{T1}, {WSR}, s{S_T} offen sc1")
            a(f"v_mul_f32 v20, {f2u(-LOG2E):#x}, v{ACG}\nv_exp_f32 v20, v20\nv_and_b32 v21, 31, v0")
            a(f"v_add_f32 v20, 1.0, v20\nv_rcp_f32 v20, v20\nv_lshlrev_b32 v21, 2, v21")
            a(f"s_lshl_b32 s{S_T}, s{S_F}, 7\ns_add_u32 s{S_T}, s{S_T}, {WS_G}")
            a(f"buffer_store_dword v20, v21, {WSR}, s{S_T} offen sc1")
            a(f"v_mul_f32 v{T0}, v{ACK}, v{ACK}")
            for j in range(1, 8): a(f"v_fmac_f32 v{T0}, v{ACK+j}, v{ACK+j}")
            a(f"v_mov_b32 v67, v{T0}\ns_nop 1\nv_permlane32_swap_b32 v{T0}, v67\nv_add_f32 v67, v{T0}, v67")
            wave_max(a, 67)
            a(f"s_mov_b32 s{S_T+1}, {WS_RECK}")
            a(f"s_branch {pub}")
        else:
            for j in range(8): a(f"v_cvt_pk_bf16_f32 v{P+j}, v{ACK+2*j}, v{ACK+2*j+1}")
            a(f"v_and_b32 v{T1}, 16, v0\nv_cmp_ne_u32 vcc, 0, v{T1}")
            a(f"s_lshl_b32 s{S_T}, s{S_F}, 10\ns_add_u32 s{S_T}, s{S_T}, {WS_VP}")
            for j in range(4): a(f"v_cndmask_b32 v{P+j}, v{P+j}, v{P+4+j}, vcc")
            a(f"buffer_store_dwordx4 {vr(P,4)}, v{VLIN}, {WSR}, s{S_T} offen sc1")
            a(f"s_mov_b32 s{S_T+1}, {WS_RECK + 512}\nv_mov_b32 v67, 0")
    a.label(pub)
    a(f"s_lshl_b32 s{S_T}, s{S_F}, 3\ns_add_u32 s{S_T+1}, s{S_T+1}, s{S_T}\nv_mov_b32 v66, s{S_TAG}")
    a("s_mov_b32 exec_lo, 0\ns_mov_b32 exec_hi, 0x80000000\ns_waitcnt vmcnt(0)")
    stamp(a, 3)
    a(f"buffer_store_dwordx2 v[66:67], v65, {WSR}, s{S_T+1} offen sc1\ns_mov_b64 exec, 1")
    a(f"v_mov_b32 v6, {LDS_C + 4*3}\nv_mov_b32 v7, 1\nds_add_u32 v6, v7\ns_mov_b64 exec, -1")
    a("s_barrier")
    epoch_update(a)
    a.label(lend)

def epoch_update(a):
    lab = a.newlabel("noepoch")
    a(f"s_cmp_lg_u32 s{S_ID}, 224\ns_cbranch_scc1 {lab}\ns_cmp_lg_u32 s{W}, 1\ns_cbranch_scc1 {lab}")
    a(f"v_lshlrev_b32 v2, 4, v0\ns_mov_b32 s{S_T+6}, {WS_ACK}\ns_mov_b32 s{S_T+7}, {WS_ACK+4096}")
    loads, regs = [], []
    for i in range(8):
        loads.append(f"buffer_load_dwordx4 {vr(16+4*i,4)}, v2, {WSR}, s{S_T+6+i//4} offen offset:{(i%4)*1024} sc1")
        regs += [16 + 4*i + j for j in range(4)]
    poll(a, loads, regs, sleep=64)
    a(f"s_mov_b64 exec, 1\nbuffer_store_dword v64, v65, {WSR}, 0 offen offset:{WS_EPOCH} sc1\ns_mov_b64 exec, -1")
    a.label(lab)

def ffn2(a):
    a(f"s_and_b32 s{S_T}, s{S_ID}, 1\ns_lshl_b32 s{S_T}, s{S_T}, 4\ns_and_b32 s{S_T+1}, s{S_ID}, 2\ns_lshl_b32 s{S_T+1}, s{S_T+1}, 2")
    a(f"s_add_u32 s{S_T}, s{S_T}, s{S_T+1}\ns_bfe_u32 s{S_T+1}, s{S_ID}, 0x30003\ns_add_u32 s{S_A}, s{S_T}, s{S_T+1}   ; tb64")
    a(f"s_and_b32 s{S_T}, s{S_ID}, 4\ns_lshr_b32 s{S_T+1}, s{S_ID}, 6\ns_add_u32 s{S_B}, s{S_T}, s{S_T+1}   ; cb")
    srd(a, R_W0, S_WD, 1792 * 1024); srd(a, R_W1, S_WO, 512 * 1024); srd(a, R_OUT, S_OUT, 2048 * 1024)
    VWS, VLIN, VR0, VR1, VG = 2, 3, 4, 5, 6
    T0, T1, T2 = 8, 9, 10
    a(f"v_lshrrev_b32 v{T0}, 3, v0\nv_and_b32 v{T1}, 7, v0\nv_bfe_u32 v{T2}, v0, 4, 1\nv_lshlrev_b32 v{T2}, 2, v{T2}")
    a(f"v_xor_b32 v{VWS}, v{T2}, v{T1}\nv_lshlrev_b32 v{VWS}, 4, v{VWS}\nv_lshl_add_u32 v{VWS}, v{T0}, 10, v{VWS}")
    a(f"v_lshlrev_b32 v{VLIN}, 4, v0")
    a(f"v_lshrrev_b32 v{T1}, 5, v0\nv_bfe_u32 v{T0}, v0, 2, 2\nv_lshl_add_u32 v{T0}, v{T1}, 2, v{T0}\nv_and_b32 v{T2}, 3, v0")
    a(f"v_lshlrev_b32 v{T2}, 3, v{T2}\nv_lshl_add_u32 v{VR0}, v{T0}, 7, v{T2}\nv_bfe_u32 v{T0}, v0, 4, 1\nv_bfe_u32 v{T2}, v0, 3, 1")
    a(f"v_lshl_or_b32 v{T0}, v{T2}, 1, v{T0}\nv_xor_b32 v{T2}, 2, v{T0}")
    a(f"v_lshl_add_u32 v{VR1}, v{T2}, 5, v{VR0}\nv_lshl_add_u32 v{VR0}, v{T0}, 5, v{VR0}")
    a(f"s_mul_i32 s{S_M0B}, s{W}, 20480")
    a(f"v_add_u32 v{VR0}, s{S_M0B}, v{VR0}\nv_add_u32 v{VR1}, s{S_M0B}, v{VR1}")
    a(f"v_lshlrev_b32 v{T1}, 9, v{T1}\nv_add_u32 v14, v{VR0}, v{T1}\nv_add_u32 v15, v{VR1}, v{T1}")
    a(f"s_lshl_b32 s{S_T}, s{S_B}, 7\ns_lshl_b32 s{S_C}, s{W}, 14\ns_add_u32 s{S_C}, s{S_C}, s{S_T}")
    a(f"s_mul_i32 s{S_D}, s{S_A}, {2*112*1024}\ns_lshl_b32 s{S_T}, s{W}, 10\ns_add_u32 s{S_D}, s{S_D}, s{S_T}")
    a(f"s_add_u32 s{S_D}, s{S_D}, {WS_HP}\ns_add_u32 s{S_E}, s{S_D}, {112*1024}")
    a(f"s_lshl_b32 s{S_T}, s{S_B}, 1\ns_add_u32 s{S_T}, s{S_T}, s{S_A}\ns_and_b32 s{S_T}, s{S_T}, {OPT['rot2']}")
    a(f"s_mul_i32 s{S_T}, s{S_T}, 7\ns_lshr_b32 s{S_T}, s{S_T}, 1\ns_lshl_b32 s{S_K2}, s{S_T}, 16\ns_lshl_b32 s{S_K3}, s{S_T}, 12")
    ACC, HF, FW = 64, 128, (16, 24)
    NS, D = 28, 8
    q = []
    def issueW(n):
        a(f"s_add_u32 s{S_T+1}, s{S_C}, s{S_K2}")
        for p in range(2):
            dma(a, VWS, R_W0, S_T, S_T + 1, p * 8192, (n % D) * 2048 + p * 1024); q.append(("W", n))
        a(f"s_add_u32 s{S_K2}, s{S_K2}, 65536\ns_cmp_eq_u32 s{S_K2}, {28*65536}\ns_cselect_b32 s{S_K2}, 0, s{S_K2}")
    def issueWo(n):
        for p in range(2):
            dma(a, VWS, R_W1, S_T, S_G, (n - NS) * 16384 + p * 8192, (n % D) * 2048 + p * 1024); q.append(("W", n))
    def issueH(n):
        a(f"s_add_u32 s{S_T}, s{S_D}, s{S_K3}\ns_add_u32 s{S_T+1}, s{S_E}, s{S_K3}")
        a(f"s_add_u32 s{S_K3}, s{S_K3}, 4096\ns_cmp_eq_u32 s{S_K3}, {28*4096}\ns_cselect_b32 s{S_K3}, 0, s{S_K3}")
        a(f"buffer_load_dwordx4 {vr(HF+(n%D)*8,4)}, v{VLIN}, {WSR}, s{S_T} offen{SC()}"); q.append(("H", n))
        a(f"buffer_load_dwordx4 {vr(HF+(n%D)*8+4,4)}, v{VLIN}, {WSR}, s{S_T+1} offen{SC()}"); q.append(("H", n))
    def waitfor(tags):
        idx = max((i for i, t in enumerate(q) if t in tags), default=-1)
        n = len(q) - 1 - idx
        del q[:idx + 1]
        a(f"s_waitcnt vmcnt({n})")
    def rd_list(n):
        b = n & 1
        return [f"ds_read_b64_tr_b16 {vr(FW[b]+4*ct+2*hf,2)}, v{14+ct} offset:{(n%D)*2048 + hf*512}" for ct in range(2) for hf in range(2)]
    a(f"s_lshl_b32 s{S_G}, s{W}, 17\ns_lshl_b32 s{S_T}, s{S_B}, 7\ns_add_u32 s{S_G}, s{S_G}, s{S_T}")
    for n in range(OPT.get("wpre", 2)): issueW(n)
    lab = a.newlabel("nopoll")
    a(f"s_cmp_lg_u32 s{W}, 0\ns_cbranch_scc1 {lab}")
    a(f"s_lshr_b32 s{S_T+4}, s{S_A}, 1\ns_lshl_b32 s{S_T+4}, s{S_T+4}, 11\ns_add_u32 s{S_T+4}, s{S_T+4}, {WS_FLH}")
    a(f"s_lshl_b32 s{S_T+5}, s{S_A}, 4\ns_add_u32 s{S_T+5}, s{S_T+5}, {WS_RECK}")
    a(f"v_lshlrev_b32 v11, 7, v0\nv_add_u32 v11, s{S_T+4}, v11\nv_and_b32 v12, 1, v0\nv_lshlrev_b32 v12, 3, v12\nv_add_u32 v12, s{S_T+5}, v12")
    a(f"v_and_b32 v13, 32, v0\nv_lshl_add_u32 v12, v13, 4, v12")
    a(f"v_cmp_gt_u32 vcc, 14, v0\ns_nop 1\nv_cndmask_b32 v11, v12, v11, vcc")
    poll(a, [f"buffer_load_dword v13, v11, {WSR}, 0 offen sc1"], [13], sleep=12)
    a.label(lab)
    a("s_waitcnt vmcnt(0)")
    lsync(a, 4, 4, 11, 12, 4 * OPT['lsl'])
    q.clear()
    stamp(a, 5)
    a(f"s_setprio {OPT['prioD']}")
    for n in range(D):
        if n >= OPT.get("wpre", 2): issueW(n)
        issueH(n)
    a(f"s_lshl_b32 s{S_T}, s{S_A}, 8\ns_add_u32 s{S_T}, s{S_T}, {WS_G}\nv_and_b32 v{T0}, 31, v0\nv_lshlrev_b32 v{T0}, 2, v{T0}")
    for m in range(2):
        a(f"buffer_load_dword v{VG+m}, v{T0}, {WSR}, s{S_T} offen offset:{128*m}{SC()}"); q.append(("G", 0))
    waitfor({("W", 0)})
    for l in rd_list(0): a(l)
    def step(n, bsrc, extra=None):
        b = n & 1
        rl = rd_list(n + 1) if n + 1 < NS + 8 else []
        for k in range(4):
            ct, m = k // 2, k % 2
            acc = ACC + 16 * k
            c = "0" if n == 0 else vr(acc, 16)
            a(f"v_mfma_f32_32x32x16_bf16 {vr(acc,16)}, {vr(FW[b]+4*ct,4)}, {vr(bsrc+4*m,4)}, {c}")
            for _ in range(2):
                if rl: a(rl.pop(0))
            if k == 2 and extra: extra()
            if OPT.get("space") and k != 2: a(f"s_nop {OPT['space']}")
    a(f"s_lshl_b32 s{S_F}, s{S_A}, 16\ns_lshl_b32 s{S_T}, s{W}, 13\ns_add_u32 s{S_F}, s{S_F}, s{S_T}\ns_add_u32 s{S_F}, s{S_F}, {WS_OP}")
    a(f"v_and_b32 v11, 3, v0\nv_lshlrev_b32 v11, 11, v11\nv_and_b32 v12, 4, v0\nv_lshl_add_u32 v11, v12, 13, v11")
    a(f"v_lshl_add_u32 v{T0}, v0, 4, s{S_M0B}")
    a(f"v_lshlrev_b32 v{T1}, 4, v0\ns_lshl_b32 s{S_T}, s{W}, 12\nv_add_u32 v{T1}, s{S_T}, v{T1}")
    a(f"v_and_b32 v{T2}, 31, v0\nv_lshlrev_b32 v{T2}, 10, v{T2}\nv_and_b32 v12, 32, v0\nv_lshrrev_b32 v12, 1, v12\nv_add_u32 v{T2}, v{T2}, v12")
    a(f"s_lshl_b32 s{S_K0}, s{S_A}, 16\ns_lshl_b32 s{S_T+1}, s{S_B}, 7\ns_add_u32 s{S_K0}, s{S_K0}, s{S_T+1}")
    a(f"s_and_b32 s{S_T+1}, s{W}, 1\ns_lshl_b32 s{S_T+1}, s{S_T+1}, 15\ns_add_u32 s{S_K0}, s{S_K0}, s{S_T+1}")
    a(f"s_and_b32 s{S_T+1}, s{W}, 2\ns_lshl_b32 s{S_T+1}, s{S_T+1}, 5\ns_add_u32 s{S_K0}, s{S_K0}, s{S_T+1}")
    HOLD = OPT["hold"]; NF = NS - HOLD; R_ = HOLD - 8
    assert 8 <= HOLD <= 16
    WX, HX, NSL = 192, 32, 10
    def mm(n, wsrc, bsrc, rl=(), extra=None, dst=None, src=None):
        rl = list(rl)
        for k in range(4):
            ct, m = k // 2, k % 2
            acc = ACC + 16 * k
            d_ = (dst or ACC) + 16 * k; c_ = (src or dst or ACC) + 16 * k
            a(f"v_mfma_f32_32x32x16_bf16 {vr(d_,16)}, {vr(wsrc+4*ct,4)}, {vr(bsrc+4*m,4)}, {'0' if n == 0 else vr(c_,16)}")
            for _ in range(2):
                if rl: a(rl.pop(0))
            if k == 2 and extra: extra()
    def rd(dst, slot, wo=False): return [f"ds_read_b64_tr_b16 {vr(dst+4*ct+2*hf,2)}, v{(VR0,VR1)[ct] if wo else 14+ct} offset:{slot*2048 + hf*(1024 if wo else 512)}" for ct in range(2) for hf in range(2)]
    def wo_dma(j, slot):
        for p in range(2): dma(a, VWS, R_W1, S_T, S_G, j * 16384 + p * 8192, slot * 2048 + p * 1024); q.append(("O", j))
    def h_load(dst, tag):
        a(f"s_add_u32 s{S_T}, s{S_D}, s{S_K3}\ns_add_u32 s{S_T+1}, s{S_E}, s{S_K3}")
        a(f"s_add_u32 s{S_K3}, s{S_K3}, 4096\ns_cmp_eq_u32 s{S_K3}, {28*4096}\ns_cselect_b32 s{S_K3}, 0, s{S_K3}")
        a(f"buffer_load_dwordx4 {vr(dst,4)}, v{VLIN}, {WSR}, s{S_T} offen{SC()}\nbuffer_load_dwordx4 {vr(dst+4,4)}, v{VLIN}, {WSR}, s{S_T+1} offen{SC()}")
        q.append(tag); q.append(tag)
    for n in range(NF):
        waitfor({("H", n), ("W", n + 1)})
        a("s_waitcnt lgkmcnt(0)")
        mm(n, FW[n & 1], HF + (n % D) * 8, rd(FW[(n + 1) & 1], (n + 1) % D) if n + 1 < NF else [], lambda: issueW(n + D))
        issueH(n + D)
    a("s_waitcnt vmcnt(0)"); q.clear()
    for i in range(8):
        for l in rd(WX + 8 * i, (NF + i) % D): a(l)
        if i % 3 == 2: a("s_waitcnt lgkmcnt(4)")
    a("s_waitcnt lgkmcnt(0)")
    for i in range(R_):
        a(f"s_add_u32 s{S_T+1}, s{S_C}, s{S_K2}")
        for p in range(2): dma(a, VWS, R_W0, S_T, S_T + 1, p * 8192, i * 2048 + p * 1024)
        a(f"s_add_u32 s{S_K2}, s{S_K2}, 65536\ns_cmp_eq_u32 s{S_K2}, {28*65536}\ns_cselect_b32 s{S_K2}, 0, s{S_K2}")
        if i < 4: h_load(HX + 8 * i, ("h", i))
    NPRE = min(8, NSL - R_)
    oslot = lambda j: R_ + j if j < NPRE else j - NPRE
    for j in range(NPRE): wo_dma(j, oslot(j))
    a("s_waitcnt vmcnt(0)"); q.clear()
    A1 = list(range(min(R_, 4))); A2 = list(range(4, R_))
    ringseq = A1 + A2 + [oslot(0)]
    for l in rd(FW[0], ringseq[0], R_ == 0): a(l)
    stamp(a, 6)
    lab = a.newlabel("hold")
    a(f"v_mov_b32 v12, {LDS_C + 4*1}")
    a.label(lab)
    a(f"s_sleep 2\nds_read_b32 v13, v12\ns_waitcnt lgkmcnt(0)\nv_readfirstlane_b32 s{S_T+10}, v13\ns_cmp_lt_u32 s{S_T+10}, {OPT.get('holdn', 1)}\ns_cbranch_scc1 {lab}")
    if OPT.get("dbgat") == 11: a("s_memrealtime s[8:9]")
    a(f"s_setprio {OPT['prioG']}")
    def free_slot(i):
        if NPRE + i < 8: wo_dma(NPRE + i, i)
    for i in A1:
        a("s_waitcnt lgkmcnt(0)")
        mm(1, FW[i & 1], HX + 8 * i, rd(FW[(i + 1) & 1], ringseq[i + 1], i + 1 == R_))
        if i + 4 < R_: h_load(HX + 8 * i, ("h", i + 4))
    for i in range(8): mm(1, WX + 8 * i, HF + ((NF + i) % D) * 8, extra=(lambda: free_slot(i)) if i in A1 else None)
    for i in A2:
        waitfor({("h", i)})
        a("s_waitcnt lgkmcnt(0)")
        mm(1, FW[i & 1], HX + 8 * (i - 4), rd(FW[(i + 1) & 1], ringseq[i + 1], i + 1 == R_), lambda: free_slot(i))
    a(f"v_sub_f32 v{VG}, 1.0, v{VG}\nv_sub_f32 v{VG+1}, 1.0, v{VG+1}")
    a(f"s_add_u32 s{S_D}, s{S_F}, 4096\ns_add_u32 s{S_E}, s{S_F}, 32768\ns_add_u32 s{S_C}, s{S_E}, 4096")
    a("s_nop 7")
    for k in range(4):
        for i in range(0, 16, 2):
            sel = "op_sel:[0,0] op_sel_hi:[1,0]" if k % 2 == 0 else "op_sel:[0,1] op_sel_hi:[1,1]"
            a(f"v_pk_mul_f32 {vr(ACC+16*k+i,2)}, {vr(ACC+16*k+i,2)}, {vr(VG,2)} {sel}")
    stamp(a, 7)
    again = a.newlabel("oagain"); ok = a.newlabel("ook"); fin = a.newlabel("ofin")
    a(f"s_mov_b32 s{S_T+10}, 0x40000")
    a.label(again)
    a(f"buffer_load_dword v13, v11, {WSR}, s{S_F} offen offset:2044 sc1")
    a(f"s_sub_u32 s{S_T+10}, s{S_T+10}, 1")
    a(f"s_waitcnt vmcnt(0)\nv_cmp_eq_u32 vcc, -1, v13\ns_cbranch_vccz {ok}")
    a(f"s_mov_b64 exec, vcc\n{'s_sleep 1' if OPT['wsl'] else 's_nop 0'}\ns_cmp_gt_i32 s{S_T+10}, 0\ns_cbranch_scc1 {again}")
    a.label(ok)
    a("s_mov_b64 exec, -1")
    q.clear()
    stamp(a, 8)
    for j in range(8):
        for m in range(2):
            sreg = (S_F, S_E, S_D, S_C)[m + 2 * (j // 4)]
            a(f"buffer_load_dwordx4 {vr(HF+8*j+4*m,4)}, v{VLIN}, {WSR}, s{sreg} offen offset:{(j%4)*1024} sc1")
    a("v_mov_b32 v12, 0")
    for j in range(8):
        a(f"s_waitcnt vmcnt({14 - 2*j}) lgkmcnt(0)")
        chk = [f"v_max3_u32 v12, v12, v{HF+8*j+2*i}, v{HF+8*j+2*i+1}" for i in range(4)]
        rl = rd(FW[(R_ + j + 1) & 1], oslot(j + 1), True) if j < 7 else []
        mm(1, FW[(R_ + j) & 1], HF + 8 * j, [x for p in zip(rl or chk, chk) for x in p] if rl else chk, dst=WX, src=ACC if j == 0 else WX)
    a(f"v_cmp_eq_u32 vcc, -1, v12\ns_cbranch_vccz {fin}")
    a(f"s_cmp_le_i32 s{S_T+10}, 0\ns_cbranch_scc1 {fin}")
    for l in rd(FW[R_ & 1], oslot(0), True): a(l)
    a(f"s_branch {again}")
    a.label(fin)
    stamp(a, 9)
    RB = 128
    for w in range(4):
        lab = a.newlabel("red")
        if w < 3: a(f"s_cmp_lg_u32 s{W}, {w}\ns_cbranch_scc1 {lab}")
        a("s_nop 7")
        others = [d for d in range(4) if d != w]
        for d in others:
            for i in range(4): a(f"ds_write_b128 v{T0}, {vr(WX+16*d+4*i,4)} offset:{d*4096 + i*1024}")
        if OPT["fbar"]: a("s_waitcnt lgkmcnt(0)\ns_barrier")
        else: lsync(a, 5, 4, 11, 12)
        for k, d in enumerate(others):
            for i in range(4): a(f"ds_read_b128 {vr(RB+16*k+4*i,4)}, v{T1} offset:{d*20480 + i*1024}")
        own = WX + 16 * w
        for k in range(3):
            a(f"s_waitcnt lgkmcnt({8 - 4*k})")
            for i in range(0, 16, 2): a(f"v_pk_add_f32 {vr(own+i,2)}, {vr(own+i,2)}, {vr(RB+16*k+i,2)}")
        for i in range(8): a(f"v_cvt_pk_bf16_f32 v{32+i}, v{own+2*i}, v{own+2*i+1}")
        if w < 3:
            a("s_branch L_out"); a.label(lab)
    a.label("L_out")
    a("s_nop 1")
    a("v_permlane32_swap_b32 v32, v34\nv_permlane32_swap_b32 v33, v35\nv_permlane32_swap_b32 v36, v38\nv_permlane32_swap_b32 v37, v39")
    a(f"buffer_store_dwordx4 v[32:35], v{T2}, {rs(R_OUT)}, s{S_K0} offen{['', ' sc1', ' nt', ' sc0 sc1', ' sc0'][OPT['outsc']]}")
    a(f"buffer_store_dwordx4 v[36:39], v{T2}, {rs(R_OUT)}, s{S_K0} offen offset:32{['', ' sc1', ' nt', ' sc0 sc1', ' sc0'][OPT['outsc']]}")

KD = """.section .rodata,"a"
.p2align 6
.amdhsa_kernel {k}
  .amdhsa_next_free_vgpr 256
  .amdhsa_next_free_sgpr 102
  .amdhsa_accum_offset 256
  .amdhsa_group_segment_fixed_size 0
  .amdhsa_kernarg_size 104
  .amdhsa_user_sgpr_count 2
  .amdhsa_user_sgpr_kernarg_segment_ptr 1
  .amdhsa_system_sgpr_workgroup_id_x 1
.end_amdhsa_kernel
"""

def gen():
    a = Asm()
    ref = open(f"cdna_kernels/{NAME}.s.ref").read().split("\n")
    H = [l for l in ref if l.startswith(";") and "@launch" not in l]
    H += ["; @launch grid=(256,1,1) block=(512,1,1) lds=163840"]
    k = NAME + "_kernel"
    a.raw(f'.amdgcn_target "amdgcn-amd-amdhsa--gfx950"\n.text\n.globl {k}\n.p2align 8\n.type {k},@function\n{k}:')
    a("s_cmp_ge_u32 s2, 256\ns_cbranch_scc1 L_exit")
    stamp(a, 0); stamp_init(a)
    if OPT.get("dbg"): a("s_memrealtime s[4:5]")
    a("s_load_dwordx16 s[16:31], s[0:1], 0\ns_load_dwordx8 s[32:39], s[0:1], 64\ns_load_dwordx2 s[40:41], s[0:1], 96")
    a(f"v_lshrrev_b32 v1, 6, v0\nv_and_b32 v0, 63, v0\nv_readfirstlane_b32 s3, v1\ns_mov_b32 s{S_ID}, s2")
    decode(a)
    a(f"s_and_b32 s{W}, s3, 3\ns_lshl_b32 s{S_M0B}, s{W}, 10")
    a("s_cmp_ge_u32 s3, 4\ns_cbranch_scc1 L_roleF")
    a(f"s_setprio {OPT['prioL']}")
    roleA(a)
    a.raw(".p2align 6"); a.label("L_roleF"); a.roleF = 1
    a(f"s_setprio {OPT['prioF']}")
    if OPT["cpf"]:
        a("s_getpc_b64 s[70:71]")
        a.label("L_pc")
        a(f"s_sub_u32 s70, s70, L_pc - {k}\ns_subb_u32 s71, s71, 0")
        a(f"s_lshr_b32 s72, s{S_ID}, 3\ns_lshl_b32 s72, s72, 2\ns_add_u32 s72, s72, s{W}\ns_lshl_b32 s72, s72, 10")
        a(f"s_cmp_ge_u32 s72, L_exit - {k} - 1024\ns_cbranch_scc1 L_nocpf")
        a("s_add_u32 s70, s70, s72\ns_addc_u32 s71, s71, 0")
        a("v_lshlrev_b32 v30, 4, v0\nv_mov_b32 v31, s71\nv_add_co_u32 v30, vcc, s70, v30\ns_nop 1\nv_addc_co_u32 v31, vcc, 0, v31, vcc")
        a("global_load_dwordx4 v[112:115], v[30:31], off")
        a.label("L_nocpf")
    ffn1(a)
    ffn2(a); stamp_dump(a)
    if OPT.get("dbg"):
        a(f"s_cmp_ge_u32 s2, 8\ns_cbranch_scc1 L_exit\ns_cmp_lg_u32 s{W}, 0\ns_cbranch_scc1 L_exit")
        if "only" in OPT: a(f"s_cmp_lg_u32 s2, {OPT['only']}\ns_cbranch_scc1 L_exit")
        a("s_waitcnt vmcnt(0)")
        a.label("L_dbgspin")
        a("s_memrealtime s[6:7]\ns_waitcnt lgkmcnt(0)")
        if OPT.get("spin"): a(f"s_sub_u32 s10, s6, {'s8' if OPT.get('dbgat') else 's4'}\ns_cmp_lt_u32 s10, {OPT['spin']}\ns_cbranch_scc1 L_dbgspin")
        srd(a, R_W0, S_DBG, 256)
        a(f"s_lshl_b32 s8, s2, 2\nv_mov_b32 v1, s8\nv_mov_b32 v2, s4\nv_mov_b32 v3, s6\ns_mov_b64 exec, 1")
        a(f"buffer_store_dword v2, v1, {rs(R_W0)}, 0 offen\nbuffer_store_dword v3, v1, {rs(R_W0)}, 0 offen offset:32")
    a.label("L_exit")
    a("s_endpgm")
    return "\n".join(H) + "\n" + a.text() + KD.format(k=k)

if __name__ == "__main__":
    if "--diag" in sys.argv: DIAG = True
    for x in sys.argv[2:]:
        if "=" in x:
            k, v = x.split("="); OPT[k] = int(v)
    open(sys.argv[1], "w").write(gen())
```

```python
import sys, math, struct

NAME = "gated_mix__grouped_kv_mqa__glu_gated_geglu__prompt"

WS_EPOCH = 0x0
WS_ACK = 0x6000
WS_KP = 0x10000
WS_VP = 0x20000
WS_G = 0x30000
WS_RECK = 0x40000
WS_PRE = 0x50000
WS_FLH = 0x80000
WS_FLO = 0xA0000
WS_QP = 0x100000
WS_OP = 0x300000
WS_HP = 0x500000
WS_DIAG = 0xE00000
WS_SIZE = 0x10000000
OPT = dict(prioA=1, prioF=2, prioG=2, prioD=0, prioL=3, sleep=4, sc1=0, rot=4, rot2=7, thr=60, clk=0, barpos=0, kvwin=2, touch=0, trig=0, qslots=3, prioQ=3, early=6, rsh=3, cpf=0)
DIAG = False

LOG2E = 1.4426950408889634
def f2u(x): return struct.unpack("<I", struct.pack("<f", x))[0]
def SC(): return " sc1" if OPT["sc1"] else ""

class Asm:
    def __init__(self): self.L = []; self.uid = 0
    def __call__(self, s):
        for line in s.split("\n"): self.L.append("    " + line.strip())
    def label(self, n): self.L.append(n + ":")
    def raw(self, s): self.L.append(s)
    def newlabel(self, p):
        self.uid += 1
        return f"L_{p}_{self.uid}"
    def text(self): return "\n".join(self.L) + "\n"

def vr(a, n=1): return f"v{a}" if n == 1 else f"v[{a}:{a+n-1}]"

S_X, S_WQ, S_WK, S_WV, S_WO, S_BX, S_WG, S_WU = 16, 18, 20, 22, 24, 26, 28, 30
S_WD, S_GW, S_OUT, S_DBG, S_WSP = 32, 34, 36, 38, 40
R_X, R_WS, R_W0, R_W1, R_OUT = 44, 48, 52, 56, 60
S_WAVE, S_TAG = 64, 65
S_T = 66
S_ID, S_M0B = 80, 81
S_A, S_B, S_C, S_D, S_E, S_F = 82, 83, 84, 85, 86, 87
S_G, S_H = 88, 89
S_K0, S_K1, S_K2, S_K3 = 90, 91, 92, 93
W = S_WAVE
WSR = f"s[{R_WS}:{R_WS+3}]"
def rs(r): return f"s[{r}:{r+3}]"

STAMP_REGS = [4, 6, 8, 10, 12, 14, 42, 94, 96, 98, 100]
def stamp(a, i, force=False):
    if OPT.get("fst") and getattr(a, "roleF", 0) and 5 <= i <= 9 and not force: return
    if DIAG: a(f"{'s_memtime' if OPT['clk'] else 's_memrealtime'} s[{STAMP_REGS[i]}:{STAMP_REGS[i]+1}]")
def stamp_init(a):
    if DIAG:
        for r in STAMP_REGS[1:]: a(f"s_mov_b32 s{r}, 0")
def stamp_dump(a):
    if not DIAG: return
    a("s_waitcnt vmcnt(0) lgkmcnt(0)")
    stamp(a, 10)
    a("s_waitcnt lgkmcnt(0)")
    a(f"s_lshl_b32 s{S_T}, s2, 2\ns_add_u32 s{S_T}, s{S_T}, s{W}\ns_lshl_b32 s{S_T}, s{S_T}, 6\ns_add_u32 s{S_T}, s{S_T}, {WS_DIAG}")
    a("s_mov_b64 exec, 1\nv_mov_b32 v1, 0")
    for i, r in enumerate(STAMP_REGS):
        a(f"v_mov_b32 v2, s{r}\nbuffer_store_dword v2, v1, {WSR}, s{S_T} offen offset:{4*i}\ns_nop 1")

def srd(a, r, p, size):
    a(f"s_mov_b32 s{r}, s{p}\ns_mov_b32 s{r+1}, s{p+1}\ns_mov_b32 s{r+2}, {size:#x}\ns_mov_b32 s{r+3}, 0x20000")

def kernarg_wait(a):
    a("s_waitcnt lgkmcnt(0)")
    a(f"s_load_dword s{S_TAG}, s[40:41], {WS_EPOCH}")
    srd(a, R_X, S_X, 2048 * 1024)

def finish_tag_ack(a, v0_, v1_):
    srd(a, R_WS, S_WSP, WS_SIZE)
    a(f"s_lshl_b32 s{S_T+2}, s2, 4\ns_lshl_b32 s{S_T+3}, s{W}, 2\ns_add_u32 s{S_T+2}, s{S_T+2}, s{S_T+3}")
    a(f"s_add_u32 s{S_T+2}, s{S_T+2}, {WS_ACK}")
    a(f"v_mov_b32 v{v1_}, 0")
    a("s_waitcnt lgkmcnt(0)")
    a(f"s_mul_i32 s{S_TAG}, s{S_TAG}, 0x9E3779B1")
    a(f"s_add_u32 s{S_TAG}, s{S_TAG}, 0x7F4A7C15")
    a(f"v_mov_b32 v{v0_}, s{S_TAG}")
    a("s_mov_b64 exec, 1")
    a(f"buffer_store_dword v{v0_}, v{v1_}, {WSR}, s{S_T+2} offen sc1")
    if OPT["touch"]:
        a("s_mov_b64 exec, 0xff")
        a(f"v_lshlrev_b32 v{v0_}, 21, v0")
        a(f"buffer_load_dword v{v0_}, v{v0_}, {WSR}, 0 offen offset:256")
        srd(a, R_OUT, S_OUT, 2048 * 1024)
        a(f"v_lshlrev_b32 v{v1_}, 18, v0")
        a(f"buffer_load_dword v{v1_}, v{v1_}, {rs(R_OUT)}, 0 offen")
    a("s_mov_b64 exec, -1")

def dma(a, vaddr, r, soff_reg, soff_base, soff_imm, lds_imm):
    a(f"s_add_u32 m0, s{S_M0B}, {lds_imm}")
    a(f"s_add_u32 s{soff_reg}, s{soff_base}, {soff_imm}")
    a(f"buffer_load_dwordx4 v{vaddr}, {rs(r)}, s{soff_reg} offen lds")

def wave_max(a, v):
    for m in ("row_shr:1", "row_shr:2", "row_shr:4", "row_shr:8", "row_bcast:15 row_mask:0xa", "row_bcast:31 row_mask:0xc"):
        a("s_nop 1")
        a(f"v_max_u32_dpp v{v}, v{v}, v{v} {m}")

def poll(a, loads, regs, sleep=None):
    lab = a.newlabel("poll"); out = a.newlabel("polled")
    sleep = sleep or OPT["sleep"]
    masked = len(loads) == 1 and len(regs) == 1
    a(f"s_mov_b32 s{S_T+10}, 0x40000")
    a.label(lab)
    for l in loads: a(l)
    a("s_waitcnt vmcnt(0)")
    a(f"v_cmp_ne_u32 vcc, s{S_TAG}, v{regs[0]}")
    for r in regs[1:]:
        a(f"v_cmp_ne_u32 s[{S_T+12}:{S_T+13}], s{S_TAG}, v{r}")
        a(f"s_or_b64 vcc, vcc, s[{S_T+12}:{S_T+13}]")
    a(f"s_cbranch_vccz {out}")
    if masked: a("s_mov_b64 exec, vcc")
    a(f"s_sleep {sleep}")
    a(f"s_sub_u32 s{S_T+10}, s{S_T+10}, 1\ns_cmp_lg_u32 s{S_T+10}, 0\ns_cbranch_scc1 {lab}")
    a.label(out)
    if masked: a("s_mov_b64 exec, -1")

def x_src_addr(a, V, T0, T1, T2):
    a(f"v_lshrrev_b32 v{T0}, 3, v0\nv_and_b32 v{T1}, 7, v0\nv_lshrrev_b32 v{T2}, 1, v{T0}")
    a(f"s_and_b32 s{S_T}, s{W}, 1\ns_lshl_b32 s{S_T}, s{S_T}, 2")
    a(f"v_or_b32 v{V}, s{S_T}, v{T2}\nv_xor_b32 v{V}, v{V}, v{T1}\nv_lshlrev_b32 v{V}, 4, v{V}")
    a(f"v_lshl_add_u32 v{V}, v{T0}, 10, v{V}")

def x_read_addr(a, V, T0, T1, T2, sbase=None):
    a(f"v_and_b32 v{T0}, 31, v0\nv_lshrrev_b32 v{T1}, 5, v0\nv_bfe_u32 v{T2}, v0, 1, 3\nv_xor_b32 v{T2}, v{T2}, v{T1}")
    a(f"v_lshlrev_b32 v{T0}, 7, v{T0}")
    if sbase is not None: a(f"v_add_u32 v{T0}, s{sbase}, v{T0}")
    for ks in range(4):
        a(f"v_xor_b32 v{V+ks}, {2*ks}, v{T2}\nv_lshl_add_u32 v{V+ks}, v{V+ks}, 4, v{T0}")

PART = 2176
LDS_Q = 8 * 4 * PART
LDS_X = LDS_Q + 8192

def kvg(a, half):
    VXS, VLIN, VXR, VER = 2, 4, 8, 6
    T0, T1, T2 = 12, 13, 14
    done = a.newlabel("kvgdone")
    a(f"v_lshlrev_b32 v{VLIN}, 4, v0")
    a(f"s_and_b32 s{S_T}, s{S_ID}, 1\ns_lshl_b32 s{S_T}, s{S_T}, 5\ns_and_b32 s{S_T+1}, s{S_ID}, 6\ns_lshl_b32 s{S_T+1}, s{S_T+1}, 2")
    a(f"s_add_u32 s{S_T}, s{S_T}, s{S_T+1}\ns_bfe_u32 s{S_T+1}, s{S_ID}, 0x20003\ns_lshl_b32 s{S_T+1}, s{S_T+1}, 1\ns_add_u32 s{S_F}, s{S_T}, s{S_T+1}")
    if half: a(f"s_add_u32 s{S_F}, s{S_F}, 1")
    x_src_addr(a, VXS, T0, T1, T2)
    a(f"s_lshl_b32 s{S_C}, s{S_F}, 15\ns_lshl_b32 s{S_T}, s{W}, 13\ns_add_u32 s{S_C}, s{S_C}, s{S_T}")
    kernarg_wait(a)
    srd(a, R_W0, S_WK, 16384); srd(a, R_W1, S_WV, 16384); srd(a, R_OUT, S_GW, 1024)
    dma(a, VLIN, R_OUT, S_T, S_M0B, 0, 65536)
    for c in range(8):
        dma(a, VXS, R_X, S_T, S_C, c * 128, c * 4096)
        if c % 2 == 0:
            dma(a, VLIN, R_W0, S_T, S_M0B, (c // 2) * 4096, 32768 + (c // 2) * 4096)
            dma(a, VLIN, R_W1, S_T, S_M0B, (c // 2) * 4096, 49152 + (c // 2) * 4096)
    x_read_addr(a, VXR, T0, T1, T2)
    a(f"v_bfe_u32 v{T0}, v0, 2, 2\nv_lshl_add_u32 v{T0}, v{T1}, 3, v{T0}\nv_and_b32 v{T2}, 3, v0\nv_lshlrev_b32 v{T2}, 3, v{T2}")
    a(f"v_lshl_add_u32 v{VER}, v{T0}, 5, v{T2}")
    a(f"v_lshlrev_b32 v7, 4, v{T1}\nv_add_u32 v7, 0x10000, v7")
    finish_tag_ack(a, 18, 19)
    a(f"s_waitcnt vmcnt({1 + 2*OPT['touch']})")
    a("s_barrier")
    ACC2 = 48
    XF, EF = 64, 96
    labs = {v: a.newlabel("kvg" + v) for v in "KVG"}
    pub = a.newlabel("kvgpub")
    for key, l in ((1, labs["V"]), (2, labs["G"]), (3, pub)):
        a(f"s_cmp_eq_u32 s{W}, {key}\ns_cbranch_scc1 {l}")
    for v in "KVG":
        a.label(labs[v])
        def reads(n):
            c, ks, b = n // 4, n % 4, n % 4
            a(f"ds_read_b128 {vr(XF+4*b,4)}, v{VXR+ks} offset:{c*4096}")
            if v in "KV":
                o = (32768 if v == "K" else 49152) + n * 512
                a(f"ds_read_b64_tr_b16 {vr(EF+4*b,2)}, v{VER} offset:{o}")
                a(f"ds_read_b64_tr_b16 {vr(EF+4*b+2,2)}, v{VER} offset:{o + 128}")
            else:
                a(f"ds_read_b128 {vr(EF+4*b,4)}, v7 offset:{n*32}")
        nrd = 3 if v in "KV" else 2
        for n in range(3): reads(n)
        for n in range(32):
            if n + 3 < 32: reads(n + 3)
            a(f"s_waitcnt lgkmcnt({nrd * min(3, 31 - n)})")
            b = n % 4
            ce = "0" if n == 0 else vr(ACC2, 16)
            if v == "V": a(f"v_mfma_f32_32x32x16_bf16 {vr(ACC2,16)}, {vr(XF+4*b,4)}, {vr(EF+4*b,4)}, {ce}")
            else: a(f"v_mfma_f32_32x32x16_bf16 {vr(ACC2,16)}, {vr(EF+4*b,4)}, {vr(XF+4*b,4)}, {ce}")
        a("s_nop 15")
        P = 64
        if v == "K":
            for j in range(8): a(f"v_mul_f32 v{ACC2+j}, {f2u(0.25*LOG2E):#x}, v{ACC2+j}")
            for j in range(4): a(f"v_cvt_pk_bf16_f32 v{P+j}, v{ACC2+2*j}, v{ACC2+2*j+1}")
            a(f"v_and_b32 v{T1}, 0x33, v0\nv_bfe_u32 v{T2}, v0, 2, 1\nv_lshl_or_b32 v{T1}, v{T2}, 3, v{T1}")
            a(f"v_bfe_u32 v{T2}, v0, 3, 1\nv_lshl_or_b32 v{T1}, v{T2}, 2, v{T1}\nv_lshlrev_b32 v{T1}, 4, v{T1}")
            a(f"s_lshl_b32 s{S_T}, s{S_F}, 10\ns_add_u32 s{S_T}, s{S_T}, {WS_KP}")
            a(f"buffer_store_dwordx4 {vr(P,4)}, v{T1}, {WSR}, s{S_T} offen sc1")
            a(f"v_mul_f32 v{T0}, v{ACC2}, v{ACC2}")
            for j in range(1, 8): a(f"v_fmac_f32 v{T0}, v{ACC2+j}, v{ACC2+j}")
            a(f"v_mov_b32 v15, v{T0}\ns_nop 1\nv_permlane32_swap_b32 v{T0}, v15\nv_add_f32 v15, v{T0}, v15")
            wave_max(a, 15)
        if v == "V":
            for j in range(8): a(f"v_cvt_pk_bf16_f32 v{P+j}, v{ACC2+2*j}, v{ACC2+2*j+1}")
            a(f"v_and_b32 v{T1}, 16, v0\nv_cmp_ne_u32 vcc, 0, v{T1}")
            a(f"s_lshl_b32 s{S_T}, s{S_F}, 10\ns_add_u32 s{S_T}, s{S_T}, {WS_VP}")
            for j in range(4): a(f"v_cndmask_b32 v{P+j}, v{P+j}, v{P+4+j}, vcc")
            a(f"buffer_store_dwordx4 {vr(P,4)}, v{VLIN}, {WSR}, s{S_T} offen sc1")
        if v == "G":
            a(f"v_mul_f32 v{T0}, {f2u(-LOG2E):#x}, v{ACC2}\nv_exp_f32 v{T0}, v{T0}\nv_and_b32 v{T1}, 31, v0")
            a(f"v_add_f32 v{T0}, 1.0, v{T0}\nv_rcp_f32 v{T0}, v{T0}\nv_lshlrev_b32 v{T1}, 2, v{T1}")
            a(f"s_lshl_b32 s{S_T}, s{S_F}, 7\ns_add_u32 s{S_T}, s{S_T}, {WS_G}")
            a(f"buffer_store_dword v{T0}, v{T1}, {WSR}, s{S_T} offen sc1")
        if v != "G": a(f"s_branch {pub}")
    a.label(pub)
    a(f"v_mov_b32 v14, s{S_TAG}\ns_lshl_b32 s{S_T+1}, s{S_F}, {OPT['rsh']}\ns_add_u32 s{S_T+1}, s{S_T+1}, {WS_RECK}\nv_mov_b32 v{T0}, 0")
    a("s_waitcnt vmcnt(0)")
    a("s_barrier")
    stamp(a, 3)
    a(f"s_cmp_lg_u32 s{W}, 0\ns_cbranch_scc1 {done}")
    a("s_mov_b32 exec_lo, 0\ns_mov_b32 exec_hi, 0x80000000")
    a(f"buffer_store_dwordx2 v[14:15], v{T0}, {WSR}, s{S_T+1} offen sc1")
    a("s_mov_b64 exec, -1")
    a.label(done)

def qproj(a):
    VXS, VWS, VLIN, VXR, VWR, VER, VGR = 2, 3, 4, 8, 5, 6, 7
    T0, T1, T2 = 12, 13, 14
    a(f"s_and_b32 s{S_T}, s{S_ID}, 1\ns_lshl_b32 s{S_T}, s{S_T}, 4\ns_lshr_b32 s{S_T+1}, s{S_ID}, 3\ns_and_b32 s{S_T+3}, s{S_ID}, 6")
    a(f"s_lshl_b32 s{S_T+2}, s{S_T+3}, 1\ns_add_u32 s{S_T+2}, s{S_T+2}, s{S_T+1}\ns_add_u32 s{S_T+2}, s{S_T+2}, 4\ns_and_b32 s{S_T+2}, s{S_T+2}, 15")
    a(f"s_add_u32 s{S_A}, s{S_T}, s{S_T+2}\ns_lshr_b32 s{S_T+1}, s{S_T+1}, 4\ns_add_u32 s{S_B}, s{S_T+3}, s{S_T+1}")
    x_src_addr(a, VXS, T0, T1, T2)
    a(f"v_and_b32 v{T2}, 1, v{T2}\nv_lshlrev_b32 v{T2}, 2, v{T2}\nv_xor_b32 v{VWS}, v{T2}, v{T1}\nv_lshlrev_b32 v{VWS}, 4, v{VWS}")
    a(f"v_lshl_add_u32 v{VWS}, v{T0}, 10, v{VWS}\nv_lshlrev_b32 v{VLIN}, 4, v0")
    a(f"s_lshl_b32 s{S_C}, s{S_A}, 16\ns_lshl_b32 s{S_T}, s{W}, 13\ns_add_u32 s{S_C}, s{S_C}, s{S_T}")
    a(f"s_lshl_b32 s{S_D}, s{S_B}, 7\ns_add_u32 s{S_D}, s{S_D}, s{S_T}")
    a(f"s_and_b32 s{S_T}, s{W}, 1\ns_lshl_b32 s{S_F}, s{S_A}, 1\ns_add_u32 s{S_F}, s{S_F}, s{S_T}   ; tt\ns_lshl_b32 s{S_E}, s{S_T}, 10")
    lab = a.newlabel("havearg")
    a(f"s_cmp_ge_u32 s{S_ID}, 224\ns_cbranch_scc1 {lab}")
    kernarg_wait(a)
    a.label(lab)
    srd(a, R_W0, S_WQ, 512 * 1024)
    def addrs():
        a(f"s_and_b32 s{S_T}, s{W}, 1\ns_lshl_b32 s{S_T}, s{S_T}, 12")
        x_read_addr(a, VXR, T0, T1, T2, S_T)
        a(f"v_bfe_u32 v{T0}, v0, 2, 2\nv_lshl_add_u32 v{T0}, v{T1}, 3, v{T0}\nv_and_b32 v{T2}, 3, v0\nv_lshlrev_b32 v{T2}, 3, v{T2}")
        a(f"v_lshl_add_u32 v{VER}, v{T0}, 5, v{T2}\nv_lshl_add_u32 v{VWR}, v{T0}, 7, v{T2}")
        a(f"v_bfe_u32 v{T0}, v0, 4, 1\nv_bfe_u32 v{T2}, v0, 3, 1\nv_lshl_or_b32 v{T0}, v{T2}, 1, v{T0}\ns_and_b32 s{S_T}, s{W}, 2")
        a(f"v_xor_b32 v{T0}, s{S_T}, v{T0}\nv_lshl_add_u32 v{VWR}, v{T0}, 5, v{VWR}\nv_add_u32 v{VWR}, 0x2000, v{VWR}")
        a(f"v_lshlrev_b32 v{VGR}, 4, v{T1}")
        lab = a.newlabel("acked")
        a(f"s_cmp_ge_u32 s{S_ID}, 224\ns_cbranch_scc1 {lab}")
        finish_tag_ack(a, 18, 19)
        a.label(lab)
        a(f"v_lshlrev_b32 v28, {OPT['rsh']}, v0\ns_mov_b32 s{S_K0}, {WS_RECK}\nv_mov_b32 v26, 0")
    NA = 1 + 2 * OPT["touch"]
    ACC, ACK, ACG = 32, 48, 96
    XF, WF, EF, GF = 64, 72, 80, 88
    duty = a.newlabel("duty"); lv = a.newlabel("dutyV"); done = a.newlabel("qdone")
    def loop(v, NS, SZ, issue, per):
        def reads(c, ks, b):
            s = (c % NS) * SZ
            a(f"ds_read_b128 {vr(XF+4*b,4)}, v{VXR+ks} offset:{s}")
            a(f"ds_read_b64_tr_b16 {vr(WF+4*b,2)}, v{VWR} offset:{s + ks*2048}")
            a(f"ds_read_b64_tr_b16 {vr(WF+4*b+2,2)}, v{VWR} offset:{s + ks*2048 + 512}")
            if v in "KV":
                o = s + (16384 if v == "K" else 18432) + ks * 512
                a(f"ds_read_b64_tr_b16 {vr(EF+4*b,2)}, v{VER} offset:{o}\nds_read_b64_tr_b16 {vr(EF+4*b+2,2)}, v{VER} offset:{o + 128}")
            if v == "K": a(f"ds_read_b128 {vr(GF+4*b,4)}, v{VGR} offset:{61440 + c*128 + ks*32}")
        nrd = {"N": 3, "K": 6, "V": 5}[v]
        for c in range(8):
            later = min(7, max(NS - 1, c + NS - 2)) - c
            a(f"s_waitcnt vmcnt({per*later})")
            a("s_barrier")
            if c == 0: stamp(a, 1)
            if c >= 1 and c + NS - 1 < 8: issue(c + NS - 1)
            if c == OPT["early"]:
                lab = a.newlabel("noearly")
                a(f"s_cmp_lg_u32 s{W}, 0\ns_cbranch_scc1 {lab}")
                a(f"buffer_load_dwordx2 v[26:27], v28, {WSR}, s{S_K0} offen sc1")
                a.label(lab)
            reads(c, 0, 0)
            for ks in range(4):
                b = ks & 1
                if ks < 3:
                    reads(c, ks + 1, b ^ 1); a(f"s_waitcnt lgkmcnt({nrd})")
                else:
                    a("s_waitcnt lgkmcnt(0)")
                cc = (lambda r: "0") if (c == 0 and ks == 0) else (lambda r: vr(r, 16))
                if v == "K":
                    a(f"v_mfma_f32_32x32x16_bf16 {vr(ACK,16)}, {vr(EF+4*b,4)}, {vr(XF+4*b,4)}, {cc(ACK)}")
                    a(f"v_mfma_f32_32x32x16_bf16 {vr(ACG,16)}, {vr(GF+4*b,4)}, {vr(XF+4*b,4)}, {cc(ACG)}")
                if v == "V": a(f"v_mfma_f32_32x32x16_bf16 {vr(ACK,16)}, {vr(XF+4*b,4)}, {vr(EF+4*b,4)}, {cc(ACK)}")
                a(f"v_mfma_f32_32x32x16_bf16 {vr(ACC,16)}, {vr(WF+4*b,4)}, {vr(XF+4*b,4)}, {cc(ACC)}")
        a("s_nop 15")
    def issue_base(c, s):
        for j in range(2): dma(a, VXS, R_X, S_T, S_C, j * 32768 + c * 128, s + j * 4096)
        for j in range(2): dma(a, VWS, R_W0, S_T, S_D, c * 65536 + j * 32768, s + 8192 + j * 4096)
    NS = OPT["qslots"]
    a(f"s_setprio {OPT['prioQ']}")
    issue = lambda c: issue_base(c, (c % NS) * 16384)
    for c in range(NS): issue(c)
    addrs()
    loop("N", NS, 16384, issue, 4)
    a(f"s_setprio {OPT['prioL']}")
    stamp(a, 2)
    P = 72
    for j in range(8): a(f"v_cvt_pk_bf16_f32 v{P+j}, v{ACC+2*j}, v{ACC+2*j+1}")
    a(f"v_bfe_u32 v{T0}, v0, 3, 2\nv_lshlrev_b32 v{T0}, 10, v{T0}\nv_and_b32 v{T1}, 32, v0\nv_lshl_add_u32 v{T0}, v{T1}, 4, v{T0}")
    a(f"v_and_b32 v{T1}, 7, v0\nv_lshl_add_u32 v{T0}, v{T1}, 4, v{T0}")
    a(f"s_and_b32 s{S_T}, s{W}, 1\ns_lshl_b32 s{S_T}, s{S_T}, 12\ns_and_b32 s{S_T+1}, s{W}, 2\ns_lshl_b32 s{S_T+1}, s{S_T+1}, 7")
    a(f"s_add_u32 s{S_T}, s{S_T}, s{S_T+1}\ns_add_u32 s{S_T}, s{S_T}, {LDS_Q}\nv_add_u32 v{T0}, s{S_T}, v{T0}")
    a(f"ds_write_b128 v{T0}, {vr(P,4)}\nds_write_b128 v{T0}, {vr(P+4,4)} offset:128")
    a(f"v_mul_f32 v20, v{ACC}, v{ACC}\nv_mul_f32 v22, v{ACC+8}, v{ACC+8}")
    for i in range(1, 8): a(f"v_fmac_f32 v20, v{ACC+i}, v{ACC+i}\nv_fmac_f32 v22, v{ACC+8+i}, v{ACC+8+i}")
    a("s_nop 1\nv_permlane32_swap_b32 v20, v22\nv_add_f32 v14, v20, v22")
    a(f"s_lshl_b32 s{S_T}, s{W}, 8\ns_add_u32 s{S_T}, s{S_T}, {LDS_X}\nv_lshl_add_u32 v{T0}, v0, 2, s{S_T}\nds_write_b32 v{T0}, v14")
    a("s_waitcnt lgkmcnt(0)")
    a("s_barrier")
    if DIAG:
        l3 = a.newlabel("st3")
        a(f"s_cmp_ge_u32 s{S_ID}, 224\ns_cbranch_scc1 {l3}"); stamp(a, 3); a.label(l3)
    lab = a.newlabel("nonorm")
    a(f"s_cmp_lg_u32 s{W}, 0\ns_cbranch_scc1 {lab}")
    a(f"ds_read2st64_b32 v[20:21], v{T0} offset0:1 offset1:2\nds_read_b32 v22, v{T0} offset:768")
    a("s_waitcnt vmcnt(0) lgkmcnt(0)")
    a("v_max3_u32 v18, v14, v20, v21\nv_max_u32 v18, v18, v22")
    wave_max(a, 18)
    a(f"s_nop 0\nv_readlane_b32 s{S_G}, v18, 63")
    a.label(lab)

def attention(a):
    VL16, VIDX, VL4, VO, VGO, VLQ = 1, 2, 3, 4, 5, 12
    QB = 8; SB = (16, 32); OA = 48; KR, VR_ = 64, 128
    def vfix(t):
        for j in range(4): a(f"v_permlane16_swap_b32 v{VR_+8*t+j}, v{VR_+8*t+4+j}")
    def S(t, buf, c="0"): a(f"v_mfma_f32_32x32x16_bf16 {vr(SB[buf],16)}, {vr(KR+4*t,4)}, {vr(QB,4)}, {c}")
    def PV(t, s, buf): a(f"v_smfmac_f32_32x32x32_bf16 {vr(OA,16)}, {vr(VR_+8*t+4*s,4)}, {vr(SB[buf]+8*s,8)}, v{VIDX}")
    def EX(buf, i): a(f"v_exp_f32 v{SB[buf]+i}, v{SB[buf]+i}")
    def flush(base):
        a(f"ds_write_b128 v{VL16}, {vr(OA,4)} offset:{base}")
        a(f"ds_write_b128 v{VL16}, {vr(OA+4,4)} offset:{base+1024}")
        a(f"ds_write_b32 v{VL4}, v{OA+8} offset:{base+2048}")
    def zero_o():
        for j in range(0, 8, 2): a(f"v_mov_b64 {vr(OA+j,2)}, 0")
        a(f"v_mov_b32 v{OA+8}, 0")
    if OPT.get("twice"):
        a(f"s_mov_b32 s{S_H}, 2"); stamp(a, 3); a.label("L_twice")
    a(f"v_lshlrev_b32 v{VL16}, 4, v0\nv_and_b32 v{VL4}, 31, v0\nv_lshlrev_b32 v{VL4}, 2, v{VL4}\nv_mov_b32 v{VIDX}, 0xdddddddd")
    a(f"v_add_u32 v{VLQ}, {LDS_Q}, v{VL16}")
    a(f"v_bfe_u32 v6, v0, 3, 2\nv_lshlrev_b32 v{VO}, 10, v6\nv_and_b32 v6, 32, v0\nv_lshl_add_u32 v{VO}, v6, 4, v{VO}")
    a(f"v_and_b32 v6, 7, v0\nv_lshl_add_u32 v{VO}, v6, 4, v{VO}\nv_lshlrev_b32 v{VGO}, 2, v6")
    a(f"v_and_b32 v6, 11, v0\nv_cmp_eq_u32 vcc, 0, v6\nv_mov_b32 v6, 0x3f803f80\ns_nop 0\nv_cndmask_b32 v6, 0, v6, vcc\nv_mov_b32 v7, v6")
    for t in range(16):
        for j in range(4, 8, 2): a(f"v_mov_b64 {vr(VR_+8*t+j,2)}, v[6:7]")
    for j in range(0, 16, 2): a(f"v_mov_b64 {vr(OA+j,2)}, 0")
    a(f"s_lshl_b32 s{S_D}, s{S_A}, 16\ns_and_b32 s{S_T}, s{W}, 2\ns_lshl_b32 s{S_T}, s{S_T}, 14\ns_add_u32 s{S_D}, s{S_D}, s{S_T}")
    a(f"s_lshl_b32 s{S_T}, s{S_B}, 12\ns_add_u32 s{S_D}, s{S_D}, s{S_T}\ns_and_b32 s{S_T}, s{W}, 1\ns_lshl_b32 s{S_T}, s{S_T}, 8")
    a(f"s_add_u32 s{S_D}, s{S_D}, s{S_T}\ns_add_u32 s{S_D}, s{S_D}, {WS_OP}")
    a(f"s_lshl_b32 s{S_C}, s{S_A}, 8\ns_lshl_b32 s{S_T}, s{W}, 6\ns_add_u32 s{S_C}, s{S_C}, s{S_T}\ns_add_u32 s{S_C}, s{S_C}, {WS_G}")
    a(f"s_lshl_b32 s{S_E}, s{W}, 3\ns_lshr_b32 s{S_T}, s{S_ID}, 3\ns_add_u32 s{S_E}, s{S_E}, s{S_T}")
    if OPT.get("twice"):
        a(f"s_sub_u32 s{S_H}, s{S_H}, 1\ns_cmp_eq_u32 s{S_H}, 0\ns_cbranch_scc1 L_twice2"); stamp(a, 1); a("s_branch L_twice"); a.label("L_twice2"); stamp(a, 2)
    slow = a.newlabel("slow"); red = a.newlabel("reduce")
    lab = a.newlabel("nopoll")
    a(f"s_cmp_lg_u32 s{W}, 0\ns_cbranch_scc1 {lab}")
    seen = a.newlabel("seen")
    a(f"v_cmp_ne_u32 vcc, s{S_TAG}, v26\ns_cbranch_vccz {seen}\ns_mov_b64 exec, vcc")
    poll(a, [f"buffer_load_dwordx2 v[26:27], v28, {WSR}, s{S_K0} offen sc1"], [26])
    a.label(seen)
    a(f"v_mul_f32 v21, s{S_G}, v27")
    a(f"v_cmp_nge_f32 vcc, {f2u(float(OPT['thr'])**2):#x}, v21")
    a(f"v_mov_b32 v16, {LDS_X}\ns_nop 0\ns_cmp_lg_u64 vcc, 0\ns_cselect_b32 s{S_T}, 1, 0\nv_mov_b32 v17, s{S_T}")
    a("ds_write_b32 v16, v17")
    if OPT["trig"]:
        lab2 = a.newlabel("notrig")
        a(f"s_cmp_ge_u32 s{S_ID}, 224\ns_cbranch_scc1 {lab2}")
        a(f"v_mov_b32 v18, 0\ns_lshl_b32 s{S_K1}, s{S_ID}, 7\ns_add_u32 s{S_K1}, s{S_K1}, {WS_PRE}")
        poll(a, [f"buffer_load_dword v20, v18, {WSR}, s{S_K1} offen sc1"], [20], sleep=4)
        a.label(lab2)
    a("s_waitcnt lgkmcnt(0)")
    a.label(lab)
    a("s_barrier")
    stamp(a, 4)
    KW = OPT["kvwin"]
    a(f"v_mov_b32 v16, {LDS_X}\nds_read_b32 v17, v16\nds_read_b128 {vr(QB,4)}, v{VLQ}")
    for t in range(16 + KW):
        if t < 16:
            if t % 2 == 0:
                a(f"s_add_u32 s{S_T}, s{S_E}, {t//2}\ns_and_b32 s{S_T}, s{S_T}, 31\ns_lshl_b32 s{S_T}, s{S_T}, 11")
                a(f"s_add_u32 s{S_T+1}, s{S_T}, {WS_VP}\ns_add_u32 s{S_T}, s{S_T}, {WS_KP}")
            a(f"buffer_load_dwordx4 {vr(KR+4*t,4)}, v{VL16}, {WSR}, s{S_T} offen offset:{(t%2)*1024}{SC()}")
            a(f"buffer_load_dwordx4 {vr(VR_+8*t,4)}, v{VL16}, {WSR}, s{S_T+1} offen offset:{(t%2)*1024}{SC()}")
        if t >= KW - 1 and t - KW + 1 < 16:
            a(f"s_waitcnt vmcnt({2 * (min(t, 15) - (t - KW + 1))})")
            vfix(t - KW + 1)
    a(f"s_mul_i32 s{S_T}, s{W}, {PART}")
    a(f"v_add_u32 v{VL16}, s{S_T}, v{VL16}\nv_add_u32 v{VL4}, s{S_T}, v{VL4}")
    a(f"s_waitcnt lgkmcnt(0)\nv_readfirstlane_b32 s{S_T}, v17")
    a(f"s_setprio {OPT['prioA']}")
    a(f"s_cmp_lg_u32 s{S_T}, 0\ns_cbranch_scc1 {slow}")
    stamp(a, 5)
    S(0, 0)
    a("s_nop 10")
    gl = lambda j, r: a(f"buffer_load_dword v{r}, v{VGO}, {WSR}, s{S_C} offen offset:{32*j}{SC()}")
    for q in range(8):
        for t in range(16):
            g = q * 16 + t
            cur, oth = g & 1, (g & 1) ^ 1
            nt = (t + 1) % 16
            if t == 0:
                if q == 1: stamp(a, 6)
                if q == 4: stamp(a, 7)
                EX(cur, 0); EX(cur, 1)
                if q > 0: PV(15, 1, oth)
                EX(cur, 2); EX(cur, 3); EX(cur, 4)
                S(nt, oth)
                for i in range(5, 16): EX(cur, i)
                if q > 0:
                    flush((q - 1) * 4 * PART); zero_o()
                if q == 7: gl(0, 6); gl(1, 7)
            elif t == 1:
                EX(cur, 0); EX(cur, 1)
                PV(0, 0, oth)
                EX(cur, 2); EX(cur, 3); EX(cur, 4)
                PV(0, 1, oth)
                EX(cur, 5); EX(cur, 6); EX(cur, 7)
                S(nt, oth)
                EX(cur, 8); EX(cur, 9); EX(cur, 10)
                PV(1, 0, cur)
                for i in range(11, 16): EX(cur, i)
                a("s_nop 2")
            else:
                EX(cur, 0); EX(cur, 1)
                PV(t - 1, 1, oth)
                EX(cur, 2); EX(cur, 3); EX(cur, 4)
                if g != 127:
                    if t == 15: a("s_waitcnt lgkmcnt(0)")
                    S(nt, oth)
                EX(cur, 5); EX(cur, 6)
                if t == 14 and q < 7: a(f"ds_read_b128 {vr(QB,4)}, v{VLQ} offset:{(q+1)*1024}")
                for i in range(7, 10): EX(cur, i)
                PV(t, 0, cur)
                for i in range(10, 16): EX(cur, i)
    stamp(a, 8)
    a("s_nop 1")
    PV(15, 1, 1)
    a("s_nop 15")
    flush(7 * 4 * PART)
    a.label(red)
    a(f"s_mul_i32 s{S_T}, s{W}, {2*4*PART}")
    a(f"v_lshl_add_u32 v{VL16}, v0, 4, s{S_T}\nv_and_b32 v{VL4}, 31, v0\nv_lshl_add_u32 v{VL4}, v{VL4}, 2, s{S_T}")
    a("s_waitcnt lgkmcnt(0)")
    a("s_barrier")
    R = 64
    for j in range(2):
        for p in range(4):
            b = (j * 4 + p) * PART; r = R + (j * 4 + p) * 12
            a(f"ds_read_b32 v{r+8}, v{VL4} offset:{b+2048}")
        for p in range(4):
            b = (j * 4 + p) * PART; r = R + (j * 4 + p) * 12
            a(f"ds_read_b128 {vr(r,4)}, v{VL16} offset:{b}")
            a(f"ds_read_b128 {vr(r+4,4)}, v{VL16} offset:{b+1024}")
        r0 = R + j * 48
        a(f"s_waitcnt lgkmcnt(8)")
        a(f"v_add_f32 v{r0+8}, v{r0+8}, v{r0+20}\nv_add_f32 v{r0+32}, v{r0+32}, v{r0+44}\nv_add_f32 v{r0+8}, v{r0+8}, v{r0+32}")
        a(f"v_rcp_f32 v{r0+8}, v{r0+8}")
    for j in range(2):
        r0 = R + j * 48
        a("s_waitcnt vmcnt(0)" if j == 0 else "s_waitcnt lgkmcnt(0)")
        for i in range(0, 8, 2):
            a(f"v_pk_add_f32 {vr(r0+i,2)}, {vr(r0+i,2)}, {vr(r0+12+i,2)}")
            a(f"v_pk_add_f32 {vr(r0+24+i,2)}, {vr(r0+24+i,2)}, {vr(r0+36+i,2)}")
        a(f"v_mul_f32 v{r0+8}, v{r0+8}, v{6+j}")
        for i in range(0, 8, 2):
            a(f"v_pk_add_f32 {vr(r0+i,2)}, {vr(r0+i,2)}, {vr(r0+24+i,2)}")
        for i in range(0, 8, 2):
            a(f"v_pk_mul_f32 {vr(r0+i,2)}, {vr(r0+i,2)}, {vr(r0+8,2)} op_sel_hi:[1,0]")
        for i in range(4):
            a(f"v_cvt_pk_bf16_f32 v{r0+12+i}, v{r0+2*i}, v{r0+2*i+1}")
        a(f"buffer_store_dwordx4 {vr(r0+12,4)}, v{VO}, {WSR}, s{S_D} offen offset:{128*j} sc1")
    a(f"s_lshl_b32 s{S_T}, s{S_A}, 12\ns_lshl_b32 s{S_T+1}, s{S_B}, 9\ns_add_u32 s{S_T}, s{S_T}, s{S_T+1}")
    a(f"s_lshl_b32 s{S_T+1}, s{W}, 7\ns_add_u32 s{S_T}, s{S_T}, s{S_T+1}\ns_add_u32 s{S_T}, s{S_T}, {WS_FLO}")
    a(f"v_mov_b32 v16, s{S_TAG}\nv_mov_b32 v17, 0\ns_mov_b64 exec, 1")
    a("s_waitcnt vmcnt(0)")
    stamp(a, 9)
    a(f"buffer_store_dword v16, v17, {WSR}, s{S_T} offen sc1")
    stamp_dump(a)
    a("s_endpgm")
    a.label(slow)
    loop = a.newlabel("slowq")
    a(f"v_lshlrev_b32 v6, 2, v0\nv_add_u32 v6, {LDS_X + 2048}, v6")
    a(f"s_lshl_b32 s{S_K1}, s{W}, 8\ns_mov_b32 s{S_K0}, 8")
    a.label(loop)
    a(f"ds_read_b128 {vr(QB,4)}, v{VLQ}\nv_add_u32 v{VLQ}, 1024, v{VLQ}")
    zero_o()
    a(f"v_mov_b32 v7, 0xff800000")
    a("s_waitcnt lgkmcnt(0)")
    for t in range(16):
        S(t, 0)
        a("s_nop 12")
        for i in range(0, 16, 2): a(f"v_max3_f32 v7, v7, v{SB[0]+i}, v{SB[0]+i+1}")
    a(f"v_mov_b32 v13, v7\ns_nop 1\nv_permlane32_swap_b32 v7, v13\nv_max_f32 v7, v7, v13")
    a(f"v_add_u32 v13, s{S_K1}, v6\nds_write_b32 v13, v7\ns_waitcnt lgkmcnt(0)\ns_barrier")
    a(f"ds_read2st64_b32 v[14:15], v6 offset0:0 offset1:1\nds_read2st64_b32 v[16:17], v6 offset0:2 offset1:3")
    a("s_waitcnt lgkmcnt(0)")
    a("v_max3_f32 v7, v14, v15, v16\nv_max_f32 v7, v7, v17")
    for i in range(16): a(f"v_sub_f32 v{SB[1]+i}, 0, v7")
    a("s_nop 1")
    for t in range(16):
        S(t, 0, vr(SB[1], 16))
        a("s_nop 12")
        for i in range(16): EX(0, i)
        a("s_nop 1")
        PV(t, 0, 0); PV(t, 1, 0)
    a("s_nop 15")
    flush(0)
    a(f"v_add_u32 v{VL16}, {4*PART}, v{VL16}\nv_add_u32 v{VL4}, {4*PART}, v{VL4}\nv_xor_b32 v6, 1024, v6")
    a(f"s_sub_u32 s{S_K0}, s{S_K0}, 1\ns_cmp_lg_u32 s{S_K0}, 0\ns_cbranch_scc1 {loop}")
    gl(0, 6); gl(1, 7)
    a(f"s_branch {red}")

def ffn1(a):
    S_RS, S_QT = S_K2, S_K3
    S_WB, S_WEND, S_XR, S_REC = S_T + 8, S_T + 9, S_T + 11, S_G
    VXS, VGS, VUS, VXR, VWR = 2, 3, 4, 8, 12
    T0, T1, T2 = 5, 6, 7
    XL, WL = 0, 32768
    x_src_addr(a, VXS, T0, T1, T2)
    a(f"s_lshr_b32 s{S_T+1}, s{S_ID}, 3\ns_bfe_u32 s{S_T}, s{S_ID}, 0x20001\ns_and_b32 s{S_T+2}, s{S_ID}, 1\ns_lshl_b32 s{S_T+2}, s{S_T+2}, 3")
    lidle = a.newlabel("idle1"); lend = a.newlabel("s1end")
    a(f"s_cmp_ge_u32 s{S_T+1}, 28\ns_cbranch_scc1 {lidle}")
    a(f"s_mul_i32 s{S_T}, s{S_T}, 28\ns_add_u32 s{S_T}, s{S_T}, s{S_T+1}\ns_lshr_b32 s{S_B}, s{S_T}, 3   ; fb")
    a(f"s_and_b32 s{S_T}, s{S_T}, 7\ns_add_u32 s{S_A}, s{S_T}, s{S_T+2}   ; tb128")
    a(f"s_movk_i32 s{S_RS}, 3584\ns_lshl_b32 s{S_D}, s{S_B}, 8")
    a(f"s_lshl_b32 s{S_F}, s{S_B}, 1\ns_add_u32 s{S_F}, s{S_F}, s{S_A}   ; rotation")
    a(f"s_and_b32 s{S_F}, s{S_F}, {OPT['rot']}")
    a(f"v_lshrrev_b32 v{T0}, 4, v0\nv_and_b32 v{T1}, 15, v0\nv_lshlrev_b32 v{T2}, 1, v{T0}\nv_xor_b32 v{T1}, v{T1}, v{T2}")
    a(f"v_lshlrev_b32 v{T1}, 4, v{T1}\nv_mul_u32_u24 v{T0}, s{S_RS}, v{T0}\nv_add_u32 v{VGS}, v{T0}, v{T1}")
    a(f"v_xor_b32 v{T1}, 128, v{T1}\nv_add_u32 v{VUS}, v{T0}, v{T1}")
    a(f"s_lshl_b32 s{S_C}, s{S_A}, 17\ns_lshl_b32 s{S_T}, s{W}, 13\ns_add_u32 s{S_C}, s{S_C}, s{S_T}")
    a(f"s_mul_i32 s{S_T}, s{W}, s{S_RS}\ns_lshl_b32 s{S_T}, s{S_T}, 2\ns_add_u32 s{S_WB}, s{S_D}, s{S_T}")
    a(f"s_lshl_b32 s{S_RS}, s{S_RS}, 4\ns_lshl_b32 s{S_T}, s{S_RS}, 5\ns_add_u32 s{S_WEND}, s{S_WB}, s{S_T}")
    a(f"s_mul_i32 s{S_T}, s{S_RS}, s{S_F}\ns_lshl_b32 s{S_T}, s{S_T}, 2\ns_add_u32 s{S_D}, s{S_WB}, s{S_T}")
    q = []
    def issueW1(j, mat):
        s = WL + (j % 6) * 8192
        a(f"s_add_u32 m0, s{S_M0B}, {s + mat*4096}\ns_nop 0")
        a(f"buffer_load_dwordx4 v{(VGS,VUS)[mat]}, {rs((R_W0,R_W1)[mat])}, s{S_D} offen lds"); q.append(("W", j))
        if mat:
            a(f"s_add_u32 s{S_D}, s{S_D}, s{S_RS}")
            if j % 4 == 3: a(f"s_cmp_eq_u32 s{S_D}, s{S_WEND}\ns_cselect_b32 s{S_D}, s{S_WB}, s{S_D}")
    def issueX1(u, j):
        if j == 0:
            a(f"s_add_u32 s{S_XR}, s{S_F}, {u}\ns_and_b32 s{S_XR}, s{S_XR}, 7\ns_lshl_b32 s{S_XR}, s{S_XR}, 7\ns_add_u32 s{S_XR}, s{S_XR}, s{S_C}")
        dma(a, VXS, R_X, S_T, S_XR, j * 32768, XL + (u % 2) * 16384 + j * 4096); q.append(("X", u))
    def issueX(u):
        for j in range(4): issueX1(u, j)
    def issueW(j): issueW1(j, 0); issueW1(j, 1)
    def waitfor(tags):
        idx = max((i for i, t in enumerate(q) if t in tags), default=-1)
        n = len(q) - 1 - idx
        del q[:idx + 1]
        a(f"s_waitcnt vmcnt({n})")
    kernarg_wait(a)
    issueX(0)
    srd(a, R_W0, S_WG, 512 * 3584); srd(a, R_W1, S_WU, 512 * 3584)
    issueW(0); issueW(1); issueW(2); issueX(1); issueW(3); issueW(4); issueW(5)
    finish_tag_ack(a, 68, 69); q += [("ack", 0)] * (1 + 2 * OPT["touch"])
    a(f"s_and_b32 s{S_T}, s{W}, 1\ns_lshl_b32 s{S_T}, s{S_T}, 13")
    x_read_addr(a, VXR, T0, T1, T2, S_T)
    a(f"v_bfe_u32 v{T0}, v0, 2, 2\nv_bfe_u32 v{T2}, v0, 4, 1\nv_lshl_add_u32 v16, v{T1}, 3, v{T0}\nv_lshlrev_b32 v16, 8, v16")
    a(f"v_lshl_add_u32 v16, v{T2}, 12, v16\nv_and_b32 v17, 3, v0\nv_lshl_add_u32 v16, v17, 3, v16\nv_add_u32 v16, {WL}, v16")
    a(f"v_lshl_or_b32 v{T0}, v{T2}, 2, v{T0}\ns_and_b32 s{S_T}, s{W}, 2\ns_lshl_b32 s{S_T}, s{S_T}, 1\nv_xor_b32 v{T0}, s{S_T}, v{T0}")
    for jj in range(4):
        a(f"v_xor_b32 v{VWR+jj}, {jj}, v{T0}\nv_lshl_add_u32 v{VWR+jj}, v{VWR+jj}, 5, v16")
    a(f"v_mov_b32 v64, s{S_TAG}\nv_mov_b32 v65, 0")
    ACC = 128
    FX = (16, 40); FW = (24, 48)
    def rd_list(j):
        b = j & 1
        xs = XL + ((j // 4) % 2) * 16384; wsl = (j % 6) * 8192
        X = [f"ds_read_b128 {vr(FX[b]+4*m,4)}, v{VXR + j%4} offset:{xs + m*4096}" for m in range(2)]
        Wl = [f"ds_read_b64_tr_b16 {vr(FW[b]+4*jj+2*hf,2)}, v{VWR+jj} offset:{wsl + hf*1024}" for jj in range(4) for hf in range(2)]
        return [X[0], Wl[0], Wl[1], X[1]] + Wl[2:]
    waitfor({("X", 0), ("W", 0)})
    a("s_barrier")
    stamp(a, 1)
    for l in rd_list(0): a(l)
    BP = OPT["barpos"]
    for j in range(32):
        b = j & 1
        if OPT.get("fst") and j in (4, 8, 16, 24): stamp(a, {4: 5, 8: 6, 16: 7, 24: 8}[j], True)
        a("s_waitcnt lgkmcnt(0)")
        rl = rd_list(j + 1) if j < 31 else []
        pend = []
        if j + 6 < 32: pend += [lambda j=j: issueW1(j + 6, 0), lambda j=j: issueW1(j + 6, 1)]
        if j % 4 == 3 and j // 4 + 2 < 8: pend += [lambda j=j, p=p: issueX1(j // 4 + 2, p) for p in range(4)]
        first_gap = max(BP - 1, 8 - len(pend)) if len(pend) > 3 else 5
        def sync():
            tags = {("W", j + 1)}
            if (j + 1) % 4 == 0: tags.add(("X", (j + 1) // 4))
            waitfor(tags)
            a("s_barrier")
        if BP == 0 and j < 31: sync()
        for n in range(8):
            jj, m = n // 2, n % 2
            acc = ACC + 16 * n
            c = "0" if j == 0 else vr(acc, 16)
            a(f"v_mfma_f32_32x32x16_bf16 {vr(acc,16)}, {vr(FW[b]+4*jj,4)}, {vr(FX[b]+4*m,4)}, {c}")
            if n == BP - 1 and j < 31: sync()
            if n >= BP - 1:
                for _ in range(3 if BP else 2):
                    if rl: a(rl.pop(0))
            if n >= first_gap and pend: pend.pop(0)()
            if n == 7 and pend: pend.pop(0)()
        assert not rl and not pend, (j, rl, pend)
        if OPT["trig"] and j == OPT["trig"]:
            lab = a.newlabel("nopre")
            a(f"s_cmp_lg_u32 s{W}, 0\ns_cbranch_scc1 {lab}")
            a(f"s_lshl_b32 s{S_T}, s{S_ID}, 7\ns_add_u32 s{S_T}, s{S_T}, {WS_PRE}")
            a(f"s_mov_b64 exec, 1\nbuffer_store_dword v64, v65, {WSR}, s{S_T} offen sc1\ns_mov_b64 exec, -1")
            a.label(lab)
    stamp(a, 2)
    a(f"v_lshlrev_b32 v2, 4, v0")
    a(f"s_lshl_b32 s{S_T}, s{S_A}, 2\ns_and_b32 s{S_T+1}, s{W}, 1\ns_lshl_b32 s{S_T+1}, s{S_T+1}, 1\ns_add_u32 s{S_T}, s{S_T}, s{S_T+1}")
    a(f"s_setprio {OPT['prioG']}")
    c0 = -2.0 * LOG2E * math.sqrt(2.0 / math.pi); c1 = c0 * 0.044715
    a(f"s_mov_b32 s{S_K2}, {f2u(c1):#x}\ns_mov_b32 s{S_K2+1}, {f2u(c1):#x}")
    a(f"v_mov_b32 v4, {f2u(c0):#x}\nv_mov_b32 v5, {f2u(c0):#x}")
    a(f"s_mul_i32 s{S_T}, s{S_T}, 112\ns_lshl_b32 s{S_T+1}, s{S_B}, 3\ns_add_u32 s{S_T}, s{S_T}, s{S_T+1}")
    a(f"s_and_b32 s{S_T+1}, s{W}, 2\ns_lshl_b32 s{S_T+1}, s{S_T+1}, 1\ns_add_u32 s{S_T}, s{S_T}, s{S_T+1}\ns_lshl_b32 s{S_T}, s{S_T}, 10")
    a(f"s_add_u32 s{S_E}, s{S_T}, {WS_HP}\ns_add_u32 s{S_F}, s{S_E}, {112*1024}")
    for jj in range(4):
        A2 = [ACC + 32 * jj, ACC + 32 * jj + 16]
        TT = [16 + 24 * (jj & 1), 16 + 24 * (jj & 1) + 12]
        P2 = [(A2[m] + i, TT[m] + i) for m in range(2) for i in range(0, 8, 2)]
        for g_, t_ in P2: a(f"v_pk_mul_f32 {vr(t_,2)}, {vr(g_,2)}, {vr(g_,2)}")
        for g_, t_ in P2: a(f"v_pk_fma_f32 {vr(t_,2)}, {vr(t_,2)}, s[{S_K2}:{S_K2+1}], v[4:5]")
        for g_, t_ in P2: a(f"v_pk_mul_f32 {vr(t_,2)}, {vr(t_,2)}, {vr(g_,2)}")
        for g_, t_ in P2: a(f"v_exp_f32 v{t_}, v{t_}\nv_exp_f32 v{t_+1}, v{t_+1}")
        for g_, t_ in P2: a(f"v_pk_mul_f32 {vr(g_,2)}, {vr(g_,2)}, {vr(g_+8,2)}")
        for g_, t_ in P2: a(f"v_pk_add_f32 {vr(t_,2)}, {vr(t_,2)}, 1.0 op_sel_hi:[1,0]")
        for g_, t_ in P2: a(f"v_rcp_f32 v{t_}, v{t_}\nv_rcp_f32 v{t_+1}, v{t_+1}")
        a("s_nop 0")
        for g_, t_ in P2: a(f"v_pk_mul_f32 {vr(g_,2)}, {vr(g_,2)}, {vr(t_,2)}")
        for m in range(2):
            for i in range(4): a(f"v_cvt_pk_bf16_f32 v{TT[m]+8+i}, v{A2[m]+2*i}, v{A2[m]+2*i+1}")
            a(f"buffer_store_dwordx4 {vr(TT[m]+8,4)}, v2, {WSR}, s{S_E if m == 0 else S_F} offen offset:{jj*1024} sc1")
    a(f"s_lshl_b32 s{S_T}, s{S_A}, 11\ns_lshl_b32 s{S_T+1}, s{S_B}, 7\ns_add_u32 s{S_T}, s{S_T}, s{S_T+1}\ns_add_u32 s{S_T}, s{S_T}, {WS_FLH}")
    stamp(a, 3)
    a("s_waitcnt vmcnt(0)")
    a("s_barrier")
    stamp(a, 4)
    a(f"s_cmp_lg_u32 s{W}, 0\ns_cbranch_scc1 {lend}")
    a(f"s_mov_b64 exec, 1\nbuffer_store_dword v64, v65, {WSR}, s{S_T} offen sc1\ns_mov_b64 exec, -1")
    a(f"s_branch {lend}")
    a.label(lidle)
    if OPT.get("skipA"): a("s_endpgm")
    a(f"s_setprio 3")
    kvg(a, 0)
    a(f"v_mov_b32 v64, s{S_TAG}\nv_mov_b32 v65, 0")
    if not OPT.get("skipA"): epoch_update(a)
    a.label(lend)

def epoch_update(a):
    lab = a.newlabel("noepoch")
    a(f"s_cmp_lg_u32 s{S_ID}, 224\ns_cbranch_scc1 {lab}\ns_cmp_lg_u32 s{W}, 1\ns_cbranch_scc1 {lab}")
    a(f"v_lshlrev_b32 v2, 4, v0\ns_mov_b32 s{S_T+6}, {WS_ACK}\ns_mov_b32 s{S_T+7}, {WS_ACK+4096}")
    loads, regs = [], []
    for i in range(8):
        loads.append(f"buffer_load_dwordx4 {vr(16+4*i,4)}, v2, {WSR}, s{S_T+6+i//4} offen offset:{(i%4)*1024} sc1")
        regs += [16 + 4*i + j for j in range(4)]
    poll(a, loads, regs, sleep=64)
    a(f"s_mov_b64 exec, 1\nbuffer_store_dword v64, v65, {WSR}, 0 offen offset:{WS_EPOCH} sc1\ns_mov_b64 exec, -1")
    a.label(lab)

def ffn2(a):
    a(f"s_and_b32 s{S_T}, s{S_ID}, 1\ns_lshl_b32 s{S_T}, s{S_T}, 4\ns_and_b32 s{S_T+1}, s{S_ID}, 2\ns_lshl_b32 s{S_T+1}, s{S_T+1}, 2")
    a(f"s_add_u32 s{S_T}, s{S_T}, s{S_T+1}\ns_bfe_u32 s{S_T+1}, s{S_ID}, 0x30003\ns_add_u32 s{S_A}, s{S_T}, s{S_T+1}   ; tb64")
    a(f"s_and_b32 s{S_T}, s{S_ID}, 4\ns_lshr_b32 s{S_T+1}, s{S_ID}, 6\ns_add_u32 s{S_B}, s{S_T}, s{S_T+1}   ; cb")
    srd(a, R_W0, S_WD, 1792 * 1024); srd(a, R_W1, S_WO, 512 * 1024); srd(a, R_OUT, S_OUT, 2048 * 1024)
    VWS, VLIN, VR0, VR1, VG = 2, 3, 4, 5, 6
    T0, T1, T2 = 8, 9, 10
    a(f"v_lshrrev_b32 v{T0}, 3, v0\nv_and_b32 v{T1}, 7, v0\nv_bfe_u32 v{T2}, v0, 4, 1\nv_lshlrev_b32 v{T2}, 2, v{T2}")
    a(f"v_xor_b32 v{VWS}, v{T2}, v{T1}\nv_lshlrev_b32 v{VWS}, 4, v{VWS}\nv_lshl_add_u32 v{VWS}, v{T0}, 10, v{VWS}")
    a(f"v_lshlrev_b32 v{VLIN}, 4, v0")
    a(f"v_lshrrev_b32 v{T1}, 5, v0\nv_bfe_u32 v{T0}, v0, 2, 2\nv_lshl_add_u32 v{T0}, v{T1}, 2, v{T0}\nv_and_b32 v{T2}, 3, v0")
    a(f"v_lshlrev_b32 v{T2}, 3, v{T2}\nv_lshl_add_u32 v{VR0}, v{T0}, 7, v{T2}\nv_bfe_u32 v{T0}, v0, 4, 1\nv_bfe_u32 v{T2}, v0, 3, 1")
    a(f"v_lshl_or_b32 v{T0}, v{T2}, 1, v{T0}\nv_xor_b32 v{T2}, 2, v{T0}")
    a(f"v_lshl_add_u32 v{VR1}, v{T2}, 5, v{VR0}\nv_lshl_add_u32 v{VR0}, v{T0}, 5, v{VR0}")
    a(f"s_lshl_b32 s{S_M0B}, s{W}, 14")
    a(f"v_add_u32 v{VR0}, s{S_M0B}, v{VR0}\nv_add_u32 v{VR1}, s{S_M0B}, v{VR1}")
    a(f"s_lshl_b32 s{S_T}, s{S_B}, 7\ns_add_u32 s{S_C}, s{S_M0B}, s{S_T}")
    a(f"s_mul_i32 s{S_D}, s{S_A}, {2*112*1024}\ns_lshl_b32 s{S_T}, s{W}, 10\ns_add_u32 s{S_D}, s{S_D}, s{S_T}")
    a(f"s_add_u32 s{S_D}, s{S_D}, {WS_HP}\ns_add_u32 s{S_E}, s{S_D}, {112*1024}")
    a(f"s_lshl_b32 s{S_T}, s{S_B}, 1\ns_add_u32 s{S_T}, s{S_T}, s{S_A}\ns_and_b32 s{S_T}, s{S_T}, {OPT['rot2']}")
    a(f"s_mul_i32 s{S_T}, s{S_T}, 7\ns_lshr_b32 s{S_T}, s{S_T}, 1\ns_lshl_b32 s{S_K2}, s{S_T}, 16\ns_lshl_b32 s{S_K3}, s{S_T}, 12")
    ACC, HF, FW = 64, 128, (16, 24)
    NS, D = 28, 8
    q = []
    def issueW(n):
        a(f"s_add_u32 s{S_T+1}, s{S_C}, s{S_K2}")
        for p in range(2):
            dma(a, VWS, R_W0, S_T, S_T + 1, p * 8192, (n % D) * 2048 + p * 1024); q.append(("W", n))
        a(f"s_add_u32 s{S_K2}, s{S_K2}, 65536\ns_cmp_eq_u32 s{S_K2}, {28*65536}\ns_cselect_b32 s{S_K2}, 0, s{S_K2}")
    def issueWo(n):
        for p in range(2):
            dma(a, VWS, R_W1, S_T, S_G, (n - NS) * 16384 + p * 8192, (n % D) * 2048 + p * 1024); q.append(("W", n))
    def issueH(n):
        a(f"s_add_u32 s{S_T}, s{S_D}, s{S_K3}\ns_add_u32 s{S_T+1}, s{S_E}, s{S_K3}")
        a(f"s_add_u32 s{S_K3}, s{S_K3}, 4096\ns_cmp_eq_u32 s{S_K3}, {28*4096}\ns_cselect_b32 s{S_K3}, 0, s{S_K3}")
        a(f"buffer_load_dwordx4 {vr(HF+(n%D)*8,4)}, v{VLIN}, {WSR}, s{S_T} offen{SC()}"); q.append(("H", n))
        a(f"buffer_load_dwordx4 {vr(HF+(n%D)*8+4,4)}, v{VLIN}, {WSR}, s{S_T+1} offen{SC()}"); q.append(("H", n))
    def waitfor(tags):
        idx = max((i for i, t in enumerate(q) if t in tags), default=-1)
        n = len(q) - 1 - idx
        del q[:idx + 1]
        a(f"s_waitcnt vmcnt({n})")
    def rd_list(n):
        b = n & 1
        return [f"ds_read_b64_tr_b16 {vr(FW[b]+4*ct+2*hf,2)}, v{(VR0,VR1)[ct]} offset:{(n%D)*2048 + hf*1024}" for ct in range(2) for hf in range(2)]
    for n in range(OPT.get("wpre", 2)): issueW(n)
    lab = a.newlabel("nopoll")
    a(f"s_cmp_lg_u32 s{W}, 0\ns_cbranch_scc1 {lab}")
    a(f"s_lshr_b32 s{S_T+4}, s{S_A}, 1\ns_lshl_b32 s{S_T+4}, s{S_T+4}, 11\ns_add_u32 s{S_T+4}, s{S_T+4}, {WS_FLH}")
    a(f"s_lshl_b32 s{S_T+5}, s{S_A}, {OPT['rsh']+1}\ns_add_u32 s{S_T+5}, s{S_T+5}, {WS_RECK}")
    a(f"v_lshlrev_b32 v11, 7, v0\nv_add_u32 v11, s{S_T+4}, v11\nv_and_b32 v12, 1, v0\nv_lshlrev_b32 v12, {OPT['rsh']}, v12\nv_add_u32 v12, s{S_T+5}, v12")
    a(f"v_cmp_gt_u32 vcc, 14, v0\ns_nop 1\nv_cndmask_b32 v11, v12, v11, vcc")
    poll(a, [f"buffer_load_dword v13, v11, {WSR}, 0 offen sc1"], [13], sleep=12)
    a.label(lab)
    a("s_waitcnt vmcnt(0)")
    a("s_barrier")
    q.clear()
    stamp(a, 5)
    a(f"s_setprio {OPT['prioD']}")
    for n in range(D):
        if n >= OPT.get("wpre", 2): issueW(n)
        issueH(n)
    a(f"s_lshl_b32 s{S_T}, s{S_A}, 8\ns_add_u32 s{S_T}, s{S_T}, {WS_G}\nv_and_b32 v{T0}, 31, v0\nv_lshlrev_b32 v{T0}, 2, v{T0}")
    for m in range(2):
        a(f"buffer_load_dword v{VG+m}, v{T0}, {WSR}, s{S_T} offen offset:{128*m}{SC()}"); q.append(("G", 0))
    waitfor({("W", 0)})
    for l in rd_list(0): a(l)
    def step(n, bsrc, extra=None):
        b = n & 1
        rl = rd_list(n + 1) if n + 1 < NS else []
        for k in range(4):
            ct, m = k // 2, k % 2
            acc = ACC + 16 * k
            c = "0" if n == 0 else vr(acc, 16)
            a(f"v_mfma_f32_32x32x16_bf16 {vr(acc,16)}, {vr(FW[b]+4*ct,4)}, {vr(bsrc+4*m,4)}, {c}")
            for _ in range(2):
                if rl: a(rl.pop(0))
            if k == 2 and extra: extra()
    for n in range(NS):
        waitfor({("H", n), ("W", n + 1)})
        a("s_waitcnt lgkmcnt(0)")
        step(n, HF + (n % D) * 8, (lambda: issueW(n + D)) if n + D < NS else None)
        if n + D < NS: issueH(n + D)
    stamp(a, 6)
    a(f"s_setprio {OPT['prioG']}")
    a(f"v_lshl_add_u32 v{T0}, v0, 4, s{S_M0B}")
    a(f"v_lshlrev_b32 v{T1}, 4, v0\ns_lshl_b32 s{S_T}, s{W}, 12\nv_add_u32 v{T1}, s{S_T}, v{T1}")
    a(f"s_bitcmp1_b32 s{W}, 0\ns_cselect_b64 vcc, -1, 0\nv_cndmask_b32 v{VG}, v{VG}, v{VG+1}, vcc\nv_sub_f32 v{VG}, 1.0, v{VG}")
    a("s_nop 7")
    for d in range(4):
        for i in range(4): a(f"ds_write_b128 v{T0}, {vr(ACC+16*d+4*i,4)} offset:{d*4096 + i*1024}")
    a("s_waitcnt lgkmcnt(0)")
    a("s_barrier")
    RB = 128
    for src in range(4):
        for i in range(4): a(f"ds_read_b128 {vr(RB+16*src+4*i,4)}, v{T1} offset:{src*16384 + i*1024}")
        if src == 1 or src == 3:
            a(f"s_waitcnt lgkmcnt(0)")
            if src == 3: a("s_barrier")
            for i in range(0, 16, 2):
                a(f"v_pk_add_f32 {vr(RB+16*(src-1)+i,2)}, {vr(RB+16*(src-1)+i,2)}, {vr(RB+16*src+i,2)}")
    a(f"s_lshl_b32 s{S_M0B}, s{W}, 10\ns_lshl_b32 s{S_C}, s{W}, 13\ns_lshl_b32 s{S_T}, s{S_B}, 7\ns_add_u32 s{S_C}, s{S_C}, s{S_T}")
    for p in range(16): dma(a, VWS, R_W1, S_T, S_C, p * 32768, p * 4096)
    OWN, OTH = 64, 80
    for i in range(0, 16, 2): a(f"v_pk_add_f32 {vr(RB+i,2)}, {vr(RB+i,2)}, {vr(RB+32+i,2)}")
    for i in range(0, 16, 2): a(f"v_pk_mul_f32 {vr(OWN+i,2)}, {vr(RB+i,2)}, {vr(VG,2)} op_sel_hi:[1,0]")
    a(f"s_lshl_b32 s{S_T}, s{W}, 14\nv_subrev_u32 v{VR0}, s{S_T}, v{VR0}\nv_subrev_u32 v{VR1}, s{S_T}, v{VR1}")
    a(f"s_and_b32 s{S_T}, s{W}, 2\ns_lshl_b32 s{S_T}, s{S_T}, 14\nv_add_u32 v{VR0}, s{S_T}, v{VR0}\nv_add_u32 v{VR1}, s{S_T}, v{VR1}")
    a(f"s_bitcmp1_b32 s{W}, 1\ns_cselect_b64 vcc, -1, 0\nv_cndmask_b32 v12, v{VR0}, v{VR1}, vcc\nv_cndmask_b32 v{VR1}, v{VR1}, v{VR0}, vcc\nv_mov_b32 v{VR0}, v12")
    a(f"s_lshl_b32 s{S_F}, s{S_A}, 1\ns_and_b32 s{S_T}, s{W}, 1\ns_add_u32 s{S_F}, s{S_F}, s{S_T}   ; tt")
    a(f"s_lshl_b32 s{S_D}, s{S_F}, 15\ns_and_b32 s{S_T}, s{W}, 2\ns_lshl_b32 s{S_T}, s{S_T}, 13\ns_add_u32 s{S_D}, s{S_D}, s{S_T}\ns_add_u32 s{S_D}, s{S_D}, {WS_OP}")
    a(f"s_lshl_b32 s{S_T+4}, s{S_A}, 12\ns_and_b32 s{S_T}, s{W}, 2\ns_lshl_b32 s{S_T}, s{S_T}, 10\ns_add_u32 s{S_T+4}, s{S_T+4}, s{S_T}")
    a(f"s_and_b32 s{S_T}, s{W}, 1\ns_lshl_b32 s{S_T}, s{S_T}, 8\ns_add_u32 s{S_T+4}, s{S_T+4}, s{S_T}\ns_add_u32 s{S_T+4}, s{S_T+4}, {WS_FLO}")
    a(f"v_and_b32 v11, 3, v0\nv_lshlrev_b32 v11, 9, v11\nv_and_b32 v12, 4, v0\nv_lshl_add_u32 v11, v12, 5, v11")
    a(f"s_lshl_b32 s{S_T}, s{W}, 12\ns_add_u32 s{S_T}, s{S_T}, 65536\nv_lshl_add_u32 v{T0}, v0, 4, s{S_T}")
    a(f"s_xor_b32 s{S_T}, s{S_T}, 8192\nv_lshl_add_u32 v{T1}, v0, 4, s{S_T}")
    a(f"v_and_b32 v{T2}, 31, v0\nv_lshlrev_b32 v{T2}, 10, v{T2}\nv_and_b32 v12, 32, v0\nv_lshrrev_b32 v12, 1, v12\nv_add_u32 v{T2}, v{T2}, v12")
    a(f"s_lshl_b32 s{S_E}, s{S_F}, 15\ns_lshl_b32 s{S_T+1}, s{S_B}, 7\ns_add_u32 s{S_E}, s{S_E}, s{S_T+1}")
    a(f"s_and_b32 s{S_T+1}, s{W}, 2\ns_lshl_b32 s{S_T+1}, s{S_T+1}, 5\ns_add_u32 s{S_E}, s{S_E}, s{S_T+1}")
    a("s_waitcnt vmcnt(0)")
    a("s_barrier")
    def rdo(j):
        b = 16 + 8 * (j % 3)
        return [f"ds_read_b64_tr_b16 {vr(b+4*o+2*hf,2)}, v{(VR0,VR1)[o]} offset:{j*2048 + hf*1024}" for o in range(2) for hf in range(2)]
    for j in range(2):
        for l in rdo(j): a(l)
    stamp(a, 7)
    poll(a, [f"buffer_load_dword v13, v11, {WSR}, s{S_T+4} offen sc1"], [13], sleep=2)
    stamp(a, 8)
    for j in range(16):
        if j % 4 == 0 and j: a(f"s_add_u32 s{S_D}, s{S_D}, 4096")
        a(f"buffer_load_dwordx4 {vr(HF+4*j,4)}, v{VLIN}, {WSR}, s{S_D} offen offset:{(j%4)*1024}{SC()}")
    for j in range(16):
        if j + 2 < 16:
            for l in rdo(j + 2): a(l)
        a(f"s_waitcnt vmcnt({15-j}) lgkmcnt({4*min(2, 15-j)})")
        b = 16 + 8 * (j % 3)
        a(f"v_mfma_f32_32x32x16_bf16 {vr(OTH,16)}, {vr(b+4,4)}, {vr(HF+4*j,4)}, {'0' if j == 0 else vr(OTH,16)}")
        a(f"v_mfma_f32_32x32x16_bf16 {vr(OWN,16)}, {vr(b,4)}, {vr(HF+4*j,4)}, {vr(OWN,16)}")
    stamp(a, 9)
    a("s_nop 10")
    for i in range(4): a(f"ds_write_b128 v{T0}, {vr(OTH+4*i,4)} offset:{i*1024}")
    a("s_waitcnt lgkmcnt(0)")
    a("s_barrier")
    for i in range(4): a(f"ds_read_b128 {vr(OTH+4*i,4)}, v{T1} offset:{i*1024}")
    for i in range(4):
        a(f"s_waitcnt lgkmcnt({3-i})")
        a(f"v_pk_add_f32 {vr(OWN+4*i,2)}, {vr(OWN+4*i,2)}, {vr(OTH+4*i,2)}\nv_pk_add_f32 {vr(OWN+4*i+2,2)}, {vr(OWN+4*i+2,2)}, {vr(OTH+4*i+2,2)}")
        a(f"v_cvt_pk_bf16_f32 v{32+2*i}, v{OWN+4*i}, v{OWN+4*i+1}\nv_cvt_pk_bf16_f32 v{33+2*i}, v{OWN+4*i+2}, v{OWN+4*i+3}")
    a("s_nop 1")
    a("v_permlane32_swap_b32 v32, v34\nv_permlane32_swap_b32 v33, v35\nv_permlane32_swap_b32 v36, v38\nv_permlane32_swap_b32 v37, v39")
    a(f"buffer_store_dwordx4 v[32:35], v{T2}, {rs(R_OUT)}, s{S_E} offen")
    a(f"buffer_store_dwordx4 v[36:39], v{T2}, {rs(R_OUT)}, s{S_E} offen offset:32")

KD = """.section .rodata,"a"
.p2align 6
.amdhsa_kernel {k}
  .amdhsa_next_free_vgpr 256
  .amdhsa_next_free_sgpr 102
  .amdhsa_accum_offset 256
  .amdhsa_group_segment_fixed_size 0
  .amdhsa_kernarg_size 104
  .amdhsa_user_sgpr_count 2
  .amdhsa_user_sgpr_kernarg_segment_ptr 1
  .amdhsa_system_sgpr_workgroup_id_x 1
.end_amdhsa_kernel
"""

def gen():
    a = Asm()
    ref = open(f"cdna_kernels/{NAME}.s.ref").read().split("\n")
    H = [l for l in ref if l.startswith(";") and "@launch" not in l]
    H += ["; @launch grid=(512,1,1) block=(256,1,1) lds=81920"]
    k = NAME + "_kernel"
    a.raw(f'.amdgcn_target "amdgcn-amd-amdhsa--gfx950"\n.text\n.globl {k}\n.p2align 8\n.type {k},@function\n{k}:')
    a("s_cmp_ge_u32 s2, 512\ns_cbranch_scc1 L_exit")
    stamp(a, 0); stamp_init(a)
    if OPT.get("dbg"): a("s_memrealtime s[4:5]")
    a("s_load_dwordx16 s[16:31], s[0:1], 0\ns_load_dwordx8 s[32:39], s[0:1], 64\ns_load_dwordx2 s[40:41], s[0:1], 96")
    a(f"v_lshrrev_b32 v1, 6, v0\nv_and_b32 v0, 63, v0\nv_readfirstlane_b32 s{W}, v1\ns_and_b32 s{S_ID}, s2, 255")
    a(f"s_cmp_ge_u32 s2, 256\ns_lshl_b32 s{S_M0B}, s{W}, 10")
    a("s_cmp_ge_u32 s2, 256\ns_cbranch_scc1 L_roleF")
    if OPT.get("skipA"): a("s_endpgm")
    a(f"s_setprio {OPT['prioL']}")
    if OPT["cpf"]:
        a("s_getpc_b64 s[70:71]")
        a.label("L_pc")
        a(f"s_lshr_b32 s72, s{S_ID}, 3\ns_lshl_b32 s72, s72, 2\ns_add_u32 s72, s72, s{W}\ns_lshl_b32 s72, s72, 10")
        a("s_cmp_ge_u32 s72, L_exit - L_pc - 1024\ns_cbranch_scc1 L_nocpf")
        a("s_add_u32 s70, s70, s72\ns_addc_u32 s71, s71, 0")
        a("v_lshlrev_b32 v30, 4, v0\nv_mov_b32 v31, s71\nv_add_co_u32 v30, vcc, s70, v30\ns_nop 1\nv_addc_co_u32 v31, vcc, 0, v31, vcc")
        a("global_load_dwordx4 v[100:103], v[30:31], off")
        a.label("L_nocpf")
    lab = a.newlabel("nokvg")
    a(f"s_cmp_lt_u32 s{S_ID}, 224\ns_cbranch_scc1 {lab}")
    kvg(a, 1)
    a.label(lab)
    qproj(a)
    attention(a)
    a.raw(".p2align 6"); a.label("L_roleF"); a.roleF = 1
    a(f"s_setprio {OPT['prioF']}")
    ffn1(a)
    if OPT.get("skipA"): stamp_dump(a); a("s_endpgm")
    ffn2(a); stamp_dump(a)
    if OPT.get("dbg"):
        a(f"s_cmp_ge_u32 s2, 264\ns_cbranch_scc1 L_exit\ns_cmp_lg_u32 s{W}, 0\ns_cbranch_scc1 L_exit")
        a("s_waitcnt vmcnt(0)")
        a.label("L_dbgspin")
        a("s_memrealtime s[6:7]\ns_waitcnt lgkmcnt(0)")
        a(f"s_sub_u32 s8, s6, s4\ns_cmp_lt_u32 s8, {OPT['spin']}\ns_cbranch_scc1 L_dbgspin")
    a.label("L_exit")
    a("s_endpgm")
    return "\n".join(H) + "\n" + a.text() + KD.format(k=k)

if __name__ == "__main__":
    if "--diag" in sys.argv: DIAG = True
    for x in sys.argv[2:]:
        if "=" in x:
            k, v = x.split("="); OPT[k] = int(v)
    open(sys.argv[1], "w").write(gen())
```

```python
import sys, math, struct

NAME = "gated_mix__grouped_kv_mqa__glu_gated_geglu__prompt"

WS_EPOCH = 0x0
WS_ACK = 0x6000
WS_KP = 0x10000
WS_VP = 0x20000
WS_G = 0x30000
WS_RECK = 0x40000
WS_PRE = 0x50000
WS_FLH = 0x80000
WS_FLO = 0xA0000
WS_QP = 0x100000
WS_OP = 0x300000
WS_HP = 0x500000
WS_DIAG = 0xE00000
WS_SIZE = 0x10000000
OPT = dict(prioA=1, prioF=2, prioG=2, prioD=0, prioL=3, sleep=4, sc1=1, rot=7, rot2=7, thr=60, clk=0, look=11, kvat=13, kvpre=3, qfirst=16, cl=3, kvper=4, wpre=2, w0=6, xup=3, ramp=2, xper=2, barpos=0, lsl=0, outsc=0, nw=10, lastbar=13, hold=14, cpf=1, prioT=3, sentat=99, pfx=0, pfw=0, vlag=8, hst=0, fbar=1, wsl=1, jm=1, bud=20)
DIAG = False

LOG2E = 1.4426950408889634
def f2u(x): return struct.unpack("<I", struct.pack("<f", x))[0]
def SC(): return " sc1" if OPT["sc1"] else ""

class Asm:
    def __init__(self): self.L = []; self.uid = 0
    def __call__(self, s):
        for line in s.split("\n"): self.L.append("    " + line.strip())
    def label(self, n): self.L.append(n + ":")
    def raw(self, s): self.L.append(s)
    def newlabel(self, p):
        self.uid += 1
        return f"L_{p}_{self.uid}"
    def text(self): return "\n".join(self.L) + "\n"

def vr(a, n=1): return f"v{a}" if n == 1 else f"v[{a}:{a+n-1}]"

S_X, S_WQ, S_WK, S_WV, S_WO, S_BX, S_WG, S_WU = 16, 18, 20, 22, 24, 26, 28, 30
S_WD, S_GW, S_OUT, S_DBG, S_WSP = 32, 34, 36, 38, 40
R_X, R_WS, R_W0, R_W1, R_OUT = 44, 48, 52, 56, 60
S_WAVE, S_TAG = 64, 65
S_T = 66
S_ID, S_M0B = 80, 81
S_A, S_B, S_C, S_D, S_E, S_F = 82, 83, 84, 85, 86, 87
S_G, S_H = 88, 89
S_K0, S_K1, S_K2, S_K3 = 90, 91, 92, 93
W = S_WAVE
WSR = f"s[{R_WS}:{R_WS+3}]"
def rs(r): return f"s[{r}:{r+3}]"

STAMP_REGS = [4, 6, 8, 10, 12, 14, 42, 94, 96, 98, 100]
def stamp(a, i, force=False):
    if OPT.get("dbgat") == i and getattr(a, "roleF", 0): a("s_memrealtime s[8:9]")
    if OPT.get("fst") and getattr(a, "roleF", 0) and 5 <= i <= 9 and not force: return
    if DIAG: a(f"{'s_memtime' if OPT['clk'] else 's_memrealtime'} s[{STAMP_REGS[i]}:{STAMP_REGS[i]+1}]")
def stamp_init(a):
    if DIAG:
        for r in STAMP_REGS[1:]: a(f"s_mov_b32 s{r}, 0")
def stamp_dump(a):
    if not DIAG: return
    a("s_waitcnt vmcnt(0) lgkmcnt(0)")
    stamp(a, 10)
    a("s_waitcnt lgkmcnt(0)")
    a(f"s_lshl_b32 s{S_T}, s2, 2\ns_add_u32 s{S_T}, s{S_T}, s{W}\ns_add_u32 s{S_T}, s{S_T}, {1024 if getattr(a, 'roleF', 0) else 0}\ns_lshl_b32 s{S_T}, s{S_T}, 6\ns_add_u32 s{S_T}, s{S_T}, {WS_DIAG}")
    a("s_mov_b64 exec, 1\nv_mov_b32 v1, 0")
    for i, r in enumerate(STAMP_REGS):
        a(f"v_mov_b32 v2, s{r}\nbuffer_store_dword v2, v1, {WSR}, s{S_T} offen offset:{4*i}\ns_nop 1")

def srd(a, r, p, size):
    a(f"s_mov_b32 s{r}, s{p}\ns_mov_b32 s{r+1}, s{p+1}\ns_mov_b32 s{r+2}, {size:#x}\ns_mov_b32 s{r+3}, 0x20000")

def kernarg_wait(a):
    a("s_waitcnt lgkmcnt(0)")
    a(f"s_load_dword s{S_TAG}, s[40:41], {WS_EPOCH}")
    srd(a, R_X, S_X, 2048 * 1024)

def finish_tag_ack(a, v0_, v1_):
    srd(a, R_WS, S_WSP, WS_SIZE)
    a(f"s_lshl_b32 s{S_T+2}, s2, 5\ns_lshl_b32 s{S_T+3}, s{W}, 2\ns_add_u32 s{S_T+2}, s{S_T+2}, s{S_T+3}")
    a(f"s_add_u32 s{S_T+2}, s{S_T+2}, {WS_ACK + (16 if getattr(a, 'roleF', 0) else 0)}")
    a(f"v_mov_b32 v{v1_}, 0")
    a("s_waitcnt lgkmcnt(0)")
    a(f"s_mul_i32 s{S_TAG}, s{S_TAG}, 0x9E3779B1")
    a(f"s_add_u32 s{S_TAG}, s{S_TAG}, 0x7F4A7C15")
    a(f"v_mov_b32 v{v0_}, s{S_TAG}")
    a("s_mov_b64 exec, 1")
    a(f"buffer_store_dword v{v0_}, v{v1_}, {WSR}, s{S_T+2} offen sc1")
    a("s_mov_b64 exec, -1")

def dma(a, vaddr, r, soff_reg, soff_base, soff_imm, lds_imm):
    a(f"s_add_u32 m0, s{S_M0B}, {lds_imm}")
    a(f"s_add_u32 s{soff_reg}, s{soff_base}, {soff_imm}")
    nt = " nt" if (OPT.get("ntx") and r == R_X) or (OPT.get("nt2") and getattr(a, "roleF", 0)) else ""
    a(f"buffer_load_dwordx4 v{vaddr}, {rs(r)}, s{soff_reg} offen{nt} lds")

def wave_max(a, v):
    for m in ("row_shr:1", "row_shr:2", "row_shr:4", "row_shr:8", "row_bcast:15 row_mask:0xa", "row_bcast:31 row_mask:0xc"):
        a("s_nop 1")
        a(f"v_max_u32_dpp v{v}, v{v}, v{v} {m}")

def poll(a, loads, regs, sleep=None):
    lab = a.newlabel("poll"); out = a.newlabel("polled")
    sleep = sleep or OPT["sleep"]
    masked = len(loads) == 1 and len(regs) == 1
    a(f"s_mov_b32 s{S_T+10}, 0x40000")
    a.label(lab)
    for l in loads: a(l)
    a("s_waitcnt vmcnt(0)")
    a(f"v_cmp_ne_u32 vcc, s{S_TAG}, v{regs[0]}")
    for r in regs[1:]:
        a(f"v_cmp_ne_u32 s[{S_T+12}:{S_T+13}], s{S_TAG}, v{r}")
        a(f"s_or_b64 vcc, vcc, s[{S_T+12}:{S_T+13}]")
    a(f"s_cbranch_vccz {out}")
    if masked: a("s_mov_b64 exec, vcc")
    a(f"s_sleep {sleep}")
    a(f"s_sub_u32 s{S_T+10}, s{S_T+10}, 1\ns_cmp_lg_u32 s{S_T+10}, 0\ns_cbranch_scc1 {lab}")
    a.label(out)
    if masked: a("s_mov_b64 exec, -1")

def x_src_addr(a, V, T0, T1, T2):
    a(f"v_lshrrev_b32 v{T0}, 3, v0\nv_and_b32 v{T1}, 7, v0\nv_lshrrev_b32 v{T2}, 1, v{T0}")
    a(f"s_and_b32 s{S_T}, s{W}, 1\ns_lshl_b32 s{S_T}, s{S_T}, 2")
    a(f"v_or_b32 v{V}, s{S_T}, v{T2}\nv_xor_b32 v{V}, v{V}, v{T1}\nv_lshlrev_b32 v{V}, 4, v{V}")
    a(f"v_lshl_add_u32 v{V}, v{T0}, 10, v{V}")

def x_read_addr(a, V, T0, T1, T2, sbase=None):
    a(f"v_and_b32 v{T0}, 31, v0\nv_lshrrev_b32 v{T1}, 5, v0\nv_bfe_u32 v{T2}, v0, 1, 3\nv_xor_b32 v{T2}, v{T2}, v{T1}")
    a(f"v_lshlrev_b32 v{T0}, 7, v{T0}")
    if sbase is not None: a(f"v_add_u32 v{T0}, s{sbase}, v{T0}")
    for ks in range(4):
        a(f"v_xor_b32 v{V+ks}, {2*ks}, v{T2}\nv_lshl_add_u32 v{V+ks}, v{V+ks}, 4, v{T0}")

XL, QWL, WL = 0, 49152, 61440
IXL, IQL, IEL, IGL = 0, 65536, 81920, 98304
PART = 2176
LDS_P = 81920
LDS_Q = LDS_P + 32 * PART
LDS_X = LDS_Q + 8192
LDS_C = LDS_X + 1088
assert LDS_X + 4096 == 163840

def lsync(a, idx, n, va, vb, slp=0):
    lab = a.newlabel("ls")
    a(f"v_mov_b32 v{va}, {LDS_C + 4*idx}\nv_mov_b32 v{vb}, 1\ns_mov_b64 exec, 1\nds_add_u32 v{va}, v{vb}\ns_mov_b64 exec, -1")
    if slp:
        l2 = a.newlabel("ls")
        a(f"s_branch {l2}")
        a.label(lab)
        a(f"s_sleep {slp}")
        a.label(l2)
    else:
        a.label(lab)
    a(f"ds_read_b32 v{vb}, v{va}\ns_waitcnt lgkmcnt(0)\nv_readfirstlane_b32 s{S_T+10}, v{vb}\ns_cmp_lt_u32 s{S_T+10}, {n}\ns_cbranch_scc1 {lab}")

def decode(a):
    a(f"s_lshr_b32 s{S_T+1}, s{S_ID}, 3\ns_bfe_u32 s{S_T}, s{S_ID}, 0x20001\ns_and_b32 s{S_T+2}, s{S_ID}, 1\ns_lshl_b32 s{S_T+2}, s{S_T+2}, 3")
    a(f"s_mul_i32 s{S_T+3}, s{S_T}, 28\ns_add_u32 s{S_T+3}, s{S_T+3}, s{S_T+1}\ns_lshr_b32 s{S_B}, s{S_T+3}, 3\ns_and_b32 s{S_A}, s{S_T+3}, 7")
    a(f"s_lshl_b32 s{S_T}, s{S_T}, 1\ns_bfe_u32 s{S_T+3}, s{S_T+1}, 0x10001\ns_add_u32 s{S_T}, s{S_T}, s{S_T+3}")
    a(f"s_and_b32 s{S_T+3}, s{S_T+1}, 1\ns_add_u32 s{S_T+3}, s{S_T+3}, 14")
    a(f"s_cmp_ge_u32 s{S_ID}, 224\ns_cselect_b32 s{S_A}, s{S_T}, s{S_A}\ns_cselect_b32 s{S_B}, s{S_T+3}, s{S_B}")
    a(f"s_add_u32 s{S_A}, s{S_A}, s{S_T+2}")
    a(f"s_lshl_b32 s{S_F}, s{S_B}, 1\ns_add_u32 s{S_F}, s{S_F}, s{S_A}\ns_and_b32 s{S_F}, s{S_F}, {OPT['rot']}")

class VQ:
    def __init__(self, a): self.a = a; self.q = []
    def add(self, t, n=1): self.q += [t] * n; self.total = getattr(self, "total", 0) + n
    def wait(self, tags):
        idx = max((i for i, t in enumerate(self.q) if t in tags), default=-1)
        n = len(self.q) - 1 - idx
        del self.q[:idx + 1]
        assert n < 64
        self.a(f"s_waitcnt vmcnt({n})")

def roleA(a):
    VL16, VIDX, VL4, VO, VGO, VLQ = 1, 2, 3, 4, 5, 12
    VXS, VQS, VXR, VQR, VGS, VUS = 6, 7, 8, 13, 14, 15
    QB = 8; SB = (16, 32); OA = 48; KR, VR_ = 64, 128
    XF, WF, ACC = 16, 24, 32
    T0, T1, T2 = 16, 17, 18
    VREC, VRA, VQW = 58, 62, 57
    S_WB, S_WEND, S_XR, S_QR = S_K2, S_K3, S_T + 11, S_T + 12
    RS = 3584 * 16
    x_src_addr(a, VXS, T0, T1, T2)
    a(f"v_lshrrev_b32 v{T0}, 2, v0\nv_and_b32 v{T1}, 3, v0\nv_lshlrev_b32 v{T1}, 4, v{T1}\nv_lshl_add_u32 v{VQS}, v{T0}, 10, v{T1}")
    a(f"v_lshrrev_b32 v{T0}, 4, v0\nv_and_b32 v{T1}, 15, v0\nv_lshlrev_b32 v{T2}, 1, v{T0}\nv_xor_b32 v{T1}, v{T1}, v{T2}")
    a(f"s_and_b32 s{S_T}, s{W}, 2\ns_lshl_b32 s{S_T}, s{S_T}, 2\nv_xor_b32 v{T1}, s{S_T}, v{T1}")
    a(f"v_lshlrev_b32 v{T1}, 4, v{T1}\nv_mul_u32_u24 v{T0}, 3584, v{T0}\nv_add_u32 v{VGS}, v{T0}, v{T1}\nv_mov_b32 v{VUS}, v{VGS}")
    a(f"s_lshl_b32 s{S_C}, s{S_A}, 17\ns_lshl_b32 s{S_T}, s{W}, 13\ns_add_u32 s{S_C}, s{S_C}, s{S_T}   ; x base")
    a(f"s_lshl_b32 s{S_H}, s{W}, 14\ns_lshl_b32 s{S_T}, s{S_B}, 6\ns_add_u32 s{S_H}, s{S_H}, s{S_T}")
    a(f"s_mul_i32 s{S_T}, s{W}, {4*3584}\ns_lshl_b32 s{S_WB}, s{S_B}, 8\ns_add_u32 s{S_WB}, s{S_WB}, s{S_T}")
    a(f"s_add_u32 s{S_WEND}, s{S_WB}, {32*RS}\ns_mul_i32 s{S_T}, s{S_F}, {4*RS}\ns_add_u32 s{S_D}, s{S_WB}, s{S_T}")
    kernarg_wait(a)
    srd(a, R_OUT, S_WQ, 512 * 1024)
    vq = VQ(a)
    def issueX1(u, j, xl, ql):
        if j == 0:
            a(f"s_add_u32 s{S_XR}, s{S_F}, {u}\ns_and_b32 s{S_XR}, s{S_XR}, 7\ns_lshl_b32 s{S_QR}, s{S_XR}, 16\ns_lshl_b32 s{S_XR}, s{S_XR}, 7")
            a(f"s_add_u32 s{S_XR}, s{S_XR}, s{S_C}\ns_add_u32 s{S_QR}, s{S_QR}, s{S_H}")
        if j < 4: dma(a, VXS, R_X, S_T, S_XR, j * 32768, xl + j * 4096)
        else: a(f"s_add_u32 m0, s{S_M0B}, {ql}\ns_nop 0\nbuffer_load_dwordx4 v{VQS}, {rs(R_OUT)}, s{S_QR} offen lds")
        vq.add(("X", u))
    def issueW1(j, mat):
        a(f"s_add_u32 m0, s{S_M0B}, {WL + (j % OPT['nw']) * 8192 + mat*4096}\ns_nop 0")
        a(f"buffer_load_dwordx4 v{(VGS,VUS)[mat]}, {rs((R_W0,R_W1)[mat])}, s{S_D} offen{' nt' if OPT.get('ntw') else ''} lds"); vq.add(("W", j))
        if mat:
            a(f"s_add_u32 s{S_D}, s{S_D}, {RS}")
            if j % 4 == 3: a(f"s_cmp_eq_u32 s{S_D}, s{S_WEND}\ns_cselect_b32 s{S_D}, s{S_WB}, s{S_D}")
    def setup(ql):
        finish_tag_ack(a, 20, 21); vq.add(("ack", 0))
        a(f"s_lshl_b32 s{S_T}, s{W}, 12")
        x_read_addr(a, VXR, T0, T1, T2, S_T)
        a(f"v_bfe_u32 v{T0}, v0, 2, 2\nv_lshl_add_u32 v{T0}, v{T1}, 3, v{T0}\nv_and_b32 v{T2}, 3, v0\nv_lshlrev_b32 v{T2}, 3, v{T2}")
        a(f"v_lshl_add_u32 v{VQR}, v{T0}, 6, v{T2}\nv_bfe_u32 v{T0}, v0, 4, 1\nv_lshl_add_u32 v{VQR}, v{T0}, 5, v{VQR}\nv_add_u32 v{VQR}, {ql}, v{VQR}")
        a(f"v_lshlrev_b32 v{T0}, 2, v0\nv_add_u32 v{T0}, {LDS_C}, v{T0}\nv_mov_b32 v{T1}, 0\nds_write_b32 v{T0}, v{T1}")
        a(f"v_lshlrev_b32 v{VL16}, 4, v0\nv_and_b32 v{VL4}, 31, v0\nv_lshlrev_b32 v{VL4}, 2, v{VL4}\nv_mov_b32 v{VIDX}, 0xdddddddd")
        a(f"v_add_u32 v{VLQ}, {LDS_Q}, v{VL16}\nv_lshlrev_b32 v{VRA}, 3, v0\ns_mov_b32 s{S_K0}, {WS_RECK}")
        a(f"v_bfe_u32 v{T0}, v0, 4, 1\nv_lshlrev_b32 v{VO}, 10, v{T0}\nv_and_b32 v{T0}, 32, v0\nv_lshl_add_u32 v{VO}, v{T0}, 4, v{VO}")
        a(f"v_and_b32 v{T0}, 15, v0\nv_lshl_add_u32 v{VO}, v{T0}, 4, v{VO}\nv_lshlrev_b32 v{VGO}, 2, v{T0}")
        a(f"s_lshl_b32 s{S_T}, s{W}, 11\ns_add_u32 s{S_T}, s{S_T}, {LDS_Q}\nv_add_u32 v{VQW}, s{S_T}, v{VO}")
        a(f"v_and_b32 v{T0}, 11, v0\nv_cmp_eq_u32 vcc, 0, v{T0}\nv_mov_b32 v{T0}, 0x3f803f80\ns_nop 0\nv_cndmask_b32 v{T0}, 0, v{T0}, vcc\nv_mov_b32 v{T0+1}, v{T0}")
        for t in range(16):
            for j in range(4, 8, 2): a(f"v_mov_b64 {vr(VR_+8*t+j,2)}, {vr(T0,2)}")
        zero_o()
        a(f"s_lshl_b32 s{S_T}, s{S_A}, 2\ns_add_u32 s{S_T}, s{S_T}, s{W}\ns_lshl_b32 s{S_G}, s{S_T}, 15")
        a(f"s_lshl_b32 s{S_T}, s{S_B}, 11\ns_add_u32 s{S_G}, s{S_G}, s{S_T}\ns_add_u32 s{S_G}, s{S_G}, {WS_OP}")
        a(f"s_lshl_b32 s{S_E}, s{W}, 3\ns_lshr_b32 s{S_T}, s{S_ID}, 3\ns_add_u32 s{S_E}, s{S_E}, s{S_T}")
    def zero_o():
        for j in range(0, 8, 2): a(f"v_mov_b64 {vr(OA+j,2)}, 0")
        a(f"v_mov_b32 v{OA+8}, 0")
    def qreads(j, xoff, qoff):
        b = j & 1
        a(f"ds_read_b128 {vr(XF+4*b,4)}, v{VXR + j%4} offset:{xoff}")
        a(f"ds_read_b64_tr_b16 {vr(WF+4*b,2)}, v{VQR} offset:{qoff + (j%4)*1024}\nds_read_b64_tr_b16 {vr(WF+4*b+2,2)}, v{VQR} offset:{qoff + (j%4)*1024 + 256}")
    def qmfma(j):
        b = j & 1
        a(f"v_mfma_f32_32x32x16_bf16 {vr(ACC,16)}, {vr(WF+4*b,4)}, {vr(XF+4*b,4)}, {'0' if j == 0 else vr(ACC,16)}")
    rec_loads = [f"buffer_load_dwordx2 {vr(VREC,2)}, v{VRA}, {WSR}, s{S_K0} offen sc1",
                 f"buffer_load_dwordx2 {vr(VREC+2,2)}, v{VRA}, {WSR}, s{S_K0} offen offset:512 sc1"]
    def rec_finish(looked):
        lab = a.newlabel("norec"); seen = a.newlabel("seen")
        a(f"s_cmp_lg_u32 s{W}, 0\ns_cbranch_scc1 {lab}")
        if looked is not None:
            a(f"s_waitcnt vmcnt({looked})")
            a(f"v_cmp_ne_u32 vcc, s{S_TAG}, v{VREC}\nv_cmp_ne_u32 s[{S_T+6}:{S_T+7}], s{S_TAG}, v{VREC+2}\ns_or_b64 vcc, vcc, s[{S_T+6}:{S_T+7}]\ns_cbranch_vccz {seen}")
        poll(a, rec_loads, [VREC, VREC + 2], sleep=8)
        a.label(seen)
        wave_max(a, VREC + 1)
        a(f"v_mov_b32 v{VREC}, {LDS_X + 1024}\ns_mov_b32 exec_lo, 0\ns_mov_b32 exec_hi, 0x80000000\nds_write_b32 v{VREC}, v{VREC+1}\ns_mov_b64 exec, -1")
        a.label(lab)
    def vfix(t):
        for j in range(4): a(f"v_permlane16_swap_b32 v{VR_+8*t+j}, v{VR_+8*t+4+j}")
    VL = OPT["vlag"]; NFIX = 16 - VL
    def kvload(t):
        if t % 2 == 0:
            a(f"s_add_u32 s{S_T}, s{S_E}, {t//2}\ns_and_b32 s{S_T}, s{S_T}, 31\ns_lshl_b32 s{S_T}, s{S_T}, 11")
            a(f"s_add_u32 s{S_T+1}, s{S_T}, {WS_VP}\ns_add_u32 s{S_T}, s{S_T}, {WS_KP}")
        a(f"buffer_load_dwordx4 {vr(KR+4*t,4)}, v{VL16}, {WSR}, s{S_T} offen offset:{(t%2)*1024}{SC()}")
        a(f"buffer_load_dwordx4 {vr(VR_+8*t,4)}, v{VL16}, {WSR}, s{S_T+1} offen offset:{(t%2)*1024}{SC()}")
        vq.add(("KV", t), 2)
        if t >= VL: a(f"s_waitcnt vmcnt({2*VL})"); vfix(t - VL)
    lidle = a.newlabel("Aidle"); ljoin = a.newlabel("Ajoin")
    a(f"s_cmp_ge_u32 s{S_ID}, 224\ns_cbranch_scc1 {lidle}")
    X = lambda u, j: issueX1(u, j, XL + (u % 3) * 16384, QWL + (u % 3) * 4096)
    for j in range(5): X(0, j)
    srd(a, R_W0, S_WG, 512 * 3584); srd(a, R_W1, S_WU, 512 * 3584)
    W0 = OPT["w0"]
    nextW, nextX, xp = W0, 1, 0
    for j in range(W0):
        issueW1(j, 0); issueW1(j, 1)
        if OPT.get("xup") and j == OPT["xup"] - 1:
            for p in range(5): X(1, p)
            nextX = 2
    if OPT.get("st4") == 1: stamp(a, 4)
    setup(QWL)
    if OPT.get("st4") == 2: stamp(a, 4)
    vq.wait({("X", 0), ("W", 0), ("W", 1)})
    a("s_waitcnt lgkmcnt(0)")
    a("s_barrier")
    stamp(a, 1)
    xo = lambda j: (XL + ((j // 4) % 3) * 16384, ((j // 4) % 3) * 4096)
    qreads(0, *xo(0))
    kvt = 0
    LB = OPT["lastbar"]
    for J in range(16):
        if J < LB:
            tags = {("W", 2 * J + 2), ("W", 2 * J + 3)}
            if J % 2 == 1: tags.add(("X", (J + 1) // 2))
            assert nextW > 2 * J + 3 and (J % 2 == 0 or nextX > (J + 1) // 2), J
            vq.wait(tags)
        elif J == LB:
            assert nextW == 32 and nextX == 8
            vq.wait({("W", 31), ("X", 7)})
        a("s_waitcnt lgkmcnt(0)")
        if J <= LB: a("s_barrier")
        qmfma(2 * J)
        qreads(2 * J + 1, *xo(2 * J + 1))
        for _ in range(5 if nextX in (1, 7) else 3):
            if nextX < 8 and J >= 2 * (nextX - 3) + 2:
                X(nextX, xp); xp += 1
                if xp == 5: nextX += 1; xp = 0; break
        a("s_waitcnt lgkmcnt(0)")
        qmfma(2 * J + 1)
        if J < 15: qreads(2 * J + 2, *xo(2 * J + 2))
        for _ in range(2 * OPT["ramp"]):
            if nextW < 32 and nextW <= max(OPT['nw'] - 1, 2 * J + OPT['nw'] - 1):
                issueW1(nextW, 0); issueW1(nextW, 1); nextW += 1
        if J == OPT["kvat"]:
            assert OPT["kvat"] >= OPT["look"] + 2 and nextW == 32 and nextX == 8
            lab = a.newlabel("kvok")
            a(f"v_mov_b32 v{VREC}, {LDS_X + 1028}\nds_read_b32 v{VREC+1}, v{VREC}\ns_waitcnt lgkmcnt(0)\nv_readfirstlane_b32 s{S_T}, v{VREC+1}")
            a(f"s_cmp_eq_u32 s{S_T}, 1\ns_cbranch_scc1 {lab}")
            rec_finish(None)
            lsync(a, 9, 4, VREC, VREC + 1)
            a.label(lab)
        if J >= OPT["kvat"]:
            for _ in range(OPT["kvpre"] if J < LB else 2 * OPT["kvper"] if J < 15 else 16):
                if kvt < OPT["qfirst"]: kvload(kvt); kvt += 1
    a(f"v_mov_b32 v{VREC}, {LDS_C + 4*10}\nv_mov_b32 v{VREC+1}, 1\ns_mov_b64 exec, 1\nds_add_u32 v{VREC}, v{VREC+1}\ns_mov_b64 exec, -1")
    a(f"s_branch {ljoin}")
    a.label(lidle)
    vq.q = []
    a(f"s_cmp_eq_u32 s{S_B}, 14\ns_cselect_b32 s{R_W0}, s{S_WK}, s{S_WV}\ns_cselect_b32 s{R_W0+1}, s{S_WK+1}, s{S_WV+1}")
    a(f"s_movk_i32 s{R_W0+2}, 16384\ns_mov_b32 s{R_W0+3}, 0x20000\ns_mov_b32 s{S_F}, 0")
    srd(a, R_W1, S_GW, 1024)
    a(f"v_lshlrev_b32 v{VGS}, 4, v0")
    dma(a, VGS, R_W1, S_T, S_M0B, 0, IGL)
    for p in range(4): dma(a, VGS, R_W0, S_T, S_M0B, p * 4096, IEL + p * 4096)
    XI = lambda u: [issueX1(u, p, IXL + (u % 4) * 16384, IQL + (u % 4) * 4096) for p in range(5)]
    for u in range(4): XI(u)
    setup(IQL)
    for u in range(8):
        vq.wait({("X", u)})
        a("s_waitcnt lgkmcnt(0)")
        a("s_barrier")
        if u == 0: stamp(a, 1)
        if 1 <= u <= 4: XI(u + 3)
        qreads(4 * u, (u % 4) * 16384, (u % 4) * 4096)
        for ks in range(4):
            j = 4 * u + ks
            if ks < 3:
                qreads(j + 1, (u % 4) * 16384, (u % 4) * 4096); a("s_waitcnt lgkmcnt(3)")
            else: a("s_waitcnt lgkmcnt(0)")
            qmfma(j)
    rec_finish(None)
    a(f"v_mov_b32 v{VREC}, {LDS_C + 4*10}\nv_mov_b32 v{VREC+1}, 2\ns_mov_b64 exec, 1\nds_add_u32 v{VREC}, v{VREC+1}\ns_mov_b64 exec, -1")
    a("s_waitcnt lgkmcnt(0)")
    a("s_barrier")
    for t in range(OPT["qfirst"]): kvload(t)
    a.label(ljoin)
    stamp(a, 2)
    a(f"s_lshl_b32 s{S_T}, s{S_A}, 2\ns_add_u32 s{S_T}, s{S_T}, s{W}\ns_lshl_b32 s{S_C}, s{S_T}, 7\ns_add_u32 s{S_C}, s{S_C}, {WS_G}")
    a("s_nop 7")
    a(f"s_lshl_b32 s{S_T}, s{W}, 8\ns_add_u32 s{S_T}, s{S_T}, {LDS_X}\nv_lshl_add_u32 v15, v0, 2, s{S_T}")
    for j in range(8): a(f"v_cvt_pk_bf16_f32 v{16+j}, v{ACC+2*j}, v{ACC+2*j+1}")
    a(f"ds_write_b128 v{VQW}, v[16:19]\nds_write_b128 v{VQW}, v[20:23] offset:256")
    a(f"v_mul_f32 v24, v{ACC}, v{ACC}\nv_mul_f32 v25, v{ACC+8}, v{ACC+8}")
    for i in range(1, 8): a(f"v_fmac_f32 v24, v{ACC+i}, v{ACC+i}\nv_fmac_f32 v25, v{ACC+8+i}, v{ACC+8+i}")
    a(f"v_mov_b32 v26, {LDS_X + 1024}\ns_nop 0\nv_permlane32_swap_b32 v24, v25\nv_add_f32 v24, v24, v25\nds_write_b32 v15, v24")
    a(f"v_lshlrev_b32 v15, 2, v0\nv_add_u32 v15, {LDS_X}, v15")
    a(f"v_mov_b32 v27, {LDS_C}\nv_mov_b32 v28, 1\ns_mov_b64 exec, 1\nds_add_u32 v27, v28\ns_mov_b64 exec, -1")
    for t in range(OPT["qfirst"], 16): kvload(t)
    a(f"s_mul_i32 s{S_T}, s{W}, {PART}\ns_add_u32 s{S_T}, s{S_T}, {LDS_P}")
    a(f"v_add_u32 v{VL16}, s{S_T}, v{VL16}\nv_add_u32 v{VL4}, s{S_T}, v{VL4}")
    lab = a.newlabel("qsync")
    a.label(lab)
    a(f"ds_read_b32 v28, v27\ns_waitcnt lgkmcnt(0)\nv_readfirstlane_b32 s{S_T}, v28\ns_cmp_lt_u32 s{S_T}, 4\ns_cbranch_scc1 {lab}")
    lab = a.newlabel("ringdead")
    a(f"v_mov_b32 v27, {LDS_C + 4*10}")
    a.label(lab)
    a(f"ds_read_b32 v28, v27\ns_waitcnt lgkmcnt(0)\nv_readfirstlane_b32 s{S_T}, v28\ns_cmp_lt_u32 s{S_T}, 8\ns_cbranch_scc1 {lab}")
    a(f"ds_read_b128 {vr(QB,4)}, v{VLQ}")
    a(f"ds_read2st64_b32 v[20:21], v15 offset0:0 offset1:1\nds_read2st64_b32 v[22:23], v15 offset0:2 offset1:3\nds_read_b32 v24, v26")
    a("s_waitcnt lgkmcnt(0)")
    a("v_max3_u32 v20, v20, v21, v22\nv_max_u32 v20, v20, v23\nv_mul_f32 v20, v20, v24")
    slow = a.newlabel("slow"); red = a.newlabel("reduce")
    a(f"v_cmp_nge_f32 vcc, {f2u(float(OPT['thr'])**2):#x}, v20")
    a(f"s_setprio {OPT['prioA']}")
    a(f"s_cbranch_vccnz {slow}")
    def S(t, buf, c="0"): a(f"v_mfma_f32_32x32x16_bf16 {vr(SB[buf],16)}, {vr(KR+4*t,4)}, {vr(QB,4)}, {c}")
    def PV(t, s, buf): a(f"v_smfmac_f32_32x32x32_bf16 {vr(OA,16)}, {vr(VR_+8*t+4*s,4)}, {vr(SB[buf]+8*s,8)}, v{VIDX}")
    def EX(buf, i): a(f"v_exp_f32 v{SB[buf]+i}, v{SB[buf]+i}")
    def flush(base):
        a(f"ds_write_b128 v{VL16}, {vr(OA,4)} offset:{base}")
        a(f"ds_write_b128 v{VL16}, {vr(OA+4,4)} offset:{base+1024}")
        a(f"ds_write_b32 v{VL4}, v{OA+8} offset:{base+2048}")
    a("s_waitcnt vmcnt(31)")
    stamp(a, 5)
    S(0, 0)
    a("s_nop 11")
    gl = lambda j, r: a(f"buffer_load_dword v{r}, v{VGO}, {WSR}, s{S_C} offen offset:{64*j}{SC()}")
    ROLL = OPT.get("roll", 0)
    for q in ((0, 1, 7) if ROLL else range(8)):
        if ROLL and q == 1:
            a(f"s_mov_b32 s{S_K0}, 6")
            a.raw(".p2align 6"); a.label("L_qloop")
        for t in range(16):
            g = q * 16 + t
            cur, oth = g & 1, (g & 1) ^ 1
            nt = (t + 1) % 16
            def kv():
                if q == 0 and t + 1 >= NFIX: a(f"s_waitcnt vmcnt({max(0, 29 - 2*t)})")
                if q == 0 and t >= NFIX: vfix(t)
            if t == 0:
                if q == 1 and not ROLL: stamp(a, 6)
                if q == 4: stamp(a, 7)
                EX(cur, 0); EX(cur, 1)
                if q > 0: PV(15, 1, oth)
                EX(cur, 2); EX(cur, 3); EX(cur, 4)
                kv(); S(nt, oth)
                for i in range(5, 16): EX(cur, i)
                if q == 0: a("s_nop 0")
                if q > 0:
                    flush(0 if ROLL else (q - 1) * 4 * PART); zero_o()
                    if ROLL: a(f"v_add_u32 v{VL16}, {4*PART}, v{VL16}\nv_add_u32 v{VL4}, {4*PART}, v{VL4}")
                if q == 7: gl(0, 6); gl(1, 7)
            elif t == 1:
                EX(cur, 0); EX(cur, 1)
                PV(0, 0, oth)
                EX(cur, 2); EX(cur, 3); EX(cur, 4)
                PV(0, 1, oth)
                if OPT.get("bs"):
                    EX(cur, 5); EX(cur, 6)
                    kv(); S(nt, oth)
                    for i in range(7, 11): EX(cur, i)
                    PV(1, 0, cur)
                    for i in range(11, 16): EX(cur, i)
                    a("s_nop 1")
                else:
                    EX(cur, 5); EX(cur, 6); EX(cur, 7)
                    kv(); S(nt, oth)
                    EX(cur, 8); EX(cur, 9); EX(cur, 10)
                    PV(1, 0, cur)
                    for i in range(11, 16): EX(cur, i)
                    a("s_nop 2")
            else:
                n0, n1, n2 = {0: (2, 5, 10), 1: (5, 8, 11), 2: (3, 6, 10), 3: (2, 5, 11), 4: (4, 7, 10)}[OPT.get("cl", 0)]
                for i in range(n0): EX(cur, i)
                PV(t - 1, 1, oth)
                for i in range(n0, n1): EX(cur, i)
                if g != 127:
                    if t == 15: a("s_waitcnt lgkmcnt(0)")
                    kv(); S(nt, oth)
                EX(cur, n1); EX(cur, n1 + 1)
                if t == 14 and q < 7: a(f"ds_read_b128 {vr(QB,4)}, v{VLQ} offset:{1024 if ROLL else (q+1)*1024}")
                if t == 15 and q < 7 and ROLL: a(f"v_add_u32 v{VLQ}, 1024, v{VLQ}")
                for i in range(n1 + 2, n2): EX(cur, i)
                PV(t, 0, cur)
                for i in range(n2, 16): EX(cur, i)
        if ROLL and q == 1: a(f"s_sub_u32 s{S_K0}, s{S_K0}, 1\ns_cmp_lg_u32 s{S_K0}, 0\ns_cbranch_scc1 L_qloop")
    stamp(a, 8)
    a(f"s_setprio {OPT['prioT']}\ns_nop 0")
    PV(15, 1, 1)
    a("s_nop 11")
    flush(0 if ROLL else 7 * 4 * PART)
    a.label(red)
    a(f"s_mul_i32 s{S_T}, s{W}, {2*4*PART}\ns_add_u32 s{S_T}, s{S_T}, {LDS_P}")
    a(f"v_lshl_add_u32 v{VL16}, v0, 4, s{S_T}\nv_and_b32 v{VL4}, 31, v0\nv_lshl_add_u32 v{VL4}, v{VL4}, 2, s{S_T}")
    lab = a.newlabel("marked")
    a(f"v_mov_b32 v18, {LDS_C + 4*3}")
    a.label(lab)
    a(f"ds_read_b32 v19, v18")
    lsync(a, 1, 4, 16, 17)
    stamp(a, 3)
    ok = a.newlabel("markok"); lab = a.newlabel("markw")
    a.label(lab)
    a(f"v_readfirstlane_b32 s{S_T}, v19\ns_cmp_ge_u32 s{S_T}, 4\ns_cbranch_scc1 {ok}")
    a(f"ds_read_b32 v19, v18\ns_waitcnt lgkmcnt(0)\ns_branch {lab}")
    a.label(ok)
    R = 64
    for j in range(2):
        for p in range(4):
            b = (j * 4 + p) * PART; r = R + (j * 4 + p) * 12
            a(f"ds_read_b32 v{r+8}, v{VL4} offset:{b+2048}")
        for p in range(4):
            b = (j * 4 + p) * PART; r = R + (j * 4 + p) * 12
            a(f"ds_read_b128 {vr(r,4)}, v{VL16} offset:{b}")
            a(f"ds_read_b128 {vr(r+4,4)}, v{VL16} offset:{b+1024}")
        r0 = R + j * 48
        a(f"s_waitcnt lgkmcnt(8)")
        a(f"v_add_f32 v{r0+8}, v{r0+8}, v{r0+20}\nv_add_f32 v{r0+32}, v{r0+32}, v{r0+44}\nv_add_f32 v{r0+8}, v{r0+8}, v{r0+32}")
        a(f"v_rcp_f32 v{r0+8}, v{r0+8}")
    for j in range(2):
        r0 = R + j * 48
        a("s_waitcnt vmcnt(0)" if j == 0 else "s_waitcnt lgkmcnt(0)")
        a(f"v_mul_f32 v{r0+8}, v{r0+8}, v{6+j}")
        for i in range(8): a(f"v_add_f32 v{r0+i}, v{r0+i}, v{r0+12+i}\nv_add_f32 v{r0+24+i}, v{r0+24+i}, v{r0+36+i}")
        for i in range(8): a(f"v_add_f32 v{r0+i}, v{r0+i}, v{r0+24+i}")
        for i in range(8): a(f"v_mul_f32 v{r0+i}, v{r0+i}, v{r0+8}")
        for i in range(4):
            a(f"v_cvt_pk_bf16_f32 v{r0+12+i}, v{r0+2*i}, v{r0+2*i+1}")
        a(f"buffer_store_dwordx4 {vr(r0+12,4)}, v{VO}, {WSR}, s{S_G} offen offset:{256*j} sc1")
    stamp(a, 4)
    stamp_dump(a)
    a("s_endpgm")
    a.label(slow)
    loop = a.newlabel("slowq"); spin = a.newlabel("slows")
    a("s_waitcnt vmcnt(0)")
    for t in range(NFIX, 16): vfix(t)
    a(f"v_lshlrev_b32 v6, 2, v0\nv_add_u32 v6, {LDS_X + 2048}, v6")
    a(f"s_lshl_b32 s{S_K1}, s{W}, 8\ns_mov_b32 s{S_K0}, 4")
    a.label(loop)
    a(f"ds_read_b128 {vr(QB,4)}, v{VLQ}\nv_add_u32 v{VLQ}, 1024, v{VLQ}")
    zero_o()
    a(f"v_mov_b32 v7, 0xff800000")
    a("s_waitcnt lgkmcnt(0)")
    for t in range(16):
        S(t, 0)
        a("s_nop 12")
        for i in range(0, 16, 2): a(f"v_max3_f32 v7, v7, v{SB[0]+i}, v{SB[0]+i+1}")
    a(f"v_mov_b32 v13, v7\ns_nop 1\nv_permlane32_swap_b32 v7, v13\nv_max_f32 v7, v7, v13")
    a(f"v_add_u32 v13, s{S_K1}, v6\nds_write_b32 v13, v7")
    a(f"v_mov_b32 v14, {LDS_C + 8}\nv_mov_b32 v15, 1\ns_mov_b64 exec, 1\nds_add_u32 v14, v15\ns_mov_b64 exec, -1")
    a.label(spin)
    a(f"ds_read_b32 v15, v14\ns_waitcnt lgkmcnt(0)\nv_readfirstlane_b32 s{S_T}, v15\ns_cmp_lt_u32 s{S_T}, s{S_K0}\ns_cbranch_scc1 {spin}")
    a(f"ds_read2st64_b32 v[14:15], v6 offset0:0 offset1:1\nds_read2st64_b32 v[16:17], v6 offset0:2 offset1:3")
    a("s_waitcnt lgkmcnt(0)")
    a("v_max3_f32 v7, v14, v15, v16\nv_max_f32 v7, v7, v17")
    for i in range(16): a(f"v_sub_f32 v{SB[1]+i}, 0, v7")
    a("s_nop 1")
    for t in range(16):
        S(t, 0, vr(SB[1], 16))
        a("s_nop 12")
        for i in range(16): EX(0, i)
        a("s_nop 1")
        PV(t, 0, 0); PV(t, 1, 0)
    a("s_nop 15")
    flush(0)
    a(f"v_add_u32 v{VL16}, {4*PART}, v{VL16}\nv_add_u32 v{VL4}, {4*PART}, v{VL4}\nv_xor_b32 v6, 1024, v6")
    a(f"s_add_u32 s{S_K0}, s{S_K0}, 4\ns_cmp_le_u32 s{S_K0}, 32\ns_cbranch_scc1 {loop}")
    gl(0, 6); gl(1, 7)
    a(f"s_branch {red}")

def ffn1(a):
    VXR, VWR = 8, 12
    T0, T1, T2 = 5, 6, 7
    lidle = a.newlabel("Fidle"); lend = a.newlabel("s1end")
    a(f"v_bfe_u32 v{T0}, v0, 4, 1\nv_lshlrev_b32 v66, 10, v{T0}\nv_and_b32 v{T0}, 32, v0\nv_lshl_add_u32 v66, v{T0}, 4, v66")
    a(f"v_and_b32 v{T0}, 15, v0\nv_lshl_add_u32 v66, v{T0}, 4, v66")
    a(f"s_lshl_b32 s{S_T}, s{S_A}, 2\ns_add_u32 s{S_T}, s{S_T}, s{W}\ns_lshl_b32 s{S_G}, s{S_T}, 15")
    a(f"s_lshl_b32 s{S_T}, s{S_B}, 11\ns_add_u32 s{S_G}, s{S_G}, s{S_T}\ns_add_u32 s{S_G}, s{S_G}, {WS_OP}")
    def sentinels():
        a("v_mov_b64 v[76:77], -1\nv_mov_b64 v[78:79], -1")
        for j in range(2): a(f"buffer_store_dwordx4 v[76:79], v66, {WSR}, s{S_G} offen offset:{256*j} sc1")
    a(f"s_cmp_ge_u32 s{S_ID}, 224\ns_cbranch_scc1 {lidle}")
    a(f"s_and_b32 s{S_T}, s{W}, 1\ns_lshl_b32 s{S_T}, s{S_T}, 13")
    a(f"v_and_b32 v{T0}, 15, v0\nv_lshrrev_b32 v{T1}, 4, v0\nv_bfe_u32 v{T2}, v0, 1, 3\nv_xor_b32 v{T2}, v{T2}, v{T1}")
    a(f"v_lshlrev_b32 v{T0}, 7, v{T0}\nv_add_u32 v{T0}, s{S_T}, v{T0}\nv_lshl_add_u32 v{VXR}, v{T2}, 4, v{T0}")
    a(f"v_xor_b32 v{T2}, 4, v{T2}\nv_lshl_add_u32 v{VXR+1}, v{T2}, 4, v{T0}")
    a(f"v_bfe_u32 v{T0}, v0, 2, 2\nv_bfe_u32 v{T2}, v0, 4, 1\nv_lshl_add_u32 v16, v{T2}, 3, v{T0}\nv_lshlrev_b32 v16, 8, v16")
    a(f"v_lshrrev_b32 v17, 5, v0\nv_lshl_add_u32 v16, v17, 13, v16\nv_and_b32 v17, 3, v0\nv_lshl_add_u32 v16, v17, 3, v16\nv_add_u32 v16, {WL}, v16")
    a(f"v_lshl_or_b32 v{T0}, v{T2}, 2, v{T0}\ns_and_b32 s{S_T}, s{W}, 2\ns_lshl_b32 s{S_T}, s{S_T}, 1\nv_xor_b32 v{T0}, s{S_T}, v{T0}")
    for jj in range(4):
        a(f"v_xor_b32 v{VWR+jj}, {jj}, v{T0}\nv_lshl_add_u32 v{VWR+jj}, v{VWR+jj}, 5, v16\nv_add_u32 v{68+jj}, 0x8000, v{VWR+jj}")
    kernarg_wait(a)
    def pfm():
        a(f"s_lshl_b32 s{S_T+4}, s{S_ID}, 2\ns_add_u32 s{S_T+4}, s{S_T+4}, s{W}\nv_lshlrev_b32 v80, 4, v0")
        srd(a, R_W0, S_WG, 512 * 3584); srd(a, R_W1, S_WU, 512 * 3584)
        a(f"s_lshl_b32 s{S_T}, s{S_T+4}, 11\ns_mul_i32 s{S_T+1}, s{S_T+4}, 2560")
        for i in range(3): a(f"buffer_load_dwordx4 v[84:87], v80, {rs(R_X)}, s{S_T+1} offen offset:{1024*i}")
        for i in range(2):
            a(f"buffer_load_dwordx4 v[84:87], v80, {rs(R_W0)}, s{S_T} offen offset:{1024*i}\nbuffer_load_dwordx4 v[84:87], v80, {rs(R_W1)}, s{S_T} offen offset:{1024*i}")
    if OPT.get("pfm") == 1: pfm()
    if OPT["pfx"] or OPT["pfw"]:
        a(f"s_lshr_b32 s{S_T+4}, s{S_ID}, 3\ns_lshl_b32 s{S_T+4}, s{S_T+4}, 2\ns_add_u32 s{S_T+4}, s{S_T+4}, s{W}\nv_lshlrev_b32 v80, 4, v0")
        if OPT.get("pfd"): a(f"s_sleep {OPT['pfd']}")
        if OPT["pfx"]:
            a(f"s_and_b32 s{S_T}, s{S_ID}, 1\ns_lshl_b32 s{S_T}, s{S_T}, 20\ns_mul_i32 s{S_T+1}, s{S_T+4}, {9*1024}\ns_add_u32 s{S_T}, s{S_T}, s{S_T+1}")
            for i in range(9):
                a(f"buffer_load_dwordx4 v[84:87], v80, {rs(R_X)}, s{S_T} offen\ns_add_u32 s{S_T}, s{S_T}, 1024")
        if OPT["pfw"]:
            srd(a, R_W0, S_WG, 512 * 3584); srd(a, R_W1, S_WU, 512 * 3584)
            a(f"s_bfe_u32 s{S_T}, s{S_ID}, 0x20001\ns_mul_i32 s{S_T}, s{S_T}, 28\ns_lshr_b32 s{S_T}, s{S_T}, 3\ns_lshl_b32 s{S_T}, s{S_T}, 8")
            a(f"s_mul_i32 s{S_T+1}, s{S_T+4}, 3584\ns_add_u32 s{S_T}, s{S_T}, s{S_T+1}")
            for i in range(5):
                a(f"buffer_load_dwordx4 v[84:87], v80, {rs(R_W0)}, s{S_T} offen\nbuffer_load_dwordx4 v[84:87], v80, {rs(R_W1)}, s{S_T} offen\ns_add_u32 s{S_T}, s{S_T}, {112*3584}")
    finish_tag_ack(a, 64, 65)
    ACC = 128
    FX = (16, 32); FW = 80
    acc_ = lambda jj, mat, p: ACC + 32 * jj + 16 * mat + 4 * p
    lq = []
    def lds(x, tag): a(x); lq.append(tag)
    def lwait(tags):
        idx = max((i for i, t in enumerate(lq) if t in tags), default=-1)
        n = len(lq) - 1 - idx
        del lq[:idx + 1]
        a(f"s_waitcnt lgkmcnt({min(n, 15)})")
    def rdX(J): return [(f"ds_read_b128 {vr(FX[J&1]+4*p,4)}, v{VXR + J%2} offset:{XL + ((J//2)%3)*16384 + p*2048}", ("X", J)) for p in range(4)]
    def rdW(J, fi):
        sl = (2 * J) % OPT["nw"]; wr = VWR if sl < 4 else 68; so = sl if sl < 4 else sl - 4
        return [(f"ds_read_b64_tr_b16 {vr(FW+4*fi+2*hf,2)}, v{wr+fi//2} offset:{so*8192 + (fi%2)*4096 + hf*1024}", ("W", J, fi)) for hf in range(2)]
    a("s_barrier")
    stamp(a, 1)
    for x in rdX(0) + [y for fi in range(8) for y in rdW(0, fi)][:10]: lds(*x)
    lwait({("X", 0), ("W", 0, 0)})
    for x in [y for fi in range(5, 8) for y in rdW(0, fi)]: lds(*x)
    LB = OPT["lastbar"]
    c0 = -2.0 * LOG2E * math.sqrt(2.0 / math.pi); c1 = c0 * 0.044715
    for J in range(16):
        if OPT.get("fst") and J in (2, 4, 8, 12): stamp(a, {2: 5, 4: 6, 8: 7, 12: 8}[J], True)
        if J == 4:
            a("s_waitcnt vmcnt(0)")
            if OPT.get("st8"): a("v_and_b32 v3, 15, v0\nv_lshlrev_b32 v3, 4, v3\nv_and_b32 v2, 32, v0\nv_lshl_add_u32 v3, v2, 4, v3\nv_and_b32 v2, 16, v0\nv_lshrrev_b32 v2, 1, v2\nv_add_u32 v3, v3, v2")
            a(f"v_lshlrev_b32 v2, 4, v0\nv_mov_b32 v4, {f2u(c0):#x}\nv_mov_b32 v5, {f2u(c0):#x}")
            a(f"s_mov_b32 s{S_K2}, {f2u(c1):#x}\ns_mov_b32 s{S_K2+1}, {f2u(c1):#x}")
            a(f"s_lshl_b32 s{S_T}, s{S_A}, 2\ns_and_b32 s{S_T+1}, s{W}, 1\ns_lshl_b32 s{S_T+1}, s{S_T+1}, 1\ns_add_u32 s{S_T}, s{S_T}, s{S_T+1}")
            a(f"s_mul_i32 s{S_T}, s{S_T}, 112\ns_lshl_b32 s{S_T+1}, s{S_B}, 3\ns_add_u32 s{S_T}, s{S_T}, s{S_T+1}")
            a(f"s_and_b32 s{S_T+1}, s{W}, 2\ns_lshl_b32 s{S_T+1}, s{S_T+1}, 1\ns_add_u32 s{S_T}, s{S_T}, s{S_T+1}\ns_lshl_b32 s{S_T}, s{S_T}, 10")
            a(f"s_add_u32 s{S_E}, s{S_T}, {WS_HP}\ns_add_u32 s{S_F}, s{S_E}, {112*1024}")
        if J in (OPT["look"], OPT["look"] + 2):
            lab = a.newlabel("nolook")
            a(f"s_cmp_lg_u32 s{W}, 0\ns_cbranch_scc1 {lab}")
            if J == OPT["look"]:
                a(f"v_lshlrev_b32 v72, 3, v0\ns_mov_b32 s{S_K0}, {WS_RECK}")
                a(f"buffer_load_dwordx2 v[74:75], v72, {WSR}, s{S_K0} offen sc1\nbuffer_load_dwordx2 v[76:77], v72, {WSR}, s{S_K0} offen offset:512 sc1")
            else:
                a(f"s_waitcnt vmcnt(0)\nv_cmp_ne_u32 vcc, s{S_TAG}, v74\nv_cmp_ne_u32 s[{S_T+6}:{S_T+7}], s{S_TAG}, v76")
                wave_max(a, 75)
                a(f"s_or_b64 vcc, vcc, s[{S_T+6}:{S_T+7}]\ns_cmp_eq_u64 vcc, 0\ns_cselect_b32 s{S_T}, 1, 0")
                a(f"v_mov_b32 v76, s{S_T}\nv_mov_b32 v72, {LDS_X + 1024}\ns_mov_b32 exec_lo, 0\ns_mov_b32 exec_hi, 0x80000000")
                a(f"ds_write2_b32 v72, v75, v76 offset0:0 offset1:1\ns_mov_b64 exec, -1\ns_waitcnt lgkmcnt(0)")
            a.label(lab)
        BP = OPT["barpos"]
        if J <= LB and BP == 0: a("s_barrier")
        pend = rdX(J + 1) if J < 15 else []
        for fi in range(8):
            if J <= LB and BP and fi == BP: a("s_barrier")
            lwait({("W", J, fi), ("X", J)})
            for p in range(4):
                ac = acc_(fi // 2, fi % 2, p)
                a(f"v_mfma_f32_16x16x32_bf16 {vr(ac,4)}, {vr(FW+4*fi,4)}, {vr(FX[J&1]+4*p,4)}, {'0' if J == 0 else vr(ac,4)}")
                if pend and (p != 3 or BP) and fi >= BP: lds(*pend.pop(0))
            if J < 15: pend += rdW(J + 1, fi)
        while pend: lds(*pend.pop(0))
        if J == 14: a(f"v_mov_b32 v6, {LDS_C + 4*10}\nv_mov_b32 v7, 1\ns_mov_b64 exec, 1\nds_add_u32 v6, v7\ns_mov_b64 exec, -1"); lq.append(("c", 0))
    stamp(a, 2)
    a(f"s_setprio {OPT['prioG']}")
    a("s_nop 7")
    for jj in range(4):
        G_ = ACC + 32 * jj; TT = 16 + 16 * (jj & 1)
        P2 = [(G_ + i, TT + i) for i in range(0, 16, 2)]
        for g_, t_ in P2: a(f"v_pk_mul_f32 {vr(t_,2)}, {vr(g_,2)}, {vr(g_,2)}")
        for g_, t_ in P2: a(f"v_pk_fma_f32 {vr(t_,2)}, {vr(t_,2)}, s[{S_K2}:{S_K2+1}], v[4:5]")
        for g_, t_ in P2: a(f"v_pk_mul_f32 {vr(t_,2)}, {vr(t_,2)}, {vr(g_,2)}")
        for g_, t_ in P2: a(f"v_exp_f32 v{t_}, v{t_}\nv_exp_f32 v{t_+1}, v{t_+1}")
        for g_, t_ in P2: a(f"v_pk_mul_f32 {vr(g_,2)}, {vr(g_,2)}, {vr(g_+16,2)}")
        for g_, t_ in P2: a(f"v_pk_add_f32 {vr(t_,2)}, {vr(t_,2)}, 1.0 op_sel_hi:[1,0]")
        for g_, t_ in P2: a(f"v_rcp_f32 v{t_}, v{t_}\nv_rcp_f32 v{t_+1}, v{t_+1}")
        a("s_nop 0")
        for g_, t_ in P2: a(f"v_pk_mul_f32 {vr(g_,2)}, {vr(g_,2)}, {vr(t_,2)}")
        for i in range(8): a(f"v_cvt_pk_bf16_f32 v{G_+16+i}, v{G_+2*i}, v{G_+2*i+1}")
        if OPT.get("st8"):
            for p in range(4):
                a(f"buffer_store_dwordx2 {vr(G_+16+2*p,2)}, v3, {WSR}, s{S_E if p < 2 else S_F} offen offset:{jj*1024 + (p&1)*256} sc1")
        else:
            for m in range(2):
                h0 = G_ + 16 + 4 * m
                if m == 0: a("s_nop 0")
                a(f"v_permlane16_swap_b32 v{h0}, v{h0+2}\nv_permlane16_swap_b32 v{h0+1}, v{h0+3}")
                a(f"buffer_store_dwordx4 {vr(h0,4)}, v2, {WSR}, s{S_E if m == 0 else S_F} offen offset:{jj*1024} sc1")
    if OPT["sentat"] > 31: sentinels()
    a(f"s_lshl_b32 s{S_T}, s{S_A}, 11\ns_lshl_b32 s{S_T+1}, s{S_B}, 7\ns_add_u32 s{S_T}, s{S_T}, s{S_T+1}\ns_add_u32 s{S_T}, s{S_T}, {WS_FLH}")
    stamp(a, 3)
    if OPT.get("lowp"): a("s_setprio 0")
    a("s_waitcnt vmcnt(0)")
    lsync(a, 3, 4, 6, 7, OPT['lsl'])
    lab = a.newlabel("ringdead")
    a(f"v_mov_b32 v6, {LDS_C + 4*10}")
    a.label(lab)
    a(f"ds_read_b32 v7, v6\ns_waitcnt lgkmcnt(0)\nv_readfirstlane_b32 s{S_T+10}, v7\ns_cmp_lt_u32 s{S_T+10}, 8\ns_cbranch_scc1 {lab}")
    stamp(a, 4)
    a(f"s_cmp_lg_u32 s{W}, 0\ns_cbranch_scc1 {lend}")
    a(f"s_mov_b64 exec, 1\nbuffer_store_dword v64, v65, {WSR}, s{S_T} offen sc1\ns_mov_b64 exec, -1")
    a(f"s_branch {lend}")
    a.label(lidle)
    VER, VGR, VLIN = 12, 13, 4
    a(f"s_lshl_b32 s{S_T}, s{W}, 12")
    x_read_addr(a, VXR, T0, T1, T2, S_T)
    a(f"v_bfe_u32 v{T0}, v0, 2, 2\nv_lshl_add_u32 v{T0}, v{T1}, 3, v{T0}\nv_and_b32 v{T2}, 3, v0\nv_lshlrev_b32 v{T2}, 3, v{T2}")
    a(f"v_lshl_add_u32 v{VER}, v{T0}, 5, v{T2}\nv_add_u32 v{VER}, {IEL}, v{VER}\nv_lshlrev_b32 v{VGR}, 4, v{T1}\nv_add_u32 v{VGR}, {IGL}, v{VGR}")
    a(f"v_lshlrev_b32 v{VLIN}, 4, v0\ns_lshl_b32 s{S_F}, s{S_A}, 2\ns_add_u32 s{S_F}, s{S_F}, s{W}   ; tt")
    kernarg_wait(a)
    finish_tag_ack(a, 64, 65)
    lv = a.newlabel("FV"); pub = a.newlabel("Fpub")
    ACK, ACG, XF, EF, GF, P = 32, 48, 16, 24, 88, 80
    sentinels()
    a(f"s_cmp_eq_u32 s{S_B}, 15\ns_cbranch_scc1 {lv}")
    for v in "KV":
        if v == "V": a.label(lv)
        def reads(j):
            b = j & 1; u = j // 4
            a(f"ds_read_b128 {vr(XF+4*b,4)}, v{VXR + j%4} offset:{(u%4)*16384}")
            a(f"ds_read_b64_tr_b16 {vr(EF+4*b,2)}, v{VER} offset:{j*512}\nds_read_b64_tr_b16 {vr(EF+4*b+2,2)}, v{VER} offset:{j*512 + 128}")
            if v == "K": a(f"ds_read_b128 {vr(GF+4*b,4)}, v{VGR} offset:{j*32}")
        for u in range(8):
            a("s_barrier")
            reads(4 * u)
            for ks in range(4):
                j = 4 * u + ks; b = j & 1
                if ks < 3: reads(j + 1); a(f"s_waitcnt lgkmcnt({4 if v == 'K' else 3})")
                else: a("s_waitcnt lgkmcnt(0)")
                cc = (lambda r: "0") if j == 0 else (lambda r: vr(r, 16))
                if v == "K":
                    a(f"v_mfma_f32_32x32x16_bf16 {vr(ACK,16)}, {vr(EF+4*b,4)}, {vr(XF+4*b,4)}, {cc(ACK)}")
                    a(f"v_mfma_f32_32x32x16_bf16 {vr(ACG,16)}, {vr(GF+4*b,4)}, {vr(XF+4*b,4)}, {cc(ACG)}")
                else:
                    a(f"v_mfma_f32_32x32x16_bf16 {vr(ACK,16)}, {vr(XF+4*b,4)}, {vr(EF+4*b,4)}, {cc(ACK)}")
        stamp(a, 2)
        a("s_nop 15")
        if v == "K":
            for j in range(8): a(f"v_mul_f32 v{ACK+j}, {f2u(0.25*LOG2E):#x}, v{ACK+j}")
            for j in range(4): a(f"v_cvt_pk_bf16_f32 v{P+j}, v{ACK+2*j}, v{ACK+2*j+1}")
            a(f"v_and_b32 v{T1}, 0x33, v0\nv_bfe_u32 v{T2}, v0, 2, 1\nv_lshl_or_b32 v{T1}, v{T2}, 3, v{T1}")
            a(f"v_bfe_u32 v{T2}, v0, 3, 1\nv_lshl_or_b32 v{T1}, v{T2}, 2, v{T1}\nv_lshlrev_b32 v{T1}, 4, v{T1}")
            a(f"s_lshl_b32 s{S_T}, s{S_F}, 10\ns_add_u32 s{S_T}, s{S_T}, {WS_KP}")
            a(f"buffer_store_dwordx4 {vr(P,4)}, v{T1}, {WSR}, s{S_T} offen sc1")
            a(f"v_mul_f32 v20, {f2u(-LOG2E):#x}, v{ACG}\nv_exp_f32 v20, v20\nv_and_b32 v21, 31, v0")
            a(f"v_add_f32 v20, 1.0, v20\nv_rcp_f32 v20, v20\nv_lshlrev_b32 v21, 2, v21")
            a(f"s_lshl_b32 s{S_T}, s{S_F}, 7\ns_add_u32 s{S_T}, s{S_T}, {WS_G}")
            a(f"buffer_store_dword v20, v21, {WSR}, s{S_T} offen sc1")
            a(f"v_mul_f32 v{T0}, v{ACK}, v{ACK}")
            for j in range(1, 8): a(f"v_fmac_f32 v{T0}, v{ACK+j}, v{ACK+j}")
            a(f"v_mov_b32 v67, v{T0}\ns_nop 1\nv_permlane32_swap_b32 v{T0}, v67\nv_add_f32 v67, v{T0}, v67")
            wave_max(a, 67)
            a(f"s_mov_b32 s{S_T+1}, {WS_RECK}")
            a(f"s_branch {pub}")
        else:
            for j in range(8): a(f"v_cvt_pk_bf16_f32 v{P+j}, v{ACK+2*j}, v{ACK+2*j+1}")
            a(f"v_and_b32 v{T1}, 16, v0\nv_cmp_ne_u32 vcc, 0, v{T1}")
            a(f"s_lshl_b32 s{S_T}, s{S_F}, 10\ns_add_u32 s{S_T}, s{S_T}, {WS_VP}")
            for j in range(4): a(f"v_cndmask_b32 v{P+j}, v{P+j}, v{P+4+j}, vcc")
            a(f"buffer_store_dwordx4 {vr(P,4)}, v{VLIN}, {WSR}, s{S_T} offen sc1")
            a(f"s_mov_b32 s{S_T+1}, {WS_RECK + 512}\nv_mov_b32 v67, 0")
    a.label(pub)
    a(f"s_lshl_b32 s{S_T}, s{S_F}, 3\ns_add_u32 s{S_T+1}, s{S_T+1}, s{S_T}\nv_mov_b32 v66, s{S_TAG}")
    a("s_mov_b32 exec_lo, 0\ns_mov_b32 exec_hi, 0x80000000\ns_waitcnt vmcnt(0)")
    stamp(a, 3)
    a(f"buffer_store_dwordx2 v[66:67], v65, {WSR}, s{S_T+1} offen sc1\ns_mov_b64 exec, 1")
    a(f"v_mov_b32 v6, {LDS_C + 4*3}\nv_mov_b32 v7, 1\nds_add_u32 v6, v7\ns_mov_b64 exec, -1")
    a("s_barrier")
    epoch_update(a)
    a.label(lend)

def epoch_update(a):
    lab = a.newlabel("noepoch")
    a(f"s_cmp_lg_u32 s{S_ID}, 224\ns_cbranch_scc1 {lab}\ns_cmp_lg_u32 s{W}, 1\ns_cbranch_scc1 {lab}")
    a(f"v_lshlrev_b32 v2, 4, v0\ns_mov_b32 s{S_T+6}, {WS_ACK}\ns_mov_b32 s{S_T+7}, {WS_ACK+4096}")
    loads, regs = [], []
    for i in range(8):
        loads.append(f"buffer_load_dwordx4 {vr(16+4*i,4)}, v2, {WSR}, s{S_T+6+i//4} offen offset:{(i%4)*1024} sc1")
        regs += [16 + 4*i + j for j in range(4)]
    poll(a, loads, regs, sleep=64)
    a(f"s_mov_b64 exec, 1\nbuffer_store_dword v64, v65, {WSR}, 0 offen offset:{WS_EPOCH} sc1\ns_mov_b64 exec, -1")
    a.label(lab)

def ffn2(a):
    a(f"s_and_b32 s{S_T}, s{S_ID}, 1\ns_lshl_b32 s{S_T}, s{S_T}, 4\ns_and_b32 s{S_T+1}, s{S_ID}, 2\ns_lshl_b32 s{S_T+1}, s{S_T+1}, 2")
    a(f"s_add_u32 s{S_T}, s{S_T}, s{S_T+1}\ns_bfe_u32 s{S_T+1}, s{S_ID}, 0x30003\ns_add_u32 s{S_A}, s{S_T}, s{S_T+1}   ; tb64")
    a(f"s_and_b32 s{S_T}, s{S_ID}, 4\ns_lshr_b32 s{S_T+1}, s{S_ID}, 6\ns_add_u32 s{S_B}, s{S_T}, s{S_T+1}   ; cb")
    srd(a, R_W0, S_WD, 1792 * 1024); srd(a, R_W1, S_WO, 512 * 1024); srd(a, R_OUT, S_OUT, 2048 * 1024)
    VWS, VLIN, VR0, VR1, VG = 2, 3, 4, 5, 6
    T0, T1, T2 = 8, 9, 10
    a(f"v_lshrrev_b32 v{T0}, 3, v0\nv_and_b32 v{T1}, 7, v0\nv_bfe_u32 v{T2}, v0, 4, 1\nv_lshlrev_b32 v{T2}, 2, v{T2}")
    a(f"v_xor_b32 v{VWS}, v{T2}, v{T1}\nv_lshlrev_b32 v{VWS}, 4, v{VWS}\nv_lshl_add_u32 v{VWS}, v{T0}, 10, v{VWS}")
    a(f"v_lshlrev_b32 v{VLIN}, 4, v0")
    a(f"v_lshrrev_b32 v{T1}, 5, v0\nv_bfe_u32 v{T0}, v0, 2, 2\nv_lshl_add_u32 v{T0}, v{T1}, 2, v{T0}\nv_and_b32 v{T2}, 3, v0")
    a(f"v_lshlrev_b32 v{T2}, 3, v{T2}\nv_lshl_add_u32 v{VR0}, v{T0}, 7, v{T2}\nv_bfe_u32 v{T0}, v0, 4, 1\nv_bfe_u32 v{T2}, v0, 3, 1")
    a(f"v_lshl_or_b32 v{T0}, v{T2}, 1, v{T0}\nv_xor_b32 v{T2}, 2, v{T0}")
    a(f"v_lshl_add_u32 v{VR1}, v{T2}, 5, v{VR0}\nv_lshl_add_u32 v{VR0}, v{T0}, 5, v{VR0}")
    a(f"s_mul_i32 s{S_M0B}, s{W}, 20480")
    a(f"v_add_u32 v{VR0}, s{S_M0B}, v{VR0}\nv_add_u32 v{VR1}, s{S_M0B}, v{VR1}")
    a(f"v_lshlrev_b32 v{T1}, 9, v{T1}\nv_add_u32 v14, v{VR0}, v{T1}\nv_add_u32 v15, v{VR1}, v{T1}")
    a(f"s_lshl_b32 s{S_T}, s{S_B}, 7\ns_lshl_b32 s{S_C}, s{W}, 14\ns_add_u32 s{S_C}, s{S_C}, s{S_T}")
    a(f"s_mul_i32 s{S_D}, s{S_A}, {2*112*1024}\ns_lshl_b32 s{S_T}, s{W}, 10\ns_add_u32 s{S_D}, s{S_D}, s{S_T}")
    a(f"s_add_u32 s{S_D}, s{S_D}, {WS_HP}\ns_add_u32 s{S_E}, s{S_D}, {112*1024}")
    a(f"s_lshl_b32 s{S_T}, s{S_B}, 1\ns_add_u32 s{S_T}, s{S_T}, s{S_A}\ns_and_b32 s{S_T}, s{S_T}, {OPT['rot2']}")
    a(f"s_mul_i32 s{S_T}, s{S_T}, 7\ns_lshr_b32 s{S_T}, s{S_T}, 1\ns_lshl_b32 s{S_K2}, s{S_T}, 16\ns_lshl_b32 s{S_K3}, s{S_T}, 12")
    ACC, HF, FW = 64, 128, (16, 24)
    NS, D = 28, 8
    q = []
    def issueW(n):
        a(f"s_add_u32 s{S_T+1}, s{S_C}, s{S_K2}")
        for p in range(2):
            dma(a, VWS, R_W0, S_T, S_T + 1, p * 8192, (n % D) * 2048 + p * 1024); q.append(("W", n))
        a(f"s_add_u32 s{S_K2}, s{S_K2}, 65536\ns_cmp_eq_u32 s{S_K2}, {28*65536}\ns_cselect_b32 s{S_K2}, 0, s{S_K2}")
    def issueWo(n):
        for p in range(2):
            dma(a, VWS, R_W1, S_T, S_G, (n - NS) * 16384 + p * 8192, (n % D) * 2048 + p * 1024); q.append(("W", n))
    def issueH(n):
        a(f"s_add_u32 s{S_T}, s{S_D}, s{S_K3}\ns_add_u32 s{S_T+1}, s{S_E}, s{S_K3}")
        a(f"s_add_u32 s{S_K3}, s{S_K3}, 4096\ns_cmp_eq_u32 s{S_K3}, {28*4096}\ns_cselect_b32 s{S_K3}, 0, s{S_K3}")
        a(f"buffer_load_dwordx4 {vr(HF+(n%D)*8,4)}, v{VLIN}, {WSR}, s{S_T} offen{SC()}"); q.append(("H", n))
        a(f"buffer_load_dwordx4 {vr(HF+(n%D)*8+4,4)}, v{VLIN}, {WSR}, s{S_T+1} offen{SC()}"); q.append(("H", n))
    def waitfor(tags):
        idx = max((i for i, t in enumerate(q) if t in tags), default=-1)
        n = len(q) - 1 - idx
        del q[:idx + 1]
        a(f"s_waitcnt vmcnt({n})")
    def rd_list(n):
        b = n & 1
        return [f"ds_read_b64_tr_b16 {vr(FW[b]+4*ct+2*hf,2)}, v{14+ct} offset:{(n%D)*2048 + hf*512}" for ct in range(2) for hf in range(2)]
    a(f"s_lshl_b32 s{S_G}, s{W}, 17\ns_lshl_b32 s{S_T}, s{S_B}, 7\ns_add_u32 s{S_G}, s{S_G}, s{S_T}")
    for n in range(OPT.get("wpre", 2)): issueW(n)
    lab = a.newlabel("nopoll")
    a(f"s_cmp_lg_u32 s{W}, 0\ns_cbranch_scc1 {lab}")
    a(f"s_lshr_b32 s{S_T+4}, s{S_A}, 1\ns_lshl_b32 s{S_T+4}, s{S_T+4}, 11\ns_add_u32 s{S_T+4}, s{S_T+4}, {WS_FLH}")
    a(f"s_lshl_b32 s{S_T+5}, s{S_A}, 4\ns_add_u32 s{S_T+5}, s{S_T+5}, {WS_RECK}")
    a(f"v_lshlrev_b32 v11, 7, v0\nv_add_u32 v11, s{S_T+4}, v11\nv_and_b32 v12, 1, v0\nv_lshlrev_b32 v12, 3, v12\nv_add_u32 v12, s{S_T+5}, v12")
    a(f"v_and_b32 v13, 32, v0\nv_lshl_add_u32 v12, v13, 4, v12")
    a(f"v_cmp_gt_u32 vcc, 14, v0\ns_nop 1\nv_cndmask_b32 v11, v12, v11, vcc")
    poll(a, [f"buffer_load_dword v13, v11, {WSR}, 0 offen sc1"], [13], sleep=12)
    a.label(lab)
    a("s_waitcnt vmcnt(0)")
    lsync(a, 4, 4, 11, 12, 4 * OPT['lsl'])
    q.clear()
    stamp(a, 5)
    a(f"s_setprio {OPT['prioD']}")
    for n in range(D):
        if n >= OPT.get("wpre", 2): issueW(n)
        issueH(n)
    a(f"s_lshl_b32 s{S_T}, s{S_A}, 8\ns_add_u32 s{S_T}, s{S_T}, {WS_G}\nv_and_b32 v{T0}, 31, v0\nv_lshlrev_b32 v{T0}, 2, v{T0}")
    for m in range(2):
        a(f"buffer_load_dword v{VG+m}, v{T0}, {WSR}, s{S_T} offen offset:{128*m}{SC()}"); q.append(("G", 0))
    waitfor({("W", 0)})
    for l in rd_list(0): a(l)
    def step(n, bsrc, extra=None):
        b = n & 1
        rl = rd_list(n + 1) if n + 1 < NS + 8 else []
        for k in range(4):
            ct, m = k // 2, k % 2
            acc = ACC + 16 * k
            c = "0" if n == 0 else vr(acc, 16)
            a(f"v_mfma_f32_32x32x16_bf16 {vr(acc,16)}, {vr(FW[b]+4*ct,4)}, {vr(bsrc+4*m,4)}, {c}")
            for _ in range(2):
                if rl: a(rl.pop(0))
            if k == 2 and extra: extra()
            if OPT.get("space") and k != 2: a(f"s_nop {OPT['space']}")
    a(f"s_lshl_b32 s{S_F}, s{S_A}, 16\ns_lshl_b32 s{S_T}, s{W}, 13\ns_add_u32 s{S_F}, s{S_F}, s{S_T}\ns_add_u32 s{S_F}, s{S_F}, {WS_OP}")
    a(f"v_and_b32 v11, 3, v0\nv_lshlrev_b32 v11, 11, v11\nv_and_b32 v12, 4, v0\nv_lshl_add_u32 v11, v12, 13, v11")
    a(f"v_lshl_add_u32 v{T0}, v0, 4, s{S_M0B}")
    a(f"v_lshlrev_b32 v{T1}, 4, v0\ns_lshl_b32 s{S_T}, s{W}, 12\nv_add_u32 v{T1}, s{S_T}, v{T1}")
    a(f"v_and_b32 v{T2}, 31, v0\nv_lshlrev_b32 v{T2}, 10, v{T2}\nv_and_b32 v12, 32, v0\nv_lshrrev_b32 v12, 1, v12\nv_add_u32 v{T2}, v{T2}, v12")
    a(f"s_lshl_b32 s{S_K0}, s{S_A}, 16\ns_lshl_b32 s{S_T+1}, s{S_B}, 7\ns_add_u32 s{S_K0}, s{S_K0}, s{S_T+1}")
    a(f"s_and_b32 s{S_T+1}, s{W}, 1\ns_lshl_b32 s{S_T+1}, s{S_T+1}, 15\ns_add_u32 s{S_K0}, s{S_K0}, s{S_T+1}")
    a(f"s_and_b32 s{S_T+1}, s{W}, 2\ns_lshl_b32 s{S_T+1}, s{S_T+1}, 5\ns_add_u32 s{S_K0}, s{S_K0}, s{S_T+1}")
    HOLD = OPT["hold"]; NF = NS - HOLD; R_ = HOLD - 8
    assert 8 <= HOLD <= 16
    WX, HX, NSL = 192, 32, 10
    def mm(n, wsrc, bsrc, rl=(), extra=None, dst=None, src=None):
        rl = list(rl)
        for k in range(4):
            ct, m = k // 2, k % 2
            acc = ACC + 16 * k
            d_ = (dst or ACC) + 16 * k; c_ = (src or dst or ACC) + 16 * k
            a(f"v_mfma_f32_32x32x16_bf16 {vr(d_,16)}, {vr(wsrc+4*ct,4)}, {vr(bsrc+4*m,4)}, {'0' if n == 0 else vr(c_,16)}")
            for _ in range(2):
                if rl: a(rl.pop(0))
            if k == 2 and extra: extra()
    def rd(dst, slot, wo=False): return [f"ds_read_b64_tr_b16 {vr(dst+4*ct+2*hf,2)}, v{(VR0,VR1)[ct] if wo else 14+ct} offset:{slot*2048 + hf*(1024 if wo else 512)}" for ct in range(2) for hf in range(2)]
    def wo_dma(j, slot):
        for p in range(2): dma(a, VWS, R_W1, S_T, S_G, j * 16384 + p * 8192, slot * 2048 + p * 1024); q.append(("O", j))
    def h_load(dst, tag):
        a(f"s_add_u32 s{S_T}, s{S_D}, s{S_K3}\ns_add_u32 s{S_T+1}, s{S_E}, s{S_K3}")
        a(f"s_add_u32 s{S_K3}, s{S_K3}, 4096\ns_cmp_eq_u32 s{S_K3}, {28*4096}\ns_cselect_b32 s{S_K3}, 0, s{S_K3}")
        a(f"buffer_load_dwordx4 {vr(dst,4)}, v{VLIN}, {WSR}, s{S_T} offen{SC()}\nbuffer_load_dwordx4 {vr(dst+4,4)}, v{VLIN}, {WSR}, s{S_T+1} offen{SC()}")
        q.append(tag); q.append(tag)
    for n in range(NF):
        waitfor({("H", n), ("W", n + 1)})
        a("s_waitcnt lgkmcnt(0)")
        mm(n, FW[n & 1], HF + (n % D) * 8, rd(FW[(n + 1) & 1], (n + 1) % D) if n + 1 < NF else [], lambda: issueW(n + D))
        issueH(n + D)
    a("s_waitcnt vmcnt(0)"); q.clear()
    for i in range(8):
        for l in rd(WX + 8 * i, (NF + i) % D): a(l)
        if i % 3 == 2: a("s_waitcnt lgkmcnt(4)")
    a("s_waitcnt lgkmcnt(0)")
    for i in range(R_):
        a(f"s_add_u32 s{S_T+1}, s{S_C}, s{S_K2}")
        for p in range(2): dma(a, VWS, R_W0, S_T, S_T + 1, p * 8192, i * 2048 + p * 1024)
        a(f"s_add_u32 s{S_K2}, s{S_K2}, 65536\ns_cmp_eq_u32 s{S_K2}, {28*65536}\ns_cselect_b32 s{S_K2}, 0, s{S_K2}")
        if i < 4: h_load(HX + 8 * i, ("h", i))
    NPRE = min(8, NSL - R_)
    oslot = lambda j: R_ + j if j < NPRE else j - NPRE
    for j in range(NPRE): wo_dma(j, oslot(j))
    a("s_waitcnt vmcnt(0)"); q.clear()
    A1 = list(range(min(R_, 4))); A2 = list(range(4, R_))
    ringseq = A1 + A2 + [oslot(0)]
    for l in rd(FW[0], ringseq[0], R_ == 0): a(l)
    stamp(a, 6)
    lab = a.newlabel("hold")
    a(f"v_mov_b32 v12, {LDS_C + 4*1}")
    a.label(lab)
    a(f"s_sleep {OPT.get('hsl', 2)}\nds_read_b32 v13, v12\ns_waitcnt lgkmcnt(0)\nv_readfirstlane_b32 s{S_T+10}, v13\ns_cmp_lt_u32 s{S_T+10}, {OPT.get('holdn', 1)}\ns_cbranch_scc1 {lab}")
    if OPT.get("dbgat") == 11: a("s_memrealtime s[8:9]")
    a(f"s_setprio {OPT['prioG']}")
    def free_slot(i):
        if NPRE + i < 8: wo_dma(NPRE + i, i)
    for i in A1:
        a("s_waitcnt lgkmcnt(0)")
        mm(1, FW[i & 1], HX + 8 * i, rd(FW[(i + 1) & 1], ringseq[i + 1], i + 1 == R_))
        if i + 4 < R_: h_load(HX + 8 * i, ("h", i + 4))
    for i in range(8): mm(1, WX + 8 * i, HF + ((NF + i) % D) * 8, extra=(lambda: free_slot(i)) if i in A1 else None)
    for i in A2:
        waitfor({("h", i)})
        a("s_waitcnt lgkmcnt(0)")
        mm(1, FW[i & 1], HX + 8 * (i - 4), rd(FW[(i + 1) & 1], ringseq[i + 1], i + 1 == R_), lambda: free_slot(i))
    a(f"v_sub_f32 v{VG}, 1.0, v{VG}\nv_sub_f32 v{VG+1}, 1.0, v{VG+1}")
    a(f"s_add_u32 s{S_D}, s{S_F}, 4096\ns_add_u32 s{S_E}, s{S_F}, 32768\ns_add_u32 s{S_C}, s{S_E}, 4096")
    a("s_nop 7")
    for k in range(4):
        for i in range(0, 16, 2):
            sel = "op_sel:[0,0] op_sel_hi:[1,0]" if k % 2 == 0 else "op_sel:[0,1] op_sel_hi:[1,1]"
            a(f"v_pk_mul_f32 {vr(ACC+16*k+i,2)}, {vr(ACC+16*k+i,2)}, {vr(VG,2)} {sel}")
    stamp(a, 7)
    again = a.newlabel("oagain"); ok = a.newlabel("ook"); fin = a.newlabel("ofin")
    a(f"s_mov_b32 s{S_T+10}, 0x40000")
    a.label(again)
    a(f"buffer_load_dword v13, v11, {WSR}, s{S_F} offen offset:2044 sc1")
    a(f"s_sub_u32 s{S_T+10}, s{S_T+10}, 1")
    a(f"s_waitcnt vmcnt(0)\nv_cmp_eq_u32 vcc, -1, v13\ns_cbranch_vccz {ok}")
    a(f"s_mov_b64 exec, vcc\n{'s_sleep 1' if OPT['wsl'] else 's_nop 0'}\ns_cmp_gt_i32 s{S_T+10}, 0\ns_cbranch_scc1 {again}")
    a.label(ok)
    a("s_mov_b64 exec, -1")
    q.clear()
    stamp(a, 8)
    for j in range(8):
        for m in range(2):
            sreg = (S_F, S_E, S_D, S_C)[m + 2 * (j // 4)]
            a(f"buffer_load_dwordx4 {vr(HF+8*j+4*m,4)}, v{VLIN}, {WSR}, s{sreg} offen offset:{(j%4)*1024} sc1")
    a("v_mov_b32 v12, 0")
    for j in range(8):
        a(f"s_waitcnt vmcnt({14 - 2*j}) lgkmcnt(0)")
        chk = [f"v_max3_u32 v12, v12, v{HF+8*j+2*i}, v{HF+8*j+2*i+1}" for i in range(4)]
        rl = rd(FW[(R_ + j + 1) & 1], oslot(j + 1), True) if j < 7 else []
        mm(1, FW[(R_ + j) & 1], HF + 8 * j, [x for p in zip(rl or chk, chk) for x in p] if rl else chk, dst=WX, src=ACC if j == 0 else WX)
    a(f"v_cmp_eq_u32 vcc, -1, v12\ns_cbranch_vccz {fin}")
    a(f"s_cmp_le_i32 s{S_T+10}, 0\ns_cbranch_scc1 {fin}")
    for l in rd(FW[R_ & 1], oslot(0), True): a(l)
    a(f"s_branch {again}")
    a.label(fin)
    stamp(a, 9)
    RB = 128
    for w in range(4):
        lab = a.newlabel("red")
        if w < 3: a(f"s_cmp_lg_u32 s{W}, {w}\ns_cbranch_scc1 {lab}")
        a("s_nop 7")
        others = [d for d in range(4) if d != w]
        for d in others:
            for i in range(4): a(f"ds_write_b128 v{T0}, {vr(WX+16*d+4*i,4)} offset:{d*4096 + i*1024}")
        if OPT["fbar"]: a("s_waitcnt lgkmcnt(0)\ns_barrier")
        else: lsync(a, 5, 4, 11, 12)
        for k, d in enumerate(others):
            for i in range(4): a(f"ds_read_b128 {vr(RB+16*k+4*i,4)}, v{T1} offset:{d*20480 + i*1024}")
        own = WX + 16 * w
        for k in range(3):
            a(f"s_waitcnt lgkmcnt({8 - 4*k})")
            for i in range(0, 16, 2): a(f"v_pk_add_f32 {vr(own+i,2)}, {vr(own+i,2)}, {vr(RB+16*k+i,2)}")
        for i in range(8): a(f"v_cvt_pk_bf16_f32 v{32+i}, v{own+2*i}, v{own+2*i+1}")
        if w < 3:
            a("s_branch L_out"); a.label(lab)
    a.label("L_out")
    a("s_nop 1")
    a("v_permlane32_swap_b32 v32, v34\nv_permlane32_swap_b32 v33, v35\nv_permlane32_swap_b32 v36, v38\nv_permlane32_swap_b32 v37, v39")
    a(f"buffer_store_dwordx4 v[32:35], v{T2}, {rs(R_OUT)}, s{S_K0} offen{['', ' sc1', ' nt', ' sc0 sc1', ' sc0'][OPT['outsc']]}")
    a(f"buffer_store_dwordx4 v[36:39], v{T2}, {rs(R_OUT)}, s{S_K0} offen offset:32{['', ' sc1', ' nt', ' sc0 sc1', ' sc0'][OPT['outsc']]}")

KD = """.section .rodata,"a"
.p2align 6
.amdhsa_kernel {k}
  .amdhsa_next_free_vgpr 256
  .amdhsa_next_free_sgpr 102
  .amdhsa_accum_offset 256
  .amdhsa_group_segment_fixed_size 0
  .amdhsa_kernarg_size 104
  .amdhsa_user_sgpr_count 2
  .amdhsa_user_sgpr_kernarg_segment_ptr 1
  .amdhsa_system_sgpr_workgroup_id_x 1
.end_amdhsa_kernel
"""

def gen():
    a = Asm()
    ref = open(f"cdna_kernels/{NAME}.s.ref").read().split("\n")
    H = [l for l in ref if l.startswith(";") and "@launch" not in l]
    H += ["; @launch grid=(256,1,1) block=(512,1,1) lds=163840"]
    k = NAME + "_kernel"
    a.raw(f'.amdgcn_target "amdgcn-amd-amdhsa--gfx950"\n.text\n.globl {k}\n.p2align 8\n.type {k},@function\n{k}:')
    a("s_cmp_ge_u32 s2, 256\ns_cbranch_scc1 L_exit")
    stamp(a, 0); stamp_init(a)
    if OPT.get("dbg"): a("s_memrealtime s[4:5]")
    a("s_load_dwordx16 s[16:31], s[0:1], 0\ns_load_dwordx8 s[32:39], s[0:1], 64\ns_load_dwordx2 s[40:41], s[0:1], 96")
    a(f"v_lshrrev_b32 v1, 6, v0\nv_and_b32 v0, 63, v0\nv_readfirstlane_b32 s3, v1\ns_mov_b32 s{S_ID}, s2")
    decode(a)
    a(f"s_and_b32 s{W}, s3, 3\ns_lshl_b32 s{S_M0B}, s{W}, 10")
    a("s_cmp_ge_u32 s3, 4\ns_cbranch_scc1 L_roleF")
    a(f"s_setprio {OPT['prioL']}")
    roleA(a)
    a.raw(".p2align 6"); a.label("L_roleF"); a.roleF = 1
    a(f"s_setprio {OPT['prioF']}")
    if OPT["cpf"]:
        a("s_getpc_b64 s[70:71]")
        a.label("L_pc")
        a(f"s_sub_u32 s70, s70, L_pc - {k}\ns_subb_u32 s71, s71, 0")
        a(f"s_lshr_b32 s72, s{S_ID}, 3\ns_lshl_b32 s72, s72, 2\ns_add_u32 s72, s72, s{W}\ns_lshl_b32 s72, s72, 10")
        a(f"s_cmp_ge_u32 s72, L_exit - {k} - 1024\ns_cbranch_scc1 L_nocpf")
        a("s_add_u32 s70, s70, s72\ns_addc_u32 s71, s71, 0")
        a("v_lshlrev_b32 v30, 4, v0\nv_mov_b32 v31, s71\nv_add_co_u32 v30, vcc, s70, v30\ns_nop 1\nv_addc_co_u32 v31, vcc, 0, v31, vcc")
        a("global_load_dwordx4 v[112:115], v[30:31], off")
        a.label("L_nocpf")
    ffn1(a)
    ffn2(a); stamp_dump(a)
    if OPT.get("dbg"):
        a(f"s_cmp_ge_u32 s2, 8\ns_cbranch_scc1 L_exit\ns_cmp_lg_u32 s{W}, 0\ns_cbranch_scc1 L_exit")
        if "only" in OPT: a(f"s_cmp_lg_u32 s2, {OPT['only']}\ns_cbranch_scc1 L_exit")
        a("s_waitcnt vmcnt(0)")
        a.label("L_dbgspin")
        a("s_memrealtime s[6:7]\ns_waitcnt lgkmcnt(0)")
        if OPT.get("spin"): a(f"s_sub_u32 s10, s6, {'s8' if OPT.get('dbgat') else 's4'}\ns_cmp_lt_u32 s10, {OPT['spin']}\ns_cbranch_scc1 L_dbgspin")
        srd(a, R_W0, S_DBG, 256)
        a(f"s_lshl_b32 s8, s2, 2\nv_mov_b32 v1, s8\nv_mov_b32 v2, s4\nv_mov_b32 v3, s6\ns_mov_b64 exec, 1")
        a(f"buffer_store_dword v2, v1, {rs(R_W0)}, 0 offen\nbuffer_store_dword v3, v1, {rs(R_W0)}, 0 offen offset:32")
    a.label("L_exit")
    a("s_endpgm")
    return "\n".join(H) + "\n" + a.text() + KD.format(k=k)

if __name__ == "__main__":
    if "--diag" in sys.argv: DIAG = True
    for x in sys.argv[2:]:
        if "=" in x:
            k, v = x.split("="); OPT[k] = int(v)
    open(sys.argv[1], "w").write(gen())
```

```python
import sys, math, struct

NAME = "gated_mix__grouped_kv_mqa__glu_gated_geglu__prompt"

WS_EPOCH = 0x0
WS_ACK = 0x6000
WS_KP = 0x10000
WS_VP = 0x20000
WS_G = 0x30000
WS_RECK = 0x40000
WS_PRE = 0x50000
WS_FLH = 0x80000
WS_FLO = 0xA0000
WS_QP = 0x100000
WS_OP = 0x300000
WS_HP = 0x500000
WS_DIAG = 0xE00000
WS_SIZE = 0x10000000
OPT = dict(prioA=1, prioF=2, prioG=2, prioD=0, prioL=3, sleep=4, sc1=1, rot=7, rot2=7, thr=60, clk=0, look=11, kvat=13, kvpre=3, qfirst=16, cl=3, kvper=4, wpre=2, w0=6, xup=3, ramp=2, xper=2, barpos=0, lsl=0, outsc=0, nw=10, lastbar=13, hold=14, cpf=1, prioT=3, sentat=99, pfx=0, pfw=0, vlag=8, hst=0, fbar=1, wsl=1, jm=1, bud=20)
DIAG = False

LOG2E = 1.4426950408889634
def f2u(x): return struct.unpack("<I", struct.pack("<f", x))[0]
def SC(): return " sc1" if OPT["sc1"] else ""

class Asm:
    def __init__(self): self.L = []; self.uid = 0
    def __call__(self, s):
        for line in s.split("\n"): self.L.append("    " + line.strip())
    def label(self, n): self.L.append(n + ":")
    def raw(self, s): self.L.append(s)
    def newlabel(self, p):
        self.uid += 1
        return f"L_{p}_{self.uid}"
    def text(self): return "\n".join(self.L) + "\n"

def vr(a, n=1): return f"v{a}" if n == 1 else f"v[{a}:{a+n-1}]"

S_X, S_WQ, S_WK, S_WV, S_WO, S_BX, S_WG, S_WU = 16, 18, 20, 22, 24, 26, 28, 30
S_WD, S_GW, S_OUT, S_DBG, S_WSP = 32, 34, 36, 38, 40
R_X, R_WS, R_W0, R_W1, R_OUT = 44, 48, 52, 56, 60
S_WAVE, S_TAG = 64, 65
S_T = 66
S_ID, S_M0B = 80, 81
S_A, S_B, S_C, S_D, S_E, S_F = 82, 83, 84, 85, 86, 87
S_G, S_H = 88, 89
S_K0, S_K1, S_K2, S_K3 = 90, 91, 92, 93
W = S_WAVE
WSR = f"s[{R_WS}:{R_WS+3}]"
def rs(r): return f"s[{r}:{r+3}]"

STAMP_REGS = [4, 6, 8, 10, 12, 14, 42, 94, 96, 98, 100]
def stamp(a, i, force=False):
    if OPT.get("dbgat") == i and getattr(a, "roleF", 0): a("s_memrealtime s[8:9]")
    if OPT.get("fst") and getattr(a, "roleF", 0) and 5 <= i <= 9 and not force: return
    if DIAG: a(f"{'s_memtime' if OPT['clk'] else 's_memrealtime'} s[{STAMP_REGS[i]}:{STAMP_REGS[i]+1}]")
def stamp_init(a):
    if DIAG:
        for r in STAMP_REGS[1:]: a(f"s_mov_b32 s{r}, 0")
def stamp_dump(a):
    if not DIAG: return
    a("s_waitcnt vmcnt(0) lgkmcnt(0)")
    stamp(a, 10)
    a("s_waitcnt lgkmcnt(0)")
    a(f"s_lshl_b32 s{S_T}, s2, 2\ns_add_u32 s{S_T}, s{S_T}, s{W}\ns_add_u32 s{S_T}, s{S_T}, {1024 if getattr(a, 'roleF', 0) else 0}\ns_lshl_b32 s{S_T}, s{S_T}, 6\ns_add_u32 s{S_T}, s{S_T}, {WS_DIAG}")
    a("s_mov_b64 exec, 1\nv_mov_b32 v1, 0")
    for i, r in enumerate(STAMP_REGS):
        a(f"v_mov_b32 v2, s{r}\nbuffer_store_dword v2, v1, {WSR}, s{S_T} offen offset:{4*i}\ns_nop 1")

def srd(a, r, p, size):
    a(f"s_mov_b32 s{r}, s{p}\ns_mov_b32 s{r+1}, s{p+1}\ns_mov_b32 s{r+2}, {size:#x}\ns_mov_b32 s{r+3}, 0x20000")

def kernarg_wait(a):
    a("s_waitcnt lgkmcnt(0)")
    a(f"s_load_dword s{S_TAG}, s[40:41], {WS_EPOCH}")
    srd(a, R_X, S_X, 2048 * 1024)

def finish_tag_ack(a, v0_, v1_):
    srd(a, R_WS, S_WSP, WS_SIZE)
    a(f"s_lshl_b32 s{S_T+2}, s2, 5\ns_lshl_b32 s{S_T+3}, s{W}, 2\ns_add_u32 s{S_T+2}, s{S_T+2}, s{S_T+3}")
    a(f"s_add_u32 s{S_T+2}, s{S_T+2}, {WS_ACK + (16 if getattr(a, 'roleF', 0) else 0)}")
    a(f"v_mov_b32 v{v1_}, 0")
    a("s_waitcnt lgkmcnt(0)")
    a(f"s_mul_i32 s{S_TAG}, s{S_TAG}, 0x9E3779B1")
    a(f"s_add_u32 s{S_TAG}, s{S_TAG}, 0x7F4A7C15")
    a(f"v_mov_b32 v{v0_}, s{S_TAG}")
    a("s_mov_b64 exec, 1")
    a(f"buffer_store_dword v{v0_}, v{v1_}, {WSR}, s{S_T+2} offen sc1")
    a("s_mov_b64 exec, -1")

def dma(a, vaddr, r, soff_reg, soff_base, soff_imm, lds_imm):
    a(f"s_add_u32 m0, s{S_M0B}, {lds_imm}")
    a(f"s_add_u32 s{soff_reg}, s{soff_base}, {soff_imm}")
    nt = " nt" if (OPT.get("ntx") and r == R_X) or (OPT.get("nt2") and getattr(a, "roleF", 0)) else ""
    a(f"buffer_load_dwordx4 v{vaddr}, {rs(r)}, s{soff_reg} offen{nt} lds")

def wave_max(a, v):
    for m in ("row_shr:1", "row_shr:2", "row_shr:4", "row_shr:8", "row_bcast:15 row_mask:0xa", "row_bcast:31 row_mask:0xc"):
        a("s_nop 1")
        a(f"v_max_u32_dpp v{v}, v{v}, v{v} {m}")

def poll(a, loads, regs, sleep=None):
    lab = a.newlabel("poll"); out = a.newlabel("polled")
    sleep = sleep or OPT["sleep"]
    masked = len(loads) == 1 and len(regs) == 1
    a(f"s_mov_b32 s{S_T+10}, 0x40000")
    a.label(lab)
    for l in loads: a(l)
    a("s_waitcnt vmcnt(0)")
    a(f"v_cmp_ne_u32 vcc, s{S_TAG}, v{regs[0]}")
    for r in regs[1:]:
        a(f"v_cmp_ne_u32 s[{S_T+12}:{S_T+13}], s{S_TAG}, v{r}")
        a(f"s_or_b64 vcc, vcc, s[{S_T+12}:{S_T+13}]")
    a(f"s_cbranch_vccz {out}")
    if masked: a("s_mov_b64 exec, vcc")
    a(f"s_sleep {sleep}")
    a(f"s_sub_u32 s{S_T+10}, s{S_T+10}, 1\ns_cmp_lg_u32 s{S_T+10}, 0\ns_cbranch_scc1 {lab}")
    a.label(out)
    if masked: a("s_mov_b64 exec, -1")

def x_src_addr(a, V, T0, T1, T2):
    a(f"v_lshrrev_b32 v{T0}, 3, v0\nv_and_b32 v{T1}, 7, v0\nv_lshrrev_b32 v{T2}, 1, v{T0}")
    a(f"s_and_b32 s{S_T}, s{W}, 1\ns_lshl_b32 s{S_T}, s{S_T}, 2")
    a(f"v_or_b32 v{V}, s{S_T}, v{T2}\nv_xor_b32 v{V}, v{V}, v{T1}\nv_lshlrev_b32 v{V}, 4, v{V}")
    a(f"v_lshl_add_u32 v{V}, v{T0}, 10, v{V}")

def x_read_addr(a, V, T0, T1, T2, sbase=None):
    a(f"v_and_b32 v{T0}, 31, v0\nv_lshrrev_b32 v{T1}, 5, v0\nv_bfe_u32 v{T2}, v0, 1, 3\nv_xor_b32 v{T2}, v{T2}, v{T1}")
    a(f"v_lshlrev_b32 v{T0}, 7, v{T0}")
    if sbase is not None: a(f"v_add_u32 v{T0}, s{sbase}, v{T0}")
    for ks in range(4):
        a(f"v_xor_b32 v{V+ks}, {2*ks}, v{T2}\nv_lshl_add_u32 v{V+ks}, v{V+ks}, 4, v{T0}")

XL, QWL, WL = 0, 49152, 61440
IXL, IQL, IEL, IGL = 0, 65536, 81920, 98304
PART = 2176
LDS_P = 81920
LDS_Q = LDS_P + 32 * PART
LDS_X = LDS_Q + 8192
LDS_C = LDS_X + 1088
assert LDS_X + 4096 == 163840

def lsync(a, idx, n, va, vb, slp=0):
    lab = a.newlabel("ls")
    a(f"v_mov_b32 v{va}, {LDS_C + 4*idx}\nv_mov_b32 v{vb}, 1\ns_mov_b64 exec, 1\nds_add_u32 v{va}, v{vb}\ns_mov_b64 exec, -1")
    if slp:
        l2 = a.newlabel("ls")
        a(f"s_branch {l2}")
        a.label(lab)
        a(f"s_sleep {slp}")
        a.label(l2)
    else:
        a.label(lab)
    a(f"ds_read_b32 v{vb}, v{va}\ns_waitcnt lgkmcnt(0)\nv_readfirstlane_b32 s{S_T+10}, v{vb}\ns_cmp_lt_u32 s{S_T+10}, {n}\ns_cbranch_scc1 {lab}")

def decode(a):
    a(f"s_lshr_b32 s{S_T+1}, s{S_ID}, 3\ns_bfe_u32 s{S_T}, s{S_ID}, 0x20001\ns_and_b32 s{S_T+2}, s{S_ID}, 1\ns_lshl_b32 s{S_T+2}, s{S_T+2}, 3")
    a(f"s_mul_i32 s{S_T+3}, s{S_T}, 28\ns_add_u32 s{S_T+3}, s{S_T+3}, s{S_T+1}\ns_lshr_b32 s{S_B}, s{S_T+3}, 3\ns_and_b32 s{S_A}, s{S_T+3}, 7")
    a(f"s_lshl_b32 s{S_T}, s{S_T}, 1\ns_bfe_u32 s{S_T+3}, s{S_T+1}, 0x10001\ns_add_u32 s{S_T}, s{S_T}, s{S_T+3}")
    a(f"s_and_b32 s{S_T+3}, s{S_T+1}, 1\ns_add_u32 s{S_T+3}, s{S_T+3}, 14")
    a(f"s_cmp_ge_u32 s{S_ID}, 224\ns_cselect_b32 s{S_A}, s{S_T}, s{S_A}\ns_cselect_b32 s{S_B}, s{S_T+3}, s{S_B}")
    a(f"s_add_u32 s{S_A}, s{S_A}, s{S_T+2}")
    a(f"s_lshl_b32 s{S_F}, s{S_B}, 1\ns_add_u32 s{S_F}, s{S_F}, s{S_A}\ns_and_b32 s{S_F}, s{S_F}, {OPT['rot']}")

class VQ:
    def __init__(self, a): self.a = a; self.q = []
    def add(self, t, n=1): self.q += [t] * n; self.total = getattr(self, "total", 0) + n
    def wait(self, tags):
        idx = max((i for i, t in enumerate(self.q) if t in tags), default=-1)
        n = len(self.q) - 1 - idx
        del self.q[:idx + 1]
        assert n < 64
        self.a(f"s_waitcnt vmcnt({n})")

def roleA(a):
    VL16, VIDX, VL4, VO, VGO, VLQ = 1, 2, 3, 4, 5, 12
    VXS, VQS, VXR, VQR, VGS, VUS = 6, 7, 8, 13, 14, 15
    QB = 8; SB = (16, 32); OA = 48; KR, VR_ = 64, 128
    XF, WF, ACC = 16, 24, 32
    T0, T1, T2 = 16, 17, 18
    VREC, VRA, VQW = 58, 62, 57
    S_WB, S_WEND, S_XR, S_QR = S_K2, S_K3, S_T + 11, S_T + 12
    RS = 3584 * 16
    x_src_addr(a, VXS, T0, T1, T2)
    a(f"v_lshrrev_b32 v{T0}, 2, v0\nv_and_b32 v{T1}, 3, v0\nv_lshlrev_b32 v{T1}, 4, v{T1}\nv_lshl_add_u32 v{VQS}, v{T0}, 10, v{T1}")
    a(f"v_lshrrev_b32 v{T0}, 4, v0\nv_and_b32 v{T1}, 15, v0\nv_lshlrev_b32 v{T2}, 1, v{T0}\nv_xor_b32 v{T1}, v{T1}, v{T2}")
    a(f"s_and_b32 s{S_T}, s{W}, 2\ns_lshl_b32 s{S_T}, s{S_T}, 2\nv_xor_b32 v{T1}, s{S_T}, v{T1}")
    a(f"v_lshlrev_b32 v{T1}, 4, v{T1}\nv_mul_u32_u24 v{T0}, 3584, v{T0}\nv_add_u32 v{VGS}, v{T0}, v{T1}\nv_mov_b32 v{VUS}, v{VGS}")
    a(f"s_lshl_b32 s{S_C}, s{S_A}, 17\ns_lshl_b32 s{S_T}, s{W}, 13\ns_add_u32 s{S_C}, s{S_C}, s{S_T}   ; x base")
    a(f"s_lshl_b32 s{S_H}, s{W}, 14\ns_lshl_b32 s{S_T}, s{S_B}, 6\ns_add_u32 s{S_H}, s{S_H}, s{S_T}")
    a(f"s_mul_i32 s{S_T}, s{W}, {4*3584}\ns_lshl_b32 s{S_WB}, s{S_B}, 8\ns_add_u32 s{S_WB}, s{S_WB}, s{S_T}")
    a(f"s_add_u32 s{S_WEND}, s{S_WB}, {32*RS}\ns_mul_i32 s{S_T}, s{S_F}, {4*RS}\ns_add_u32 s{S_D}, s{S_WB}, s{S_T}")
    kernarg_wait(a)
    srd(a, R_OUT, S_WQ, 512 * 1024)
    vq = VQ(a)
    def issueX1(u, j, xl, ql):
        if j == 0:
            a(f"s_add_u32 s{S_XR}, s{S_F}, {u}\ns_and_b32 s{S_XR}, s{S_XR}, 7\ns_lshl_b32 s{S_QR}, s{S_XR}, 16\ns_lshl_b32 s{S_XR}, s{S_XR}, 7")
            a(f"s_add_u32 s{S_XR}, s{S_XR}, s{S_C}\ns_add_u32 s{S_QR}, s{S_QR}, s{S_H}")
        if j < 4: dma(a, VXS, R_X, S_T, S_XR, j * 32768, xl + j * 4096)
        else: a(f"s_add_u32 m0, s{S_M0B}, {ql}\ns_nop 0\nbuffer_load_dwordx4 v{VQS}, {rs(R_OUT)}, s{S_QR} offen lds")
        vq.add(("X", u))
    def issueW1(j, mat):
        a(f"s_add_u32 m0, s{S_M0B}, {WL + (j % OPT['nw']) * 8192 + mat*4096}\ns_nop 0")
        a(f"buffer_load_dwordx4 v{(VGS,VUS)[mat]}, {rs((R_W0,R_W1)[mat])}, s{S_D} offen{' nt' if OPT.get('ntw') else ''} lds"); vq.add(("W", j))
        if mat:
            a(f"s_add_u32 s{S_D}, s{S_D}, {RS}")
            if j % 4 == 3: a(f"s_cmp_eq_u32 s{S_D}, s{S_WEND}\ns_cselect_b32 s{S_D}, s{S_WB}, s{S_D}")
    def setup(ql):
        finish_tag_ack(a, 20, 21); vq.add(("ack", 0))
        a(f"s_lshl_b32 s{S_T}, s{W}, 12")
        x_read_addr(a, VXR, T0, T1, T2, S_T)
        a(f"v_bfe_u32 v{T0}, v0, 2, 2\nv_lshl_add_u32 v{T0}, v{T1}, 3, v{T0}\nv_and_b32 v{T2}, 3, v0\nv_lshlrev_b32 v{T2}, 3, v{T2}")
        a(f"v_lshl_add_u32 v{VQR}, v{T0}, 6, v{T2}\nv_bfe_u32 v{T0}, v0, 4, 1\nv_lshl_add_u32 v{VQR}, v{T0}, 5, v{VQR}\nv_add_u32 v{VQR}, {ql}, v{VQR}")
        a(f"v_lshlrev_b32 v{T0}, 2, v0\nv_add_u32 v{T0}, {LDS_C}, v{T0}\nv_mov_b32 v{T1}, 0\nds_write_b32 v{T0}, v{T1}")
        a(f"v_lshlrev_b32 v{VL16}, 4, v0\nv_and_b32 v{VL4}, 31, v0\nv_lshlrev_b32 v{VL4}, 2, v{VL4}\nv_mov_b32 v{VIDX}, 0xdddddddd")
        a(f"v_add_u32 v{VLQ}, {LDS_Q}, v{VL16}\nv_lshlrev_b32 v{VRA}, 3, v0\ns_mov_b32 s{S_K0}, {WS_RECK}")
        a(f"v_bfe_u32 v{T0}, v0, 4, 1\nv_lshlrev_b32 v{VO}, 10, v{T0}\nv_and_b32 v{T0}, 32, v0\nv_lshl_add_u32 v{VO}, v{T0}, 4, v{VO}")
        a(f"v_and_b32 v{T0}, 15, v0\nv_lshl_add_u32 v{VO}, v{T0}, 4, v{VO}\nv_lshlrev_b32 v{VGO}, 2, v{T0}")
        a(f"s_lshl_b32 s{S_T}, s{W}, 11\ns_add_u32 s{S_T}, s{S_T}, {LDS_Q}\nv_add_u32 v{VQW}, s{S_T}, v{VO}")
        a(f"v_and_b32 v{T0}, 11, v0\nv_cmp_eq_u32 vcc, 0, v{T0}\nv_mov_b32 v{T0}, 0x3f803f80\ns_nop 0\nv_cndmask_b32 v{T0}, 0, v{T0}, vcc\nv_mov_b32 v{T0+1}, v{T0}")
        for t in range(16):
            for j in range(4, 8, 2): a(f"v_mov_b64 {vr(VR_+8*t+j,2)}, {vr(T0,2)}")
        zero_o()
        a(f"s_lshl_b32 s{S_T}, s{S_A}, 2\ns_add_u32 s{S_T}, s{S_T}, s{W}\ns_lshl_b32 s{S_G}, s{S_T}, 15")
        a(f"s_lshl_b32 s{S_T}, s{S_B}, 11\ns_add_u32 s{S_G}, s{S_G}, s{S_T}\ns_add_u32 s{S_G}, s{S_G}, {WS_OP}")
        a(f"s_lshl_b32 s{S_E}, s{W}, 3\ns_lshr_b32 s{S_T}, s{S_ID}, 3\ns_add_u32 s{S_E}, s{S_E}, s{S_T}")
    def zero_o():
        for j in range(0, 8, 2): a(f"v_mov_b64 {vr(OA+j,2)}, 0")
        a(f"v_mov_b32 v{OA+8}, 0")
    def qreads(j, xoff, qoff):
        b = j & 1
        a(f"ds_read_b128 {vr(XF+4*b,4)}, v{VXR + j%4} offset:{xoff}")
        a(f"ds_read_b64_tr_b16 {vr(WF+4*b,2)}, v{VQR} offset:{qoff + (j%4)*1024}\nds_read_b64_tr_b16 {vr(WF+4*b+2,2)}, v{VQR} offset:{qoff + (j%4)*1024 + 256}")
    def qmfma(j):
        b = j & 1
        a(f"v_mfma_f32_32x32x16_bf16 {vr(ACC,16)}, {vr(WF+4*b,4)}, {vr(XF+4*b,4)}, {'0' if j == 0 else vr(ACC,16)}")
    rec_loads = [f"buffer_load_dwordx2 {vr(VREC,2)}, v{VRA}, {WSR}, s{S_K0} offen sc1",
                 f"buffer_load_dwordx2 {vr(VREC+2,2)}, v{VRA}, {WSR}, s{S_K0} offen offset:512 sc1"]
    def rec_finish(looked):
        lab = a.newlabel("norec"); seen = a.newlabel("seen")
        a(f"s_cmp_lg_u32 s{W}, 0\ns_cbranch_scc1 {lab}")
        if looked is not None:
            a(f"s_waitcnt vmcnt({looked})")
            a(f"v_cmp_ne_u32 vcc, s{S_TAG}, v{VREC}\nv_cmp_ne_u32 s[{S_T+6}:{S_T+7}], s{S_TAG}, v{VREC+2}\ns_or_b64 vcc, vcc, s[{S_T+6}:{S_T+7}]\ns_cbranch_vccz {seen}")
        poll(a, rec_loads, [VREC, VREC + 2], sleep=8)
        a.label(seen)
        wave_max(a, VREC + 1)
        a(f"v_mov_b32 v{VREC}, {LDS_X + 1024}\ns_mov_b32 exec_lo, 0\ns_mov_b32 exec_hi, 0x80000000\nds_write_b32 v{VREC}, v{VREC+1}\ns_mov_b64 exec, -1")
        a.label(lab)
    def vfix(t):
        for j in range(4): a(f"v_permlane16_swap_b32 v{VR_+8*t+j}, v{VR_+8*t+4+j}")
    VL = OPT["vlag"]; NFIX = 16 - VL
    def kvload(t):
        if t % 2 == 0:
            a(f"s_add_u32 s{S_T}, s{S_E}, {t//2}\ns_and_b32 s{S_T}, s{S_T}, 31\ns_lshl_b32 s{S_T}, s{S_T}, 11")
            a(f"s_add_u32 s{S_T+1}, s{S_T}, {WS_VP}\ns_add_u32 s{S_T}, s{S_T}, {WS_KP}")
        a(f"buffer_load_dwordx4 {vr(KR+4*t,4)}, v{VL16}, {WSR}, s{S_T} offen offset:{(t%2)*1024}{SC()}")
        a(f"buffer_load_dwordx4 {vr(VR_+8*t,4)}, v{VL16}, {WSR}, s{S_T+1} offen offset:{(t%2)*1024}{SC()}")
        vq.add(("KV", t), 2)
        if t >= VL: a(f"s_waitcnt vmcnt({2*VL})"); vfix(t - VL)
    lidle = a.newlabel("Aidle"); ljoin = a.newlabel("Ajoin")
    a(f"s_cmp_ge_u32 s{S_ID}, 224\ns_cbranch_scc1 {lidle}")
    X = lambda u, j: issueX1(u, j, XL + (u % 3) * 16384, QWL + (u % 3) * 4096)
    for j in range(5): X(0, j)
    srd(a, R_W0, S_WG, 512 * 3584); srd(a, R_W1, S_WU, 512 * 3584)
    W0 = OPT["w0"]
    nextW, nextX, xp = W0, 1, 0
    for j in range(W0):
        issueW1(j, 0); issueW1(j, 1)
        if OPT.get("xup") and j == OPT["xup"] - 1:
            for p in range(5): X(1, p)
            nextX = 2
    if OPT.get("st4") == 1: stamp(a, 4)
    setup(QWL)
    if OPT.get("st4") == 2: stamp(a, 4)
    vq.wait({("X", 0), ("W", 0), ("W", 1)})
    a("s_waitcnt lgkmcnt(0)")
    a("s_barrier")
    stamp(a, 1)
    xo = lambda j: (XL + ((j // 4) % 3) * 16384, ((j // 4) % 3) * 4096)
    qreads(0, *xo(0))
    kvt = 0
    LB = OPT["lastbar"]
    for J in range(16):
        if J < LB:
            tags = {("W", 2 * J + 2), ("W", 2 * J + 3)}
            if J % 2 == 1: tags.add(("X", (J + 1) // 2))
            assert nextW > 2 * J + 3 and (J % 2 == 0 or nextX > (J + 1) // 2), J
            vq.wait(tags)
        elif J == LB:
            assert nextW == 32 and nextX == 8
            vq.wait({("W", 31), ("X", 7)})
        a("s_waitcnt lgkmcnt(0)")
        if J <= LB: a("s_barrier")
        qmfma(2 * J)
        qreads(2 * J + 1, *xo(2 * J + 1))
        for _ in range(5 if nextX in (1, 7) else 3):
            if nextX < 8 and J >= 2 * (nextX - 3) + 2:
                X(nextX, xp); xp += 1
                if xp == 5: nextX += 1; xp = 0; break
        a("s_waitcnt lgkmcnt(0)")
        qmfma(2 * J + 1)
        if J < 15: qreads(2 * J + 2, *xo(2 * J + 2))
        for _ in range(2 * OPT["ramp"]):
            if nextW < 32 and nextW <= max(OPT['nw'] - 1, 2 * J + OPT['nw'] - 1):
                issueW1(nextW, 0); issueW1(nextW, 1); nextW += 1
        if J == OPT["kvat"]:
            assert OPT["kvat"] >= OPT["look"] + 2 and nextW == 32 and nextX == 8
            lab = a.newlabel("kvok")
            a(f"v_mov_b32 v{VREC}, {LDS_X + 1028}\nds_read_b32 v{VREC+1}, v{VREC}\ns_waitcnt lgkmcnt(0)\nv_readfirstlane_b32 s{S_T}, v{VREC+1}")
            a(f"s_cmp_eq_u32 s{S_T}, 1\ns_cbranch_scc1 {lab}")
            rec_finish(None)
            lsync(a, 9, 4, VREC, VREC + 1)
            a.label(lab)
        if J >= OPT["kvat"]:
            for _ in range(OPT["kvpre"] if J < LB else 2 * OPT["kvper"] if J < 15 else 16):
                if kvt < OPT["qfirst"]: kvload(kvt); kvt += 1
    a(f"v_mov_b32 v{VREC}, {LDS_C + 4*10}\nv_mov_b32 v{VREC+1}, 1\ns_mov_b64 exec, 1\nds_add_u32 v{VREC}, v{VREC+1}\ns_mov_b64 exec, -1")
    a(f"s_branch {ljoin}")
    a.label(lidle)
    vq.q = []
    a(f"s_cmp_eq_u32 s{S_B}, 14\ns_cselect_b32 s{R_W0}, s{S_WK}, s{S_WV}\ns_cselect_b32 s{R_W0+1}, s{S_WK+1}, s{S_WV+1}")
    a(f"s_movk_i32 s{R_W0+2}, 16384\ns_mov_b32 s{R_W0+3}, 0x20000\ns_mov_b32 s{S_F}, 0")
    srd(a, R_W1, S_GW, 1024)
    a(f"v_lshlrev_b32 v{VGS}, 4, v0")
    dma(a, VGS, R_W1, S_T, S_M0B, 0, IGL)
    for p in range(4): dma(a, VGS, R_W0, S_T, S_M0B, p * 4096, IEL + p * 4096)
    XI = lambda u: [issueX1(u, p, IXL + (u % 4) * 16384, IQL + (u % 4) * 4096) for p in range(5)]
    for u in range(4): XI(u)
    setup(IQL)
    for u in range(8):
        vq.wait({("X", u)})
        a("s_waitcnt lgkmcnt(0)")
        a("s_barrier")
        if u == 0: stamp(a, 1)
        if 1 <= u <= 4: XI(u + 3)
        qreads(4 * u, (u % 4) * 16384, (u % 4) * 4096)
        for ks in range(4):
            j = 4 * u + ks
            if ks < 3:
                qreads(j + 1, (u % 4) * 16384, (u % 4) * 4096); a("s_waitcnt lgkmcnt(3)")
            else: a("s_waitcnt lgkmcnt(0)")
            qmfma(j)
    rec_finish(None)
    a(f"v_mov_b32 v{VREC}, {LDS_C + 4*10}\nv_mov_b32 v{VREC+1}, 2\ns_mov_b64 exec, 1\nds_add_u32 v{VREC}, v{VREC+1}\ns_mov_b64 exec, -1")
    a("s_waitcnt lgkmcnt(0)")
    a("s_barrier")
    for t in range(OPT["qfirst"]): kvload(t)
    a.label(ljoin)
    stamp(a, 2)
    a(f"s_lshl_b32 s{S_T}, s{S_A}, 2\ns_add_u32 s{S_T}, s{S_T}, s{W}\ns_lshl_b32 s{S_C}, s{S_T}, 7\ns_add_u32 s{S_C}, s{S_C}, {WS_G}")
    a("s_nop 7")
    a(f"s_lshl_b32 s{S_T}, s{W}, 8\ns_add_u32 s{S_T}, s{S_T}, {LDS_X}\nv_lshl_add_u32 v15, v0, 2, s{S_T}")
    for j in range(8): a(f"v_cvt_pk_bf16_f32 v{16+j}, v{ACC+2*j}, v{ACC+2*j+1}")
    a(f"ds_write_b128 v{VQW}, v[16:19]\nds_write_b128 v{VQW}, v[20:23] offset:256")
    a(f"v_mul_f32 v24, v{ACC}, v{ACC}\nv_mul_f32 v25, v{ACC+8}, v{ACC+8}")
    for i in range(1, 8): a(f"v_fmac_f32 v24, v{ACC+i}, v{ACC+i}\nv_fmac_f32 v25, v{ACC+8+i}, v{ACC+8+i}")
    a(f"v_mov_b32 v26, {LDS_X + 1024}\ns_nop 0\nv_permlane32_swap_b32 v24, v25\nv_add_f32 v24, v24, v25\nds_write_b32 v15, v24")
    a(f"v_lshlrev_b32 v15, 2, v0\nv_add_u32 v15, {LDS_X}, v15")
    a(f"v_mov_b32 v27, {LDS_C}\nv_mov_b32 v28, 1\ns_mov_b64 exec, 1\nds_add_u32 v27, v28\ns_mov_b64 exec, -1")
    for t in range(OPT["qfirst"], 16): kvload(t)
    a(f"s_mul_i32 s{S_T}, s{W}, {PART}\ns_add_u32 s{S_T}, s{S_T}, {LDS_P}")
    a(f"v_add_u32 v{VL16}, s{S_T}, v{VL16}\nv_add_u32 v{VL4}, s{S_T}, v{VL4}")
    lab = a.newlabel("qsync")
    a.label(lab)
    a(f"ds_read_b32 v28, v27\ns_waitcnt lgkmcnt(0)\nv_readfirstlane_b32 s{S_T}, v28\ns_cmp_lt_u32 s{S_T}, 4\ns_cbranch_scc1 {lab}")
    lab = a.newlabel("ringdead")
    a(f"v_mov_b32 v27, {LDS_C + 4*10}")
    a.label(lab)
    a(f"ds_read_b32 v28, v27\ns_waitcnt lgkmcnt(0)\nv_readfirstlane_b32 s{S_T}, v28\ns_cmp_lt_u32 s{S_T}, 8\ns_cbranch_scc1 {lab}")
    a(f"ds_read_b128 {vr(QB,4)}, v{VLQ}")
    a(f"ds_read2st64_b32 v[20:21], v15 offset0:0 offset1:1\nds_read2st64_b32 v[22:23], v15 offset0:2 offset1:3\nds_read_b32 v24, v26")
    a("s_waitcnt lgkmcnt(0)")
    a("v_max3_u32 v20, v20, v21, v22\nv_max_u32 v20, v20, v23\nv_mul_f32 v20, v20, v24")
    slow = a.newlabel("slow"); red = a.newlabel("reduce")
    a(f"v_cmp_nge_f32 vcc, {f2u(float(OPT['thr'])**2):#x}, v20")
    a(f"s_setprio {OPT['prioA']}")
    a(f"s_cbranch_vccnz {slow}")
    def S(t, buf, c="0"): a(f"v_mfma_f32_32x32x16_bf16 {vr(SB[buf],16)}, {vr(KR+4*t,4)}, {vr(QB,4)}, {c}")
    def PV(t, s, buf): a(f"v_smfmac_f32_32x32x32_bf16 {vr(OA,16)}, {vr(VR_+8*t+4*s,4)}, {vr(SB[buf]+8*s,8)}, v{VIDX}")
    def EX(buf, i): a(f"v_exp_f32 v{SB[buf]+i}, v{SB[buf]+i}")
    def flush(base):
        a(f"ds_write_b128 v{VL16}, {vr(OA,4)} offset:{base}")
        a(f"ds_write_b128 v{VL16}, {vr(OA+4,4)} offset:{base+1024}")
        a(f"ds_write_b32 v{VL4}, v{OA+8} offset:{base+2048}")
    a("s_waitcnt vmcnt(31)")
    stamp(a, 5)
    S(0, 0)
    a("s_nop 11")
    gl = lambda j, r: a(f"buffer_load_dword v{r}, v{VGO}, {WSR}, s{S_C} offen offset:{64*j}{SC()}")
    ROLL = OPT.get("roll", 0)
    for q in ((0, 1, 7) if ROLL else range(8)):
        if ROLL and q == 1:
            a(f"s_mov_b32 s{S_K0}, 6")
            a.raw(".p2align 6"); a.label("L_qloop")
        for t in range(16):
            g = q * 16 + t
            cur, oth = g & 1, (g & 1) ^ 1
            nt = (t + 1) % 16
            def kv():
                if q == 0 and t + 1 >= NFIX: a(f"s_waitcnt vmcnt({max(0, 29 - 2*t)})")
                if q == 0 and t >= NFIX: vfix(t)
            if t == 0:
                if q == 1 and not ROLL: stamp(a, 6)
                if q == 4: stamp(a, 7)
                EX(cur, 0); EX(cur, 1)
                if q > 0: PV(15, 1, oth)
                EX(cur, 2); EX(cur, 3); EX(cur, 4)
                kv(); S(nt, oth)
                for i in range(5, 16): EX(cur, i)
                if q == 0: a("s_nop 0")
                if q > 0:
                    flush(0 if ROLL else (q - 1) * 4 * PART); zero_o()
                    if ROLL: a(f"v_add_u32 v{VL16}, {4*PART}, v{VL16}\nv_add_u32 v{VL4}, {4*PART}, v{VL4}")
                if q == 7: gl(0, 6); gl(1, 7)
            elif t == 1:
                EX(cur, 0); EX(cur, 1)
                PV(0, 0, oth)
                EX(cur, 2); EX(cur, 3); EX(cur, 4)
                PV(0, 1, oth)
                if OPT.get("bs"):
                    EX(cur, 5); EX(cur, 6)
                    kv(); S(nt, oth)
                    for i in range(7, 11): EX(cur, i)
                    PV(1, 0, cur)
                    for i in range(11, 16): EX(cur, i)
                    a("s_nop 1")
                else:
                    EX(cur, 5); EX(cur, 6); EX(cur, 7)
                    kv(); S(nt, oth)
                    EX(cur, 8); EX(cur, 9); EX(cur, 10)
                    PV(1, 0, cur)
                    for i in range(11, 16): EX(cur, i)
                    a("s_nop 2")
            else:
                n0, n1, n2 = {0: (2, 5, 10), 1: (5, 8, 11), 2: (3, 6, 10), 3: (2, 5, 11), 4: (4, 7, 10)}[OPT.get("cl", 0)]
                for i in range(n0): EX(cur, i)
                PV(t - 1, 1, oth)
                for i in range(n0, n1): EX(cur, i)
                if g != 127:
                    if t == 15: a("s_waitcnt lgkmcnt(0)")
                    kv(); S(nt, oth)
                EX(cur, n1); EX(cur, n1 + 1)
                if t == 14 and q < 7: a(f"ds_read_b128 {vr(QB,4)}, v{VLQ} offset:{1024 if ROLL else (q+1)*1024}")
                if t == 15 and q < 7 and ROLL: a(f"v_add_u32 v{VLQ}, 1024, v{VLQ}")
                for i in range(n1 + 2, n2): EX(cur, i)
                PV(t, 0, cur)
                for i in range(n2, 16): EX(cur, i)
        if ROLL and q == 1: a(f"s_sub_u32 s{S_K0}, s{S_K0}, 1\ns_cmp_lg_u32 s{S_K0}, 0\ns_cbranch_scc1 L_qloop")
    stamp(a, 8)
    a(f"s_setprio {OPT['prioT']}\ns_nop 0")
    PV(15, 1, 1)
    a("s_nop 11")
    flush(0 if ROLL else 7 * 4 * PART)
    a.label(red)
    a(f"s_mul_i32 s{S_T}, s{W}, {2*4*PART}\ns_add_u32 s{S_T}, s{S_T}, {LDS_P}")
    a(f"v_lshl_add_u32 v{VL16}, v0, 4, s{S_T}\nv_and_b32 v{VL4}, 31, v0\nv_lshl_add_u32 v{VL4}, v{VL4}, 2, s{S_T}")
    lab = a.newlabel("marked")
    a(f"v_mov_b32 v18, {LDS_C + 4*3}")
    a.label(lab)
    a(f"ds_read_b32 v19, v18")
    lsync(a, 1, 4, 16, 17)
    stamp(a, 3)
    ok = a.newlabel("markok"); lab = a.newlabel("markw")
    a.label(lab)
    a(f"v_readfirstlane_b32 s{S_T}, v19\ns_cmp_ge_u32 s{S_T}, 4\ns_cbranch_scc1 {ok}")
    a(f"ds_read_b32 v19, v18\ns_waitcnt lgkmcnt(0)\ns_branch {lab}")
    a.label(ok)
    R = 64
    for j in range(2):
        for p in range(4):
            b = (j * 4 + p) * PART; r = R + (j * 4 + p) * 12
            a(f"ds_read_b32 v{r+8}, v{VL4} offset:{b+2048}")
        for p in range(4):
            b = (j * 4 + p) * PART; r = R + (j * 4 + p) * 12
            a(f"ds_read_b128 {vr(r,4)}, v{VL16} offset:{b}")
            a(f"ds_read_b128 {vr(r+4,4)}, v{VL16} offset:{b+1024}")
        r0 = R + j * 48
        a(f"s_waitcnt lgkmcnt(8)")
        a(f"v_add_f32 v{r0+8}, v{r0+8}, v{r0+20}\nv_add_f32 v{r0+32}, v{r0+32}, v{r0+44}\nv_add_f32 v{r0+8}, v{r0+8}, v{r0+32}")
        a(f"v_rcp_f32 v{r0+8}, v{r0+8}")
    for j in range(2):
        r0 = R + j * 48
        a("s_waitcnt vmcnt(0)" if j == 0 else "s_waitcnt lgkmcnt(0)")
        a(f"v_mul_f32 v{r0+8}, v{r0+8}, v{6+j}")
        for i in range(8): a(f"v_add_f32 v{r0+i}, v{r0+i}, v{r0+12+i}\nv_add_f32 v{r0+24+i}, v{r0+24+i}, v{r0+36+i}")
        for i in range(8): a(f"v_add_f32 v{r0+i}, v{r0+i}, v{r0+24+i}")
        for i in range(8): a(f"v_mul_f32 v{r0+i}, v{r0+i}, v{r0+8}")
        for i in range(4):
            a(f"v_cvt_pk_bf16_f32 v{r0+12+i}, v{r0+2*i}, v{r0+2*i+1}")
        a(f"buffer_store_dwordx4 {vr(r0+12,4)}, v{VO}, {WSR}, s{S_G} offen offset:{256*j} sc1")
    stamp(a, 4)
    stamp_dump(a)
    a("s_endpgm")
    a.label(slow)
    loop = a.newlabel("slowq"); spin = a.newlabel("slows")
    a("s_waitcnt vmcnt(0)")
    for t in range(NFIX, 16): vfix(t)
    a(f"v_lshlrev_b32 v6, 2, v0\nv_add_u32 v6, {LDS_X + 2048}, v6")
    a(f"s_lshl_b32 s{S_K1}, s{W}, 8\ns_mov_b32 s{S_K0}, 4")
    a.label(loop)
    a(f"ds_read_b128 {vr(QB,4)}, v{VLQ}\nv_add_u32 v{VLQ}, 1024, v{VLQ}")
    zero_o()
    a(f"v_mov_b32 v7, 0xff800000")
    a("s_waitcnt lgkmcnt(0)")
    for t in range(16):
        S(t, 0)
        a("s_nop 12")
        for i in range(0, 16, 2): a(f"v_max3_f32 v7, v7, v{SB[0]+i}, v{SB[0]+i+1}")
    a(f"v_mov_b32 v13, v7\ns_nop 1\nv_permlane32_swap_b32 v7, v13\nv_max_f32 v7, v7, v13")
    a(f"v_add_u32 v13, s{S_K1}, v6\nds_write_b32 v13, v7")
    a(f"v_mov_b32 v14, {LDS_C + 8}\nv_mov_b32 v15, 1\ns_mov_b64 exec, 1\nds_add_u32 v14, v15\ns_mov_b64 exec, -1")
    a.label(spin)
    a(f"ds_read_b32 v15, v14\ns_waitcnt lgkmcnt(0)\nv_readfirstlane_b32 s{S_T}, v15\ns_cmp_lt_u32 s{S_T}, s{S_K0}\ns_cbranch_scc1 {spin}")
    a(f"ds_read2st64_b32 v[14:15], v6 offset0:0 offset1:1\nds_read2st64_b32 v[16:17], v6 offset0:2 offset1:3")
    a("s_waitcnt lgkmcnt(0)")
    a("v_max3_f32 v7, v14, v15, v16\nv_max_f32 v7, v7, v17")
    for i in range(16): a(f"v_sub_f32 v{SB[1]+i}, 0, v7")
    a("s_nop 1")
    for t in range(16):
        S(t, 0, vr(SB[1], 16))
        a("s_nop 12")
        for i in range(16): EX(0, i)
        a("s_nop 1")
        PV(t, 0, 0); PV(t, 1, 0)
    a("s_nop 15")
    flush(0)
    a(f"v_add_u32 v{VL16}, {4*PART}, v{VL16}\nv_add_u32 v{VL4}, {4*PART}, v{VL4}\nv_xor_b32 v6, 1024, v6")
    a(f"s_add_u32 s{S_K0}, s{S_K0}, 4\ns_cmp_le_u32 s{S_K0}, 32\ns_cbranch_scc1 {loop}")
    gl(0, 6); gl(1, 7)
    a(f"s_branch {red}")

def ffn1(a):
    VXR, VWR = 8, 12
    T0, T1, T2 = 5, 6, 7
    lidle = a.newlabel("Fidle"); lend = a.newlabel("s1end")
    a(f"v_bfe_u32 v{T0}, v0, 4, 1\nv_lshlrev_b32 v66, 10, v{T0}\nv_and_b32 v{T0}, 32, v0\nv_lshl_add_u32 v66, v{T0}, 4, v66")
    a(f"v_and_b32 v{T0}, 15, v0\nv_lshl_add_u32 v66, v{T0}, 4, v66")
    a(f"s_lshl_b32 s{S_T}, s{S_A}, 2\ns_add_u32 s{S_T}, s{S_T}, s{W}\ns_lshl_b32 s{S_G}, s{S_T}, 15")
    a(f"s_lshl_b32 s{S_T}, s{S_B}, 11\ns_add_u32 s{S_G}, s{S_G}, s{S_T}\ns_add_u32 s{S_G}, s{S_G}, {WS_OP}")
    def sentinels():
        a("v_mov_b64 v[76:77], -1\nv_mov_b64 v[78:79], -1")
        for j in range(2): a(f"buffer_store_dwordx4 v[76:79], v66, {WSR}, s{S_G} offen offset:{256*j} sc1")
    a(f"s_cmp_ge_u32 s{S_ID}, 224\ns_cbranch_scc1 {lidle}")
    a(f"s_and_b32 s{S_T}, s{W}, 1\ns_lshl_b32 s{S_T}, s{S_T}, 13")
    a(f"v_and_b32 v{T0}, 15, v0\nv_lshrrev_b32 v{T1}, 4, v0\nv_bfe_u32 v{T2}, v0, 1, 3\nv_xor_b32 v{T2}, v{T2}, v{T1}")
    a(f"v_lshlrev_b32 v{T0}, 7, v{T0}\nv_add_u32 v{T0}, s{S_T}, v{T0}\nv_lshl_add_u32 v{VXR}, v{T2}, 4, v{T0}")
    a(f"v_xor_b32 v{T2}, 4, v{T2}\nv_lshl_add_u32 v{VXR+1}, v{T2}, 4, v{T0}")
    a(f"v_bfe_u32 v{T0}, v0, 2, 2\nv_bfe_u32 v{T2}, v0, 4, 1\nv_lshl_add_u32 v16, v{T2}, 3, v{T0}\nv_lshlrev_b32 v16, 8, v16")
    a(f"v_lshrrev_b32 v17, 5, v0\nv_lshl_add_u32 v16, v17, 13, v16\nv_and_b32 v17, 3, v0\nv_lshl_add_u32 v16, v17, 3, v16\nv_add_u32 v16, {WL}, v16")
    a(f"v_lshl_or_b32 v{T0}, v{T2}, 2, v{T0}\ns_and_b32 s{S_T}, s{W}, 2\ns_lshl_b32 s{S_T}, s{S_T}, 1\nv_xor_b32 v{T0}, s{S_T}, v{T0}")
    for jj in range(4):
        a(f"v_xor_b32 v{VWR+jj}, {jj}, v{T0}\nv_lshl_add_u32 v{VWR+jj}, v{VWR+jj}, 5, v16\nv_add_u32 v{68+jj}, 0x8000, v{VWR+jj}")
    kernarg_wait(a)
    def pfm():
        a(f"s_lshl_b32 s{S_T+4}, s{S_ID}, 2\ns_add_u32 s{S_T+4}, s{S_T+4}, s{W}\nv_lshlrev_b32 v80, 4, v0")
        srd(a, R_W0, S_WG, 512 * 3584); srd(a, R_W1, S_WU, 512 * 3584)
        a(f"s_lshl_b32 s{S_T}, s{S_T+4}, 11\ns_mul_i32 s{S_T+1}, s{S_T+4}, 2560")
        for i in range(3): a(f"buffer_load_dwordx4 v[84:87], v80, {rs(R_X)}, s{S_T+1} offen offset:{1024*i}")
        for i in range(2):
            a(f"buffer_load_dwordx4 v[84:87], v80, {rs(R_W0)}, s{S_T} offen offset:{1024*i}\nbuffer_load_dwordx4 v[84:87], v80, {rs(R_W1)}, s{S_T} offen offset:{1024*i}")
    if OPT.get("pfm") == 1: pfm()
    if OPT["pfx"] or OPT["pfw"]:
        a(f"s_lshr_b32 s{S_T+4}, s{S_ID}, 3\ns_lshl_b32 s{S_T+4}, s{S_T+4}, 2\ns_add_u32 s{S_T+4}, s{S_T+4}, s{W}\nv_lshlrev_b32 v80, 4, v0")
        if OPT.get("pfd"): a(f"s_sleep {OPT['pfd']}")
        if OPT["pfx"]:
            a(f"s_and_b32 s{S_T}, s{S_ID}, 1\ns_lshl_b32 s{S_T}, s{S_T}, 20\ns_mul_i32 s{S_T+1}, s{S_T+4}, {9*1024}\ns_add_u32 s{S_T}, s{S_T}, s{S_T+1}")
            for i in range(9):
                a(f"buffer_load_dwordx4 v[84:87], v80, {rs(R_X)}, s{S_T} offen\ns_add_u32 s{S_T}, s{S_T}, 1024")
        if OPT["pfw"]:
            srd(a, R_W0, S_WG, 512 * 3584); srd(a, R_W1, S_WU, 512 * 3584)
            a(f"s_bfe_u32 s{S_T}, s{S_ID}, 0x20001\ns_mul_i32 s{S_T}, s{S_T}, 28\ns_lshr_b32 s{S_T}, s{S_T}, 3\ns_lshl_b32 s{S_T}, s{S_T}, 8")
            a(f"s_mul_i32 s{S_T+1}, s{S_T+4}, 3584\ns_add_u32 s{S_T}, s{S_T}, s{S_T+1}")
            for i in range(5):
                a(f"buffer_load_dwordx4 v[84:87], v80, {rs(R_W0)}, s{S_T} offen\nbuffer_load_dwordx4 v[84:87], v80, {rs(R_W1)}, s{S_T} offen\ns_add_u32 s{S_T}, s{S_T}, {112*3584}")
    finish_tag_ack(a, 64, 65)
    ACC = 128
    FX = (16, 32); FW = 80
    acc_ = lambda jj, mat, p: ACC + 32 * jj + 16 * mat + 4 * p
    lq = []
    def lds(x, tag): a(x); lq.append(tag)
    def lwait(tags):
        idx = max((i for i, t in enumerate(lq) if t in tags), default=-1)
        n = len(lq) - 1 - idx
        del lq[:idx + 1]
        a(f"s_waitcnt lgkmcnt({min(n, 15)})")
    def rdX(J): return [(f"ds_read_b128 {vr(FX[J&1]+4*p,4)}, v{VXR + J%2} offset:{XL + ((J//2)%3)*16384 + p*2048}", ("X", J)) for p in range(4)]
    def rdW(J, fi):
        sl = (2 * J) % OPT["nw"]; wr = VWR if sl < 4 else 68; so = sl if sl < 4 else sl - 4
        return [(f"ds_read_b64_tr_b16 {vr(FW+4*fi+2*hf,2)}, v{wr+fi//2} offset:{so*8192 + (fi%2)*4096 + hf*1024}", ("W", J, fi)) for hf in range(2)]
    a("s_barrier")
    stamp(a, 1)
    for x in rdX(0) + [y for fi in range(8) for y in rdW(0, fi)][:10]: lds(*x)
    lwait({("X", 0), ("W", 0, 0)})
    for x in [y for fi in range(5, 8) for y in rdW(0, fi)]: lds(*x)
    LB = OPT["lastbar"]
    c0 = -2.0 * LOG2E * math.sqrt(2.0 / math.pi); c1 = c0 * 0.044715
    for J in range(16):
        if OPT.get("fst") and J in (2, 4, 8, 12): stamp(a, {2: 5, 4: 6, 8: 7, 12: 8}[J], True)
        if J == 4:
            a("s_waitcnt vmcnt(0)")
            if OPT.get("st8"): a("v_and_b32 v3, 15, v0\nv_lshlrev_b32 v3, 4, v3\nv_and_b32 v2, 32, v0\nv_lshl_add_u32 v3, v2, 4, v3\nv_and_b32 v2, 16, v0\nv_lshrrev_b32 v2, 1, v2\nv_add_u32 v3, v3, v2")
            a(f"v_lshlrev_b32 v2, 4, v0\nv_mov_b32 v4, {f2u(c0):#x}\nv_mov_b32 v5, {f2u(c0):#x}")
            a(f"s_mov_b32 s{S_K2}, {f2u(c1):#x}\ns_mov_b32 s{S_K2+1}, {f2u(c1):#x}")
            a(f"s_lshl_b32 s{S_T}, s{S_A}, 2\ns_and_b32 s{S_T+1}, s{W}, 1\ns_lshl_b32 s{S_T+1}, s{S_T+1}, 1\ns_add_u32 s{S_T}, s{S_T}, s{S_T+1}")
            a(f"s_mul_i32 s{S_T}, s{S_T}, 112\ns_lshl_b32 s{S_T+1}, s{S_B}, 3\ns_add_u32 s{S_T}, s{S_T}, s{S_T+1}")
            a(f"s_and_b32 s{S_T+1}, s{W}, 2\ns_lshl_b32 s{S_T+1}, s{S_T+1}, 1\ns_add_u32 s{S_T}, s{S_T}, s{S_T+1}\ns_lshl_b32 s{S_T}, s{S_T}, 10")
            a(f"s_add_u32 s{S_E}, s{S_T}, {WS_HP}\ns_add_u32 s{S_F}, s{S_E}, {112*1024}")
        if J in (OPT["look"], OPT["look"] + 2):
            lab = a.newlabel("nolook")
            a(f"s_cmp_lg_u32 s{W}, 0\ns_cbranch_scc1 {lab}")
            if J == OPT["look"]:
                a(f"v_lshlrev_b32 v72, 3, v0\ns_mov_b32 s{S_K0}, {WS_RECK}")
                a(f"buffer_load_dwordx2 v[74:75], v72, {WSR}, s{S_K0} offen sc1\nbuffer_load_dwordx2 v[76:77], v72, {WSR}, s{S_K0} offen offset:512 sc1")
            else:
                a(f"s_waitcnt vmcnt(0)\nv_cmp_ne_u32 vcc, s{S_TAG}, v74\nv_cmp_ne_u32 s[{S_T+6}:{S_T+7}], s{S_TAG}, v76")
                wave_max(a, 75)
                a(f"s_or_b64 vcc, vcc, s[{S_T+6}:{S_T+7}]\ns_cmp_eq_u64 vcc, 0\ns_cselect_b32 s{S_T}, 1, 0")
                a(f"v_mov_b32 v76, s{S_T}\nv_mov_b32 v72, {LDS_X + 1024}\ns_mov_b32 exec_lo, 0\ns_mov_b32 exec_hi, 0x80000000")
                a(f"ds_write2_b32 v72, v75, v76 offset0:0 offset1:1\ns_mov_b64 exec, -1\ns_waitcnt lgkmcnt(0)")
            a.label(lab)
        BP = OPT["barpos"]
        if J <= LB and BP == 0: a("s_barrier")
        pend = rdX(J + 1) if J < 15 else []
        for fi in range(8):
            if J <= LB and BP and fi == BP: a("s_barrier")
            lwait({("W", J, fi), ("X", J)})
            for p in range(4):
                ac = acc_(fi // 2, fi % 2, p)
                a(f"v_mfma_f32_16x16x32_bf16 {vr(ac,4)}, {vr(FW+4*fi,4)}, {vr(FX[J&1]+4*p,4)}, {'0' if J == 0 else vr(ac,4)}")
                if pend and (p != 3 or BP) and fi >= BP: lds(*pend.pop(0))
            if J < 15: pend += rdW(J + 1, fi)
        while pend: lds(*pend.pop(0))
        if J == 14: a(f"v_mov_b32 v6, {LDS_C + 4*10}\nv_mov_b32 v7, 1\ns_mov_b64 exec, 1\nds_add_u32 v6, v7\ns_mov_b64 exec, -1"); lq.append(("c", 0))
    stamp(a, 2)
    a(f"s_setprio {OPT['prioG']}")
    a("s_nop 7")
    for jj in range(4):
        G_ = ACC + 32 * jj; TT = 16 + 16 * (jj & 1)
        P2 = [(G_ + i, TT + i) for i in range(0, 16, 2)]
        for g_, t_ in P2: a(f"v_pk_mul_f32 {vr(t_,2)}, {vr(g_,2)}, {vr(g_,2)}")
        for g_, t_ in P2: a(f"v_pk_fma_f32 {vr(t_,2)}, {vr(t_,2)}, s[{S_K2}:{S_K2+1}], v[4:5]")
        for g_, t_ in P2: a(f"v_pk_mul_f32 {vr(t_,2)}, {vr(t_,2)}, {vr(g_,2)}")
        for g_, t_ in P2: a(f"v_exp_f32 v{t_}, v{t_}\nv_exp_f32 v{t_+1}, v{t_+1}")
        for g_, t_ in P2: a(f"v_pk_mul_f32 {vr(g_,2)}, {vr(g_,2)}, {vr(g_+16,2)}")
        for g_, t_ in P2: a(f"v_pk_add_f32 {vr(t_,2)}, {vr(t_,2)}, 1.0 op_sel_hi:[1,0]")
        for g_, t_ in P2: a(f"v_rcp_f32 v{t_}, v{t_}\nv_rcp_f32 v{t_+1}, v{t_+1}")
        a("s_nop 0")
        for g_, t_ in P2: a(f"v_pk_mul_f32 {vr(g_,2)}, {vr(g_,2)}, {vr(t_,2)}")
        for i in range(8): a(f"v_cvt_pk_bf16_f32 v{G_+16+i}, v{G_+2*i}, v{G_+2*i+1}")
        if OPT.get("st8"):
            for p in range(4):
                a(f"buffer_store_dwordx2 {vr(G_+16+2*p,2)}, v3, {WSR}, s{S_E if p < 2 else S_F} offen offset:{jj*1024 + (p&1)*256} sc1")
        else:
            for m in range(2):
                h0 = G_ + 16 + 4 * m
                if m == 0: a("s_nop 0")
                a(f"v_permlane16_swap_b32 v{h0}, v{h0+2}\nv_permlane16_swap_b32 v{h0+1}, v{h0+3}")
                a(f"buffer_store_dwordx4 {vr(h0,4)}, v2, {WSR}, s{S_E if m == 0 else S_F} offen offset:{jj*1024} sc1")
    if OPT["sentat"] > 31: sentinels()
    a(f"s_lshl_b32 s{S_T}, s{S_A}, 11\ns_lshl_b32 s{S_T+1}, s{S_B}, 7\ns_add_u32 s{S_T}, s{S_T}, s{S_T+1}\ns_add_u32 s{S_T}, s{S_T}, {WS_FLH}")
    stamp(a, 3)
    if OPT.get("lowp"): a("s_setprio 0")
    a("s_waitcnt vmcnt(0)")
    lsync(a, 3, 4, 6, 7, OPT['lsl'])
    lab = a.newlabel("ringdead")
    a(f"v_mov_b32 v6, {LDS_C + 4*10}")
    a.label(lab)
    a(f"ds_read_b32 v7, v6\ns_waitcnt lgkmcnt(0)\nv_readfirstlane_b32 s{S_T+10}, v7\ns_cmp_lt_u32 s{S_T+10}, 8\ns_cbranch_scc1 {lab}")
    stamp(a, 4)
    a(f"s_cmp_lg_u32 s{W}, 0\ns_cbranch_scc1 {lend}")
    a(f"s_mov_b64 exec, 1\nbuffer_store_dword v64, v65, {WSR}, s{S_T} offen sc1\ns_mov_b64 exec, -1")
    a(f"s_branch {lend}")
    a.label(lidle)
    VER, VGR, VLIN = 12, 13, 4
    a(f"s_lshl_b32 s{S_T}, s{W}, 12")
    x_read_addr(a, VXR, T0, T1, T2, S_T)
    a(f"v_bfe_u32 v{T0}, v0, 2, 2\nv_lshl_add_u32 v{T0}, v{T1}, 3, v{T0}\nv_and_b32 v{T2}, 3, v0\nv_lshlrev_b32 v{T2}, 3, v{T2}")
    a(f"v_lshl_add_u32 v{VER}, v{T0}, 5, v{T2}\nv_add_u32 v{VER}, {IEL}, v{VER}\nv_lshlrev_b32 v{VGR}, 4, v{T1}\nv_add_u32 v{VGR}, {IGL}, v{VGR}")
    a(f"v_lshlrev_b32 v{VLIN}, 4, v0\ns_lshl_b32 s{S_F}, s{S_A}, 2\ns_add_u32 s{S_F}, s{S_F}, s{W}   ; tt")
    kernarg_wait(a)
    finish_tag_ack(a, 64, 65)
    lv = a.newlabel("FV"); pub = a.newlabel("Fpub")
    ACK, ACG, XF, EF, GF, P = 32, 48, 16, 24, 88, 80
    sentinels()
    a(f"s_cmp_eq_u32 s{S_B}, 15\ns_cbranch_scc1 {lv}")
    for v in "KV":
        if v == "V": a.label(lv)
        def reads(j):
            b = j & 1; u = j // 4
            a(f"ds_read_b128 {vr(XF+4*b,4)}, v{VXR + j%4} offset:{(u%4)*16384}")
            a(f"ds_read_b64_tr_b16 {vr(EF+4*b,2)}, v{VER} offset:{j*512}\nds_read_b64_tr_b16 {vr(EF+4*b+2,2)}, v{VER} offset:{j*512 + 128}")
            if v == "K": a(f"ds_read_b128 {vr(GF+4*b,4)}, v{VGR} offset:{j*32}")
        for u in range(8):
            a("s_barrier")
            reads(4 * u)
            for ks in range(4):
                j = 4 * u + ks; b = j & 1
                if ks < 3: reads(j + 1); a(f"s_waitcnt lgkmcnt({4 if v == 'K' else 3})")
                else: a("s_waitcnt lgkmcnt(0)")
                cc = (lambda r: "0") if j == 0 else (lambda r: vr(r, 16))
                if v == "K":
                    a(f"v_mfma_f32_32x32x16_bf16 {vr(ACK,16)}, {vr(EF+4*b,4)}, {vr(XF+4*b,4)}, {cc(ACK)}")
                    a(f"v_mfma_f32_32x32x16_bf16 {vr(ACG,16)}, {vr(GF+4*b,4)}, {vr(XF+4*b,4)}, {cc(ACG)}")
                else:
                    a(f"v_mfma_f32_32x32x16_bf16 {vr(ACK,16)}, {vr(XF+4*b,4)}, {vr(EF+4*b,4)}, {cc(ACK)}")
        stamp(a, 2)
        a("s_nop 15")
        if v == "K":
            for j in range(8): a(f"v_mul_f32 v{ACK+j}, {f2u(0.25*LOG2E):#x}, v{ACK+j}")
            for j in range(4): a(f"v_cvt_pk_bf16_f32 v{P+j}, v{ACK+2*j}, v{ACK+2*j+1}")
            a(f"v_and_b32 v{T1}, 0x33, v0\nv_bfe_u32 v{T2}, v0, 2, 1\nv_lshl_or_b32 v{T1}, v{T2}, 3, v{T1}")
            a(f"v_bfe_u32 v{T2}, v0, 3, 1\nv_lshl_or_b32 v{T1}, v{T2}, 2, v{T1}\nv_lshlrev_b32 v{T1}, 4, v{T1}")
            a(f"s_lshl_b32 s{S_T}, s{S_F}, 10\ns_add_u32 s{S_T}, s{S_T}, {WS_KP}")
            a(f"buffer_store_dwordx4 {vr(P,4)}, v{T1}, {WSR}, s{S_T} offen sc1")
            a(f"v_mul_f32 v20, {f2u(-LOG2E):#x}, v{ACG}\nv_exp_f32 v20, v20\nv_and_b32 v21, 31, v0")
            a(f"v_add_f32 v20, 1.0, v20\nv_rcp_f32 v20, v20\nv_lshlrev_b32 v21, 2, v21")
            a(f"s_lshl_b32 s{S_T}, s{S_F}, 7\ns_add_u32 s{S_T}, s{S_T}, {WS_G}")
            a(f"buffer_store_dword v20, v21, {WSR}, s{S_T} offen sc1")
            a(f"v_mul_f32 v{T0}, v{ACK}, v{ACK}")
            for j in range(1, 8): a(f"v_fmac_f32 v{T0}, v{ACK+j}, v{ACK+j}")
            a(f"v_mov_b32 v67, v{T0}\ns_nop 1\nv_permlane32_swap_b32 v{T0}, v67\nv_add_f32 v67, v{T0}, v67")
            wave_max(a, 67)
            a(f"s_mov_b32 s{S_T+1}, {WS_RECK}")
            a(f"s_branch {pub}")
        else:
            for j in range(8): a(f"v_cvt_pk_bf16_f32 v{P+j}, v{ACK+2*j}, v{ACK+2*j+1}")
            a(f"v_and_b32 v{T1}, 16, v0\nv_cmp_ne_u32 vcc, 0, v{T1}")
            a(f"s_lshl_b32 s{S_T}, s{S_F}, 10\ns_add_u32 s{S_T}, s{S_T}, {WS_VP}")
            for j in range(4): a(f"v_cndmask_b32 v{P+j}, v{P+j}, v{P+4+j}, vcc")
            a(f"buffer_store_dwordx4 {vr(P,4)}, v{VLIN}, {WSR}, s{S_T} offen sc1")
            a(f"s_mov_b32 s{S_T+1}, {WS_RECK + 512}\nv_mov_b32 v67, 0")
    a.label(pub)
    a(f"s_lshl_b32 s{S_T}, s{S_F}, 3\ns_add_u32 s{S_T+1}, s{S_T+1}, s{S_T}\nv_mov_b32 v66, s{S_TAG}")
    a("s_mov_b32 exec_lo, 0\ns_mov_b32 exec_hi, 0x80000000\ns_waitcnt vmcnt(0)")
    stamp(a, 3)
    a(f"buffer_store_dwordx2 v[66:67], v65, {WSR}, s{S_T+1} offen sc1\ns_mov_b64 exec, 1")
    a(f"v_mov_b32 v6, {LDS_C + 4*3}\nv_mov_b32 v7, 1\nds_add_u32 v6, v7\ns_mov_b64 exec, -1")
    a("s_barrier")
    epoch_update(a)
    a.label(lend)

def epoch_update(a):
    lab = a.newlabel("noepoch")
    a(f"s_cmp_lg_u32 s{S_ID}, 224\ns_cbranch_scc1 {lab}\ns_cmp_lg_u32 s{W}, 1\ns_cbranch_scc1 {lab}")
    a(f"v_lshlrev_b32 v2, 4, v0\ns_mov_b32 s{S_T+6}, {WS_ACK}\ns_mov_b32 s{S_T+7}, {WS_ACK+4096}")
    loads, regs = [], []
    for i in range(8):
        loads.append(f"buffer_load_dwordx4 {vr(16+4*i,4)}, v2, {WSR}, s{S_T+6+i//4} offen offset:{(i%4)*1024} sc1")
        regs += [16 + 4*i + j for j in range(4)]
    poll(a, loads, regs, sleep=64)
    a(f"s_mov_b64 exec, 1\nbuffer_store_dword v64, v65, {WSR}, 0 offen offset:{WS_EPOCH} sc1\ns_mov_b64 exec, -1")
    a.label(lab)

def ffn2(a):
    a(f"s_and_b32 s{S_T}, s{S_ID}, 1\ns_lshl_b32 s{S_T}, s{S_T}, 4\ns_and_b32 s{S_T+1}, s{S_ID}, 2\ns_lshl_b32 s{S_T+1}, s{S_T+1}, 2")
    a(f"s_add_u32 s{S_T}, s{S_T}, s{S_T+1}\ns_bfe_u32 s{S_T+1}, s{S_ID}, 0x30003\ns_add_u32 s{S_A}, s{S_T}, s{S_T+1}   ; tb64")
    a(f"s_and_b32 s{S_T}, s{S_ID}, 4\ns_lshr_b32 s{S_T+1}, s{S_ID}, 6\ns_add_u32 s{S_B}, s{S_T}, s{S_T+1}   ; cb")
    srd(a, R_W0, S_WD, 1792 * 1024); srd(a, R_W1, S_WO, 512 * 1024); srd(a, R_OUT, S_OUT, 2048 * 1024)
    VWS, VLIN, VR0, VR1, VG = 2, 3, 4, 5, 6
    T0, T1, T2 = 8, 9, 10
    a(f"v_lshrrev_b32 v{T0}, 3, v0\nv_and_b32 v{T1}, 7, v0\nv_bfe_u32 v{T2}, v0, 4, 1\nv_lshlrev_b32 v{T2}, 2, v{T2}")
    a(f"v_xor_b32 v{VWS}, v{T2}, v{T1}\nv_lshlrev_b32 v{VWS}, 4, v{VWS}\nv_lshl_add_u32 v{VWS}, v{T0}, 10, v{VWS}")
    a(f"v_lshlrev_b32 v{VLIN}, 4, v0")
    a(f"v_lshrrev_b32 v{T1}, 5, v0\nv_bfe_u32 v{T0}, v0, 2, 2\nv_lshl_add_u32 v{T0}, v{T1}, 2, v{T0}\nv_and_b32 v{T2}, 3, v0")
    a(f"v_lshlrev_b32 v{T2}, 3, v{T2}\nv_lshl_add_u32 v{VR0}, v{T0}, 7, v{T2}\nv_bfe_u32 v{T0}, v0, 4, 1\nv_bfe_u32 v{T2}, v0, 3, 1")
    a(f"v_lshl_or_b32 v{T0}, v{T2}, 1, v{T0}\nv_xor_b32 v{T2}, 2, v{T0}")
    a(f"v_lshl_add_u32 v{VR1}, v{T2}, 5, v{VR0}\nv_lshl_add_u32 v{VR0}, v{T0}, 5, v{VR0}")
    a(f"s_mul_i32 s{S_M0B}, s{W}, 20480")
    a(f"v_add_u32 v{VR0}, s{S_M0B}, v{VR0}\nv_add_u32 v{VR1}, s{S_M0B}, v{VR1}")
    a(f"v_lshlrev_b32 v{T1}, 9, v{T1}\nv_add_u32 v14, v{VR0}, v{T1}\nv_add_u32 v15, v{VR1}, v{T1}")
    a(f"s_lshl_b32 s{S_T}, s{S_B}, 7\ns_lshl_b32 s{S_C}, s{W}, 14\ns_add_u32 s{S_C}, s{S_C}, s{S_T}")
    a(f"s_mul_i32 s{S_D}, s{S_A}, {2*112*1024}\ns_lshl_b32 s{S_T}, s{W}, 10\ns_add_u32 s{S_D}, s{S_D}, s{S_T}")
    a(f"s_add_u32 s{S_D}, s{S_D}, {WS_HP}\ns_add_u32 s{S_E}, s{S_D}, {112*1024}")
    a(f"s_lshl_b32 s{S_T}, s{S_B}, 1\ns_add_u32 s{S_T}, s{S_T}, s{S_A}\ns_and_b32 s{S_T}, s{S_T}, {OPT['rot2']}")
    a(f"s_mul_i32 s{S_T}, s{S_T}, 7\ns_lshr_b32 s{S_T}, s{S_T}, 1\ns_lshl_b32 s{S_K2}, s{S_T}, 16\ns_lshl_b32 s{S_K3}, s{S_T}, 12")
    ACC, HF, FW = 64, 128, (16, 24)
    NS, D = 28, 8
    q = []
    def issueW(n):
        a(f"s_add_u32 s{S_T+1}, s{S_C}, s{S_K2}")
        for p in range(2):
            dma(a, VWS, R_W0, S_T, S_T + 1, p * 8192, (n % D) * 2048 + p * 1024); q.append(("W", n))
        a(f"s_add_u32 s{S_K2}, s{S_K2}, 65536\ns_cmp_eq_u32 s{S_K2}, {28*65536}\ns_cselect_b32 s{S_K2}, 0, s{S_K2}")
    def issueWo(n):
        for p in range(2):
            dma(a, VWS, R_W1, S_T, S_G, (n - NS) * 16384 + p * 8192, (n % D) * 2048 + p * 1024); q.append(("W", n))
    def issueH(n):
        a(f"s_add_u32 s{S_T}, s{S_D}, s{S_K3}\ns_add_u32 s{S_T+1}, s{S_E}, s{S_K3}")
        a(f"s_add_u32 s{S_K3}, s{S_K3}, 4096\ns_cmp_eq_u32 s{S_K3}, {28*4096}\ns_cselect_b32 s{S_K3}, 0, s{S_K3}")
        a(f"buffer_load_dwordx4 {vr(HF+(n%D)*8,4)}, v{VLIN}, {WSR}, s{S_T} offen{SC()}"); q.append(("H", n))
        a(f"buffer_load_dwordx4 {vr(HF+(n%D)*8+4,4)}, v{VLIN}, {WSR}, s{S_T+1} offen{SC()}"); q.append(("H", n))
    def waitfor(tags):
        idx = max((i for i, t in enumerate(q) if t in tags), default=-1)
        n = len(q) - 1 - idx
        del q[:idx + 1]
        a(f"s_waitcnt vmcnt({n})")
    def rd_list(n):
        b = n & 1
        return [f"ds_read_b64_tr_b16 {vr(FW[b]+4*ct+2*hf,2)}, v{14+ct} offset:{(n%D)*2048 + hf*512}" for ct in range(2) for hf in range(2)]
    a(f"s_lshl_b32 s{S_G}, s{W}, 17\ns_lshl_b32 s{S_T}, s{S_B}, 7\ns_add_u32 s{S_G}, s{S_G}, s{S_T}")
    for n in range(OPT.get("wpre", 2)): issueW(n)
    lab = a.newlabel("nopoll")
    a(f"s_cmp_lg_u32 s{W}, 0\ns_cbranch_scc1 {lab}")
    a(f"s_lshr_b32 s{S_T+4}, s{S_A}, 1\ns_lshl_b32 s{S_T+4}, s{S_T+4}, 11\ns_add_u32 s{S_T+4}, s{S_T+4}, {WS_FLH}")
    a(f"s_lshl_b32 s{S_T+5}, s{S_A}, 4\ns_add_u32 s{S_T+5}, s{S_T+5}, {WS_RECK}")
    a(f"v_lshlrev_b32 v11, 7, v0\nv_add_u32 v11, s{S_T+4}, v11\nv_and_b32 v12, 1, v0\nv_lshlrev_b32 v12, 3, v12\nv_add_u32 v12, s{S_T+5}, v12")
    a(f"v_and_b32 v13, 32, v0\nv_lshl_add_u32 v12, v13, 4, v12")
    a(f"v_cmp_gt_u32 vcc, 14, v0\ns_nop 1\nv_cndmask_b32 v11, v12, v11, vcc")
    poll(a, [f"buffer_load_dword v13, v11, {WSR}, 0 offen sc1"], [13], sleep=12)
    a.label(lab)
    a("s_waitcnt vmcnt(0)")
    lsync(a, 4, 4, 11, 12, 4 * OPT['lsl'])
    q.clear()
    stamp(a, 5)
    a(f"s_setprio {OPT['prioD']}")
    for n in range(D):
        if n >= OPT.get("wpre", 2): issueW(n)
        issueH(n)
    a(f"s_lshl_b32 s{S_T}, s{S_A}, 8\ns_add_u32 s{S_T}, s{S_T}, {WS_G}\nv_and_b32 v{T0}, 31, v0\nv_lshlrev_b32 v{T0}, 2, v{T0}")
    for m in range(2):
        a(f"buffer_load_dword v{VG+m}, v{T0}, {WSR}, s{S_T} offen offset:{128*m}{SC()}"); q.append(("G", 0))
    waitfor({("W", 0)})
    for l in rd_list(0): a(l)
    def step(n, bsrc, extra=None):
        b = n & 1
        rl = rd_list(n + 1) if n + 1 < NS + 8 else []
        for k in range(4):
            ct, m = k // 2, k % 2
            acc = ACC + 16 * k
            c = "0" if n == 0 else vr(acc, 16)
            a(f"v_mfma_f32_32x32x16_bf16 {vr(acc,16)}, {vr(FW[b]+4*ct,4)}, {vr(bsrc+4*m,4)}, {c}")
            for _ in range(2):
                if rl: a(rl.pop(0))
            if k == 2 and extra: extra()
            if OPT.get("space") and k != 2: a(f"s_nop {OPT['space']}")
    a(f"s_lshl_b32 s{S_F}, s{S_A}, 16\ns_lshl_b32 s{S_T}, s{W}, 13\ns_add_u32 s{S_F}, s{S_F}, s{S_T}\ns_add_u32 s{S_F}, s{S_F}, {WS_OP}")
    a(f"v_and_b32 v11, 3, v0\nv_lshlrev_b32 v11, 11, v11\nv_and_b32 v12, 4, v0\nv_lshl_add_u32 v11, v12, 13, v11")
    a(f"v_lshl_add_u32 v{T0}, v0, 4, s{S_M0B}")
    a(f"v_lshlrev_b32 v{T1}, 4, v0\ns_lshl_b32 s{S_T}, s{W}, 12\nv_add_u32 v{T1}, s{S_T}, v{T1}")
    a(f"v_and_b32 v{T2}, 31, v0\nv_lshlrev_b32 v{T2}, 10, v{T2}\nv_and_b32 v12, 32, v0\nv_lshrrev_b32 v12, 1, v12\nv_add_u32 v{T2}, v{T2}, v12")
    a(f"s_lshl_b32 s{S_K0}, s{S_A}, 16\ns_lshl_b32 s{S_T+1}, s{S_B}, 7\ns_add_u32 s{S_K0}, s{S_K0}, s{S_T+1}")
    a(f"s_and_b32 s{S_T+1}, s{W}, 1\ns_lshl_b32 s{S_T+1}, s{S_T+1}, 15\ns_add_u32 s{S_K0}, s{S_K0}, s{S_T+1}")
    a(f"s_and_b32 s{S_T+1}, s{W}, 2\ns_lshl_b32 s{S_T+1}, s{S_T+1}, 5\ns_add_u32 s{S_K0}, s{S_K0}, s{S_T+1}")
    HOLD = OPT["hold"]; NF = NS - HOLD; R_ = HOLD - 8
    assert 8 <= HOLD <= 16
    WX, HX, NSL = 192, 32, 10
    def mm(n, wsrc, bsrc, rl=(), extra=None, dst=None, src=None):
        rl = list(rl)
        for k in range(4):
            ct, m = k // 2, k % 2
            acc = ACC + 16 * k
            d_ = (dst or ACC) + 16 * k; c_ = (src or dst or ACC) + 16 * k
            a(f"v_mfma_f32_32x32x16_bf16 {vr(d_,16)}, {vr(wsrc+4*ct,4)}, {vr(bsrc+4*m,4)}, {'0' if n == 0 else vr(c_,16)}")
            for _ in range(2):
                if rl: a(rl.pop(0))
            if k == 2 and extra: extra()
    def rd(dst, slot, wo=False): return [f"ds_read_b64_tr_b16 {vr(dst+4*ct+2*hf,2)}, v{(VR0,VR1)[ct] if wo else 14+ct} offset:{slot*2048 + hf*(1024 if wo else 512)}" for ct in range(2) for hf in range(2)]
    def wo_dma(j, slot):
        for p in range(2): dma(a, VWS, R_W1, S_T, S_G, j * 16384 + p * 8192, slot * 2048 + p * 1024); q.append(("O", j))
    def h_load(dst, tag):
        a(f"s_add_u32 s{S_T}, s{S_D}, s{S_K3}\ns_add_u32 s{S_T+1}, s{S_E}, s{S_K3}")
        a(f"s_add_u32 s{S_K3}, s{S_K3}, 4096\ns_cmp_eq_u32 s{S_K3}, {28*4096}\ns_cselect_b32 s{S_K3}, 0, s{S_K3}")
        a(f"buffer_load_dwordx4 {vr(dst,4)}, v{VLIN}, {WSR}, s{S_T} offen{SC()}\nbuffer_load_dwordx4 {vr(dst+4,4)}, v{VLIN}, {WSR}, s{S_T+1} offen{SC()}")
        q.append(tag); q.append(tag)
    for n in range(NF):
        waitfor({("H", n), ("W", n + 1)})
        a("s_waitcnt lgkmcnt(0)")
        mm(n, FW[n & 1], HF + (n % D) * 8, rd(FW[(n + 1) & 1], (n + 1) % D) if n + 1 < NF else [], lambda: issueW(n + D))
        issueH(n + D)
    a("s_waitcnt vmcnt(0)"); q.clear()
    for i in range(8):
        for l in rd(WX + 8 * i, (NF + i) % D): a(l)
        if i % 3 == 2: a("s_waitcnt lgkmcnt(4)")
    a("s_waitcnt lgkmcnt(0)")
    for i in range(R_):
        a(f"s_add_u32 s{S_T+1}, s{S_C}, s{S_K2}")
        for p in range(2): dma(a, VWS, R_W0, S_T, S_T + 1, p * 8192, i * 2048 + p * 1024)
        a(f"s_add_u32 s{S_K2}, s{S_K2}, 65536\ns_cmp_eq_u32 s{S_K2}, {28*65536}\ns_cselect_b32 s{S_K2}, 0, s{S_K2}")
        if i < 4: h_load(HX + 8 * i, ("h", i))
    NPRE = min(8, NSL - R_)
    oslot = lambda j: R_ + j if j < NPRE else j - NPRE
    for j in range(NPRE): wo_dma(j, oslot(j))
    a("s_waitcnt vmcnt(0)"); q.clear()
    A1 = list(range(min(R_, 4))); A2 = list(range(4, R_))
    ringseq = A1 + A2 + [oslot(0)]
    for l in rd(FW[0], ringseq[0], R_ == 0): a(l)
    stamp(a, 6)
    lab = a.newlabel("hold")
    a(f"v_mov_b32 v12, {LDS_C + 4*1}")
    a.label(lab)
    a(f"s_sleep {OPT.get('hsl', 2)}\nds_read_b32 v13, v12\ns_waitcnt lgkmcnt(0)\nv_readfirstlane_b32 s{S_T+10}, v13\ns_cmp_lt_u32 s{S_T+10}, {OPT.get('holdn', 1)}\ns_cbranch_scc1 {lab}")
    if OPT.get("dbgat") == 11: a("s_memrealtime s[8:9]")
    a(f"s_setprio {OPT['prioG']}")
    def free_slot(i):
        if NPRE + i < 8: wo_dma(NPRE + i, i)
    for i in A1:
        a("s_waitcnt lgkmcnt(0)")
        mm(1, FW[i & 1], HX + 8 * i, rd(FW[(i + 1) & 1], ringseq[i + 1], i + 1 == R_))
        if i + 4 < R_: h_load(HX + 8 * i, ("h", i + 4))
    for i in range(8): mm(1, WX + 8 * i, HF + ((NF + i) % D) * 8, extra=(lambda: free_slot(i)) if i in A1 else None)
    for i in A2:
        waitfor({("h", i)})
        a("s_waitcnt lgkmcnt(0)")
        mm(1, FW[i & 1], HX + 8 * (i - 4), rd(FW[(i + 1) & 1], ringseq[i + 1], i + 1 == R_), lambda: free_slot(i))
    a(f"v_sub_f32 v{VG}, 1.0, v{VG}\nv_sub_f32 v{VG+1}, 1.0, v{VG+1}")
    a(f"s_add_u32 s{S_D}, s{S_F}, 4096\ns_add_u32 s{S_E}, s{S_F}, 32768\ns_add_u32 s{S_C}, s{S_E}, 4096")
    a("s_nop 7")
    for k in range(4):
        for i in range(0, 16, 2):
            sel = "op_sel:[0,0] op_sel_hi:[1,0]" if k % 2 == 0 else "op_sel:[0,1] op_sel_hi:[1,1]"
            a(f"v_pk_mul_f32 {vr(ACC+16*k+i,2)}, {vr(ACC+16*k+i,2)}, {vr(VG,2)} {sel}")
    stamp(a, 7)
    again = a.newlabel("oagain"); ok = a.newlabel("ook"); fin = a.newlabel("ofin")
    a(f"s_mov_b32 s{S_T+10}, 0x40000")
    a.label(again)
    a(f"buffer_load_dword v13, v11, {WSR}, s{S_F} offen offset:2044 sc1")
    a(f"s_sub_u32 s{S_T+10}, s{S_T+10}, 1")
    a(f"s_waitcnt vmcnt(0)\nv_cmp_eq_u32 vcc, -1, v13\ns_cbranch_vccz {ok}")
    a(f"s_mov_b64 exec, vcc\n{'s_sleep 1' if OPT['wsl'] else 's_nop 0'}\ns_cmp_gt_i32 s{S_T+10}, 0\ns_cbranch_scc1 {again}")
    a.label(ok)
    a("s_mov_b64 exec, -1")
    q.clear()
    stamp(a, 8)
    for j in range(8):
        for m in range(2):
            sreg = (S_F, S_E, S_D, S_C)[m + 2 * (j // 4)]
            a(f"buffer_load_dwordx4 {vr(HF+8*j+4*m,4)}, v{VLIN}, {WSR}, s{sreg} offen offset:{(j%4)*1024} sc1")
    a("v_mov_b32 v12, 0")
    for j in range(8):
        a(f"s_waitcnt vmcnt({14 - 2*j}) lgkmcnt(0)")
        chk = [f"v_max3_u32 v12, v12, v{HF+8*j+2*i}, v{HF+8*j+2*i+1}" for i in range(4)]
        rl = rd(FW[(R_ + j + 1) & 1], oslot(j + 1), True) if j < 7 else []
        mm(1, FW[(R_ + j) & 1], HF + 8 * j, [x for p in zip(rl or chk, chk) for x in p] if rl else chk, dst=WX, src=ACC if j == 0 else WX)
    a(f"v_cmp_eq_u32 vcc, -1, v12\ns_cbranch_vccz {fin}")
    a(f"s_cmp_le_i32 s{S_T+10}, 0\ns_cbranch_scc1 {fin}")
    for l in rd(FW[R_ & 1], oslot(0), True): a(l)
    a(f"s_branch {again}")
    a.label(fin)
    stamp(a, 9)
    RB = 128
    for w in range(4):
        lab = a.newlabel("red")
        if w < 3: a(f"s_cmp_lg_u32 s{W}, {w}\ns_cbranch_scc1 {lab}")
        a("s_nop 7")
        others = [d for d in range(4) if d != w]
        for d in others:
            for i in range(4): a(f"ds_write_b128 v{T0}, {vr(WX+16*d+4*i,4)} offset:{d*4096 + i*1024}")
        if OPT["fbar"]: a("s_waitcnt lgkmcnt(0)\ns_barrier")
        else: lsync(a, 5, 4, 11, 12)
        for k, d in enumerate(others):
            for i in range(4): a(f"ds_read_b128 {vr(RB+16*k+4*i,4)}, v{T1} offset:{d*20480 + i*1024}")
        own = WX + 16 * w
        for k in range(3):
            a(f"s_waitcnt lgkmcnt({8 - 4*k})")
            for i in range(0, 16, 2): a(f"v_pk_add_f32 {vr(own+i,2)}, {vr(own+i,2)}, {vr(RB+16*k+i,2)}")
        for i in range(8): a(f"v_cvt_pk_bf16_f32 v{32+i}, v{own+2*i}, v{own+2*i+1}")
        if w < 3:
            a("s_branch L_out"); a.label(lab)
    a.label("L_out")
    a("s_nop 1")
    a("v_permlane32_swap_b32 v32, v34\nv_permlane32_swap_b32 v33, v35\nv_permlane32_swap_b32 v36, v38\nv_permlane32_swap_b32 v37, v39")
    a(f"buffer_store_dwordx4 v[32:35], v{T2}, {rs(R_OUT)}, s{S_K0} offen{['', ' sc1', ' nt', ' sc0 sc1', ' sc0'][OPT['outsc']]}")
    a(f"buffer_store_dwordx4 v[36:39], v{T2}, {rs(R_OUT)}, s{S_K0} offen offset:32{['', ' sc1', ' nt', ' sc0 sc1', ' sc0'][OPT['outsc']]}")

KD = """.section .rodata,"a"
.p2align 6
.amdhsa_kernel {k}
  .amdhsa_next_free_vgpr 256
  .amdhsa_next_free_sgpr 102
  .amdhsa_accum_offset 256
  .amdhsa_group_segment_fixed_size 0
  .amdhsa_kernarg_size 104
  .amdhsa_user_sgpr_count 2
  .amdhsa_user_sgpr_kernarg_segment_ptr 1
  .amdhsa_system_sgpr_workgroup_id_x 1
.end_amdhsa_kernel
"""

def gen():
    a = Asm()
    ref = open(f"cdna_kernels/{NAME}.s.ref").read().split("\n")
    H = [l for l in ref if l.startswith(";") and "@launch" not in l]
    H += ["; @launch grid=(256,1,1) block=(512,1,1) lds=163840"]
    H += ["; " + l for l in """
One workgroup per CU, 8 waves: waves 0..3 ('A') and waves 4..7 ('F') share each SIMD.
 stage 1  block (128 tokens, slot s): A waves stream x / weights into LDS (LDS-DMA) and project Q for heads 2s, 2s+1;
          F waves compute gate/up for 128 columns + GELU (slots 0..13) or K*scale, V and the gate (slots 14, 15).
 A then   keeps all of K/V in registers (keys split over the 4 waves), S = K Q^T, exp2, and P V with a sparse MFMA that
          reads the upper halves of the fp32 probabilities directly; row sums come from a row of ones in V.
          No shift is subtracted while max|q| max|k| <= 60 (checked at run time, Cauchy-Schwarz); otherwise a second
          code path subtracts the true row maximum (two passes).
 F then   computes out[64x64] = (1-g) (H Wd) + (g O) Wo with K split over its 4 waves.
Hand-offs between workgroups (K, V, g, H, O) are write-through stores + tagged flags / markers in d_ws; the tag is
derived from an epoch word that each launch advances once every wave has read it.
""".strip("\n").split("\n")]
    k = NAME + "_kernel"
    a.raw(f'.amdgcn_target "amdgcn-amd-amdhsa--gfx950"\n.text\n.globl {k}\n.p2align 8\n.type {k},@function\n{k}:')
    a("s_cmp_ge_u32 s2, 256\ns_cbranch_scc1 L_exit")
    stamp(a, 0); stamp_init(a)
    if OPT.get("dbg"): a("s_memrealtime s[4:5]")
    a("s_load_dwordx16 s[16:31], s[0:1], 0\ns_load_dwordx8 s[32:39], s[0:1], 64\ns_load_dwordx2 s[40:41], s[0:1], 96")
    a(f"v_lshrrev_b32 v1, 6, v0\nv_and_b32 v0, 63, v0\nv_readfirstlane_b32 s3, v1\ns_mov_b32 s{S_ID}, s2")
    decode(a)
    a(f"s_and_b32 s{W}, s3, 3\ns_lshl_b32 s{S_M0B}, s{W}, 10")
    a("s_cmp_ge_u32 s3, 4\ns_cbranch_scc1 L_roleF")
    a(f"s_setprio {OPT['prioL']}")
    roleA(a)
    a.raw(".p2align 6"); a.label("L_roleF"); a.roleF = 1
    a(f"s_setprio {OPT['prioF']}")
    if OPT["cpf"]:
        a("s_getpc_b64 s[70:71]")
        a.label("L_pc")
        a(f"s_sub_u32 s70, s70, L_pc - {k}\ns_subb_u32 s71, s71, 0")
        a(f"s_lshr_b32 s72, s{S_ID}, 3\ns_lshl_b32 s72, s72, 2\ns_add_u32 s72, s72, s{W}\ns_lshl_b32 s72, s72, 10")
        a(f"s_cmp_ge_u32 s72, L_exit - {k} - 1024\ns_cbranch_scc1 L_nocpf")
        a("s_add_u32 s70, s70, s72\ns_addc_u32 s71, s71, 0")
        a("v_lshlrev_b32 v30, 4, v0\nv_mov_b32 v31, s71\nv_add_co_u32 v30, vcc, s70, v30\ns_nop 1\nv_addc_co_u32 v31, vcc, 0, v31, vcc")
        a("global_load_dwordx4 v[112:115], v[30:31], off")
        a.label("L_nocpf")
    ffn1(a)
    ffn2(a); stamp_dump(a)
    if OPT.get("dbg"):
        a(f"s_cmp_ge_u32 s2, 8\ns_cbranch_scc1 L_exit\ns_cmp_lg_u32 s{W}, 0\ns_cbranch_scc1 L_exit")
        if "only" in OPT: a(f"s_cmp_lg_u32 s2, {OPT['only']}\ns_cbranch_scc1 L_exit")
        a("s_waitcnt vmcnt(0)")
        a.label("L_dbgspin")
        a("s_memrealtime s[6:7]\ns_waitcnt lgkmcnt(0)")
        if OPT.get("spin"): a(f"s_sub_u32 s10, s6, {'s8' if OPT.get('dbgat') else 's4'}\ns_cmp_lt_u32 s10, {OPT['spin']}\ns_cbranch_scc1 L_dbgspin")
        srd(a, R_W0, S_DBG, 256)
        a(f"s_lshl_b32 s8, s2, 2\nv_mov_b32 v1, s8\nv_mov_b32 v2, s4\nv_mov_b32 v3, s6\ns_mov_b64 exec, 1")
        a(f"buffer_store_dword v2, v1, {rs(R_W0)}, 0 offen\nbuffer_store_dword v3, v1, {rs(R_W0)}, 0 offen offset:32")
    a.label("L_exit")
    a("s_endpgm")
    return "\n".join(H) + "\n" + a.text() + KD.format(k=k)

if __name__ == "__main__":
    if "--diag" in sys.argv: DIAG = True
    for x in sys.argv[2:]:
        if "=" in x:
            k, v = x.split("="); OPT[k] = int(v)
    open(sys.argv[1], "w").write(gen())
```

```python
import sys, math, struct

NAME = "gated_mix__grouped_kv_mqa__glu_gated_geglu__prompt"

WS_EPOCH = 0x0
WS_ACK = 0x6000
WS_KP = 0x10000
WS_VP = 0x20000
WS_G = 0x30000
WS_RECK = 0x40000
WS_PRE = 0x50000
WS_FLH = 0x80000
WS_FLO = 0xA0000
WS_QP = 0x100000
WS_OP = 0x300000
WS_HP = 0x500000
WS_DIAG = 0xE00000
WS_SIZE = 0x10000000
OPT = dict(prioA=1, prioF=2, prioG=2, prioD=0, prioL=3, sleep=4, sc1=1, rot=7, rot2=7, thr=60, clk=0, look=11, kvat=13, kvpre=3, qfirst=16, cl=3, kvper=4, wpre=2, w0=6, xup=3, ramp=2, xper=2, barpos=0, lsl=0, outsc=0, nw=10, lastbar=13, hold=14, cpf=1, prioT=3, sentat=99, pfx=0, pfw=0, vlag=8, hst=0, fbar=1, wsl=1, jm=1, bud=20)
DIAG = False

LOG2E = 1.4426950408889634
def f2u(x): return struct.unpack("<I", struct.pack("<f", x))[0]
def SC(): return " sc1" if OPT["sc1"] else ""

class Asm:
    def __init__(self): self.L = []; self.uid = 0
    def __call__(self, s):
        for line in s.split("\n"): self.L.append("    " + line.strip())
    def label(self, n): self.L.append(n + ":")
    def raw(self, s): self.L.append(s)
    def newlabel(self, p):
        self.uid += 1
        return f"L_{p}_{self.uid}"
    def text(self): return "\n".join(self.L) + "\n"

def vr(a, n=1): return f"v{a}" if n == 1 else f"v[{a}:{a+n-1}]"

S_X, S_WQ, S_WK, S_WV, S_WO, S_BX, S_WG, S_WU = 16, 18, 20, 22, 24, 26, 28, 30
S_WD, S_GW, S_OUT, S_DBG, S_WSP = 32, 34, 36, 38, 40
R_X, R_WS, R_W0, R_W1, R_OUT = 44, 48, 52, 56, 60
S_WAVE, S_TAG = 64, 65
S_T = 66
S_ID, S_M0B = 80, 81
S_A, S_B, S_C, S_D, S_E, S_F = 82, 83, 84, 85, 86, 87
S_G, S_H = 88, 89
S_K0, S_K1, S_K2, S_K3 = 90, 91, 92, 93
W = S_WAVE
WSR = f"s[{R_WS}:{R_WS+3}]"
def rs(r): return f"s[{r}:{r+3}]"

STAMP_REGS = [4, 6, 8, 10, 12, 14, 42, 94, 96, 98, 100]
def stamp(a, i, force=False):
    if OPT.get("dbgat") == i and getattr(a, "roleF", 0): a("s_memrealtime s[8:9]")
    if OPT.get("fst") and getattr(a, "roleF", 0) and 5 <= i <= 9 and not force: return
    if DIAG: a(f"{'s_memtime' if OPT['clk'] else 's_memrealtime'} s[{STAMP_REGS[i]}:{STAMP_REGS[i]+1}]")
def stamp_init(a):
    if DIAG:
        for r in STAMP_REGS[1:]: a(f"s_mov_b32 s{r}, 0")
def stamp_dump(a):
    if not DIAG: return
    a("s_waitcnt vmcnt(0) lgkmcnt(0)")
    stamp(a, 10)
    a("s_waitcnt lgkmcnt(0)")
    a(f"s_lshl_b32 s{S_T}, s2, 2\ns_add_u32 s{S_T}, s{S_T}, s{W}\ns_add_u32 s{S_T}, s{S_T}, {1024 if getattr(a, 'roleF', 0) else 0}\ns_lshl_b32 s{S_T}, s{S_T}, 6\ns_add_u32 s{S_T}, s{S_T}, {WS_DIAG}")
    a("s_mov_b64 exec, 1\nv_mov_b32 v1, 0")
    for i, r in enumerate(STAMP_REGS):
        a(f"v_mov_b32 v2, s{r}\nbuffer_store_dword v2, v1, {WSR}, s{S_T} offen offset:{4*i}\ns_nop 1")

def srd(a, r, p, size):
    a(f"s_mov_b32 s{r}, s{p}\ns_mov_b32 s{r+1}, s{p+1}\ns_mov_b32 s{r+2}, {size:#x}\ns_mov_b32 s{r+3}, 0x20000")

def kernarg_wait(a):
    a("s_waitcnt lgkmcnt(0)")
    a(f"s_load_dword s{S_TAG}, s[40:41], {WS_EPOCH}")
    srd(a, R_X, S_X, 2048 * 1024)

def finish_tag_ack(a, v0_, v1_):
    srd(a, R_WS, S_WSP, WS_SIZE)
    a(f"s_lshl_b32 s{S_T+2}, s2, 5\ns_lshl_b32 s{S_T+3}, s{W}, 2\ns_add_u32 s{S_T+2}, s{S_T+2}, s{S_T+3}")
    a(f"s_add_u32 s{S_T+2}, s{S_T+2}, {WS_ACK + (16 if getattr(a, 'roleF', 0) else 0)}")
    a(f"v_mov_b32 v{v1_}, 0")
    a("s_waitcnt lgkmcnt(0)")
    a(f"s_mul_i32 s{S_TAG}, s{S_TAG}, 0x9E3779B1")
    a(f"s_add_u32 s{S_TAG}, s{S_TAG}, 0x7F4A7C15")
    a(f"v_mov_b32 v{v0_}, s{S_TAG}")
    a("s_mov_b64 exec, 1")
    a(f"buffer_store_dword v{v0_}, v{v1_}, {WSR}, s{S_T+2} offen sc1")
    a("s_mov_b64 exec, -1")

def dma(a, vaddr, r, soff_reg, soff_base, soff_imm, lds_imm):
    a(f"s_add_u32 m0, s{S_M0B}, {lds_imm}")
    a(f"s_add_u32 s{soff_reg}, s{soff_base}, {soff_imm}")
    nt = " nt" if (OPT.get("ntx") and r == R_X) or (OPT.get("nt2") and getattr(a, "roleF", 0)) else ""
    a(f"buffer_load_dwordx4 v{vaddr}, {rs(r)}, s{soff_reg} offen{nt} lds")

def wave_max(a, v):
    for m in ("row_shr:1", "row_shr:2", "row_shr:4", "row_shr:8", "row_bcast:15 row_mask:0xa", "row_bcast:31 row_mask:0xc"):
        a("s_nop 1")
        a(f"v_max_u32_dpp v{v}, v{v}, v{v} {m}")

def poll(a, loads, regs, sleep=None):
    lab = a.newlabel("poll"); out = a.newlabel("polled")
    sleep = sleep or OPT["sleep"]
    masked = len(loads) == 1 and len(regs) == 1
    a(f"s_mov_b32 s{S_T+10}, 0x40000")
    a.label(lab)
    for l in loads: a(l)
    a("s_waitcnt vmcnt(0)")
    a(f"v_cmp_ne_u32 vcc, s{S_TAG}, v{regs[0]}")
    for r in regs[1:]:
        a(f"v_cmp_ne_u32 s[{S_T+12}:{S_T+13}], s{S_TAG}, v{r}")
        a(f"s_or_b64 vcc, vcc, s[{S_T+12}:{S_T+13}]")
    a(f"s_cbranch_vccz {out}")
    if masked: a("s_mov_b64 exec, vcc")
    a(f"s_sleep {sleep}")
    a(f"s_sub_u32 s{S_T+10}, s{S_T+10}, 1\ns_cmp_lg_u32 s{S_T+10}, 0\ns_cbranch_scc1 {lab}")
    a.label(out)
    if masked: a("s_mov_b64 exec, -1")

def x_src_addr(a, V, T0, T1, T2):
    a(f"v_lshrrev_b32 v{T0}, 3, v0\nv_and_b32 v{T1}, 7, v0\nv_lshrrev_b32 v{T2}, 1, v{T0}")
    a(f"s_and_b32 s{S_T}, s{W}, 1\ns_lshl_b32 s{S_T}, s{S_T}, 2")
    a(f"v_or_b32 v{V}, s{S_T}, v{T2}\nv_xor_b32 v{V}, v{V}, v{T1}\nv_lshlrev_b32 v{V}, 4, v{V}")
    a(f"v_lshl_add_u32 v{V}, v{T0}, 10, v{V}")

def x_read_addr(a, V, T0, T1, T2, sbase=None):
    a(f"v_and_b32 v{T0}, 31, v0\nv_lshrrev_b32 v{T1}, 5, v0\nv_bfe_u32 v{T2}, v0, 1, 3\nv_xor_b32 v{T2}, v{T2}, v{T1}")
    a(f"v_lshlrev_b32 v{T0}, 7, v{T0}")
    if sbase is not None: a(f"v_add_u32 v{T0}, s{sbase}, v{T0}")
    for ks in range(4):
        a(f"v_xor_b32 v{V+ks}, {2*ks}, v{T2}\nv_lshl_add_u32 v{V+ks}, v{V+ks}, 4, v{T0}")

XL, QWL, WL = 0, 49152, 61440
IXL, IQL, IEL, IGL = 0, 65536, 81920, 98304
PART = 2176
LDS_P = 81920
LDS_Q = LDS_P + 32 * PART
LDS_X = LDS_Q + 8192
LDS_C = LDS_X + 1088
assert LDS_X + 4096 == 163840

def lsync(a, idx, n, va, vb, slp=0):
    lab = a.newlabel("ls")
    a(f"v_mov_b32 v{va}, {LDS_C + 4*idx}\nv_mov_b32 v{vb}, 1\ns_mov_b64 exec, 1\nds_add_u32 v{va}, v{vb}\ns_mov_b64 exec, -1")
    if slp:
        l2 = a.newlabel("ls")
        a(f"s_branch {l2}")
        a.label(lab)
        a(f"s_sleep {slp}")
        a.label(l2)
    else:
        a.label(lab)
    a(f"ds_read_b32 v{vb}, v{va}\ns_waitcnt lgkmcnt(0)\nv_readfirstlane_b32 s{S_T+10}, v{vb}\ns_cmp_lt_u32 s{S_T+10}, {n}\ns_cbranch_scc1 {lab}")

def decode(a):
    a(f"s_lshr_b32 s{S_T+1}, s{S_ID}, 3\ns_bfe_u32 s{S_T}, s{S_ID}, 0x20001\ns_and_b32 s{S_T+2}, s{S_ID}, 1\ns_lshl_b32 s{S_T+2}, s{S_T+2}, 3")
    a(f"s_mul_i32 s{S_T+3}, s{S_T}, 28\ns_add_u32 s{S_T+3}, s{S_T+3}, s{S_T+1}\ns_lshr_b32 s{S_B}, s{S_T+3}, 3\ns_and_b32 s{S_A}, s{S_T+3}, 7")
    a(f"s_lshl_b32 s{S_T}, s{S_T}, 1\ns_bfe_u32 s{S_T+3}, s{S_T+1}, 0x10001\ns_add_u32 s{S_T}, s{S_T}, s{S_T+3}")
    a(f"s_and_b32 s{S_T+3}, s{S_T+1}, 1\ns_add_u32 s{S_T+3}, s{S_T+3}, 14")
    a(f"s_cmp_ge_u32 s{S_ID}, 224\ns_cselect_b32 s{S_A}, s{S_T}, s{S_A}\ns_cselect_b32 s{S_B}, s{S_T+3}, s{S_B}")
    a(f"s_add_u32 s{S_A}, s{S_A}, s{S_T+2}")
    a(f"s_lshl_b32 s{S_F}, s{S_B}, 1\ns_add_u32 s{S_F}, s{S_F}, s{S_A}\ns_and_b32 s{S_F}, s{S_F}, {OPT['rot']}")

class VQ:
    def __init__(self, a): self.a = a; self.q = []
    def add(self, t, n=1): self.q += [t] * n; self.total = getattr(self, "total", 0) + n
    def wait(self, tags):
        idx = max((i for i, t in enumerate(self.q) if t in tags), default=-1)
        n = len(self.q) - 1 - idx
        del self.q[:idx + 1]
        assert n < 64
        self.a(f"s_waitcnt vmcnt({n})")

def roleA(a):
    VL16, VIDX, VL4, VO, VGO, VLQ = 1, 2, 3, 4, 5, 12
    VXS, VQS, VXR, VQR, VGS, VUS = 6, 7, 8, 13, 14, 15
    QB = 8; SB = (16, 32); OA = 48; KR, VR_ = 64, 128
    XF, WF, ACC = 16, 24, 32
    T0, T1, T2 = 16, 17, 18
    VREC, VRA, VQW = 58, 62, 57
    S_WB, S_WEND, S_XR, S_QR = S_K2, S_K3, S_T + 11, S_T + 12
    RS = 3584 * 16
    x_src_addr(a, VXS, T0, T1, T2)
    a(f"v_lshrrev_b32 v{T0}, 2, v0\nv_and_b32 v{T1}, 3, v0\nv_lshlrev_b32 v{T1}, 4, v{T1}\nv_lshl_add_u32 v{VQS}, v{T0}, 10, v{T1}")
    a(f"v_lshrrev_b32 v{T0}, 4, v0\nv_and_b32 v{T1}, 15, v0\nv_lshlrev_b32 v{T2}, 1, v{T0}\nv_xor_b32 v{T1}, v{T1}, v{T2}")
    a(f"s_and_b32 s{S_T}, s{W}, 2\ns_lshl_b32 s{S_T}, s{S_T}, 2\nv_xor_b32 v{T1}, s{S_T}, v{T1}")
    a(f"v_lshlrev_b32 v{T1}, 4, v{T1}\nv_mul_u32_u24 v{T0}, 3584, v{T0}\nv_add_u32 v{VGS}, v{T0}, v{T1}\nv_mov_b32 v{VUS}, v{VGS}")
    a(f"s_lshl_b32 s{S_C}, s{S_A}, 17\ns_lshl_b32 s{S_T}, s{W}, 13\ns_add_u32 s{S_C}, s{S_C}, s{S_T}   ; x base")
    a(f"s_lshl_b32 s{S_H}, s{W}, 14\ns_lshl_b32 s{S_T}, s{S_B}, 6\ns_add_u32 s{S_H}, s{S_H}, s{S_T}")
    a(f"s_mul_i32 s{S_T}, s{W}, {4*3584}\ns_lshl_b32 s{S_WB}, s{S_B}, 8\ns_add_u32 s{S_WB}, s{S_WB}, s{S_T}")
    a(f"s_add_u32 s{S_WEND}, s{S_WB}, {32*RS}\ns_mul_i32 s{S_T}, s{S_F}, {4*RS}\ns_add_u32 s{S_D}, s{S_WB}, s{S_T}")
    kernarg_wait(a)
    srd(a, R_OUT, S_WQ, 512 * 1024)
    vq = VQ(a)
    def issueX1(u, j, xl, ql):
        if j == 0:
            a(f"s_add_u32 s{S_XR}, s{S_F}, {u}\ns_and_b32 s{S_XR}, s{S_XR}, 7\ns_lshl_b32 s{S_QR}, s{S_XR}, 16\ns_lshl_b32 s{S_XR}, s{S_XR}, 7")
            a(f"s_add_u32 s{S_XR}, s{S_XR}, s{S_C}\ns_add_u32 s{S_QR}, s{S_QR}, s{S_H}")
        if j < 4: dma(a, VXS, R_X, S_T, S_XR, j * 32768, xl + j * 4096)
        else: a(f"s_add_u32 m0, s{S_M0B}, {ql}\ns_nop 0\nbuffer_load_dwordx4 v{VQS}, {rs(R_OUT)}, s{S_QR} offen lds")
        vq.add(("X", u))
    def issueW1(j, mat):
        a(f"s_add_u32 m0, s{S_M0B}, {WL + (j % OPT['nw']) * 8192 + mat*4096}\ns_nop 0")
        a(f"buffer_load_dwordx4 v{(VGS,VUS)[mat]}, {rs((R_W0,R_W1)[mat])}, s{S_D} offen{' nt' if OPT.get('ntw') else ''} lds"); vq.add(("W", j))
        if mat:
            a(f"s_add_u32 s{S_D}, s{S_D}, {RS}")
            if j % 4 == 3: a(f"s_cmp_eq_u32 s{S_D}, s{S_WEND}\ns_cselect_b32 s{S_D}, s{S_WB}, s{S_D}")
    def setup(ql):
        finish_tag_ack(a, 20, 21); vq.add(("ack", 0))
        a(f"s_lshl_b32 s{S_T}, s{W}, 12")
        x_read_addr(a, VXR, T0, T1, T2, S_T)
        a(f"v_bfe_u32 v{T0}, v0, 2, 2\nv_lshl_add_u32 v{T0}, v{T1}, 3, v{T0}\nv_and_b32 v{T2}, 3, v0\nv_lshlrev_b32 v{T2}, 3, v{T2}")
        a(f"v_lshl_add_u32 v{VQR}, v{T0}, 6, v{T2}\nv_bfe_u32 v{T0}, v0, 4, 1\nv_lshl_add_u32 v{VQR}, v{T0}, 5, v{VQR}\nv_add_u32 v{VQR}, {ql}, v{VQR}")
        a(f"v_lshlrev_b32 v{T0}, 2, v0\nv_add_u32 v{T0}, {LDS_C}, v{T0}\nv_mov_b32 v{T1}, 0\nds_write_b32 v{T0}, v{T1}")
        a(f"v_lshlrev_b32 v{VL16}, 4, v0\nv_and_b32 v{VL4}, 31, v0\nv_lshlrev_b32 v{VL4}, 2, v{VL4}\nv_mov_b32 v{VIDX}, 0xdddddddd")
        a(f"v_add_u32 v{VLQ}, {LDS_Q}, v{VL16}\nv_lshlrev_b32 v{VRA}, 3, v0\ns_mov_b32 s{S_K0}, {WS_RECK}")
        a(f"v_bfe_u32 v{T0}, v0, 4, 1\nv_lshlrev_b32 v{VO}, 10, v{T0}\nv_and_b32 v{T0}, 32, v0\nv_lshl_add_u32 v{VO}, v{T0}, 4, v{VO}")
        a(f"v_and_b32 v{T0}, 15, v0\nv_lshl_add_u32 v{VO}, v{T0}, 4, v{VO}\nv_lshlrev_b32 v{VGO}, 2, v{T0}")
        a(f"s_lshl_b32 s{S_T}, s{W}, 11\ns_add_u32 s{S_T}, s{S_T}, {LDS_Q}\nv_add_u32 v{VQW}, s{S_T}, v{VO}")
        a(f"v_and_b32 v{T0}, 11, v0\nv_cmp_eq_u32 vcc, 0, v{T0}\nv_mov_b32 v{T0}, 0x3f803f80\ns_nop 0\nv_cndmask_b32 v{T0}, 0, v{T0}, vcc\nv_mov_b32 v{T0+1}, v{T0}")
        for t in range(16):
            for j in range(4, 8, 2): a(f"v_mov_b64 {vr(VR_+8*t+j,2)}, {vr(T0,2)}")
        zero_o()
        a(f"s_lshl_b32 s{S_T}, s{S_A}, 2\ns_add_u32 s{S_T}, s{S_T}, s{W}\ns_lshl_b32 s{S_G}, s{S_T}, 15")
        a(f"s_lshl_b32 s{S_T}, s{S_B}, 11\ns_add_u32 s{S_G}, s{S_G}, s{S_T}\ns_add_u32 s{S_G}, s{S_G}, {WS_OP}")
        a(f"s_lshl_b32 s{S_E}, s{W}, 3\ns_lshr_b32 s{S_T}, s{S_ID}, 3\ns_add_u32 s{S_E}, s{S_E}, s{S_T}")
    def zero_o():
        for j in range(0, 8, 2): a(f"v_mov_b64 {vr(OA+j,2)}, 0")
        a(f"v_mov_b32 v{OA+8}, 0")
    def qreads(j, xoff, qoff):
        b = j & 1
        a(f"ds_read_b128 {vr(XF+4*b,4)}, v{VXR + j%4} offset:{xoff}")
        a(f"ds_read_b64_tr_b16 {vr(WF+4*b,2)}, v{VQR} offset:{qoff + (j%4)*1024}\nds_read_b64_tr_b16 {vr(WF+4*b+2,2)}, v{VQR} offset:{qoff + (j%4)*1024 + 256}")
    def qmfma(j):
        b = j & 1
        a(f"v_mfma_f32_32x32x16_bf16 {vr(ACC,16)}, {vr(WF+4*b,4)}, {vr(XF+4*b,4)}, {'0' if j == 0 else vr(ACC,16)}")
    rec_loads = [f"buffer_load_dwordx2 {vr(VREC,2)}, v{VRA}, {WSR}, s{S_K0} offen sc1",
                 f"buffer_load_dwordx2 {vr(VREC+2,2)}, v{VRA}, {WSR}, s{S_K0} offen offset:512 sc1"]
    def rec_finish(looked):
        lab = a.newlabel("norec"); seen = a.newlabel("seen")
        a(f"s_cmp_lg_u32 s{W}, 0\ns_cbranch_scc1 {lab}")
        if looked is not None:
            a(f"s_waitcnt vmcnt({looked})")
            a(f"v_cmp_ne_u32 vcc, s{S_TAG}, v{VREC}\nv_cmp_ne_u32 s[{S_T+6}:{S_T+7}], s{S_TAG}, v{VREC+2}\ns_or_b64 vcc, vcc, s[{S_T+6}:{S_T+7}]\ns_cbranch_vccz {seen}")
        poll(a, rec_loads, [VREC, VREC + 2], sleep=8)
        a.label(seen)
        a(f"v_cmp_lt_u32 vcc, {f2u(2.0**50):#x}, v{VREC+3}\nv_mov_b32 v{VREC}, 0x7f800000\ns_nop 0\nv_cndmask_b32 v{VREC+1}, v{VREC+1}, v{VREC}, vcc")
        wave_max(a, VREC + 1)
        a(f"v_mov_b32 v{VREC}, {LDS_X + 1024}\ns_mov_b32 exec_lo, 0\ns_mov_b32 exec_hi, 0x80000000\nds_write_b32 v{VREC}, v{VREC+1}\ns_mov_b64 exec, -1")
        a.label(lab)
    def vfix(t):
        for j in range(4): a(f"v_permlane16_swap_b32 v{VR_+8*t+j}, v{VR_+8*t+4+j}")
    VL = OPT["vlag"]; NFIX = 16 - VL
    def kvload(t):
        if t % 2 == 0:
            a(f"s_add_u32 s{S_T}, s{S_E}, {t//2}\ns_and_b32 s{S_T}, s{S_T}, 31\ns_lshl_b32 s{S_T}, s{S_T}, 11")
            a(f"s_add_u32 s{S_T+1}, s{S_T}, {WS_VP}\ns_add_u32 s{S_T}, s{S_T}, {WS_KP}")
        a(f"buffer_load_dwordx4 {vr(KR+4*t,4)}, v{VL16}, {WSR}, s{S_T} offen offset:{(t%2)*1024}{SC()}")
        a(f"buffer_load_dwordx4 {vr(VR_+8*t,4)}, v{VL16}, {WSR}, s{S_T+1} offen offset:{(t%2)*1024}{SC()}")
        vq.add(("KV", t), 2)
        if t >= VL: a(f"s_waitcnt vmcnt({2*VL})"); vfix(t - VL)
    lidle = a.newlabel("Aidle"); ljoin = a.newlabel("Ajoin")
    a(f"s_cmp_ge_u32 s{S_ID}, 224\ns_cbranch_scc1 {lidle}")
    X = lambda u, j: issueX1(u, j, XL + (u % 3) * 16384, QWL + (u % 3) * 4096)
    for j in range(5): X(0, j)
    srd(a, R_W0, S_WG, 512 * 3584); srd(a, R_W1, S_WU, 512 * 3584)
    W0 = OPT["w0"]
    nextW, nextX, xp = W0, 1, 0
    for j in range(W0):
        issueW1(j, 0); issueW1(j, 1)
        if OPT.get("xup") and j == OPT["xup"] - 1:
            for p in range(5): X(1, p)
            nextX = 2
    if OPT.get("st4") == 1: stamp(a, 4)
    setup(QWL)
    if OPT.get("st4") == 2: stamp(a, 4)
    vq.wait({("X", 0), ("W", 0), ("W", 1)})
    a("s_waitcnt lgkmcnt(0)")
    a("s_barrier")
    stamp(a, 1)
    xo = lambda j: (XL + ((j // 4) % 3) * 16384, ((j // 4) % 3) * 4096)
    qreads(0, *xo(0))
    kvt = 0
    LB = OPT["lastbar"]
    for J in range(16):
        if J < LB:
            tags = {("W", 2 * J + 2), ("W", 2 * J + 3)}
            if J % 2 == 1: tags.add(("X", (J + 1) // 2))
            assert nextW > 2 * J + 3 and (J % 2 == 0 or nextX > (J + 1) // 2), J
            vq.wait(tags)
        elif J == LB:
            assert nextW == 32 and nextX == 8
            vq.wait({("W", 31), ("X", 7)})
        a("s_waitcnt lgkmcnt(0)")
        if J <= LB: a("s_barrier")
        qmfma(2 * J)
        qreads(2 * J + 1, *xo(2 * J + 1))
        for _ in range(5 if nextX in (1, 7) else 3):
            if nextX < 8 and J >= 2 * (nextX - 3) + 2:
                X(nextX, xp); xp += 1
                if xp == 5: nextX += 1; xp = 0; break
        a("s_waitcnt lgkmcnt(0)")
        qmfma(2 * J + 1)
        if J < 15: qreads(2 * J + 2, *xo(2 * J + 2))
        for _ in range(2 * OPT["ramp"]):
            if nextW < 32 and nextW <= max(OPT['nw'] - 1, 2 * J + OPT['nw'] - 1):
                issueW1(nextW, 0); issueW1(nextW, 1); nextW += 1
        if J == OPT["kvat"]:
            assert OPT["kvat"] >= OPT["look"] + 2 and nextW == 32 and nextX == 8
            lab = a.newlabel("kvok")
            a(f"v_mov_b32 v{VREC}, {LDS_X + 1028}\nds_read_b32 v{VREC+1}, v{VREC}\ns_waitcnt lgkmcnt(0)\nv_readfirstlane_b32 s{S_T}, v{VREC+1}")
            a(f"s_cmp_eq_u32 s{S_T}, 1\ns_cbranch_scc1 {lab}")
            rec_finish(None)
            lsync(a, 9, 4, VREC, VREC + 1)
            a.label(lab)
        if J >= OPT["kvat"]:
            for _ in range(OPT["kvpre"] if J < LB else 2 * OPT["kvper"] if J < 15 else 16):
                if kvt < OPT["qfirst"]: kvload(kvt); kvt += 1
    a(f"v_mov_b32 v{VREC}, {LDS_C + 4*10}\nv_mov_b32 v{VREC+1}, 1\ns_mov_b64 exec, 1\nds_add_u32 v{VREC}, v{VREC+1}\ns_mov_b64 exec, -1")
    a(f"s_branch {ljoin}")
    a.label(lidle)
    vq.q = []
    a(f"s_cmp_eq_u32 s{S_B}, 14\ns_cselect_b32 s{R_W0}, s{S_WK}, s{S_WV}\ns_cselect_b32 s{R_W0+1}, s{S_WK+1}, s{S_WV+1}")
    a(f"s_movk_i32 s{R_W0+2}, 16384\ns_mov_b32 s{R_W0+3}, 0x20000\ns_mov_b32 s{S_F}, 0")
    srd(a, R_W1, S_GW, 1024)
    a(f"v_lshlrev_b32 v{VGS}, 4, v0")
    dma(a, VGS, R_W1, S_T, S_M0B, 0, IGL)
    for p in range(4): dma(a, VGS, R_W0, S_T, S_M0B, p * 4096, IEL + p * 4096)
    XI = lambda u: [issueX1(u, p, IXL + (u % 4) * 16384, IQL + (u % 4) * 4096) for p in range(5)]
    for u in range(4): XI(u)
    setup(IQL)
    for u in range(8):
        vq.wait({("X", u)})
        a("s_waitcnt lgkmcnt(0)")
        a("s_barrier")
        if u == 0: stamp(a, 1)
        if 1 <= u <= 4: XI(u + 3)
        qreads(4 * u, (u % 4) * 16384, (u % 4) * 4096)
        for ks in range(4):
            j = 4 * u + ks
            if ks < 3:
                qreads(j + 1, (u % 4) * 16384, (u % 4) * 4096); a("s_waitcnt lgkmcnt(3)")
            else: a("s_waitcnt lgkmcnt(0)")
            qmfma(j)
    rec_finish(None)
    a(f"v_mov_b32 v{VREC}, {LDS_C + 4*10}\nv_mov_b32 v{VREC+1}, 2\ns_mov_b64 exec, 1\nds_add_u32 v{VREC}, v{VREC+1}\ns_mov_b64 exec, -1")
    a("s_waitcnt lgkmcnt(0)")
    a("s_barrier")
    for t in range(OPT["qfirst"]): kvload(t)
    a.label(ljoin)
    stamp(a, 2)
    a(f"s_lshl_b32 s{S_T}, s{S_A}, 2\ns_add_u32 s{S_T}, s{S_T}, s{W}\ns_lshl_b32 s{S_C}, s{S_T}, 7\ns_add_u32 s{S_C}, s{S_C}, {WS_G}")
    a("s_nop 7")
    a(f"s_lshl_b32 s{S_T}, s{W}, 8\ns_add_u32 s{S_T}, s{S_T}, {LDS_X}\nv_lshl_add_u32 v15, v0, 2, s{S_T}")
    for j in range(8): a(f"v_cvt_pk_bf16_f32 v{16+j}, v{ACC+2*j}, v{ACC+2*j+1}")
    a(f"ds_write_b128 v{VQW}, v[16:19]\nds_write_b128 v{VQW}, v[20:23] offset:256")
    a(f"v_mul_f32 v24, v{ACC}, v{ACC}\nv_mul_f32 v25, v{ACC+8}, v{ACC+8}")
    for i in range(1, 8): a(f"v_fmac_f32 v24, v{ACC+i}, v{ACC+i}\nv_fmac_f32 v25, v{ACC+8+i}, v{ACC+8+i}")
    a(f"v_mov_b32 v26, {LDS_X + 1024}\ns_nop 0\nv_permlane32_swap_b32 v24, v25\nv_add_f32 v24, v24, v25\nds_write_b32 v15, v24")
    a(f"v_lshlrev_b32 v15, 2, v0\nv_add_u32 v15, {LDS_X}, v15")
    a(f"v_mov_b32 v27, {LDS_C}\nv_mov_b32 v28, 1\ns_mov_b64 exec, 1\nds_add_u32 v27, v28\ns_mov_b64 exec, -1")
    for t in range(OPT["qfirst"], 16): kvload(t)
    a(f"s_mul_i32 s{S_T}, s{W}, {PART}\ns_add_u32 s{S_T}, s{S_T}, {LDS_P}")
    a(f"v_add_u32 v{VL16}, s{S_T}, v{VL16}\nv_add_u32 v{VL4}, s{S_T}, v{VL4}")
    lab = a.newlabel("qsync")
    a.label(lab)
    a(f"ds_read_b32 v28, v27\ns_waitcnt lgkmcnt(0)\nv_readfirstlane_b32 s{S_T}, v28\ns_cmp_lt_u32 s{S_T}, 4\ns_cbranch_scc1 {lab}")
    lab = a.newlabel("ringdead")
    a(f"v_mov_b32 v27, {LDS_C + 4*10}")
    a.label(lab)
    a(f"ds_read_b32 v28, v27\ns_waitcnt lgkmcnt(0)\nv_readfirstlane_b32 s{S_T}, v28\ns_cmp_lt_u32 s{S_T}, 8\ns_cbranch_scc1 {lab}")
    a(f"ds_read_b128 {vr(QB,4)}, v{VLQ}")
    a(f"ds_read2st64_b32 v[20:21], v15 offset0:0 offset1:1\nds_read2st64_b32 v[22:23], v15 offset0:2 offset1:3\nds_read_b32 v24, v26")
    a("s_waitcnt lgkmcnt(0)")
    a("v_max3_u32 v20, v20, v21, v22\nv_max_u32 v20, v20, v23\nv_mul_f32 v20, v20, v24")
    slow = a.newlabel("slow"); red = a.newlabel("reduce")
    a(f"v_cmp_nge_f32 vcc, {f2u(float(OPT['thr'])**2):#x}, v20")
    a(f"s_setprio {OPT['prioA']}")
    a(f"s_cbranch_vccnz {slow}")
    def S(t, buf, c="0"): a(f"v_mfma_f32_32x32x16_bf16 {vr(SB[buf],16)}, {vr(KR+4*t,4)}, {vr(QB,4)}, {c}")
    def PV(t, s, buf): a(f"v_smfmac_f32_32x32x32_bf16 {vr(OA,16)}, {vr(VR_+8*t+4*s,4)}, {vr(SB[buf]+8*s,8)}, v{VIDX}")
    def EX(buf, i): a(f"v_exp_f32 v{SB[buf]+i}, v{SB[buf]+i}")
    def flush(base):
        a(f"ds_write_b128 v{VL16}, {vr(OA,4)} offset:{base}")
        a(f"ds_write_b128 v{VL16}, {vr(OA+4,4)} offset:{base+1024}")
        a(f"ds_write_b32 v{VL4}, v{OA+8} offset:{base+2048}")
    a("s_waitcnt vmcnt(31)")
    stamp(a, 5)
    S(0, 0)
    a("s_nop 11")
    gl = lambda j, r: a(f"buffer_load_dword v{r}, v{VGO}, {WSR}, s{S_C} offen offset:{64*j}{SC()}")
    ROLL = OPT.get("roll", 0)
    for q in ((0, 1, 7) if ROLL else range(8)):
        if ROLL and q == 1:
            a(f"s_mov_b32 s{S_K0}, 6")
            a.raw(".p2align 6"); a.label("L_qloop")
        for t in range(16):
            g = q * 16 + t
            cur, oth = g & 1, (g & 1) ^ 1
            nt = (t + 1) % 16
            def kv():
                if q == 0 and t + 1 >= NFIX: a(f"s_waitcnt vmcnt({max(0, 29 - 2*t)})")
                if q == 0 and t >= NFIX: vfix(t)
            if t == 0:
                if q == 1 and not ROLL: stamp(a, 6)
                if q == 4: stamp(a, 7)
                EX(cur, 0); EX(cur, 1)
                if q > 0: PV(15, 1, oth)
                EX(cur, 2); EX(cur, 3); EX(cur, 4)
                kv(); S(nt, oth)
                for i in range(5, 16): EX(cur, i)
                if q == 0: a("s_nop 0")
                if q > 0:
                    flush(0 if ROLL else (q - 1) * 4 * PART); zero_o()
                    if ROLL: a(f"v_add_u32 v{VL16}, {4*PART}, v{VL16}\nv_add_u32 v{VL4}, {4*PART}, v{VL4}")
                if q == 7: gl(0, 6); gl(1, 7)
            elif t == 1:
                EX(cur, 0); EX(cur, 1)
                PV(0, 0, oth)
                EX(cur, 2); EX(cur, 3); EX(cur, 4)
                PV(0, 1, oth)
                if OPT.get("bs"):
                    EX(cur, 5); EX(cur, 6)
                    kv(); S(nt, oth)
                    for i in range(7, 11): EX(cur, i)
                    PV(1, 0, cur)
                    for i in range(11, 16): EX(cur, i)
                    a("s_nop 1")
                else:
                    EX(cur, 5); EX(cur, 6); EX(cur, 7)
                    kv(); S(nt, oth)
                    EX(cur, 8); EX(cur, 9); EX(cur, 10)
                    PV(1, 0, cur)
                    for i in range(11, 16): EX(cur, i)
                    a("s_nop 2")
            else:
                n0, n1, n2 = {0: (2, 5, 10), 1: (5, 8, 11), 2: (3, 6, 10), 3: (2, 5, 11), 4: (4, 7, 10)}[OPT.get("cl", 0)]
                for i in range(n0): EX(cur, i)
                PV(t - 1, 1, oth)
                for i in range(n0, n1): EX(cur, i)
                if g != 127:
                    if t == 15: a("s_waitcnt lgkmcnt(0)")
                    kv(); S(nt, oth)
                EX(cur, n1); EX(cur, n1 + 1)
                if t == 14 and q < 7: a(f"ds_read_b128 {vr(QB,4)}, v{VLQ} offset:{1024 if ROLL else (q+1)*1024}")
                if t == 15 and q < 7 and ROLL: a(f"v_add_u32 v{VLQ}, 1024, v{VLQ}")
                for i in range(n1 + 2, n2): EX(cur, i)
                PV(t, 0, cur)
                for i in range(n2, 16): EX(cur, i)
        if ROLL and q == 1: a(f"s_sub_u32 s{S_K0}, s{S_K0}, 1\ns_cmp_lg_u32 s{S_K0}, 0\ns_cbranch_scc1 L_qloop")
    stamp(a, 8)
    a(f"s_setprio {OPT['prioT']}\ns_nop 0")
    PV(15, 1, 1)
    a("s_nop 11")
    flush(0 if ROLL else 7 * 4 * PART)
    a.label(red)
    a(f"s_mul_i32 s{S_T}, s{W}, {2*4*PART}\ns_add_u32 s{S_T}, s{S_T}, {LDS_P}")
    a(f"v_lshl_add_u32 v{VL16}, v0, 4, s{S_T}\nv_and_b32 v{VL4}, 31, v0\nv_lshl_add_u32 v{VL4}, v{VL4}, 2, s{S_T}")
    lab = a.newlabel("marked")
    a(f"v_mov_b32 v18, {LDS_C + 4*3}")
    a.label(lab)
    a(f"ds_read_b32 v19, v18")
    lsync(a, 1, 4, 16, 17)
    stamp(a, 3)
    ok = a.newlabel("markok"); lab = a.newlabel("markw")
    a.label(lab)
    a(f"v_readfirstlane_b32 s{S_T}, v19\ns_cmp_ge_u32 s{S_T}, 4\ns_cbranch_scc1 {ok}")
    a(f"ds_read_b32 v19, v18\ns_waitcnt lgkmcnt(0)\ns_branch {lab}")
    a.label(ok)
    R = 64
    for j in range(2):
        for p in range(4):
            b = (j * 4 + p) * PART; r = R + (j * 4 + p) * 12
            a(f"ds_read_b32 v{r+8}, v{VL4} offset:{b+2048}")
        for p in range(4):
            b = (j * 4 + p) * PART; r = R + (j * 4 + p) * 12
            a(f"ds_read_b128 {vr(r,4)}, v{VL16} offset:{b}")
            a(f"ds_read_b128 {vr(r+4,4)}, v{VL16} offset:{b+1024}")
        r0 = R + j * 48
        a(f"s_waitcnt lgkmcnt(8)")
        a(f"v_add_f32 v{r0+8}, v{r0+8}, v{r0+20}\nv_add_f32 v{r0+32}, v{r0+32}, v{r0+44}\nv_add_f32 v{r0+8}, v{r0+8}, v{r0+32}")
        a(f"v_rcp_f32 v{r0+8}, v{r0+8}")
    for j in range(2):
        r0 = R + j * 48
        a("s_waitcnt vmcnt(0)" if j == 0 else "s_waitcnt lgkmcnt(0)")
        a(f"v_mul_f32 v{r0+8}, v{r0+8}, v{6+j}")
        for i in range(8): a(f"v_add_f32 v{r0+i}, v{r0+i}, v{r0+12+i}\nv_add_f32 v{r0+24+i}, v{r0+24+i}, v{r0+36+i}")
        for i in range(8): a(f"v_add_f32 v{r0+i}, v{r0+i}, v{r0+24+i}")
        for i in range(8): a(f"v_mul_f32 v{r0+i}, v{r0+i}, v{r0+8}")
        for i in range(4):
            a(f"v_cvt_pk_bf16_f32 v{r0+12+i}, v{r0+2*i}, v{r0+2*i+1}")
        a(f"buffer_store_dwordx4 {vr(r0+12,4)}, v{VO}, {WSR}, s{S_G} offen offset:{256*j} sc1")
    stamp(a, 4)
    stamp_dump(a)
    a("s_endpgm")
    a.label(slow)
    loop = a.newlabel("slowq"); spin = a.newlabel("slows")
    a("s_waitcnt vmcnt(0)")
    for t in range(NFIX, 16): vfix(t)
    a(f"v_lshlrev_b32 v6, 2, v0\nv_add_u32 v6, {LDS_X + 2048}, v6")
    a(f"s_lshl_b32 s{S_K1}, s{W}, 8\ns_mov_b32 s{S_K0}, 4")
    a.label(loop)
    a(f"ds_read_b128 {vr(QB,4)}, v{VLQ}\nv_add_u32 v{VLQ}, 1024, v{VLQ}")
    zero_o()
    a(f"v_mov_b32 v7, 0xff800000")
    a("s_waitcnt lgkmcnt(0)")
    for t in range(16):
        S(t, 0)
        a("s_nop 12")
        for i in range(0, 16, 2): a(f"v_max3_f32 v7, v7, v{SB[0]+i}, v{SB[0]+i+1}")
    a(f"v_mov_b32 v13, v7\ns_nop 1\nv_permlane32_swap_b32 v7, v13\nv_max_f32 v7, v7, v13")
    a(f"v_add_u32 v13, s{S_K1}, v6\nds_write_b32 v13, v7")
    a(f"v_mov_b32 v14, {LDS_C + 8}\nv_mov_b32 v15, 1\ns_mov_b64 exec, 1\nds_add_u32 v14, v15\ns_mov_b64 exec, -1")
    a.label(spin)
    a(f"ds_read_b32 v15, v14\ns_waitcnt lgkmcnt(0)\nv_readfirstlane_b32 s{S_T}, v15\ns_cmp_lt_u32 s{S_T}, s{S_K0}\ns_cbranch_scc1 {spin}")
    a(f"ds_read2st64_b32 v[14:15], v6 offset0:0 offset1:1\nds_read2st64_b32 v[16:17], v6 offset0:2 offset1:3")
    a("s_waitcnt lgkmcnt(0)")
    a("v_max3_f32 v7, v14, v15, v16\nv_max_f32 v7, v7, v17")
    for i in range(16): a(f"v_sub_f32 v{SB[1]+i}, 0, v7")
    a("s_nop 1")
    for t in range(16):
        S(t, 0, vr(SB[1], 16))
        a("s_nop 12")
        for i in range(16): EX(0, i)
        a("s_nop 1")
        PV(t, 0, 0); PV(t, 1, 0)
    a("s_nop 15")
    flush(0)
    a(f"v_add_u32 v{VL16}, {4*PART}, v{VL16}\nv_add_u32 v{VL4}, {4*PART}, v{VL4}\nv_xor_b32 v6, 1024, v6")
    a(f"s_add_u32 s{S_K0}, s{S_K0}, 4\ns_cmp_le_u32 s{S_K0}, 32\ns_cbranch_scc1 {loop}")
    gl(0, 6); gl(1, 7)
    a(f"s_branch {red}")

def ffn1(a):
    VXR, VWR = 8, 12
    T0, T1, T2 = 5, 6, 7
    lidle = a.newlabel("Fidle"); lend = a.newlabel("s1end")
    a(f"v_bfe_u32 v{T0}, v0, 4, 1\nv_lshlrev_b32 v66, 10, v{T0}\nv_and_b32 v{T0}, 32, v0\nv_lshl_add_u32 v66, v{T0}, 4, v66")
    a(f"v_and_b32 v{T0}, 15, v0\nv_lshl_add_u32 v66, v{T0}, 4, v66")
    a(f"s_lshl_b32 s{S_T}, s{S_A}, 2\ns_add_u32 s{S_T}, s{S_T}, s{W}\ns_lshl_b32 s{S_G}, s{S_T}, 15")
    a(f"s_lshl_b32 s{S_T}, s{S_B}, 11\ns_add_u32 s{S_G}, s{S_G}, s{S_T}\ns_add_u32 s{S_G}, s{S_G}, {WS_OP}")
    def sentinels():
        a("v_mov_b64 v[76:77], -1\nv_mov_b64 v[78:79], -1")
        for j in range(2): a(f"buffer_store_dwordx4 v[76:79], v66, {WSR}, s{S_G} offen offset:{256*j} sc1")
    a(f"s_cmp_ge_u32 s{S_ID}, 224\ns_cbranch_scc1 {lidle}")
    a(f"s_and_b32 s{S_T}, s{W}, 1\ns_lshl_b32 s{S_T}, s{S_T}, 13")
    a(f"v_and_b32 v{T0}, 15, v0\nv_lshrrev_b32 v{T1}, 4, v0\nv_bfe_u32 v{T2}, v0, 1, 3\nv_xor_b32 v{T2}, v{T2}, v{T1}")
    a(f"v_lshlrev_b32 v{T0}, 7, v{T0}\nv_add_u32 v{T0}, s{S_T}, v{T0}\nv_lshl_add_u32 v{VXR}, v{T2}, 4, v{T0}")
    a(f"v_xor_b32 v{T2}, 4, v{T2}\nv_lshl_add_u32 v{VXR+1}, v{T2}, 4, v{T0}")
    a(f"v_bfe_u32 v{T0}, v0, 2, 2\nv_bfe_u32 v{T2}, v0, 4, 1\nv_lshl_add_u32 v16, v{T2}, 3, v{T0}\nv_lshlrev_b32 v16, 8, v16")
    a(f"v_lshrrev_b32 v17, 5, v0\nv_lshl_add_u32 v16, v17, 13, v16\nv_and_b32 v17, 3, v0\nv_lshl_add_u32 v16, v17, 3, v16\nv_add_u32 v16, {WL}, v16")
    a(f"v_lshl_or_b32 v{T0}, v{T2}, 2, v{T0}\ns_and_b32 s{S_T}, s{W}, 2\ns_lshl_b32 s{S_T}, s{S_T}, 1\nv_xor_b32 v{T0}, s{S_T}, v{T0}")
    for jj in range(4):
        a(f"v_xor_b32 v{VWR+jj}, {jj}, v{T0}\nv_lshl_add_u32 v{VWR+jj}, v{VWR+jj}, 5, v16\nv_add_u32 v{68+jj}, 0x8000, v{VWR+jj}")
    kernarg_wait(a)
    def pfm():
        a(f"s_lshl_b32 s{S_T+4}, s{S_ID}, 2\ns_add_u32 s{S_T+4}, s{S_T+4}, s{W}\nv_lshlrev_b32 v80, 4, v0")
        srd(a, R_W0, S_WG, 512 * 3584); srd(a, R_W1, S_WU, 512 * 3584)
        a(f"s_lshl_b32 s{S_T}, s{S_T+4}, 11\ns_mul_i32 s{S_T+1}, s{S_T+4}, 2560")
        for i in range(3): a(f"buffer_load_dwordx4 v[84:87], v80, {rs(R_X)}, s{S_T+1} offen offset:{1024*i}")
        for i in range(2):
            a(f"buffer_load_dwordx4 v[84:87], v80, {rs(R_W0)}, s{S_T} offen offset:{1024*i}\nbuffer_load_dwordx4 v[84:87], v80, {rs(R_W1)}, s{S_T} offen offset:{1024*i}")
    if OPT.get("pfm") == 1: pfm()
    if OPT["pfx"] or OPT["pfw"]:
        a(f"s_lshr_b32 s{S_T+4}, s{S_ID}, 3\ns_lshl_b32 s{S_T+4}, s{S_T+4}, 2\ns_add_u32 s{S_T+4}, s{S_T+4}, s{W}\nv_lshlrev_b32 v80, 4, v0")
        if OPT.get("pfd"): a(f"s_sleep {OPT['pfd']}")
        if OPT["pfx"]:
            a(f"s_and_b32 s{S_T}, s{S_ID}, 1\ns_lshl_b32 s{S_T}, s{S_T}, 20\ns_mul_i32 s{S_T+1}, s{S_T+4}, {9*1024}\ns_add_u32 s{S_T}, s{S_T}, s{S_T+1}")
            for i in range(9):
                a(f"buffer_load_dwordx4 v[84:87], v80, {rs(R_X)}, s{S_T} offen\ns_add_u32 s{S_T}, s{S_T}, 1024")
        if OPT["pfw"]:
            srd(a, R_W0, S_WG, 512 * 3584); srd(a, R_W1, S_WU, 512 * 3584)
            a(f"s_bfe_u32 s{S_T}, s{S_ID}, 0x20001\ns_mul_i32 s{S_T}, s{S_T}, 28\ns_lshr_b32 s{S_T}, s{S_T}, 3\ns_lshl_b32 s{S_T}, s{S_T}, 8")
            a(f"s_mul_i32 s{S_T+1}, s{S_T+4}, 3584\ns_add_u32 s{S_T}, s{S_T}, s{S_T+1}")
            for i in range(5):
                a(f"buffer_load_dwordx4 v[84:87], v80, {rs(R_W0)}, s{S_T} offen\nbuffer_load_dwordx4 v[84:87], v80, {rs(R_W1)}, s{S_T} offen\ns_add_u32 s{S_T}, s{S_T}, {112*3584}")
    finish_tag_ack(a, 64, 65)
    ACC = 128
    FX = (16, 32); FW = 80
    acc_ = lambda jj, mat, p: ACC + 32 * jj + 16 * mat + 4 * p
    lq = []
    def lds(x, tag): a(x); lq.append(tag)
    def lwait(tags):
        idx = max((i for i, t in enumerate(lq) if t in tags), default=-1)
        n = len(lq) - 1 - idx
        del lq[:idx + 1]
        a(f"s_waitcnt lgkmcnt({min(n, 15)})")
    def rdX(J): return [(f"ds_read_b128 {vr(FX[J&1]+4*p,4)}, v{VXR + J%2} offset:{XL + ((J//2)%3)*16384 + p*2048}", ("X", J)) for p in range(4)]
    def rdW(J, fi):
        sl = (2 * J) % OPT["nw"]; wr = VWR if sl < 4 else 68; so = sl if sl < 4 else sl - 4
        return [(f"ds_read_b64_tr_b16 {vr(FW+4*fi+2*hf,2)}, v{wr+fi//2} offset:{so*8192 + (fi%2)*4096 + hf*1024}", ("W", J, fi)) for hf in range(2)]
    a("s_barrier")
    stamp(a, 1)
    for x in rdX(0) + [y for fi in range(8) for y in rdW(0, fi)][:10]: lds(*x)
    lwait({("X", 0), ("W", 0, 0)})
    for x in [y for fi in range(5, 8) for y in rdW(0, fi)]: lds(*x)
    LB = OPT["lastbar"]
    c0 = -2.0 * LOG2E * math.sqrt(2.0 / math.pi); c1 = c0 * 0.044715
    for J in range(16):
        if OPT.get("fst") and J in (2, 4, 8, 12): stamp(a, {2: 5, 4: 6, 8: 7, 12: 8}[J], True)
        if J == 4:
            a("s_waitcnt vmcnt(0)")
            if OPT.get("st8"): a("v_and_b32 v3, 15, v0\nv_lshlrev_b32 v3, 4, v3\nv_and_b32 v2, 32, v0\nv_lshl_add_u32 v3, v2, 4, v3\nv_and_b32 v2, 16, v0\nv_lshrrev_b32 v2, 1, v2\nv_add_u32 v3, v3, v2")
            a(f"v_lshlrev_b32 v2, 4, v0\nv_mov_b32 v4, {f2u(c0):#x}\nv_mov_b32 v5, {f2u(c0):#x}")
            a(f"s_mov_b32 s{S_K2}, {f2u(c1):#x}\ns_mov_b32 s{S_K2+1}, {f2u(c1):#x}")
            a(f"s_lshl_b32 s{S_T}, s{S_A}, 2\ns_and_b32 s{S_T+1}, s{W}, 1\ns_lshl_b32 s{S_T+1}, s{S_T+1}, 1\ns_add_u32 s{S_T}, s{S_T}, s{S_T+1}")
            a(f"s_mul_i32 s{S_T}, s{S_T}, 112\ns_lshl_b32 s{S_T+1}, s{S_B}, 3\ns_add_u32 s{S_T}, s{S_T}, s{S_T+1}")
            a(f"s_and_b32 s{S_T+1}, s{W}, 2\ns_lshl_b32 s{S_T+1}, s{S_T+1}, 1\ns_add_u32 s{S_T}, s{S_T}, s{S_T+1}\ns_lshl_b32 s{S_T}, s{S_T}, 10")
            a(f"s_add_u32 s{S_E}, s{S_T}, {WS_HP}\ns_add_u32 s{S_F}, s{S_E}, {112*1024}")
        if J in (OPT["look"], OPT["look"] + 2):
            lab = a.newlabel("nolook")
            a(f"s_cmp_lg_u32 s{W}, 0\ns_cbranch_scc1 {lab}")
            if J == OPT["look"]:
                a(f"v_lshlrev_b32 v72, 3, v0\ns_mov_b32 s{S_K0}, {WS_RECK}")
                a(f"buffer_load_dwordx2 v[74:75], v72, {WSR}, s{S_K0} offen sc1\nbuffer_load_dwordx2 v[76:77], v72, {WSR}, s{S_K0} offen offset:512 sc1")
            else:
                a(f"s_waitcnt vmcnt(0)\nv_cmp_ne_u32 vcc, s{S_TAG}, v74\nv_cmp_ne_u32 s[{S_T+6}:{S_T+7}], s{S_TAG}, v76")
                a(f"s_mov_b32 s{S_T}, {f2u(2.0**50):#x}\nv_cmp_lt_u32 s[{S_T+8}:{S_T+9}], s{S_T}, v77\nv_mov_b32 v72, 0x7f800000\ns_nop 0\nv_cndmask_b32 v75, v75, v72, s[{S_T+8}:{S_T+9}]")
                wave_max(a, 75)
                a(f"s_or_b64 vcc, vcc, s[{S_T+6}:{S_T+7}]\ns_cmp_eq_u64 vcc, 0\ns_cselect_b32 s{S_T}, 1, 0")
                a(f"v_mov_b32 v76, s{S_T}\nv_mov_b32 v72, {LDS_X + 1024}\ns_mov_b32 exec_lo, 0\ns_mov_b32 exec_hi, 0x80000000")
                a(f"ds_write2_b32 v72, v75, v76 offset0:0 offset1:1\ns_mov_b64 exec, -1\ns_waitcnt lgkmcnt(0)")
            a.label(lab)
        BP = OPT["barpos"]
        if J <= LB and BP == 0: a("s_barrier")
        pend = rdX(J + 1) if J < 15 else []
        for fi in range(8):
            if J <= LB and BP and fi == BP: a("s_barrier")
            lwait({("W", J, fi), ("X", J)})
            for p in range(4):
                ac = acc_(fi // 2, fi % 2, p)
                a(f"v_mfma_f32_16x16x32_bf16 {vr(ac,4)}, {vr(FW+4*fi,4)}, {vr(FX[J&1]+4*p,4)}, {'0' if J == 0 else vr(ac,4)}")
                if pend and (p != 3 or BP) and fi >= BP: lds(*pend.pop(0))
            if J < 15: pend += rdW(J + 1, fi)
        while pend: lds(*pend.pop(0))
        if J == 14: a(f"v_mov_b32 v6, {LDS_C + 4*10}\nv_mov_b32 v7, 1\ns_mov_b64 exec, 1\nds_add_u32 v6, v7\ns_mov_b64 exec, -1"); lq.append(("c", 0))
    stamp(a, 2)
    a(f"s_setprio {OPT['prioG']}")
    a("s_nop 7")
    for jj in range(4):
        G_ = ACC + 32 * jj; TT = 16 + 16 * (jj & 1)
        P2 = [(G_ + i, TT + i) for i in range(0, 16, 2)]
        for g_, t_ in P2: a(f"v_pk_mul_f32 {vr(t_,2)}, {vr(g_,2)}, {vr(g_,2)}")
        for g_, t_ in P2: a(f"v_pk_fma_f32 {vr(t_,2)}, {vr(t_,2)}, s[{S_K2}:{S_K2+1}], v[4:5]")
        for g_, t_ in P2: a(f"v_pk_mul_f32 {vr(t_,2)}, {vr(t_,2)}, {vr(g_,2)}")
        for g_, t_ in P2: a(f"v_exp_f32 v{t_}, v{t_}\nv_exp_f32 v{t_+1}, v{t_+1}")
        for g_, t_ in P2: a(f"v_pk_mul_f32 {vr(g_,2)}, {vr(g_,2)}, {vr(g_+16,2)}")
        for g_, t_ in P2: a(f"v_pk_add_f32 {vr(t_,2)}, {vr(t_,2)}, 1.0 op_sel_hi:[1,0]")
        for g_, t_ in P2: a(f"v_rcp_f32 v{t_}, v{t_}\nv_rcp_f32 v{t_+1}, v{t_+1}")
        a("s_nop 0")
        for g_, t_ in P2: a(f"v_pk_mul_f32 {vr(g_,2)}, {vr(g_,2)}, {vr(t_,2)}")
        for i in range(8): a(f"v_cvt_pk_bf16_f32 v{G_+16+i}, v{G_+2*i}, v{G_+2*i+1}")
        if OPT.get("st8"):
            for p in range(4):
                a(f"buffer_store_dwordx2 {vr(G_+16+2*p,2)}, v3, {WSR}, s{S_E if p < 2 else S_F} offen offset:{jj*1024 + (p&1)*256} sc1")
        else:
            for m in range(2):
                h0 = G_ + 16 + 4 * m
                if m == 0: a("s_nop 0")
                a(f"v_permlane16_swap_b32 v{h0}, v{h0+2}\nv_permlane16_swap_b32 v{h0+1}, v{h0+3}")
                a(f"buffer_store_dwordx4 {vr(h0,4)}, v2, {WSR}, s{S_E if m == 0 else S_F} offen offset:{jj*1024} sc1")
    if OPT["sentat"] > 31: sentinels()
    a(f"s_lshl_b32 s{S_T}, s{S_A}, 11\ns_lshl_b32 s{S_T+1}, s{S_B}, 7\ns_add_u32 s{S_T}, s{S_T}, s{S_T+1}\ns_add_u32 s{S_T}, s{S_T}, {WS_FLH}")
    stamp(a, 3)
    if OPT.get("lowp"): a("s_setprio 0")
    a("s_waitcnt vmcnt(0)")
    lsync(a, 3, 4, 6, 7, OPT['lsl'])
    lab = a.newlabel("ringdead")
    a(f"v_mov_b32 v6, {LDS_C + 4*10}")
    a.label(lab)
    a(f"ds_read_b32 v7, v6\ns_waitcnt lgkmcnt(0)\nv_readfirstlane_b32 s{S_T+10}, v7\ns_cmp_lt_u32 s{S_T+10}, 8\ns_cbranch_scc1 {lab}")
    stamp(a, 4)
    a(f"s_cmp_lg_u32 s{W}, 0\ns_cbranch_scc1 {lend}")
    a(f"s_mov_b64 exec, 1\nbuffer_store_dword v64, v65, {WSR}, s{S_T} offen sc1\ns_mov_b64 exec, -1")
    a(f"s_branch {lend}")
    a.label(lidle)
    VER, VGR, VLIN = 12, 13, 4
    a(f"s_lshl_b32 s{S_T}, s{W}, 12")
    x_read_addr(a, VXR, T0, T1, T2, S_T)
    a(f"v_bfe_u32 v{T0}, v0, 2, 2\nv_lshl_add_u32 v{T0}, v{T1}, 3, v{T0}\nv_and_b32 v{T2}, 3, v0\nv_lshlrev_b32 v{T2}, 3, v{T2}")
    a(f"v_lshl_add_u32 v{VER}, v{T0}, 5, v{T2}\nv_add_u32 v{VER}, {IEL}, v{VER}\nv_lshlrev_b32 v{VGR}, 4, v{T1}\nv_add_u32 v{VGR}, {IGL}, v{VGR}")
    a(f"v_lshlrev_b32 v{VLIN}, 4, v0\ns_lshl_b32 s{S_F}, s{S_A}, 2\ns_add_u32 s{S_F}, s{S_F}, s{W}   ; tt")
    kernarg_wait(a)
    finish_tag_ack(a, 64, 65)
    lv = a.newlabel("FV"); pub = a.newlabel("Fpub")
    ACK, ACG, XF, EF, GF, P = 32, 48, 16, 24, 88, 80
    sentinels()
    a(f"s_cmp_eq_u32 s{S_B}, 15\ns_cbranch_scc1 {lv}")
    for v in "KV":
        if v == "V": a.label(lv)
        def reads(j):
            b = j & 1; u = j // 4
            a(f"ds_read_b128 {vr(XF+4*b,4)}, v{VXR + j%4} offset:{(u%4)*16384}")
            a(f"ds_read_b64_tr_b16 {vr(EF+4*b,2)}, v{VER} offset:{j*512}\nds_read_b64_tr_b16 {vr(EF+4*b+2,2)}, v{VER} offset:{j*512 + 128}")
            if v == "K": a(f"ds_read_b128 {vr(GF+4*b,4)}, v{VGR} offset:{j*32}")
        for u in range(8):
            a("s_barrier")
            reads(4 * u)
            for ks in range(4):
                j = 4 * u + ks; b = j & 1
                if ks < 3: reads(j + 1); a(f"s_waitcnt lgkmcnt({4 if v == 'K' else 3})")
                else: a("s_waitcnt lgkmcnt(0)")
                cc = (lambda r: "0") if j == 0 else (lambda r: vr(r, 16))
                if v == "K":
                    a(f"v_mfma_f32_32x32x16_bf16 {vr(ACK,16)}, {vr(EF+4*b,4)}, {vr(XF+4*b,4)}, {cc(ACK)}")
                    a(f"v_mfma_f32_32x32x16_bf16 {vr(ACG,16)}, {vr(GF+4*b,4)}, {vr(XF+4*b,4)}, {cc(ACG)}")
                else:
                    a(f"v_mfma_f32_32x32x16_bf16 {vr(ACK,16)}, {vr(XF+4*b,4)}, {vr(EF+4*b,4)}, {cc(ACK)}")
        stamp(a, 2)
        a("s_nop 15")
        if v == "K":
            for j in range(8): a(f"v_mul_f32 v{ACK+j}, {f2u(0.25*LOG2E):#x}, v{ACK+j}")
            for j in range(4): a(f"v_cvt_pk_bf16_f32 v{P+j}, v{ACK+2*j}, v{ACK+2*j+1}")
            a(f"v_and_b32 v{T1}, 0x33, v0\nv_bfe_u32 v{T2}, v0, 2, 1\nv_lshl_or_b32 v{T1}, v{T2}, 3, v{T1}")
            a(f"v_bfe_u32 v{T2}, v0, 3, 1\nv_lshl_or_b32 v{T1}, v{T2}, 2, v{T1}\nv_lshlrev_b32 v{T1}, 4, v{T1}")
            a(f"s_lshl_b32 s{S_T}, s{S_F}, 10\ns_add_u32 s{S_T}, s{S_T}, {WS_KP}")
            a(f"buffer_store_dwordx4 {vr(P,4)}, v{T1}, {WSR}, s{S_T} offen sc1")
            a(f"v_mul_f32 v20, {f2u(-LOG2E):#x}, v{ACG}\nv_exp_f32 v20, v20\nv_and_b32 v21, 31, v0")
            a(f"v_add_f32 v20, 1.0, v20\nv_rcp_f32 v20, v20\nv_lshlrev_b32 v21, 2, v21")
            a(f"s_lshl_b32 s{S_T}, s{S_F}, 7\ns_add_u32 s{S_T}, s{S_T}, {WS_G}")
            a(f"buffer_store_dword v20, v21, {WSR}, s{S_T} offen sc1")
            a(f"v_mul_f32 v{T0}, v{ACK}, v{ACK}")
            for j in range(1, 8): a(f"v_fmac_f32 v{T0}, v{ACK+j}, v{ACK+j}")
            a(f"v_mov_b32 v67, v{T0}\ns_nop 1\nv_permlane32_swap_b32 v{T0}, v67\nv_add_f32 v67, v{T0}, v67")
            wave_max(a, 67)
            a(f"s_mov_b32 s{S_T+1}, {WS_RECK}")
            a(f"s_branch {pub}")
        else:
            for j in range(8): a(f"v_cvt_pk_bf16_f32 v{P+j}, v{ACK+2*j}, v{ACK+2*j+1}")
            a(f"v_and_b32 v{T1}, 16, v0\nv_cmp_ne_u32 vcc, 0, v{T1}")
            a(f"s_lshl_b32 s{S_T}, s{S_F}, 10\ns_add_u32 s{S_T}, s{S_T}, {WS_VP}")
            for j in range(4): a(f"v_cndmask_b32 v{P+j}, v{P+j}, v{P+4+j}, vcc")
            a(f"buffer_store_dwordx4 {vr(P,4)}, v{VLIN}, {WSR}, s{S_T} offen sc1")
            a(f"v_max3_f32 v67, abs(v{ACK}), abs(v{ACK+1}), abs(v{ACK+2})")
            for j in range(3, 15, 2): a(f"v_max3_f32 v67, v67, abs(v{ACK+j}), abs(v{ACK+j+1})")
            a(f"v_max3_f32 v67, v67, abs(v{ACK+15}), abs(v{ACK+15})")
            wave_max(a, 67)
            a(f"s_mov_b32 s{S_T+1}, {WS_RECK + 512}")
    a.label(pub)
    a(f"s_lshl_b32 s{S_T}, s{S_F}, 3\ns_add_u32 s{S_T+1}, s{S_T+1}, s{S_T}\nv_mov_b32 v66, s{S_TAG}")
    a("s_mov_b32 exec_lo, 0\ns_mov_b32 exec_hi, 0x80000000\ns_waitcnt vmcnt(0)")
    stamp(a, 3)
    a(f"buffer_store_dwordx2 v[66:67], v65, {WSR}, s{S_T+1} offen sc1\ns_mov_b64 exec, 1")
    a(f"v_mov_b32 v6, {LDS_C + 4*3}\nv_mov_b32 v7, 1\nds_add_u32 v6, v7\ns_mov_b64 exec, -1")
    a("s_barrier")
    epoch_update(a)
    a.label(lend)

def epoch_update(a):
    lab = a.newlabel("noepoch")
    a(f"s_cmp_lg_u32 s{S_ID}, 224\ns_cbranch_scc1 {lab}\ns_cmp_lg_u32 s{W}, 1\ns_cbranch_scc1 {lab}")
    a(f"v_lshlrev_b32 v2, 4, v0\ns_mov_b32 s{S_T+6}, {WS_ACK}\ns_mov_b32 s{S_T+7}, {WS_ACK+4096}")
    loads, regs = [], []
    for i in range(8):
        loads.append(f"buffer_load_dwordx4 {vr(16+4*i,4)}, v2, {WSR}, s{S_T+6+i//4} offen offset:{(i%4)*1024} sc1")
        regs += [16 + 4*i + j for j in range(4)]
    poll(a, loads, regs, sleep=64)
    a(f"s_mov_b64 exec, 1\nbuffer_store_dword v64, v65, {WSR}, 0 offen offset:{WS_EPOCH} sc1\ns_mov_b64 exec, -1")
    a.label(lab)

def ffn2(a):
    a(f"s_and_b32 s{S_T}, s{S_ID}, 1\ns_lshl_b32 s{S_T}, s{S_T}, 4\ns_and_b32 s{S_T+1}, s{S_ID}, 2\ns_lshl_b32 s{S_T+1}, s{S_T+1}, 2")
    a(f"s_add_u32 s{S_T}, s{S_T}, s{S_T+1}\ns_bfe_u32 s{S_T+1}, s{S_ID}, 0x30003\ns_add_u32 s{S_A}, s{S_T}, s{S_T+1}   ; tb64")
    a(f"s_and_b32 s{S_T}, s{S_ID}, 4\ns_lshr_b32 s{S_T+1}, s{S_ID}, 6\ns_add_u32 s{S_B}, s{S_T}, s{S_T+1}   ; cb")
    srd(a, R_W0, S_WD, 1792 * 1024); srd(a, R_W1, S_WO, 512 * 1024); srd(a, R_OUT, S_OUT, 2048 * 1024)
    VWS, VLIN, VR0, VR1, VG = 2, 3, 4, 5, 6
    T0, T1, T2 = 8, 9, 10
    a(f"v_lshrrev_b32 v{T0}, 3, v0\nv_and_b32 v{T1}, 7, v0\nv_bfe_u32 v{T2}, v0, 4, 1\nv_lshlrev_b32 v{T2}, 2, v{T2}")
    a(f"v_xor_b32 v{VWS}, v{T2}, v{T1}\nv_lshlrev_b32 v{VWS}, 4, v{VWS}\nv_lshl_add_u32 v{VWS}, v{T0}, 10, v{VWS}")
    a(f"v_lshlrev_b32 v{VLIN}, 4, v0")
    a(f"v_lshrrev_b32 v{T1}, 5, v0\nv_bfe_u32 v{T0}, v0, 2, 2\nv_lshl_add_u32 v{T0}, v{T1}, 2, v{T0}\nv_and_b32 v{T2}, 3, v0")
    a(f"v_lshlrev_b32 v{T2}, 3, v{T2}\nv_lshl_add_u32 v{VR0}, v{T0}, 7, v{T2}\nv_bfe_u32 v{T0}, v0, 4, 1\nv_bfe_u32 v{T2}, v0, 3, 1")
    a(f"v_lshl_or_b32 v{T0}, v{T2}, 1, v{T0}\nv_xor_b32 v{T2}, 2, v{T0}")
    a(f"v_lshl_add_u32 v{VR1}, v{T2}, 5, v{VR0}\nv_lshl_add_u32 v{VR0}, v{T0}, 5, v{VR0}")
    a(f"s_mul_i32 s{S_M0B}, s{W}, 20480")
    a(f"v_add_u32 v{VR0}, s{S_M0B}, v{VR0}\nv_add_u32 v{VR1}, s{S_M0B}, v{VR1}")
    a(f"v_lshlrev_b32 v{T1}, 9, v{T1}\nv_add_u32 v14, v{VR0}, v{T1}\nv_add_u32 v15, v{VR1}, v{T1}")
    a(f"s_lshl_b32 s{S_T}, s{S_B}, 7\ns_lshl_b32 s{S_C}, s{W}, 14\ns_add_u32 s{S_C}, s{S_C}, s{S_T}")
    a(f"s_mul_i32 s{S_D}, s{S_A}, {2*112*1024}\ns_lshl_b32 s{S_T}, s{W}, 10\ns_add_u32 s{S_D}, s{S_D}, s{S_T}")
    a(f"s_add_u32 s{S_D}, s{S_D}, {WS_HP}\ns_add_u32 s{S_E}, s{S_D}, {112*1024}")
    a(f"s_lshl_b32 s{S_T}, s{S_B}, 1\ns_add_u32 s{S_T}, s{S_T}, s{S_A}\ns_and_b32 s{S_T}, s{S_T}, {OPT['rot2']}")
    a(f"s_mul_i32 s{S_T}, s{S_T}, 7\ns_lshr_b32 s{S_T}, s{S_T}, 1\ns_lshl_b32 s{S_K2}, s{S_T}, 16\ns_lshl_b32 s{S_K3}, s{S_T}, 12")
    ACC, HF, FW = 64, 128, (16, 24)
    NS, D = 28, 8
    q = []
    def issueW(n):
        a(f"s_add_u32 s{S_T+1}, s{S_C}, s{S_K2}")
        for p in range(2):
            dma(a, VWS, R_W0, S_T, S_T + 1, p * 8192, (n % D) * 2048 + p * 1024); q.append(("W", n))
        a(f"s_add_u32 s{S_K2}, s{S_K2}, 65536\ns_cmp_eq_u32 s{S_K2}, {28*65536}\ns_cselect_b32 s{S_K2}, 0, s{S_K2}")
    def issueWo(n):
        for p in range(2):
            dma(a, VWS, R_W1, S_T, S_G, (n - NS) * 16384 + p * 8192, (n % D) * 2048 + p * 1024); q.append(("W", n))
    def issueH(n):
        a(f"s_add_u32 s{S_T}, s{S_D}, s{S_K3}\ns_add_u32 s{S_T+1}, s{S_E}, s{S_K3}")
        a(f"s_add_u32 s{S_K3}, s{S_K3}, 4096\ns_cmp_eq_u32 s{S_K3}, {28*4096}\ns_cselect_b32 s{S_K3}, 0, s{S_K3}")
        a(f"buffer_load_dwordx4 {vr(HF+(n%D)*8,4)}, v{VLIN}, {WSR}, s{S_T} offen{SC()}"); q.append(("H", n))
        a(f"buffer_load_dwordx4 {vr(HF+(n%D)*8+4,4)}, v{VLIN}, {WSR}, s{S_T+1} offen{SC()}"); q.append(("H", n))
    def waitfor(tags):
        idx = max((i for i, t in enumerate(q) if t in tags), default=-1)
        n = len(q) - 1 - idx
        del q[:idx + 1]
        a(f"s_waitcnt vmcnt({n})")
    def rd_list(n):
        b = n & 1
        return [f"ds_read_b64_tr_b16 {vr(FW[b]+4*ct+2*hf,2)}, v{14+ct} offset:{(n%D)*2048 + hf*512}" for ct in range(2) for hf in range(2)]
    a(f"s_lshl_b32 s{S_G}, s{W}, 17\ns_lshl_b32 s{S_T}, s{S_B}, 7\ns_add_u32 s{S_G}, s{S_G}, s{S_T}")
    for n in range(OPT.get("wpre", 2)): issueW(n)
    lab = a.newlabel("nopoll")
    a(f"s_cmp_lg_u32 s{W}, 0\ns_cbranch_scc1 {lab}")
    a(f"s_lshr_b32 s{S_T+4}, s{S_A}, 1\ns_lshl_b32 s{S_T+4}, s{S_T+4}, 11\ns_add_u32 s{S_T+4}, s{S_T+4}, {WS_FLH}")
    a(f"s_lshl_b32 s{S_T+5}, s{S_A}, 4\ns_add_u32 s{S_T+5}, s{S_T+5}, {WS_RECK}")
    a(f"v_lshlrev_b32 v11, 7, v0\nv_add_u32 v11, s{S_T+4}, v11\nv_and_b32 v12, 1, v0\nv_lshlrev_b32 v12, 3, v12\nv_add_u32 v12, s{S_T+5}, v12")
    a(f"v_and_b32 v13, 32, v0\nv_lshl_add_u32 v12, v13, 4, v12")
    a(f"v_cmp_gt_u32 vcc, 14, v0\ns_nop 1\nv_cndmask_b32 v11, v12, v11, vcc")
    poll(a, [f"buffer_load_dword v13, v11, {WSR}, 0 offen sc1"], [13], sleep=12)
    a.label(lab)
    a("s_waitcnt vmcnt(0)")
    lsync(a, 4, 4, 11, 12, 4 * OPT['lsl'])
    q.clear()
    stamp(a, 5)
    a(f"s_setprio {OPT['prioD']}")
    for n in range(D):
        if n >= OPT.get("wpre", 2): issueW(n)
        issueH(n)
    a(f"s_lshl_b32 s{S_T}, s{S_A}, 8\ns_add_u32 s{S_T}, s{S_T}, {WS_G}\nv_and_b32 v{T0}, 31, v0\nv_lshlrev_b32 v{T0}, 2, v{T0}")
    for m in range(2):
        a(f"buffer_load_dword v{VG+m}, v{T0}, {WSR}, s{S_T} offen offset:{128*m}{SC()}"); q.append(("G", 0))
    waitfor({("W", 0)})
    for l in rd_list(0): a(l)
    def step(n, bsrc, extra=None):
        b = n & 1
        rl = rd_list(n + 1) if n + 1 < NS + 8 else []
        for k in range(4):
            ct, m = k // 2, k % 2
            acc = ACC + 16 * k
            c = "0" if n == 0 else vr(acc, 16)
            a(f"v_mfma_f32_32x32x16_bf16 {vr(acc,16)}, {vr(FW[b]+4*ct,4)}, {vr(bsrc+4*m,4)}, {c}")
            for _ in range(2):
                if rl: a(rl.pop(0))
            if k == 2 and extra: extra()
            if OPT.get("space") and k != 2: a(f"s_nop {OPT['space']}")
    a(f"s_lshl_b32 s{S_F}, s{S_A}, 16\ns_lshl_b32 s{S_T}, s{W}, 13\ns_add_u32 s{S_F}, s{S_F}, s{S_T}\ns_add_u32 s{S_F}, s{S_F}, {WS_OP}")
    a(f"v_and_b32 v11, 3, v0\nv_lshlrev_b32 v11, 11, v11\nv_and_b32 v12, 4, v0\nv_lshl_add_u32 v11, v12, 13, v11")
    a(f"v_lshl_add_u32 v{T0}, v0, 4, s{S_M0B}")
    a(f"v_lshlrev_b32 v{T1}, 4, v0\ns_lshl_b32 s{S_T}, s{W}, 12\nv_add_u32 v{T1}, s{S_T}, v{T1}")
    a(f"v_and_b32 v{T2}, 31, v0\nv_lshlrev_b32 v{T2}, 10, v{T2}\nv_and_b32 v12, 32, v0\nv_lshrrev_b32 v12, 1, v12\nv_add_u32 v{T2}, v{T2}, v12")
    a(f"s_lshl_b32 s{S_K0}, s{S_A}, 16\ns_lshl_b32 s{S_T+1}, s{S_B}, 7\ns_add_u32 s{S_K0}, s{S_K0}, s{S_T+1}")
    a(f"s_and_b32 s{S_T+1}, s{W}, 1\ns_lshl_b32 s{S_T+1}, s{S_T+1}, 15\ns_add_u32 s{S_K0}, s{S_K0}, s{S_T+1}")
    a(f"s_and_b32 s{S_T+1}, s{W}, 2\ns_lshl_b32 s{S_T+1}, s{S_T+1}, 5\ns_add_u32 s{S_K0}, s{S_K0}, s{S_T+1}")
    HOLD = OPT["hold"]; NF = NS - HOLD; R_ = HOLD - 8
    assert 8 <= HOLD <= 16
    WX, HX, NSL = 192, 32, 10
    def mm(n, wsrc, bsrc, rl=(), extra=None, dst=None, src=None):
        rl = list(rl)
        for k in range(4):
            ct, m = k // 2, k % 2
            acc = ACC + 16 * k
            d_ = (dst or ACC) + 16 * k; c_ = (src or dst or ACC) + 16 * k
            a(f"v_mfma_f32_32x32x16_bf16 {vr(d_,16)}, {vr(wsrc+4*ct,4)}, {vr(bsrc+4*m,4)}, {'0' if n == 0 else vr(c_,16)}")
            for _ in range(2):
                if rl: a(rl.pop(0))
            if k == 2 and extra: extra()
    def rd(dst, slot, wo=False): return [f"ds_read_b64_tr_b16 {vr(dst+4*ct+2*hf,2)}, v{(VR0,VR1)[ct] if wo else 14+ct} offset:{slot*2048 + hf*(1024 if wo else 512)}" for ct in range(2) for hf in range(2)]
    def wo_dma(j, slot):
        for p in range(2): dma(a, VWS, R_W1, S_T, S_G, j * 16384 + p * 8192, slot * 2048 + p * 1024); q.append(("O", j))
    def h_load(dst, tag):
        a(f"s_add_u32 s{S_T}, s{S_D}, s{S_K3}\ns_add_u32 s{S_T+1}, s{S_E}, s{S_K3}")
        a(f"s_add_u32 s{S_K3}, s{S_K3}, 4096\ns_cmp_eq_u32 s{S_K3}, {28*4096}\ns_cselect_b32 s{S_K3}, 0, s{S_K3}")
        a(f"buffer_load_dwordx4 {vr(dst,4)}, v{VLIN}, {WSR}, s{S_T} offen{SC()}\nbuffer_load_dwordx4 {vr(dst+4,4)}, v{VLIN}, {WSR}, s{S_T+1} offen{SC()}")
        q.append(tag); q.append(tag)
    for n in range(NF):
        waitfor({("H", n), ("W", n + 1)})
        a("s_waitcnt lgkmcnt(0)")
        mm(n, FW[n & 1], HF + (n % D) * 8, rd(FW[(n + 1) & 1], (n + 1) % D) if n + 1 < NF else [], lambda: issueW(n + D))
        issueH(n + D)
    a("s_waitcnt vmcnt(0)"); q.clear()
    for i in range(8):
        for l in rd(WX + 8 * i, (NF + i) % D): a(l)
        if i % 3 == 2: a("s_waitcnt lgkmcnt(4)")
    a("s_waitcnt lgkmcnt(0)")
    for i in range(R_):
        a(f"s_add_u32 s{S_T+1}, s{S_C}, s{S_K2}")
        for p in range(2): dma(a, VWS, R_W0, S_T, S_T + 1, p * 8192, i * 2048 + p * 1024)
        a(f"s_add_u32 s{S_K2}, s{S_K2}, 65536\ns_cmp_eq_u32 s{S_K2}, {28*65536}\ns_cselect_b32 s{S_K2}, 0, s{S_K2}")
        if i < 4: h_load(HX + 8 * i, ("h", i))
    NPRE = min(8, NSL - R_)
    oslot = lambda j: R_ + j if j < NPRE else j - NPRE
    for j in range(NPRE): wo_dma(j, oslot(j))
    a("s_waitcnt vmcnt(0)"); q.clear()
    A1 = list(range(min(R_, 4))); A2 = list(range(4, R_))
    ringseq = A1 + A2 + [oslot(0)]
    for l in rd(FW[0], ringseq[0], R_ == 0): a(l)
    stamp(a, 6)
    lab = a.newlabel("hold")
    a(f"v_mov_b32 v12, {LDS_C + 4*1}")
    a.label(lab)
    a(f"s_sleep {OPT.get('hsl', 2)}\nds_read_b32 v13, v12\ns_waitcnt lgkmcnt(0)\nv_readfirstlane_b32 s{S_T+10}, v13\ns_cmp_lt_u32 s{S_T+10}, {OPT.get('holdn', 1)}\ns_cbranch_scc1 {lab}")
    if OPT.get("dbgat") == 11: a("s_memrealtime s[8:9]")
    a(f"s_setprio {OPT['prioG']}")
    def free_slot(i):
        if NPRE + i < 8: wo_dma(NPRE + i, i)
    for i in A1:
        a("s_waitcnt lgkmcnt(0)")
        mm(1, FW[i & 1], HX + 8 * i, rd(FW[(i + 1) & 1], ringseq[i + 1], i + 1 == R_))
        if i + 4 < R_: h_load(HX + 8 * i, ("h", i + 4))
    for i in range(8): mm(1, WX + 8 * i, HF + ((NF + i) % D) * 8, extra=(lambda: free_slot(i)) if i in A1 else None)
    for i in A2:
        waitfor({("h", i)})
        a("s_waitcnt lgkmcnt(0)")
        mm(1, FW[i & 1], HX + 8 * (i - 4), rd(FW[(i + 1) & 1], ringseq[i + 1], i + 1 == R_), lambda: free_slot(i))
    a(f"v_sub_f32 v{VG}, 1.0, v{VG}\nv_sub_f32 v{VG+1}, 1.0, v{VG+1}")
    a(f"s_add_u32 s{S_D}, s{S_F}, 4096\ns_add_u32 s{S_E}, s{S_F}, 32768\ns_add_u32 s{S_C}, s{S_E}, 4096")
    a("s_nop 7")
    for k in range(4):
        for i in range(0, 16, 2):
            sel = "op_sel:[0,0] op_sel_hi:[1,0]" if k % 2 == 0 else "op_sel:[0,1] op_sel_hi:[1,1]"
            a(f"v_pk_mul_f32 {vr(ACC+16*k+i,2)}, {vr(ACC+16*k+i,2)}, {vr(VG,2)} {sel}")
    stamp(a, 7)
    again = a.newlabel("oagain"); ok = a.newlabel("ook"); fin = a.newlabel("ofin")
    a(f"s_mov_b32 s{S_T+10}, 0x40000")
    a.label(again)
    a(f"buffer_load_dword v13, v11, {WSR}, s{S_F} offen offset:2044 sc1")
    a(f"s_sub_u32 s{S_T+10}, s{S_T+10}, 1")
    a(f"s_waitcnt vmcnt(0)\nv_cmp_eq_u32 vcc, -1, v13\ns_cbranch_vccz {ok}")
    a(f"s_mov_b64 exec, vcc\n{'s_sleep 1' if OPT['wsl'] else 's_nop 0'}\ns_cmp_gt_i32 s{S_T+10}, 0\ns_cbranch_scc1 {again}")
    a.label(ok)
    a("s_mov_b64 exec, -1")
    q.clear()
    stamp(a, 8)
    for j in range(8):
        for m in range(2):
            sreg = (S_F, S_E, S_D, S_C)[m + 2 * (j // 4)]
            a(f"buffer_load_dwordx4 {vr(HF+8*j+4*m,4)}, v{VLIN}, {WSR}, s{sreg} offen offset:{(j%4)*1024} sc1")
    a("v_mov_b32 v12, 0")
    for j in range(8):
        a(f"s_waitcnt vmcnt({14 - 2*j}) lgkmcnt(0)")
        chk = [f"v_max3_u32 v12, v12, v{HF+8*j+2*i}, v{HF+8*j+2*i+1}" for i in range(4)]
        rl = rd(FW[(R_ + j + 1) & 1], oslot(j + 1), True) if j < 7 else []
        mm(1, FW[(R_ + j) & 1], HF + 8 * j, [x for p in zip(rl or chk, chk) for x in p] if rl else chk, dst=WX, src=ACC if j == 0 else WX)
    a(f"v_cmp_eq_u32 vcc, -1, v12\ns_cbranch_vccz {fin}")
    a(f"s_cmp_le_i32 s{S_T+10}, 0\ns_cbranch_scc1 {fin}")
    for l in rd(FW[R_ & 1], oslot(0), True): a(l)
    a(f"s_branch {again}")
    a.label(fin)
    stamp(a, 9)
    RB = 128
    for w in range(4):
        lab = a.newlabel("red")
        if w < 3: a(f"s_cmp_lg_u32 s{W}, {w}\ns_cbranch_scc1 {lab}")
        a("s_nop 7")
        others = [d for d in range(4) if d != w]
        for d in others:
            for i in range(4): a(f"ds_write_b128 v{T0}, {vr(WX+16*d+4*i,4)} offset:{d*4096 + i*1024}")
        if OPT["fbar"]: a("s_waitcnt lgkmcnt(0)\ns_barrier")
        else: lsync(a, 5, 4, 11, 12)
        for k, d in enumerate(others):
            for i in range(4): a(f"ds_read_b128 {vr(RB+16*k+4*i,4)}, v{T1} offset:{d*20480 + i*1024}")
        own = WX + 16 * w
        for k in range(3):
            a(f"s_waitcnt lgkmcnt({8 - 4*k})")
            for i in range(0, 16, 2): a(f"v_pk_add_f32 {vr(own+i,2)}, {vr(own+i,2)}, {vr(RB+16*k+i,2)}")
        for i in range(8): a(f"v_cvt_pk_bf16_f32 v{32+i}, v{own+2*i}, v{own+2*i+1}")
        if w < 3:
            a("s_branch L_out"); a.label(lab)
    a.label("L_out")
    a("s_nop 1")
    a("v_permlane32_swap_b32 v32, v34\nv_permlane32_swap_b32 v33, v35\nv_permlane32_swap_b32 v36, v38\nv_permlane32_swap_b32 v37, v39")
    a(f"buffer_store_dwordx4 v[32:35], v{T2}, {rs(R_OUT)}, s{S_K0} offen{['', ' sc1', ' nt', ' sc0 sc1', ' sc0'][OPT['outsc']]}")
    a(f"buffer_store_dwordx4 v[36:39], v{T2}, {rs(R_OUT)}, s{S_K0} offen offset:32{['', ' sc1', ' nt', ' sc0 sc1', ' sc0'][OPT['outsc']]}")

KD = """.section .rodata,"a"
.p2align 6
.amdhsa_kernel {k}
  .amdhsa_next_free_vgpr 256
  .amdhsa_next_free_sgpr 102
  .amdhsa_accum_offset 256
  .amdhsa_group_segment_fixed_size 0
  .amdhsa_kernarg_size 104
  .amdhsa_user_sgpr_count 2
  .amdhsa_user_sgpr_kernarg_segment_ptr 1
  .amdhsa_system_sgpr_workgroup_id_x 1
.end_amdhsa_kernel
"""

def gen():
    a = Asm()
    ref = open(f"cdna_kernels/{NAME}.s.ref").read().split("\n")
    H = [l for l in ref if l.startswith(";") and "@launch" not in l]
    H += ["; @launch grid=(256,1,1) block=(512,1,1) lds=163840"]
    H += ["; " + l for l in """
One workgroup per CU, 8 waves: waves 0..3 ('A') and waves 4..7 ('F') share each SIMD.
 stage 1  block (128 tokens, slot s): A waves stream x / weights into LDS (LDS-DMA) and project Q for heads 2s, 2s+1;
          F waves compute gate/up for 128 columns + GELU (slots 0..13) or K*scale, V and the gate (slots 14, 15).
 A then   keeps all of K/V in registers (keys split over the 4 waves), S = K Q^T, exp2, and P V with a sparse MFMA that
          reads the upper halves of the fp32 probabilities directly; row sums come from a row of ones in V.
          No shift is subtracted while max|q| max|k| <= 60 (checked at run time, Cauchy-Schwarz); otherwise a second
          code path subtracts the true row maximum (two passes).
 F then   computes out[64x64] = (1-g) (H Wd) + (g O) Wo with K split over its 4 waves.
Hand-offs between workgroups (K, V, g, H, O) are write-through stores + tagged flags / markers in d_ws; the tag is
derived from an epoch word that each launch advances once every wave has read it.
""".strip("\n").split("\n")]
    k = NAME + "_kernel"
    a.raw(f'.amdgcn_target "amdgcn-amd-amdhsa--gfx950"\n.text\n.globl {k}\n.p2align 8\n.type {k},@function\n{k}:')
    a("s_cmp_ge_u32 s2, 256\ns_cbranch_scc1 L_exit")
    stamp(a, 0); stamp_init(a)
    if OPT.get("dbg"): a("s_memrealtime s[4:5]")
    a("s_load_dwordx16 s[16:31], s[0:1], 0\ns_load_dwordx8 s[32:39], s[0:1], 64\ns_load_dwordx2 s[40:41], s[0:1], 96")
    a(f"v_lshrrev_b32 v1, 6, v0\nv_and_b32 v0, 63, v0\nv_readfirstlane_b32 s3, v1\ns_mov_b32 s{S_ID}, s2")
    decode(a)
    a(f"s_and_b32 s{W}, s3, 3\ns_lshl_b32 s{S_M0B}, s{W}, 10")
    a("s_cmp_ge_u32 s3, 4\ns_cbranch_scc1 L_roleF")
    a(f"s_setprio {OPT['prioL']}")
    roleA(a)
    a.raw(".p2align 6"); a.label("L_roleF"); a.roleF = 1
    a(f"s_setprio {OPT['prioF']}")
    if OPT["cpf"]:
        a("s_getpc_b64 s[70:71]")
        a.label("L_pc")
        a(f"s_sub_u32 s70, s70, L_pc - {k}\ns_subb_u32 s71, s71, 0")
        a(f"s_lshr_b32 s72, s{S_ID}, 3\ns_lshl_b32 s72, s72, 2\ns_add_u32 s72, s72, s{W}\ns_lshl_b32 s72, s72, 10")
        a(f"s_cmp_ge_u32 s72, L_exit - {k} - 1024\ns_cbranch_scc1 L_nocpf")
        a("s_add_u32 s70, s70, s72\ns_addc_u32 s71, s71, 0")
        a("v_lshlrev_b32 v30, 4, v0\nv_mov_b32 v31, s71\nv_add_co_u32 v30, vcc, s70, v30\ns_nop 1\nv_addc_co_u32 v31, vcc, 0, v31, vcc")
        a("global_load_dwordx4 v[112:115], v[30:31], off")
        a.label("L_nocpf")
    ffn1(a)
    ffn2(a); stamp_dump(a)
    if OPT.get("dbg"):
        a(f"s_cmp_ge_u32 s2, 8\ns_cbranch_scc1 L_exit\ns_cmp_lg_u32 s{W}, 0\ns_cbranch_scc1 L_exit")
        if "only" in OPT: a(f"s_cmp_lg_u32 s2, {OPT['only']}\ns_cbranch_scc1 L_exit")
        a("s_waitcnt vmcnt(0)")
        a.label("L_dbgspin")
        a("s_memrealtime s[6:7]\ns_waitcnt lgkmcnt(0)")
        if OPT.get("spin"): a(f"s_sub_u32 s10, s6, {'s8' if OPT.get('dbgat') else 's4'}\ns_cmp_lt_u32 s10, {OPT['spin']}\ns_cbranch_scc1 L_dbgspin")
        srd(a, R_W0, S_DBG, 256)
        a(f"s_lshl_b32 s8, s2, 2\nv_mov_b32 v1, s8\nv_mov_b32 v2, s4\nv_mov_b32 v3, s6\ns_mov_b64 exec, 1")
        a(f"buffer_store_dword v2, v1, {rs(R_W0)}, 0 offen\nbuffer_store_dword v3, v1, {rs(R_W0)}, 0 offen offset:32")
    a.label("L_exit")
    a("s_endpgm")
    return "\n".join(H) + "\n" + a.text() + KD.format(k=k)

if __name__ == "__main__":
    if "--diag" in sys.argv: DIAG = True
    for x in sys.argv[2:]:
        if "=" in x:
            k, v = x.split("="); OPT[k] = int(v)
    open(sys.argv[1], "w").write(gen())
```
